```python
import torch

def _softmax(x, axis=-1):
    return torch.softmax(x, dim=axis)
def _gelu(x):
    return torch.nn.functional.gelu(x, approximate="tanh")
def _silu(x):
    return torch.nn.functional.silu(x)
def _sigmoid(x):
    return torch.sigmoid(x)
def _layernorm(x, axis=-1, eps=1e-5):
    m = x.mean(dim=axis, keepdim=True)
    v = x.var(dim=axis, keepdim=True, unbiased=False)
    return (x - m) / torch.sqrt(v + eps)
def _scatter_add(tgt, idx, src, axis=0):
    return tgt.clone().index_add_(axis, idx, src)
def _segment_sum(src, seg, n):
    out = torch.zeros((n,) + src.shape[1:], dtype=src.dtype)
    return out.index_add_(0, seg, src)
def _pad(x, pw):
    flat = tuple(v for pair in reversed(pw) for v in pair)
    return torch.nn.functional.pad(x, flat)

kernel_name = 'parallel_sum__mha_block_cached__glu_gated_geglu__decode'

def setup_inputs():

    _w = (lambda a: (lambda t: t.to(torch.bfloat16) if t.is_floating_point() else t)(torch.as_tensor(a)))
    def _A_setup():
        B, Sq, D = 1, 1, 1024
        H, Sk, Dh = 32, 65536, 128
        return {
            "x": _w((lambda *s: torch.randn(*s, dtype=torch.bfloat16) * 0.05)(B, Sq, D)),
            "k_cache": _w((lambda *s: torch.randn(*s, dtype=torch.bfloat16) * 3.2)(B, H, Sk, Dh)),
            "v_cache": _w((lambda *s: torch.randn(*s, dtype=torch.bfloat16) * 1.6)(B, H, Sk, Dh)),
            "wq": _w((lambda *s: torch.randn(*s, dtype=torch.bfloat16) * 3.2)(D, H * Dh) * (D ** -0.5)),
            "wo": _w((lambda *s: torch.randn(*s, dtype=torch.bfloat16) * 1.6)(H * Dh, D) * ((H * Dh) ** -0.5)),
        }
    _A_in = _A_setup()

    def _B_setup():
        B, S, Dm, Df = 1, 1, 1024, 3584
        return {
            "x": _w((lambda *s: torch.randn(*s, dtype=torch.bfloat16) * 0.05)(B, S, Dm)),
            "w_gate": _w((lambda *s: torch.randn(*s, dtype=torch.bfloat16) * 1.6)(Dm, Df) * (Dm ** -0.5)),
            "w_up": _w((lambda *s: torch.randn(*s, dtype=torch.bfloat16) * 1.6)(Dm, Df) * (Dm ** -0.5)),
            "w_down": _w((lambda *s: torch.randn(*s, dtype=torch.bfloat16) * 1.6)(Df, Dm) * (Df ** -0.5)),
        }
    _B_in = _B_setup()

    return {
        "A_x": _A_in["x"],
        "A_k_cache": _A_in["k_cache"],
        "A_v_cache": _A_in["v_cache"],
        "A_wq": _A_in["wq"],
        "A_wo": _A_in["wo"],
        "B_x": _B_in["x"],
        "B_w_gate": _B_in["w_gate"],
        "B_w_up": _B_in["w_up"],
        "B_w_down": _B_in["w_down"],
    }

def reference(A_x, A_k_cache, A_v_cache, A_wq, A_wo, B_x, B_w_gate, B_w_up, B_w_down):
    def _A_ref(x, k_cache, v_cache, wq, wo):
        B, Sq, D = x.shape
        H, Dh = 32, 128
        q = (lambda x, *d: x.permute(*d))((x @ wq).reshape(B, Sq, H, Dh), 0, 2, 1, 3)
        scores = torch.einsum("bhqd,bhkd->bhqk", q, k_cache) * (Dh ** -0.5)
        p = _softmax(scores, axis=-1)
        o = torch.einsum("bhqk,bhkd->bhqd", p, v_cache)
        return (lambda x, *d: x.permute(*d))(o, 0, 2, 1, 3).reshape(B, Sq, H * Dh) @ wo

    def _B_ref(x, w_gate, w_up, w_down):
        g = torch.einsum("bsd,df->bsf", x, w_gate)
        u = torch.einsum("bsd,df->bsf", x, w_up)
        h = _gelu(g) * u
        return torch.einsum("bsf,fd->bsd", h, w_down)

    x = A_x
    xn = _layernorm(x, axis=-1)
    return x + _A_ref(xn, A_k_cache, A_v_cache, A_wq, A_wo) + _B_ref(xn, B_w_gate, B_w_up, B_w_down)
```

```python
import re

TRANS = ("v_exp_f32", "v_log_f32", "v_rcp_f32", "v_rsq_f32", "v_sqrt_f32", "v_sin_f32", "v_cos_f32")

def regs_of(op):
    op = op.strip()
    op = op.lstrip("-")
    if op.startswith("|"): op = op.strip("|")
    m = re.fullmatch(r"abs\((.*)\)", op)
    if m: op = m.group(1)
    m = re.fullmatch(r"([vsa])(\d+)", op)
    if m: return [(m.group(1), int(m.group(2)))]
    m = re.fullmatch(r"([vsa])\[(\d+):(\d+)\]", op)
    if m: return [(m.group(1), i) for i in range(int(m.group(2)), int(m.group(3)) + 1)]
    if op == "vcc": return [("s", "vcc")]
    if op in ("exec",): return [("s", "exec")]
    if op == "m0": return [("s", "m0")]
    return []

def split_ops(s):
    out = []; depth = 0; cur = ""
    for ch in s:
        if ch in "[(": depth += 1
        if ch in "])": depth -= 1
        if ch == "," and depth == 0:
            out.append(cur); cur = ""
        else:
            cur += ch
    if cur.strip(): out.append(cur)
    return [x.strip() for x in out]

class Ins:
    def __init__(self, text):
        self.text = text
        t = text.split(";")[0].strip()
        parts = t.split(None, 1)
        self.mn = parts[0]
        rest = parts[1] if len(parts) > 1 else ""
        ops = split_ops(rest)
        mods = ""
        if ops:
            sp = ops[-1].split(None, 1)
            ops[-1] = sp[0]
            mods = sp[1] if len(sp) > 1 else ""
        self.ops = ops; self.mods = mods
        mn = self.mn
        self.dst = []; self.src = []
        self.kind = "other"
        self.dpp = "_dpp" in mn
        base = mn.replace("_dpp", "").replace("_e32", "").replace("_e64", "")
        self.base = base
        R = [regs_of(o) for o in ops]
        if mn.startswith("v_mfma"):
            self.kind = "mfma"; self.dst = R[0]; self.srcA = R[1]; self.srcB = R[2]; self.srcC = R[3]; self.src = R[1] + R[2] + R[3]
        elif mn.startswith("v_"):
            self.kind = "valu"
            if base.startswith("v_permlane") and "swap" in base:
                self.dst = R[0] + R[1]; self.src = R[0] + R[1]
            elif base in ("v_add_co_u32", "v_sub_co_u32", "v_addc_co_u32", "v_mad_u64_u32"):
                self.dst = R[0] + R[1]; self.src = sum(R[2:], [])
            else:
                self.dst = R[0]; self.src = sum(R[1:], [])
                if base in ("v_fmac_f32", "v_dot2c_f32_bf16") or self.dpp or base == "v_writelane_b32":
                    self.src = self.src + R[0]
                if base == "v_cndmask_b32" and len(ops) == 3:
                    self.src.append(("s", "vcc"))
        elif mn.startswith("buffer_load") or mn.startswith("global_load"):
            self.kind = "vmem"; self.dst = R[0]; self.src = sum(R[1:], [])
        elif mn.startswith("buffer_store") or mn.startswith("global_store") or "atomic" in mn and not mn.startswith("s_"):
            self.kind = "vmem"; self.src = sum(R, [])
            self.store = True
            if mn.startswith("buffer_store"): self.data = R[0]
            else: self.data = R[1]
        elif mn.startswith("buffer_wbl2") or mn.startswith("buffer_inv"):
            self.kind = "other"
        elif mn.startswith("ds_read") or mn.startswith("ds_bpermute") or mn.startswith("ds_swizzle"):
            self.kind = "ds"; self.dst = R[0]; self.src = sum(R[1:], [])
        elif mn.startswith("ds_"):
            self.kind = "ds"; self.src = sum(R, [])
        elif mn.startswith("s_"):
            self.kind = "salu"
            if mn.startswith("s_cmp") or mn.startswith("s_cbranch") or mn in ("s_waitcnt", "s_nop", "s_barrier", "s_sleep", "s_branch", "s_endpgm", "s_setprio"):
                self.src = sum(R, [])
            else:
                self.dst = R[0] if R else []; self.src = sum(R[1:], [])
        self.ws = 1
        if mn == "s_nop": self.ws = int(ops[0]) + 1

def need(prod, cons):
    n = 0
    pd = set(prod.dst); cs = set(cons.src); cd = set(cons.dst)
    vpd = {r for r in pd if r[0] in "va"}; spd = {r for r in pd if r[0] == "s"}
    if prod.kind == "valu":
        isdot = prod.base.startswith("v_dot2")
        if vpd & cs or (isdot and vpd & cd):
            if cons.kind == "valu":
                if cons.dpp: n = max(n, 2)
                if cons.base.startswith("v_permlane"): n = max(n, 2)
                if cons.base in ("v_readlane_b32", "v_readfirstlane_b32"): n = max(n, 1)
                if prod.base in TRANS and cons.base not in TRANS: n = max(n, 1)
                if prod.base in TRANS and cons.base in TRANS: n = max(n, 1)
            if cons.kind == "mfma": n = max(n, 2)
            if isdot:
                if cons.base == prod.base and cons.kind == "valu":
                    ab = set(regs_of(cons.ops[1]) + regs_of(cons.ops[2]))
                    if vpd & ab: n = max(n, 3)
                else:
                    n = max(n, 3)
            if prod.base in TRANS and cons.kind in ("vmem", "ds"): n = max(n, 1)
        if spd & cs:
            if cons.kind == "valu":
                n = max(n, 4 if cons.base in ("v_readlane_b32", "v_writelane_b32") else 2)
            if cons.kind == "vmem": n = max(n, 5)
            if cons.kind == "salu": n = max(n, 4)
        if ("s", "exec") in pd and cons.kind in ("valu", "mfma"): n = max(n, 5)
    if prod.kind == "mfma":
        passes = 8 if "32x32" in prod.base else 4
        rw = {4: 8, 8: 12}[passes]
        if cons.kind == "mfma":
            if pd & set(cons.srcA + cons.srcB): n = max(n, rw)
            if pd & set(cons.srcC) and cons.srcC != prod.dst: n = max(n, {4: 6, 8: 10}[passes])
            if pd & cd and cons.srcC != prod.dst: n = max(n, rw)
        elif cons.kind in ("valu", "vmem", "ds"):
            if pd & (cs | cd): n = max(n, rw)
            if cons.kind == "valu" and set(prod.srcC) & cd: n = max(n, {4: 3, 8: 7}[passes])
    if prod.kind == "vmem" and getattr(prod, "store", False) and ("x4" in prod.mn or "x3" in prod.mn):
        if set(prod.data) & cd: n = max(n, 2)
    if prod.kind == "salu" and ("s", "m0") in pd and cons.kind == "vmem" and "lds" in cons.mods: n = max(n, 1)
    return n

class Asm:
    def __init__(self):
        self.lines = []
        self.hist = []
        self.nops = 0
    def raw(self, s):
        self.lines.append(s)
    def label(self, name, flush=True):
        self.lines.append(name + ":")
    def fence(self, n=None):
        req = 0; dist = 0
        for p in reversed(self.hist[-20:]):
            w = 0
            if p.kind == "mfma": w = 8 if "16x16" in p.base else 12
            elif p.kind == "valu": w = 5 if any(r[0] == "s" for r in p.dst) else 3
            elif p.kind == "vmem" and getattr(p, "store", False): w = 2
            req = max(req, w - dist)
            dist += p.ws
        if req > 0: self("s_nop %d" % (req - 1))
    def __call__(self, text):
        for t in text.split("\n"):
            t = t.strip()
            if not t: continue
            if t.startswith(";"):
                self.lines.append("    " + t); continue
            if t.endswith(":"):
                self.label(t[:-1]); continue
            ins = Ins(t)
            req = 0; dist = 0
            for p in reversed(self.hist[-24:]):
                req = max(req, need(p, ins) - dist)
                dist += p.ws
                if dist > 24: break
            while req > 0:
                k = min(req, 16)
                nop = Ins("s_nop %d" % (k - 1))
                self.lines.append("    " + nop.text); self.hist.append(nop); self.nops += 1
                req -= k
            self.lines.append("    " + t); self.hist.append(ins)
    def text(self):
        return "\n".join(self.lines) + "\n"
```

```python
import sys
from asmlib import Asm

NAME = "parallel_sum__mha_block_cached__glu_gated_geglu__decode_kernel"
HDR = open("parallel_sum__mha_block_cached__glu_gated_geglu__decode.s.ref").read().split("; Override launch")[0]

H0Q, H0GU, H1, H2 = 0x1000, 0x50000, 0xD0000, 0x150000
WS_BYTES = 0x200000
SC = 0
RED_Q, RED_G, RED_U, RED_O, RED_A, RED_F = [32768 + 2048 * i for i in range(6)]
QL = 32768 + 12288
HL = QL + 256
MX = HL + 1024
LS = MX + 16
LDS_BYTES = LS + 16

LOG2E = 0x3fb8aa3b
SCALE = 0x3db504f3

def gen(diag=False, D=8, NB=8, pol_w="nt", pol_gu="nt", pol_kv="nt"):
    a = Asm()
    def stamp(i):
        if diag:
            a(f"s_memrealtime s[{84+2*i}:{85+2*i}]")
    def srd(n, lo, hi, size):
        a(f"s_mov_b32 s{n}, {lo}\ns_mov_b32 s{n+1}, {hi}\ns_mov_b32 s{n+2}, {size}\ns_mov_b32 s{n+3}, 0x20000")
    def wave_reduce(v, t, op):
        for r in (8, 4, 2, 1):
            a(f"{op}_dpp v{v}, v{v}, v{v} row_ror:{r} row_mask:0xf bank_mask:0xf")
        a(f"v_mov_b32 v{t}, v{v}\nv_permlane16_swap_b32 v{v}, v{t}\n{op} v{v}, v{v}, v{t}")
        a(f"v_mov_b32 v{t}, v{v}\nv_permlane32_swap_b32 v{v}, v{t}\n{op} v{v}, v{v}, v{t}")
    def rbf(v):
        a(f"v_cvt_pk_bf16_f32 v{v}, v{v}, v{v}\nv_and_b32 v{v}, 0xffff0000, v{v}")
    def buildA(buf, P, c):
        base = 24 + 4 * buf
        for t in range(4):
            a(f"v_and_b32_dpp v{base+t}, v{P}, v{120+t} row_newbcast:{c} row_mask:0xf bank_mask:0xf")
    def mfma(acc, buf, breg, first):
        base = 24 + 4 * buf
        a(f"v_mfma_f32_16x16x32_bf16 v[{acc}:{acc+3}], v[{base}:{base+3}], v[{breg}:{breg+3}], " + ("0" if first else f"v[{acc}:{acc+3}]"))
    def writeD(acc, off):
        a(f"s_mov_b64 exec, s[78:79]\nds_write_b128 v225, v[{acc}:{acc+3}] offset:{off}\ns_mov_b64 exec, -1")
    def poll(label, loads, tagregs, acc=250, t1=251, t2=252):
        a.fence()
        a(f"s_mov_b32 s77, 0x100000")
        a(f"{label}:")
        for l in loads: a(l)
        a("s_waitcnt vmcnt(0)")
        a(f"v_xor_b32 v{acc}, s30, v{tagregs[0]}")
        rest = tagregs[1:]
        while len(rest) >= 2:
            a(f"v_xor_b32 v{t1}, s30, v{rest[0]}\nv_xor_b32 v{t2}, s30, v{rest[1]}\nv_or3_b32 v{acc}, v{acc}, v{t1}, v{t2}")
            rest = rest[2:]
        if rest:
            a(f"v_xor_b32 v{t1}, s30, v{rest[0]}\nv_or_b32 v{acc}, v{acc}, v{t1}")
        a(f"v_cmp_ne_u32 vcc, 0, v{acc}")
        a(f"s_cmp_eq_u64 vcc, 0\ns_cbranch_scc1 {label}_ok")
        a(f"s_sub_u32 s77, s77, 1\ns_cmp_eq_u32 s77, 0\ns_cbranch_scc1 {label}_ok\ns_sleep 1\ns_branch {label}")
        a(f"{label}_ok:")

    a("s_cmp_ge_u32 s2, 256\ns_cbranch_scc1 L_exit")
    stamp(0)
    a("s_load_dwordx16 s[4:19], s[0:1], 0\ns_load_dwordx8 s[20:27], s[0:1], 64")
    a("v_lshrrev_b32 v5, 6, v0\nv_and_b32 v1, 63, v0\nv_readfirstlane_b32 s3, v5")
    a("v_lshrrev_b32 v2, 4, v1\nv_and_b32 v3, 15, v1")
    a("s_lshr_b32 s28, s2, 3\ns_and_b32 s29, s2, 7")
    a("s_mov_b32 s78, -1\ns_mov_b32 s79, 0")
    a("v_lshlrev_b32 v6, 4, v1")
    a("v_lshlrev_b32 v7, 4, v3")
    a("s_lshl_b32 s74, s29, 2\ns_add_u32 s74, s74, s3\ns_lshl_b32 s74, s74, 5")
    a("s_waitcnt lgkmcnt(0)")
    a("s_load_dword s30, s[26:27], 0")
    srd(52, "s4", "s5", 2048)
    srd(56, "s26", "s27", WS_BYTES)
    a("s_cmp_eq_u32 s3, 4\ns_cbranch_scc1 L_comm")

    a("buffer_load_dwordx4 v[96:99], v6, s[52:55], 0 offen\nbuffer_load_dwordx4 v[100:103], v6, s[52:55], 0 offen offset:1024")
    a("v_and_b32 v8, 7, v3\nv_lshl_add_u32 v8, v8, 2, v2\nv_lshlrev_b32 v8, 1, v8\ns_lshl_b32 s75, s74, 1")
    a("buffer_load_ushort v9, v8, s[52:55], s75 offen")
    srd(40, "s10", "s11", 1024 * 8192)
    a("v_lshl_add_u32 v10, v2, 13, v7")
    a("s_lshl_b32 s75, s74, 13\ns_lshl_b32 s76, s28, 8\ns_add_u32 s75, s75, s76")
    for i in range(8):
        a(f"buffer_load_dwordx4 v[{128+4*i}:{131+4*i}], v10, s[40:43], s75 offen {pol_w}")
        if i < 7: a("s_add_u32 s75, s75, 32768")
    srd(44, "s16", "s17", 1024 * 7168)
    srd(48, "s18", "s19", 1024 * 7168)
    a("v_mul_u32_u24 v11, 7168, v2\nv_add_u32 v11, v11, v7")
    a("v_cmp_gt_u32 vcc, 14, v3\nv_mov_b32 v12, 0x80000000\nv_cndmask_b32 v11, v12, v11, vcc")
    a("s_mul_i32 s76, s74, 7168\ns_mul_i32 s31, s28, 224\ns_add_u32 s76, s76, s31\ns_mov_b32 s75, s76")
    for i in range(8):
        a(f"buffer_load_dwordx4 v[{160+4*i}:{163+4*i}], v11, s[44:47], s75 offen {pol_gu}")
        if i < 7: a(f"s_add_u32 s75, s75, {4*7168}")
    a("s_lshl_b32 s31, s2, 21\ns_add_u32 s32, s6, s31\ns_addc_u32 s33, s7, 0\ns_mov_b32 s34, 0x200000\ns_mov_b32 s35, 0x20000")
    a("s_add_u32 s36, s8, s31\ns_addc_u32 s37, s9, 0\ns_mov_b32 s38, 0x200000\ns_mov_b32 s39, 0x20000")
    a("s_lshl_b32 s31, s3, 10\nv_add_u32 v4, s31, v6")
    a("s_mov_b32 s72, 0")
    a("v_and_b32 v12, 1, v3\nv_lshrrev_b32 v13, 1, v3\nv_cmp_eq_u32 vcc, 1, v12\nv_mov_b32 v14, 0xffff\nv_mov_b32 v15, 0xffff0000\nv_cndmask_b32 v14, v14, v15, vcc")
    for t in range(4):
        a(f"v_cmp_eq_u32 vcc, {t}, v13\nv_cndmask_b32 v{120+t}, 0, v14, vcc")
    a("v_cmp_eq_u32 s[82:83], 1, v12\nv_and_b32 v13, 1, v13\nv_cmp_eq_u32 s[80:81], 1, v13")
    a("s_lshl_b32 s31, s3, 9\nv_lshlrev_b32 v225, 5, v3\nv_lshl_add_u32 v225, v2, 4, v225\nv_add_u32 v225, s31, v225")
    a("s_lshl_b32 s31, s3, 13\nv_lshlrev_b32 v224, 2, v1\nv_add_u32 v224, s31, v224")
    a("s_waitcnt vmcnt(16)")
    for k in range(8):
        a(f"v_lshlrev_b32 v{104+2*k}, 16, v{96+k}\nv_and_b32 v{105+2*k}, 0xffff0000, v{96+k}")
    a("v_add_f32 v12, v104, v105\nv_add_f32 v13, v106, v107\nv_add_f32 v14, v108, v109\nv_add_f32 v15, v110, v111")
    a("v_add_f32 v16, v112, v113\nv_add_f32 v17, v114, v115\nv_add_f32 v18, v116, v117\nv_add_f32 v19, v118, v119")
    a("v_add_f32 v12, v12, v13\nv_add_f32 v14, v14, v15\nv_add_f32 v16, v16, v17\nv_add_f32 v18, v18, v19")
    a("v_add_f32 v12, v12, v14\nv_add_f32 v16, v16, v18\nv_add_f32 v12, v12, v16")
    wave_reduce(12, 13, "v_add_f32")
    a("v_mul_f32 v12, 0x3a800000, v12")
    for k in range(16):
        a(f"v_sub_f32 v{104+k}, v{104+k}, v12")
    a("v_mul_f32 v14, v104, v104\nv_mul_f32 v15, v105, v105\nv_mul_f32 v16, v106, v106\nv_mul_f32 v17, v107, v107")
    for k in range(4, 16):
        a(f"v_fmac_f32 v{14+k%4}, v{104+k}, v{104+k}")
    a("v_add_f32 v14, v14, v15\nv_add_f32 v16, v16, v17\nv_add_f32 v14, v14, v16")
    wave_reduce(14, 13, "v_add_f32")
    a("v_mul_f32 v14, 0x3a800000, v14")
    rbf(14); rbf(12)
    a("v_add_f32 v14, 0x3727c5ac, v14")
    rbf(14)
    a("v_sqrt_f32 v14, v14")
    rbf(14)
    a("v_rcp_f32 v14, v14\nv_lshlrev_b32 v9, 16, v9\nv_sub_f32 v9, v9, v12")
    rbf(9)
    a("v_mul_f32 v9, v9, v14\nv_cvt_pk_bf16_f32 v124, v9, v9")
    a("s_mov_b32 s75, s76")
    for i in range(8):
        a(f"buffer_load_dwordx4 v[{192+4*i}:{195+4*i}], v11, s[48:51], s75 offen {pol_gu}")
        if i < 7: a(f"s_add_u32 s75, s75, {4*7168}")
    def stage1(acc, wbase):
        buildA(0, 124, 0)
        for i in range(8):
            if i < 7: buildA((i + 1) & 1, 124, i + 1)
            mfma(acc, i & 1, wbase + 4 * i, i == 0)
    a("s_waitcnt vmcnt(16)")
    stage1(12, 128)
    writeD(12, RED_Q)
    a("s_waitcnt lgkmcnt(0)\ns_barrier")
    stamp(1)
    def kslot(n):
        return 32 + 4 * n if n < D else 64 + 4 * (n - D)
    def issueK(reg, s="s[32:35]"):
        a(f"buffer_load_dwordx4 v[{reg}:{reg+3}], v4, {s}, s72 offen {pol_kv}\ns_add_u32 s72, s72, 4096")
    assert D == 8 and NB in (8,)
    for n in range(D + NB):
        a(f"s_waitcnt vmcnt({D-1})")
        issueK(kslot(n))
        if n == 0:
            stage1(16, 160)
        if n == 7:
            stage1(20, 192)
            writeD(16, RED_G)
            writeD(20, RED_U)
    a("v_mov_b32 v126, 0xff800000\nv_mov_b32 v127, 0\ns_mov_b32 s76, %d" % SCALE)
    a("s_waitcnt lgkmcnt(0)\ns_barrier")
    stamp(2)
    a(f"ds_read_b128 v[8:11], v7 offset:{QL}\ns_waitcnt lgkmcnt(0)")

    def kgroup(regs, issues):
        for k in range(16):
            if issues[k] is not None: a(f"s_waitcnt vmcnt({D-1})")
            r = regs[k]; acc = 12 + k % 4
            a(f"v_dot2_f32_bf16 v{acc}, v{r}, v8, 0\nv_dot2_f32_bf16 v{acc}, v{r+1}, v9, v{acc}\nv_dot2_f32_bf16 v{acc}, v{r+2}, v10, v{acc}\nv_dot2_f32_bf16 v{acc}, v{r+3}, v11, v{acc}")
            if issues[k] is not None:
                if issues[k][2]: a("s_mov_b32 s72, 0")
                issueK(issues[k][0], issues[k][1])
            if k % 4 == 3:
                C = 20 + k // 4
                a("v_add_f32_dpp v16, v12, v12 row_ror:8 row_mask:0xf bank_mask:0x3")
                a("v_add_f32_dpp v17, v14, v14 row_ror:8 row_mask:0xf bank_mask:0x3")
                a("v_add_f32_dpp v16, v13, v13 row_ror:8 row_mask:0xf bank_mask:0xc")
                a("v_add_f32_dpp v17, v15, v15 row_ror:8 row_mask:0xf bank_mask:0xc")
                a(f"v_add_f32_dpp v{C}, v16, v16 row_shl:4 row_mask:0xf bank_mask:0x5")
                a(f"v_add_f32_dpp v{C}, v17, v17 row_shr:4 row_mask:0xf bank_mask:0xa")
        for C in range(20, 24):
            a(f"v_add_f32_dpp v{C}, v{C}, v{C} quad_perm:[2,3,0,1] row_mask:0xf bank_mask:0xf")
        a("v_cndmask_b32 v20, v20, v21, s[80:81]\nv_cndmask_b32 v22, v22, v23, s[80:81]")
        a("v_add_f32_dpp v20, v20, v20 quad_perm:[1,0,3,2] row_mask:0xf bank_mask:0xf")
        a("v_add_f32_dpp v22, v22, v22 quad_perm:[1,0,3,2] row_mask:0xf bank_mask:0xf")
        a("v_cndmask_b32 v18, v20, v22, s[82:83]")
        rbf(18)
        a("v_mul_f32 v18, s76, v18")
        rbf(18)
        a("v_max_f32 v126, v126, v18\nds_write_b32 v224, v18\nv_add_u32 v224, 256, v224")
    ring = [32 + 4 * (k % 8) for k in range(16)]
    KS, VS = "s[32:35]", "s[36:39]"
    kgroup([kslot(n) for n in range(16)], [(32 + 4 * k, KS, False) for k in range(8)] + [None] * 8)
    a("s_mov_b32 s73, 30")
    a.fence()
    a("L_kloop:")
    kgroup(ring, [(ring[k], KS, False) for k in range(16)])
    a.fence()
    a("s_sub_u32 s73, s73, 1\ns_cmp_lg_u32 s73, 0\ns_cbranch_scc1 L_kloop")
    kgroup(ring, [(ring[k], KS, False) for k in range(8)] + [(ring[k], VS, k == 8) for k in range(8, 16)])
    wave_reduce(126, 13, "v_max_f32")
    a(f"s_lshl_b32 s31, s3, 2\nv_mov_b32 v13, s31\nds_write_b32 v13, v126 offset:{MX}")
    a("v_subrev_u32 v224, 8192, v224")
    a("s_waitcnt lgkmcnt(0)\ns_barrier")
    stamp(3)
    a(f"v_mov_b32 v13, 0\nds_read_b128 v[16:19], v13 offset:{MX}\nds_read_b32 v125, v224")
    a(f"s_mul_i32 s31, s3, 112\nv_lshl_add_u32 v13, v3, 2, v2\nv_lshlrev_b32 v13, 2, v13\nv_add_u32 v13, s31, v13\nds_read_b32 v227, v13 offset:{HL}")
    a("s_mov_b32 s76, %d" % LOG2E)
    a("s_waitcnt lgkmcnt(0)")
    a("v_max_f32 v16, v16, v17\nv_max3_f32 v226, v16, v18, v19")
    def mkP():
        a("v_sub_f32 v125, v125, v226\nv_mul_f32 v125, s76, v125\nv_exp_f32 v125, v125\nv_add_f32 v127, v127, v125\nv_cvt_pk_bf16_f32 v125, v125, v125")
    mkP()
    a("v_mov_b32 v124, v125\nv_mov_b32 v12, 0\nv_mov_b32 v13, 0\nv_mov_b32 v14, 0\nv_mov_b32 v15, 0")
    lam = [4 * (((c >> 1) & 1) + 2 * (c & 1)) + [0, 2, 1, 3][c >> 2] for c in range(16)]
    inv = [lam.index(i) for i in range(16)]
    buildA(0, 124, inv[0])
    def vgroup(issues, last):
        for k in range(16):
            if k == 0 and not last:
                a("v_add_u32 v224, 256, v224\nds_read_b32 v125, v224")
            if k == 6 and not last:
                a("s_waitcnt lgkmcnt(0)"); mkP()
            if k < 15: buildA((k + 1) & 1, 124, inv[k + 1])
            elif not last:
                buildA(0, 125, inv[0]); a("v_mov_b32 v124, v125")
            a(f"s_waitcnt vmcnt({issues[k][0]})")
            mfma(12, k & 1, ring[k], False)
            for s in issues[k][1]: a(s)
            if last and k == 2:
                wave_reduce(127, 16, "v_add_f32")
                a(f"s_lshl_b32 s31, s3, 2\nv_mov_b32 v16, s31\nds_write_b32 v16, v127 offset:{LS}")
    def vis(k):
        return [f"buffer_load_dwordx4 v[{ring[k]}:{ring[k]+3}], v4, {VS}, s72 offen {pol_kv}", "s_add_u32 s72, s72, 4096"]
    a("s_mov_b32 s73, 31")
    a.fence()
    a("L_vloop:")
    vgroup([(D - 1, vis(k)) for k in range(16)], False)
    a.fence()
    a("s_sub_u32 s73, s73, 1\ns_cmp_lg_u32 s73, 0\ns_cbranch_scc1 L_vloop")
    srd(60, "s12", "s13", 4096 * 2048)
    srd(64, "s20", "s21", 3584 * 2048)
    a("v_lshl_add_u32 v10, v2, 14, v7\nv_lshl_add_u32 v11, v2, 11, v7")
    a("s_lshl_b32 s31, s28, 2\ns_add_u32 s31, s31, s3\ns_lshl_b32 s75, s31, 16\ns_mul_i32 s74, s31, %d" % (28 * 2048))
    a("s_lshl_b32 s31, s29, 8\ns_add_u32 s75, s75, s31\ns_add_u32 s74, s74, s31")
    wl = []
    for i in range(7):
        wl.append([f"buffer_load_dwordx4 v[{160+4*i}:{163+4*i}], v11, s[64:67], s74 offen {pol_w}", "s_add_u32 s74, s74, 8192"])
    for t in range(8):
        wl.append([f"buffer_load_dwordx4 v[{128+4*t}:{131+4*t}], v10, s[60:63], s75 offen {pol_w}", "s_add_u32 s75, s75, 2048"])
    iss = [(D - 1, vis(k)) for k in range(8)]
    nissued = 0
    for k in range(8, 16):
        n = (15 - k) + nissued
        take = wl[nissued:nissued + 2] if k < 15 else wl[nissued:]
        iss.append((n, sum(take, [])))
        nissued += len(take)
    vgroup(iss, True)
    writeD(12, RED_O)
    a("s_waitcnt lgkmcnt(0)\ns_barrier")
    stamp(4)
    a("v_and_b32 v16, 7, v3\nv_lshrrev_b32 v17, 3, v3\ns_lshl_b32 s31, s28, 14\ns_add_u32 s31, s31, %d" % H1)
    a("v_lshlrev_b32 v16, 11, v16\nv_add_u32 v16, s31, v16")
    a("v_lshlrev_b32 v17, 5, v17\nv_lshl_add_u32 v17, v2, 6, v17\ns_lshl_b32 s31, s3, 8\nv_add3_u32 v17, v17, s31, v16")
    a("s_waitcnt vmcnt(8)")
    buildA(0, 227, 0)
    for i in range(7):
        if i < 6: buildA((i + 1) & 1, 227, i + 1)
        mfma(20, i & 1, 160 + 4 * i, i == 0)
    writeD(20, RED_F)
    a("s_add_u32 s30, s30, 1")
    poll("L_p1", ["buffer_load_dwordx4 v[228:231], v17, s[56:59], 0 offen sc1",
                  "buffer_load_dwordx4 v[232:235], v17, s[56:59], 0 offen offset:16 sc1",
                  "buffer_load_dwordx4 v[236:239], v16, s[56:59], 0 offen offset:1024 sc1"], [229, 231, 233, 235, 237, 239])
    stamp(5)
    steps = ["quad_perm:[1,0,3,2]", "quad_perm:[2,3,0,1]", "row_half_mirror"]
    a("v_mov_b32 v240, v236")
    for s in steps: a(f"v_max_f32_dpp v240, v240, v240 {s} row_mask:0xf bank_mask:0xf")
    a("v_sub_f32 v236, v236, v240\nv_mul_f32 v236, s76, v236\nv_exp_f32 v236, v236")
    a("v_mul_f32 v238, v238, v236\nv_mul_f32 v228, v228, v236\nv_mul_f32 v230, v230, v236\nv_mul_f32 v232, v232, v236\nv_mul_f32 v234, v234, v236")
    for s in steps:
        for v in (238, 228, 230, 232, 234): a(f"v_add_f32_dpp v{v}, v{v}, v{v} {s} row_mask:0xf bank_mask:0xf")
    a("v_rcp_f32 v238, v238")
    for v in (228, 230, 232, 234): a(f"v_mul_f32 v{v}, v{v}, v238")
    for v in (228, 230, 232, 234): a(f"v_cvt_pk_bf16_f32 v{v}, v{v}, v{v}")
    seq = [(b, i) for b in range(2) for i in range(4)]
    buildA(0, 228, 0)
    for t, (b, i) in enumerate(seq):
        if t < 7:
            b2, i2 = seq[t + 1]; buildA((t + 1) & 1, 228 + 2 * i2, 8 * b2)
        mfma(16, t & 1, 128 + 4 * t, t == 0)
    writeD(16, RED_A)
    a("s_waitcnt lgkmcnt(0)\ns_barrier")
    stamp(6)
    if diag:
        stamp(7)
        a("s_cmp_lg_u32 s3, 0\ns_cbranch_scc1 L_exit\ns_mov_b32 s31, 0\ns_branch L_stamps")
    else:
        a("s_endpgm")

    a("L_comm:")
    a("s_lshl_b32 s31, s29, 8\ns_lshl_b32 s75, s28, 3\ns_add_u32 s75, s75, s31\nv_mov_b32 v8, 0")
    a("buffer_load_dwordx2 v[10:11], v8, s[52:55], s75 offen")
    srd(68, "s22", "s23", 2048)
    a("v_lshlrev_b32 v9, 3, v1")
    a("s_lshl_b32 s31, s2, 10\ns_add_u32 s40, s31, %d" % H0Q)
    a("s_lshl_b32 s31, s28, 13\ns_add_u32 s41, s31, %d\ns_add_u32 s42, s41, 4096" % H0Q)
    a("s_waitcnt lgkmcnt(0)\ns_add_u32 s30, s30, 1")
    def red4(dst, off, tmp):
        for w in range(4): a(f"ds_read_b64 v[{tmp+2*w}:{tmp+2*w+1}], v9 offset:{off+512*w}")
    def sum4(dst, tmp):
        a(f"v_add_f32 v{dst}, v{tmp}, v{tmp+2}\nv_add_f32 v{dst+2}, v{tmp+1}, v{tmp+3}\nv_add_f32 v{tmp+4}, v{tmp+4}, v{tmp+6}\nv_add_f32 v{tmp+5}, v{tmp+5}, v{tmp+7}")
        a(f"v_add_f32 v{dst}, v{dst}, v{tmp+4}\nv_add_f32 v{dst+2}, v{dst+2}, v{tmp+5}")
    a("v_mov_b32 v13, s30\nv_mov_b32 v15, s30\nv_mov_b32 v17, s30\nv_mov_b32 v19, s30")
    a("s_barrier")
    stamp(1)
    red4(12, RED_Q, 20); a("s_waitcnt lgkmcnt(0)"); sum4(12, 20)
    a("buffer_store_dwordx4 v[12:15], v6, s[56:59], s40 offen sc1")
    poll("L_p0", [f"buffer_load_dwordx4 v[{128+4*jj}:{131+4*jj}], v6, s[56:59], s{41+jj//4} offen offset:{1024*(jj%4)} sc1" for jj in range(8)],
         [129 + 2 * i for i in range(16)])
    stamp(2)
    def sum8(base, stride):
        for o in (0, 2):
            for (x, y) in ((0, 1), (2, 3), (4, 5), (6, 7), (0, 2), (4, 6), (0, 4)):
                a(f"v_add_f32 v{base+x*stride+o}, v{base+x*stride+o}, v{base+y*stride+o}")
    sum8(128, 4)
    a(f"v_cvt_pk_bf16_f32 v128, v128, v130\nv_lshlrev_b32 v20, 2, v1\nds_write_b32 v20, v128 offset:{QL}")
    a("s_waitcnt lgkmcnt(0)\ns_barrier")
    red4(12, RED_G, 20); red4(16, RED_U, 28); a("s_waitcnt lgkmcnt(0)"); sum4(12, 20); sum4(16, 28)
    a("s_lshl_b32 s43, s2, 11\ns_add_u32 s40, s43, %d" % H0GU)
    a("buffer_store_dwordx4 v[12:15], v6, s[56:59], s40 offen sc1\nbuffer_store_dwordx4 v[16:19], v6, s[56:59], s40 offen offset:1024 sc1")
    a("s_lshl_b32 s31, s28, 14\ns_add_u32 s44, s31, %d\ns_add_u32 s45, s44, 4096\ns_add_u32 s46, s44, 8192\ns_add_u32 s47, s44, 12288" % H0GU)
    poll("L_pg", [f"buffer_load_dwordx4 v[{128+4*n}:{131+4*n}], v6, s[56:59], s{44+n//4} offen offset:{1024*(n%4)} sc1" for n in range(16)],
         [129 + 2 * i for i in range(32)])
    stamp(3)
    sum8(128, 8); sum8(132, 8)
    for v in (128, 130, 132, 134): rbf(v)
    a("s_mov_b32 s48, 0x3d372713\ns_mov_b32 s49, 0xc0135761")
    for g, u in ((128, 132), (130, 134)):
        a(f"v_mul_f32 v20, v{g}, v{g}\nv_fma_f32 v20, v20, s48, 1.0\nv_mul_f32 v20, v20, v{g}\nv_mul_f32 v20, s49, v20\nv_exp_f32 v20, v20\nv_add_f32 v20, 1.0, v20\nv_rcp_f32 v20, v20\nv_mul_f32 v{g}, v{g}, v20")
        rbf(g)
        a(f"v_mul_f32 v{g}, v{g}, v{u}")
    a(f"v_cvt_pk_bf16_f32 v20, v128, v128\nv_cvt_pk_bf16_f32 v21, v130, v130\nds_write_b64 v9, v[20:21] offset:{HL}")
    a("s_waitcnt lgkmcnt(0)\ns_barrier")
    a(f"ds_read_b128 v[20:23], v8 offset:{MX}\ns_waitcnt lgkmcnt(0)\nv_max_f32 v20, v20, v21\nv_max3_f32 v16, v20, v22, v23")
    a("s_add_u32 s40, s43, %d\ns_add_u32 s41, s43, %d" % (H1, H2))
    a("v_and_b32 v36, 31, v1\nv_lshlrev_b32 v36, 14, v36\nv_lshrrev_b32 v37, 5, v1\nv_lshl_add_u32 v36, v37, 10, v36")
    a("s_lshl_b32 s31, s29, 11\ns_lshl_b32 s42, s28, 5\ns_add_u32 s42, s42, s31\ns_add_u32 s42, s42, %d" % H2)
    a("s_waitcnt vmcnt(0)")
    a("v_lshlrev_b32 v40, 16, v10\nv_and_b32 v41, 0xffff0000, v10\nv_lshlrev_b32 v42, 16, v11\nv_and_b32 v43, 0xffff0000, v11")
    a("s_barrier")
    stamp(4)
    red4(12, RED_O, 20); a(f"ds_read_b128 v[28:31], v8 offset:{LS}\ns_waitcnt lgkmcnt(0)"); sum4(12, 20)
    a("buffer_store_dwordx4 v[12:15], v6, s[56:59], s40 offen sc1")
    a("v_add_f32 v28, v28, v29\nv_add_f32 v30, v30, v31\nv_add_f32 v18, v28, v30")
    a("s_mov_b64 exec, 1\nbuffer_store_dwordx4 v[16:19], v8, s[56:59], s40 offen offset:1024 sc1\ns_mov_b64 exec, -1")
    a("s_barrier")
    stamp(5)
    red4(12, RED_A, 20); red4(16, RED_F, 28); a("s_waitcnt lgkmcnt(0)"); sum4(12, 20); sum4(16, 28)
    a("buffer_store_dwordx4 v[12:15], v6, s[56:59], s41 offen sc1\nbuffer_store_dwordx4 v[16:19], v6, s[56:59], s41 offen offset:1024 sc1")
    poll("L_p2", ["buffer_load_dwordx4 v[128:131], v36, s[56:59], s42 offen sc1", "buffer_load_dwordx4 v[132:135], v36, s[56:59], s42 offen offset:16 sc1"],
         [129, 131, 133, 135])
    stamp(6)
    T = (128, 130, 132, 134)
    for r in (8, 4, 2, 1):
        for v in T: a(f"v_add_f32_dpp v{v}, v{v}, v{v} row_ror:{r} row_mask:0xf bank_mask:0xf")
    for v in T: a(f"v_add_f32_dpp v{v}, v{v}, v{v} row_bcast:15 row_mask:0xa bank_mask:0xf")
    for v in T: rbf(v)
    for i, v in enumerate(T): a(f"v_readlane_b32 s{44+i}, v{v}, 48")
    for i, v in enumerate(T): a(f"v_add_f32 v{v}, v{v}, v{40+i}")
    for v in T: rbf(v)
    for i, v in enumerate(T): a(f"v_add_f32 v{v}, s{44+i}, v{v}")
    a("v_cvt_pk_bf16_f32 v20, v128, v130\nv_cvt_pk_bf16_f32 v21, v132, v134")
    a("s_mov_b64 exec, 0x10000\nbuffer_store_dwordx2 v[20:21], v8, s[68:71], s75 offen")
    a("s_cmp_lg_u32 s2, 0\ns_cbranch_scc1 L_noep\nbuffer_store_dword v13, v8, s[56:59], 0 offen sc1\nL_noep:")
    if diag:
        a("s_waitcnt vmcnt(0)")
        stamp(7)
        a("s_mov_b32 s31, 64")
        a("L_stamps:")
        a("s_waitcnt lgkmcnt(0)\ns_mov_b64 exec, 1")
        a("s_add_u32 s26, s26, 0x8000000\ns_addc_u32 s27, s27, 0\ns_lshl_b32 s74, s2, 7\ns_add_u32 s74, s74, s31\nv_mov_b32 v8, s74")
        for q in range(4):
            for e in range(4): a(f"v_mov_b32 v{12+e}, s{84+4*q+e}")
            a(f"global_store_dwordx4 v8, v[12:15], s[26:27] offset:{16*q}")
            a("s_nop 2")
    a("L_exit:\ns_endpgm")

    out = HDR
    out += "; Override launch geometry by editing the next line (default: block=256,\n"
    out += f"; @launch grid=(256,1,1) block=(320,1,1) lds={LDS_BYTES}\n"
    out += f'.amdgcn_target "amdgcn-amd-amdhsa--gfx950"\n.text\n.globl {NAME}\n.p2align 8\n.type {NAME},@function\n{NAME}:\n'
    out += a.text()
    out += f""".section .rodata,"a"
.p2align 6
.amdhsa_kernel {NAME}
  .amdhsa_next_free_vgpr 256
  .amdhsa_next_free_sgpr 102
  .amdhsa_accum_offset 256
  .amdhsa_group_segment_fixed_size 0
  .amdhsa_kernarg_size 96
  .amdhsa_user_sgpr_count 2
  .amdhsa_user_sgpr_kernarg_segment_ptr 1
  .amdhsa_system_sgpr_workgroup_id_x 1
  .amdhsa_float_denorm_mode_32 3
.end_amdhsa_kernel
"""
    return out, LDS_BYTES

if __name__ == "__main__":
    diag = len(sys.argv) > 2 and sys.argv[2] == "diag"
    s, lds = gen(diag=diag)
    open(sys.argv[1], "w").write(s)
    print("lds", lds)
```

```python
import sys
from asmlib import Asm

NAME = "parallel_sum__mha_block_cached__glu_gated_geglu__decode_kernel"
HDR = open("parallel_sum__mha_block_cached__glu_gated_geglu__decode.s.ref").read().split("; Override launch")[0]

H0Q, H0GU, H1, H2 = 0x1000, 0x50000, 0xD0000, 0x150000
WS_BYTES = 0x200000
SC = 0
RED_Q, RED_G, RED_U, RED_O, RED_A, RED_F = [32768 + 2048 * i for i in range(6)]
QL = 32768 + 12288
HL = QL + 256
MX = HL + 1024
LS = MX + 16
LDS_BYTES = LS + 16

LOG2E = 0x3fb8aa3b
SCALE = 0x3db504f3

def gen(diag=False, ser=0, maskpoll=1, sl1=1, sl2=1, D=8, DS=8, D2=0, NB2=0, pol_w="nt", pol_gu="nt", pol_kv="nt"):
    a = Asm()
    def stamp(i, mode=1):
        if diag == mode or (diag and i in (0, 7)) or (diag and incomm[0]):
            a(f"s_memrealtime s[{84+2*i}:{85+2*i}]")
    incomm = [False]
    def series(k):
        if not ser: return
        if k == 0: a("s_memrealtime s[100:101]")
        if k == 5: a("s_waitcnt lgkmcnt(0)\ns_mov_b32 m0, s71\ns_nop 0\nv_writelane_b32 v255, s100, m0\ns_add_u32 s71, s71, 1")
    def srd(n, lo, hi, size):
        a(f"s_mov_b32 s{n}, {lo}\ns_mov_b32 s{n+1}, {hi}\ns_mov_b32 s{n+2}, {size}\ns_mov_b32 s{n+3}, 0x20000")
    def wave_reduce(v, t, op):
        for r in (8, 4, 2, 1):
            a(f"{op}_dpp v{v}, v{v}, v{v} row_ror:{r} row_mask:0xf bank_mask:0xf")
        a(f"v_mov_b32 v{t}, v{v}\nv_permlane16_swap_b32 v{v}, v{t}\n{op} v{v}, v{v}, v{t}")
        a(f"v_mov_b32 v{t}, v{v}\nv_permlane32_swap_b32 v{v}, v{t}\n{op} v{v}, v{v}, v{t}")
    def rbf(v):
        a(f"v_cvt_pk_bf16_f32 v{v}, v{v}, v{v}\nv_and_b32 v{v}, 0xffff0000, v{v}")
    def buildA(buf, P, c):
        base = 24 + 4 * buf
        for t in range(4):
            a(f"v_and_b32_dpp v{base+t}, v{P}, v{120+t} row_newbcast:{c} row_mask:0xf bank_mask:0xf")
    def mfma(acc, buf, breg, first):
        base = 24 + 4 * buf
        a(f"v_mfma_f32_16x16x32_bf16 v[{acc}:{acc+3}], v[{base}:{base+3}], v[{breg}:{breg+3}], " + ("0" if first else f"v[{acc}:{acc+3}]"))
    def writeD(acc, off):
        a(f"s_mov_b64 exec, s[78:79]\nds_write_b128 v225, v[{acc}:{acc+3}] offset:{off}\ns_mov_b64 exec, -1")
    def poll(label, loads, tagregs, acc=250, t1=251, t2=252, sleep=1):
        a.fence()
        a(f"s_mov_b32 s77, 0x100000")
        a(f"{label}:")
        for l in loads: a(l)
        a("s_waitcnt vmcnt(0)")
        a(f"v_xor_b32 v{acc}, s30, v{tagregs[0]}")
        rest = tagregs[1:]
        while len(rest) >= 2:
            a(f"v_xor_b32 v{t1}, s30, v{rest[0]}\nv_xor_b32 v{t2}, s30, v{rest[1]}\nv_or3_b32 v{acc}, v{acc}, v{t1}, v{t2}")
            rest = rest[2:]
        if rest:
            a(f"v_xor_b32 v{t1}, s30, v{rest[0]}\nv_or_b32 v{acc}, v{acc}, v{t1}")
        a(f"v_cmp_ne_u32 vcc, 0, v{acc}")
        a(f"s_cmp_eq_u64 vcc, 0\ns_cbranch_scc1 {label}_ok")
        if maskpoll: a("s_mov_b64 exec, vcc")
        a(f"s_sub_u32 s77, s77, 1\ns_cmp_eq_u32 s77, 0\ns_cbranch_scc1 {label}_ok\ns_sleep {sleep}\ns_branch {label}")
        a(f"{label}_ok:")
        a("s_mov_b64 exec, -1")
    def poll_rows(label, loads, sbase, sleep=1):
        a.fence()
        n = len(loads)
        a(f"s_mov_b32 s77, 0x100000\ns_mov_b32 s76, {(1 << n) - 1}")
        a(f"{label}:")
        for i, (l, _, _) in enumerate(loads):
            a(f"s_bitcmp1_b32 s76, {i}\ns_cbranch_scc0 {label}_s{i}")
            a(l)
            a(f"{label}_s{i}:")
        a("s_waitcnt vmcnt(0)")
        for i, (_, ta, tb) in enumerate(loads):
            a(f"v_xor_b32 v250, s30, v{ta}\nv_xor_b32 v251, s30, v{tb}\nv_or_b32 v250, v250, v251\nv_cmp_ne_u32 s[{sbase+2*i}:{sbase+2*i+1}], 0, v250")
        a("s_mov_b32 s76, 0")
        for i in range(n):
            a(f"s_cmp_lg_u64 s[{sbase+2*i}:{sbase+2*i+1}], 0\ns_cselect_b32 s74, {1 << i}, 0\ns_or_b32 s76, s76, s74")
        a(f"s_cmp_eq_u32 s76, 0\ns_cbranch_scc1 {label}_ok")
        a(f"s_sub_u32 s77, s77, 1\ns_cmp_eq_u32 s77, 0\ns_cbranch_scc1 {label}_ok\ns_sleep {sleep}\ns_branch {label}")
        a(f"{label}_ok:")

    a("s_cmp_ge_u32 s2, 256\ns_cbranch_scc1 L_exit")
    stamp(0)
    a("s_load_dwordx16 s[4:19], s[0:1], 0\ns_load_dwordx8 s[20:27], s[0:1], 64")
    a("v_lshrrev_b32 v5, 6, v0\nv_and_b32 v1, 63, v0\nv_readfirstlane_b32 s3, v5")
    a("v_lshrrev_b32 v2, 4, v1\nv_and_b32 v3, 15, v1")
    a("s_lshr_b32 s28, s2, 3\ns_and_b32 s29, s2, 7")
    a("s_mov_b32 s78, -1\ns_mov_b32 s79, 0")
    a("v_lshlrev_b32 v6, 4, v1")
    a("v_lshlrev_b32 v7, 4, v3")
    a("s_lshl_b32 s74, s29, 2\ns_add_u32 s74, s74, s3\ns_lshl_b32 s74, s74, 5")
    a("s_waitcnt lgkmcnt(0)")
    stamp(1, 2)
    a("s_load_dword s30, s[26:27], 0")
    srd(52, "s4", "s5", 2048)
    srd(56, "s26", "s27", WS_BYTES)
    a("s_cmp_eq_u32 s3, 4\ns_cbranch_scc1 L_comm")

    a("buffer_load_dwordx4 v[96:99], v6, s[52:55], 0 offen\nbuffer_load_dwordx4 v[100:103], v6, s[52:55], 0 offen offset:1024")
    a("v_and_b32 v8, 7, v3\nv_lshl_add_u32 v8, v8, 2, v2\nv_lshlrev_b32 v8, 1, v8\ns_lshl_b32 s75, s74, 1")
    a("buffer_load_ushort v9, v8, s[52:55], s75 offen")
    srd(40, "s10", "s11", 1024 * 8192)
    a("v_lshl_add_u32 v10, v2, 13, v7")
    a("s_lshl_b32 s75, s74, 13\ns_lshl_b32 s76, s28, 8\ns_add_u32 s75, s75, s76")
    for i in range(8):
        a(f"buffer_load_dwordx4 v[{128+4*i}:{131+4*i}], v10, s[40:43], s75 offen {pol_w}")
        if i < 7: a("s_add_u32 s75, s75, 32768")
    srd(44, "s16", "s17", 1024 * 7168)
    srd(48, "s18", "s19", 1024 * 7168)
    a("v_mul_u32_u24 v11, 7168, v2\nv_add_u32 v11, v11, v7")
    a("v_cmp_gt_u32 vcc, 14, v3\nv_mov_b32 v12, 0x80000000\nv_cndmask_b32 v11, v12, v11, vcc")
    a("s_mul_i32 s76, s74, 7168\ns_mul_i32 s31, s28, 224\ns_add_u32 s76, s76, s31\ns_mov_b32 s75, s76")
    for i in range(8):
        a(f"buffer_load_dwordx4 v[{160+4*i}:{163+4*i}], v11, s[44:47], s75 offen {pol_gu}")
        if i < 7: a(f"s_add_u32 s75, s75, {4*7168}")
    a("s_lshl_b32 s31, s2, 21\ns_add_u32 s32, s6, s31\ns_addc_u32 s33, s7, 0\ns_mov_b32 s34, 0x200000\ns_mov_b32 s35, 0x20000")
    a("s_add_u32 s36, s8, s31\ns_addc_u32 s37, s9, 0\ns_mov_b32 s38, 0x200000\ns_mov_b32 s39, 0x20000")
    a("s_lshl_b32 s31, s3, 10\nv_add_u32 v4, s31, v6")
    a("s_mov_b32 s72, 0")
    if ser: a("s_mov_b32 s71, 0\nv_mov_b32 v255, 0")
    a("v_and_b32 v12, 1, v3\nv_lshrrev_b32 v13, 1, v3\nv_cmp_eq_u32 vcc, 1, v12\nv_mov_b32 v14, 0xffff\nv_mov_b32 v15, 0xffff0000\nv_cndmask_b32 v14, v14, v15, vcc")
    for t in range(4):
        a(f"v_cmp_eq_u32 vcc, {t}, v13\nv_cndmask_b32 v{120+t}, 0, v14, vcc")
    a("v_cmp_eq_u32 s[82:83], 1, v12\nv_and_b32 v13, 1, v13\nv_cmp_eq_u32 s[80:81], 1, v13")
    a("s_lshl_b32 s31, s3, 9\nv_lshlrev_b32 v225, 5, v3\nv_lshl_add_u32 v225, v2, 4, v225\nv_add_u32 v225, s31, v225")
    a("s_lshl_b32 s31, s3, 13\nv_lshlrev_b32 v224, 2, v1\nv_add_u32 v224, s31, v224")
    a("s_waitcnt vmcnt(16)")
    stamp(2, 2)
    for k in range(8):
        a(f"v_lshlrev_b32 v{104+2*k}, 16, v{96+k}\nv_and_b32 v{105+2*k}, 0xffff0000, v{96+k}")
    a("v_add_f32 v12, v104, v105\nv_add_f32 v13, v106, v107\nv_add_f32 v14, v108, v109\nv_add_f32 v15, v110, v111")
    a("v_add_f32 v16, v112, v113\nv_add_f32 v17, v114, v115\nv_add_f32 v18, v116, v117\nv_add_f32 v19, v118, v119")
    a("v_add_f32 v12, v12, v13\nv_add_f32 v14, v14, v15\nv_add_f32 v16, v16, v17\nv_add_f32 v18, v18, v19")
    a("v_add_f32 v12, v12, v14\nv_add_f32 v16, v16, v18\nv_add_f32 v12, v12, v16")
    wave_reduce(12, 13, "v_add_f32")
    a("v_mul_f32 v12, 0x3a800000, v12")
    for k in range(16):
        a(f"v_sub_f32 v{104+k}, v{104+k}, v12")
    a("v_mul_f32 v14, v104, v104\nv_mul_f32 v15, v105, v105\nv_mul_f32 v16, v106, v106\nv_mul_f32 v17, v107, v107")
    for k in range(4, 16):
        a(f"v_fmac_f32 v{14+k%4}, v{104+k}, v{104+k}")
    a("v_add_f32 v14, v14, v15\nv_add_f32 v16, v16, v17\nv_add_f32 v14, v14, v16")
    wave_reduce(14, 13, "v_add_f32")
    a("v_mul_f32 v14, 0x3a800000, v14")
    rbf(14); rbf(12)
    a("v_add_f32 v14, 0x3727c5ac, v14")
    rbf(14)
    a("v_sqrt_f32 v14, v14")
    rbf(14)
    a("v_rcp_f32 v14, v14\nv_lshlrev_b32 v9, 16, v9\nv_sub_f32 v9, v9, v12")
    rbf(9)
    a("v_mul_f32 v9, v9, v14\nv_cvt_pk_bf16_f32 v124, v9, v9")
    stamp(3, 2)
    a("s_mov_b32 s75, s76")
    for i in range(8):
        a(f"buffer_load_dwordx4 v[{192+4*i}:{195+4*i}], v11, s[48:51], s75 offen {pol_gu}")
        if i < 7: a(f"s_add_u32 s75, s75, {4*7168}")
    def stage1(acc, wbase):
        buildA(0, 124, 0)
        for i in range(8):
            if i < 7: buildA((i + 1) & 1, 124, i + 1)
            mfma(acc, i & 1, wbase + 4 * i, i == 0)
    a("s_waitcnt vmcnt(16)")
    stamp(4, 2)
    stage1(12, 128)
    writeD(12, RED_Q)
    a("s_waitcnt lgkmcnt(0)\ns_barrier")
    stamp(1); stamp(5, 2)
    def kslot(n):
        return 32 + 4 * (n % 16)
    def issueK(reg, s="s[32:35]"):
        a(f"buffer_load_dwordx4 v[{reg}:{reg+3}], v4, {s}, s72 offen {pol_kv}\ns_add_u32 s72, s72, 4096")
    assert 1 <= D <= 16 and DS <= 8
    for n in range(16):
        a(f"s_waitcnt vmcnt({DS-1})")
        issueK(kslot(n))
        if n == 0:
            stage1(16, 160)
        if n == DS - 1:
            stage1(20, 192)
            writeD(16, RED_G)
            writeD(20, RED_U)
    a("v_mov_b32 v126, 0xff800000\nv_mov_b32 v127, 0\ns_mov_b32 s76, %d" % SCALE)
    stamp(6, 2)
    a("s_waitcnt lgkmcnt(0)\ns_barrier")
    stamp(2)
    a(f"ds_read_b128 v[8:11], v7 offset:{QL}\ns_waitcnt lgkmcnt(0)")

    def kgroup(regs, issues, waits):
        for k in range(16):
            series(k)
            a(f"s_waitcnt vmcnt({waits[k]})")
            r = regs[k]; acc = 12 + k % 4
            a(f"v_dot2_f32_bf16 v{acc}, v{r}, v8, 0\nv_dot2_f32_bf16 v{acc}, v{r+1}, v9, v{acc}\nv_dot2_f32_bf16 v{acc}, v{r+2}, v10, v{acc}\nv_dot2_f32_bf16 v{acc}, v{r+3}, v11, v{acc}")
            if issues[k] is not None:
                if issues[k][2]: a("s_mov_b32 s72, 0")
                issueK(issues[k][0], issues[k][1])
            if k % 4 == 3:
                C = 20 + k // 4
                a("v_add_f32_dpp v16, v12, v12 row_ror:8 row_mask:0xf bank_mask:0x3")
                a("v_add_f32_dpp v17, v14, v14 row_ror:8 row_mask:0xf bank_mask:0x3")
                a("v_add_f32_dpp v16, v13, v13 row_ror:8 row_mask:0xf bank_mask:0xc")
                a("v_add_f32_dpp v17, v15, v15 row_ror:8 row_mask:0xf bank_mask:0xc")
                a(f"v_add_f32_dpp v{C}, v16, v16 row_shl:4 row_mask:0xf bank_mask:0x5")
                a(f"v_add_f32_dpp v{C}, v17, v17 row_shr:4 row_mask:0xf bank_mask:0xa")
        for C in range(20, 24):
            a(f"v_add_f32_dpp v{C}, v{C}, v{C} quad_perm:[2,3,0,1] row_mask:0xf bank_mask:0xf")
        a("v_cndmask_b32 v20, v20, v21, s[80:81]\nv_cndmask_b32 v22, v22, v23, s[80:81]")
        a("v_add_f32_dpp v20, v20, v20 quad_perm:[1,0,3,2] row_mask:0xf bank_mask:0xf")
        a("v_add_f32_dpp v22, v22, v22 quad_perm:[1,0,3,2] row_mask:0xf bank_mask:0xf")
        a("v_cndmask_b32 v18, v20, v22, s[82:83]")
        rbf(18)
        a("v_mul_f32 v18, s76, v18")
        rbf(18)
        a("v_max_f32 v126, v126, v18\nds_write_b32 v224, v18\nv_add_u32 v224, 256, v224")
    ring = [kslot(k) for k in range(16)]
    KS, VS = "s[32:35]", "s[36:39]"
    kgroup(ring, [(ring[k], KS, False) for k in range(D)] + [None] * (16 - D), [D - 1] * D + [15 - k + D for k in range(D, 16)])
    a("s_mov_b32 s73, 30")
    a.fence()
    a("L_kloop:")
    kgroup(ring, [(kslot(k + D), KS, False) for k in range(16)], [D - 1] * 16)
    a.fence()
    a("s_sub_u32 s73, s73, 1\ns_cmp_lg_u32 s73, 0\ns_cbranch_scc1 L_kloop")
    kgroup(ring, [(kslot(k + D), KS, False) for k in range(16 - D)] + [(kslot(k + D), VS, k == 16 - D) for k in range(16 - D, 16)], [D - 1] * 16)
    wave_reduce(126, 13, "v_max_f32")
    a(f"s_lshl_b32 s31, s3, 2\nv_mov_b32 v13, s31\nds_write_b32 v13, v126 offset:{MX}")
    a("v_subrev_u32 v224, 8192, v224")
    a("s_waitcnt lgkmcnt(0)\ns_barrier")
    stamp(3)
    a(f"v_mov_b32 v13, 0\nds_read_b128 v[16:19], v13 offset:{MX}\nds_read_b32 v125, v224")
    a(f"s_mul_i32 s31, s3, 112\nv_lshl_add_u32 v13, v3, 2, v2\nv_lshlrev_b32 v13, 2, v13\nv_add_u32 v13, s31, v13\nds_read_b32 v227, v13 offset:{HL}")
    a("s_mov_b32 s76, %d" % LOG2E)
    a("s_waitcnt lgkmcnt(0)")
    a("v_max_f32 v16, v16, v17\nv_max3_f32 v226, v16, v18, v19")
    def mkP():
        a("v_sub_f32 v125, v125, v226\nv_mul_f32 v125, s76, v125\nv_exp_f32 v125, v125\nv_add_f32 v127, v127, v125\nv_cvt_pk_bf16_f32 v125, v125, v125")
    mkP()
    a("v_mov_b32 v124, v125\nv_mov_b32 v12, 0\nv_mov_b32 v13, 0\nv_mov_b32 v14, 0\nv_mov_b32 v15, 0")
    lam = [4 * (((c >> 1) & 1) + 2 * (c & 1)) + [0, 2, 1, 3][c >> 2] for c in range(16)]
    inv = [lam.index(i) for i in range(16)]
    buildA(0, 124, inv[0])
    def vgroup(issues, last):
        for k in range(16):
            series(k)
            if k == 0 and not last:
                a("v_add_u32 v224, 256, v224\nds_read_b32 v125, v224")
            if k == 6 and not last:
                a("s_waitcnt lgkmcnt(0)"); mkP()
            if k < 15: buildA((k + 1) & 1, 124, inv[k + 1])
            elif not last:
                buildA(0, 125, inv[0]); a("v_mov_b32 v124, v125")
            a(f"s_waitcnt vmcnt({issues[k][0]})")
            mfma(12, k & 1, ring[k], False)
            for s in issues[k][1]: a(s)
            if last and k == 2:
                wave_reduce(127, 16, "v_add_f32")
                a(f"s_lshl_b32 s31, s3, 2\nv_mov_b32 v16, s31\nds_write_b32 v16, v127 offset:{LS}")
    def vis(k, d):
        r = kslot(k + d)
        return [f"buffer_load_dwordx4 v[{r}:{r+3}], v4, {VS}, s72 offen {pol_kv}", "s_add_u32 s72, s72, 4096"]
    a(f"s_mov_b32 s73, {31 - NB2}")
    a.fence()
    a("L_vloop:")
    vgroup([(D - 1, vis(k, D)) for k in range(16)], False)
    a.fence()
    a("s_sub_u32 s73, s73, 1\ns_cmp_lg_u32 s73, 0\ns_cbranch_scc1 L_vloop")
    if D2:
        for d in range(D, D2):
            for x in vis(0, d): a(x)
        D = D2
        if NB2:
            a(f"s_mov_b32 s73, {NB2}")
            a.fence()
            a("L_vloop2:")
            vgroup([(D - 1, vis(k, D)) for k in range(16)], False)
            a.fence()
            a("s_sub_u32 s73, s73, 1\ns_cmp_lg_u32 s73, 0\ns_cbranch_scc1 L_vloop2")
    srd(60, "s12", "s13", 4096 * 2048)
    srd(64, "s20", "s21", 3584 * 2048)
    a("v_lshl_add_u32 v10, v2, 14, v7\nv_lshl_add_u32 v11, v2, 11, v7")
    a("s_lshl_b32 s31, s28, 2\ns_add_u32 s31, s31, s3\ns_lshl_b32 s75, s31, 16\ns_mul_i32 s74, s31, %d" % (28 * 2048))
    a("s_lshl_b32 s31, s29, 8\ns_add_u32 s75, s75, s31\ns_add_u32 s74, s74, s31")
    wl = []
    for i in range(7):
        wl.append([f"buffer_load_dwordx4 v[{160+4*i}:{163+4*i}], v11, s[64:67], s74 offen {pol_w}", "s_add_u32 s74, s74, 8192"])
    for t in range(8):
        wl.append([f"buffer_load_dwordx4 v[{128+4*t}:{131+4*t}], v10, s[60:63], s75 offen {pol_w}", "s_add_u32 s75, s75, 2048"])
    iss = [(D - 1, vis(k, D)) for k in range(16 - D)]
    nissued = 0
    for k in range(16 - D, 16):
        n = (15 - k) + nissued
        take = wl[nissued:nissued + 2] if k < 15 else wl[nissued:]
        iss.append((n, sum(take, [])))
        nissued += len(take)
    vgroup(iss, True)
    writeD(12, RED_O)
    a("s_waitcnt lgkmcnt(0)\ns_barrier")
    stamp(4)
    a("v_and_b32 v16, 7, v3\nv_lshrrev_b32 v17, 3, v3\ns_lshl_b32 s31, s28, 14\ns_add_u32 s31, s31, %d" % H1)
    a("v_lshlrev_b32 v16, 11, v16\nv_add_u32 v16, s31, v16")
    a("v_lshlrev_b32 v17, 5, v17\nv_lshl_add_u32 v17, v2, 6, v17\ns_lshl_b32 s31, s3, 8\nv_add3_u32 v17, v17, s31, v16")
    a("s_waitcnt vmcnt(8)")
    buildA(0, 227, 0)
    for i in range(7):
        if i < 6: buildA((i + 1) & 1, 227, i + 1)
        mfma(20, i & 1, 160 + 4 * i, i == 0)
    writeD(20, RED_F)
    a("s_add_u32 s30, s30, 1")
    poll("L_p1", ["buffer_load_dwordx4 v[228:231], v17, s[56:59], 0 offen sc1",
                  "buffer_load_dwordx4 v[232:235], v17, s[56:59], 0 offen offset:16 sc1",
                  "buffer_load_dwordx4 v[236:239], v16, s[56:59], 0 offen offset:1024 sc1"], [229, 231, 233, 235, 237, 239], sleep=sl1)
    stamp(5)
    steps = ["quad_perm:[1,0,3,2]", "quad_perm:[2,3,0,1]", "row_half_mirror"]
    a("v_mov_b32 v240, v236")
    for s in steps: a(f"v_max_f32_dpp v240, v240, v240 {s} row_mask:0xf bank_mask:0xf")
    a("v_sub_f32 v236, v236, v240\nv_mul_f32 v236, s76, v236\nv_exp_f32 v236, v236")
    a("v_mul_f32 v238, v238, v236\nv_mul_f32 v228, v228, v236\nv_mul_f32 v230, v230, v236\nv_mul_f32 v232, v232, v236\nv_mul_f32 v234, v234, v236")
    for s in steps:
        for v in (238, 228, 230, 232, 234): a(f"v_add_f32_dpp v{v}, v{v}, v{v} {s} row_mask:0xf bank_mask:0xf")
    a("v_rcp_f32 v238, v238")
    for v in (228, 230, 232, 234): a(f"v_mul_f32 v{v}, v{v}, v238")
    for v in (228, 230, 232, 234): a(f"v_cvt_pk_bf16_f32 v{v}, v{v}, v{v}")
    seq = [(b, i) for b in range(2) for i in range(4)]
    buildA(0, 228, 0)
    for t, (b, i) in enumerate(seq):
        if t < 7:
            b2, i2 = seq[t + 1]; buildA((t + 1) & 1, 228 + 2 * i2, 8 * b2)
        mfma(16, t & 1, 128 + 4 * t, t == 0)
    writeD(16, RED_A)
    a("s_waitcnt lgkmcnt(0)\ns_barrier")
    stamp(6)
    if ser:
        a("s_add_u32 s68, s26, 0x9000000\ns_addc_u32 s69, s27, 0\ns_lshl_b32 s31, s2, 2\ns_add_u32 s31, s31, s3\ns_lshl_b32 s31, s31, 8\nv_lshlrev_b32 v16, 2, v1\nv_add_u32 v16, s31, v16")
        a("global_store_dword v16, v255, s[68:69]")
    if diag:
        a("s_waitcnt lgkmcnt(0)\ns_getreg_b32 s98, hwreg(HW_REG_HW_ID)\ns_getreg_b32 s99, hwreg(HW_REG_XCC_ID)")
        a("s_cmp_lg_u32 s3, 0\ns_cbranch_scc1 L_exit\ns_mov_b32 s31, 0\ns_branch L_stamps")
    else:
        a("s_endpgm")

    a("L_comm:")
    incomm[0] = True
    a("s_lshl_b32 s31, s29, 8\ns_lshl_b32 s75, s28, 3\ns_add_u32 s75, s75, s31\nv_mov_b32 v8, 0")
    a("buffer_load_dwordx2 v[10:11], v8, s[52:55], s75 offen")
    srd(68, "s22", "s23", 2048)
    a("v_lshlrev_b32 v9, 3, v1")
    a("s_lshl_b32 s31, s2, 10\ns_add_u32 s40, s31, %d" % H0Q)
    a("s_lshl_b32 s31, s28, 13\ns_add_u32 s41, s31, %d\ns_add_u32 s42, s41, 4096" % H0Q)
    a("s_waitcnt lgkmcnt(0)\ns_add_u32 s30, s30, 1")
    def red4(dst, off, tmp):
        for w in range(4): a(f"ds_read_b64 v[{tmp+2*w}:{tmp+2*w+1}], v9 offset:{off+512*w}")
    def sum4(dst, tmp):
        a(f"v_add_f32 v{dst}, v{tmp}, v{tmp+2}\nv_add_f32 v{dst+2}, v{tmp+1}, v{tmp+3}\nv_add_f32 v{tmp+4}, v{tmp+4}, v{tmp+6}\nv_add_f32 v{tmp+5}, v{tmp+5}, v{tmp+7}")
        a(f"v_add_f32 v{dst}, v{dst}, v{tmp+4}\nv_add_f32 v{dst+2}, v{dst+2}, v{tmp+5}")
    a("v_mov_b32 v13, s30\nv_mov_b32 v15, s30\nv_mov_b32 v17, s30\nv_mov_b32 v19, s30")
    a("s_barrier")
    stamp(1)
    red4(12, RED_Q, 20); a("s_waitcnt lgkmcnt(0)"); sum4(12, 20)
    a("buffer_store_dwordx4 v[12:15], v6, s[56:59], s40 offen sc1")
    if maskpoll:
        poll_rows("L_p0", [(f"buffer_load_dwordx4 v[{128+4*jj}:{131+4*jj}], v6, s[56:59], s{41+jj//4} offen offset:{1024*(jj%4)} sc1", 129 + 4 * jj, 131 + 4 * jj) for jj in range(8)], 4)
    else:
        poll("L_p0", [f"buffer_load_dwordx4 v[{128+4*jj}:{131+4*jj}], v6, s[56:59], s{41+jj//4} offen offset:{1024*(jj%4)} sc1" for jj in range(8)],
             [129 + 2 * i for i in range(16)])
    stamp(2)
    def sum8(base, stride):
        for o in (0, 2):
            for (x, y) in ((0, 1), (2, 3), (4, 5), (6, 7), (0, 2), (4, 6), (0, 4)):
                a(f"v_add_f32 v{base+x*stride+o}, v{base+x*stride+o}, v{base+y*stride+o}")
    sum8(128, 4)
    a(f"v_cvt_pk_bf16_f32 v128, v128, v130\nv_lshlrev_b32 v20, 2, v1\nds_write_b32 v20, v128 offset:{QL}")
    a("s_waitcnt lgkmcnt(0)\ns_barrier")
    red4(12, RED_G, 20); red4(16, RED_U, 28); a("s_waitcnt lgkmcnt(0)"); sum4(12, 20); sum4(16, 28)
    a("s_lshl_b32 s43, s2, 11\ns_add_u32 s40, s43, %d" % H0GU)
    a("buffer_store_dwordx4 v[12:15], v6, s[56:59], s40 offen sc1\nbuffer_store_dwordx4 v[16:19], v6, s[56:59], s40 offen offset:1024 sc1")
    a("s_lshl_b32 s31, s28, 14\ns_add_u32 s44, s31, %d\ns_add_u32 s45, s44, 4096\ns_add_u32 s46, s44, 8192\ns_add_u32 s47, s44, 12288" % H0GU)
    if maskpoll: a("s_sleep 100")
    poll("L_pg", [f"buffer_load_dwordx4 v[{128+4*n}:{131+4*n}], v6, s[56:59], s{44+n//4} offen offset:{1024*(n%4)} sc1" for n in range(16)],
         [129 + 2 * i for i in range(32)], sleep=(100 if maskpoll else 1))
    stamp(3)
    sum8(128, 8); sum8(132, 8)
    for v in (128, 130, 132, 134): rbf(v)
    a("s_mov_b32 s48, 0x3d372713\ns_mov_b32 s49, 0xc0135761")
    for g, u in ((128, 132), (130, 134)):
        a(f"v_mul_f32 v20, v{g}, v{g}\nv_fma_f32 v20, v20, s48, 1.0\nv_mul_f32 v20, v20, v{g}\nv_mul_f32 v20, s49, v20\nv_exp_f32 v20, v20\nv_add_f32 v20, 1.0, v20\nv_rcp_f32 v20, v20\nv_mul_f32 v{g}, v{g}, v20")
        rbf(g)
        a(f"v_mul_f32 v{g}, v{g}, v{u}")
    a(f"v_cvt_pk_bf16_f32 v20, v128, v128\nv_cvt_pk_bf16_f32 v21, v130, v130\nds_write_b64 v9, v[20:21] offset:{HL}")
    a("s_waitcnt lgkmcnt(0)\ns_barrier")
    a(f"ds_read_b128 v[20:23], v8 offset:{MX}\ns_waitcnt lgkmcnt(0)\nv_max_f32 v20, v20, v21\nv_max3_f32 v16, v20, v22, v23")
    a("s_add_u32 s40, s43, %d\ns_add_u32 s41, s43, %d" % (H1, H2))
    a("v_and_b32 v36, 31, v1\nv_lshlrev_b32 v36, 14, v36\nv_lshrrev_b32 v37, 5, v1\nv_lshl_add_u32 v36, v37, 10, v36")
    a("s_lshl_b32 s31, s29, 11\ns_lshl_b32 s42, s28, 5\ns_add_u32 s42, s42, s31\ns_add_u32 s42, s42, %d" % H2)
    a("s_waitcnt vmcnt(0)")
    a("v_lshlrev_b32 v40, 16, v10\nv_and_b32 v41, 0xffff0000, v10\nv_lshlrev_b32 v42, 16, v11\nv_and_b32 v43, 0xffff0000, v11")
    a("s_barrier")
    stamp(4)
    red4(12, RED_O, 20); a(f"ds_read_b128 v[28:31], v8 offset:{LS}\ns_waitcnt lgkmcnt(0)"); sum4(12, 20)
    a("buffer_store_dwordx4 v[12:15], v6, s[56:59], s40 offen sc1")
    a("v_add_f32 v28, v28, v29\nv_add_f32 v30, v30, v31\nv_add_f32 v18, v28, v30")
    a("s_mov_b64 exec, 1\nbuffer_store_dwordx4 v[16:19], v8, s[56:59], s40 offen offset:1024 sc1\ns_mov_b64 exec, -1")
    a("s_barrier")
    stamp(5)
    red4(12, RED_A, 20); red4(16, RED_F, 28); a("s_waitcnt lgkmcnt(0)"); sum4(12, 20); sum4(16, 28)
    a("buffer_store_dwordx4 v[12:15], v6, s[56:59], s41 offen sc1\nbuffer_store_dwordx4 v[16:19], v6, s[56:59], s41 offen offset:1024 sc1")
    poll("L_p2", ["buffer_load_dwordx4 v[128:131], v36, s[56:59], s42 offen sc1", "buffer_load_dwordx4 v[132:135], v36, s[56:59], s42 offen offset:16 sc1"],
         [129, 131, 133, 135], sleep=sl2)
    stamp(6)
    T = (128, 130, 132, 134)
    for r in (8, 4, 2, 1):
        for v in T: a(f"v_add_f32_dpp v{v}, v{v}, v{v} row_ror:{r} row_mask:0xf bank_mask:0xf")
    for v in T: a(f"v_add_f32_dpp v{v}, v{v}, v{v} row_bcast:15 row_mask:0xa bank_mask:0xf")
    for v in T: rbf(v)
    for i, v in enumerate(T): a(f"v_readlane_b32 s{44+i}, v{v}, 48")
    for i, v in enumerate(T): a(f"v_add_f32 v{v}, v{v}, v{40+i}")
    for v in T: rbf(v)
    for i, v in enumerate(T): a(f"v_add_f32 v{v}, s{44+i}, v{v}")
    a("v_cvt_pk_bf16_f32 v20, v128, v130\nv_cvt_pk_bf16_f32 v21, v132, v134")
    a("s_mov_b64 exec, 0x10000\nbuffer_store_dwordx2 v[20:21], v8, s[68:71], s75 offen")
    a("s_cmp_lg_u32 s2, 0\ns_cbranch_scc1 L_noep\nbuffer_store_dword v13, v8, s[56:59], 0 offen sc1\nL_noep:")
    if diag:
        a("s_waitcnt vmcnt(0)")
        stamp(7)
        a("s_mov_b32 s31, 64")
        a("L_stamps:")
        a("s_waitcnt lgkmcnt(0)\ns_mov_b64 exec, 1")
        a("s_add_u32 s26, s26, 0x8000000\ns_addc_u32 s27, s27, 0\ns_lshl_b32 s74, s2, 7\ns_add_u32 s74, s74, s31\nv_mov_b32 v8, s74")
        for q in range(4):
            for e in range(4): a(f"v_mov_b32 v{12+e}, s{84+4*q+e}")
            a(f"global_store_dwordx4 v8, v[12:15], s[26:27] offset:{16*q}")
            a("s_nop 2")
    a("L_exit:\ns_endpgm")

    out = HDR
    out += "; Override launch geometry by editing the next line (default: block=256,\n"
    out += f"; @launch grid=(256,1,1) block=(320,1,1) lds={LDS_BYTES}\n"
    out += f'.amdgcn_target "amdgcn-amd-amdhsa--gfx950"\n.text\n.globl {NAME}\n.p2align 8\n.type {NAME},@function\n{NAME}:\n'
    out += a.text()
    out += f""".section .rodata,"a"
.p2align 6
.amdhsa_kernel {NAME}
  .amdhsa_next_free_vgpr 256
  .amdhsa_next_free_sgpr 102
  .amdhsa_accum_offset 256
  .amdhsa_group_segment_fixed_size 0
  .amdhsa_kernarg_size 96
  .amdhsa_user_sgpr_count 2
  .amdhsa_user_sgpr_kernarg_segment_ptr 1
  .amdhsa_system_sgpr_workgroup_id_x 1
  .amdhsa_float_denorm_mode_32 3
.end_amdhsa_kernel
"""
    return out, LDS_BYTES

if __name__ == "__main__":
    kw = {}
    for x in sys.argv[2:]:
        k, v = x.split("=")
        try: v = int(v)
        except ValueError: pass
        kw[k] = v
    s, lds = gen(**kw)
    open(sys.argv[1], "w").write(s)
    print("lds", lds)
```

```python
import sys
from asmlib import Asm

NAME = "parallel_sum__mha_block_cached__glu_gated_geglu__decode_kernel"
HDR = open("parallel_sum__mha_block_cached__glu_gated_geglu__decode.s.ref").read().split("; Override launch")[0]

H0Q, H0GU, H1, H2 = 0x1000, 0x50000, 0xD0000, 0x150000
WS_BYTES = 0x200000
SC = 0
RED_Q, RED_G, RED_U, RED_O, RED_A, RED_F = [32768 + 2048 * i for i in range(6)]
QL = 32768 + 12288
HL = QL + 256
MX = HL + 1024
LS = MX + 16
LDS_BYTES = LS + 16

LOG2E = 0x3fb8aa3b
SCALE = 0x3db504f3

def gen(diag=False, dbgout=0, ser=0, maskpoll=1, sl1=1, sl2=1, D=8, DS=8, D2=0, NB2=0, pol_w="nt", pol_gu="nt", pol_kv="nt"):
    a = Asm()
    def stamp(i, mode=1):
        if diag == mode or (diag and i in (0, 7)) or (diag and incomm[0]):
            a(f"s_memrealtime s[{84+2*i}:{85+2*i}]")
    incomm = [False]
    def series(k):
        if not ser: return
        if k == 0: a("s_memrealtime s[100:101]")
        if k == 5: a("s_waitcnt lgkmcnt(0)\ns_mov_b32 m0, s71\ns_nop 0\nv_writelane_b32 v255, s100, m0\ns_add_u32 s71, s71, 1")
    def srd(n, lo, hi, size):
        a(f"s_mov_b32 s{n}, {lo}\ns_mov_b32 s{n+1}, {hi}\ns_mov_b32 s{n+2}, {size}\ns_mov_b32 s{n+3}, 0x20000")
    def wave_reduce(v, t, op):
        for r in (8, 4, 2, 1):
            a(f"{op}_dpp v{v}, v{v}, v{v} row_ror:{r} row_mask:0xf bank_mask:0xf")
        a(f"v_mov_b32 v{t}, v{v}\nv_permlane16_swap_b32 v{v}, v{t}\n{op} v{v}, v{v}, v{t}")
        a(f"v_mov_b32 v{t}, v{v}\nv_permlane32_swap_b32 v{v}, v{t}\n{op} v{v}, v{v}, v{t}")
    def rbf(v):
        a(f"v_cvt_pk_bf16_f32 v{v}, v{v}, v{v}\nv_and_b32 v{v}, 0xffff0000, v{v}")
    def buildA(buf, P, c):
        base = 24 + 4 * buf
        for t in range(4):
            a(f"v_and_b32_dpp v{base+t}, v{P}, v{120+t} row_newbcast:{c} row_mask:0xf bank_mask:0xf")
    def mfma(acc, buf, breg, first):
        base = 24 + 4 * buf
        a(f"v_mfma_f32_16x16x32_bf16 v[{acc}:{acc+3}], v[{base}:{base+3}], v[{breg}:{breg+3}], " + ("0" if first else f"v[{acc}:{acc+3}]"))
    def writeD(acc, off):
        a(f"s_mov_b64 exec, s[78:79]\nds_write_b128 v225, v[{acc}:{acc+3}] offset:{off}\ns_mov_b64 exec, -1")
    def poll(label, loads, tagregs, acc=250, t1=251, t2=252, sleep=1):
        a.fence()
        a(f"s_mov_b32 s77, 0x100000")
        a(f"{label}:")
        for l in loads: a(l)
        a("s_waitcnt vmcnt(0)")
        a(f"v_xor_b32 v{acc}, s30, v{tagregs[0]}")
        rest = tagregs[1:]
        while len(rest) >= 2:
            a(f"v_xor_b32 v{t1}, s30, v{rest[0]}\nv_xor_b32 v{t2}, s30, v{rest[1]}\nv_or3_b32 v{acc}, v{acc}, v{t1}, v{t2}")
            rest = rest[2:]
        if rest:
            a(f"v_xor_b32 v{t1}, s30, v{rest[0]}\nv_or_b32 v{acc}, v{acc}, v{t1}")
        a(f"v_cmp_ne_u32 vcc, 0, v{acc}")
        a(f"s_cmp_eq_u64 vcc, 0\ns_cbranch_scc1 {label}_ok")
        if maskpoll: a("s_mov_b64 exec, vcc")
        a(f"s_sub_u32 s77, s77, 1\ns_cmp_eq_u32 s77, 0\ns_cbranch_scc1 {label}_ok\ns_sleep {sleep}\ns_branch {label}")
        a(f"{label}_ok:")
        a("s_mov_b64 exec, -1")
    def poll_rows(label, loads, sbase, sleep=1):
        a.fence()
        n = len(loads)
        a(f"s_mov_b32 s77, 0x100000\ns_mov_b32 s76, {(1 << n) - 1}")
        a(f"{label}:")
        for i, (l, _, _) in enumerate(loads):
            a(f"s_bitcmp1_b32 s76, {i}\ns_cbranch_scc0 {label}_s{i}")
            a(l)
            a(f"{label}_s{i}:")
        a("s_waitcnt vmcnt(0)")
        for i, (_, ta, tb) in enumerate(loads):
            a(f"v_xor_b32 v250, s30, v{ta}\nv_xor_b32 v251, s30, v{tb}\nv_or_b32 v250, v250, v251\nv_cmp_ne_u32 s[{sbase+2*i}:{sbase+2*i+1}], 0, v250")
        a("s_mov_b32 s76, 0")
        for i in range(n):
            a(f"s_cmp_lg_u64 s[{sbase+2*i}:{sbase+2*i+1}], 0\ns_cselect_b32 s74, {1 << i}, 0\ns_or_b32 s76, s76, s74")
        a(f"s_cmp_eq_u32 s76, 0\ns_cbranch_scc1 {label}_ok")
        a(f"s_sub_u32 s77, s77, 1\ns_cmp_eq_u32 s77, 0\ns_cbranch_scc1 {label}_ok\ns_sleep {sleep}\ns_branch {label}")
        a(f"{label}_ok:")

    a("s_cmp_ge_u32 s2, 256\ns_cbranch_scc1 L_exit")
    stamp(0)
    a("s_load_dwordx16 s[4:19], s[0:1], 0\ns_load_dwordx8 s[20:27], s[0:1], 64")
    a("v_lshrrev_b32 v5, 6, v0\nv_and_b32 v1, 63, v0\nv_readfirstlane_b32 s3, v5")
    a("v_lshrrev_b32 v2, 4, v1\nv_and_b32 v3, 15, v1")
    a("s_lshr_b32 s28, s2, 3\ns_and_b32 s29, s2, 7")
    a("s_mov_b32 s78, -1\ns_mov_b32 s79, 0")
    a("v_lshlrev_b32 v6, 4, v1")
    a("v_lshlrev_b32 v7, 4, v3")
    a("s_lshl_b32 s74, s29, 2\ns_add_u32 s74, s74, s3\ns_lshl_b32 s74, s74, 5")
    a("s_waitcnt lgkmcnt(0)")
    stamp(1, 2)
    a("s_load_dword s30, s[26:27], 0")
    srd(52, "s4", "s5", 2048)
    srd(56, "s26", "s27", WS_BYTES)
    a("s_cmp_eq_u32 s3, 4\ns_cbranch_scc1 L_comm")

    a("buffer_load_dwordx4 v[96:99], v6, s[52:55], 0 offen\nbuffer_load_dwordx4 v[100:103], v6, s[52:55], 0 offen offset:1024")
    a("v_and_b32 v8, 7, v3\nv_lshl_add_u32 v8, v8, 2, v2\nv_lshlrev_b32 v8, 1, v8\ns_lshl_b32 s75, s74, 1")
    a("buffer_load_ushort v9, v8, s[52:55], s75 offen")
    srd(40, "s10", "s11", 1024 * 8192)
    a("v_lshl_add_u32 v10, v2, 13, v7")
    a("s_lshl_b32 s75, s74, 13\ns_lshl_b32 s76, s28, 8\ns_add_u32 s75, s75, s76")
    for i in range(8):
        a(f"buffer_load_dwordx4 v[{128+4*i}:{131+4*i}], v10, s[40:43], s75 offen {pol_w}")
        if i < 7: a("s_add_u32 s75, s75, 32768")
    srd(44, "s16", "s17", 1024 * 7168)
    srd(48, "s18", "s19", 1024 * 7168)
    a("v_mul_u32_u24 v11, 7168, v2\nv_add_u32 v11, v11, v7")
    a("v_cmp_gt_u32 vcc, 14, v3\nv_mov_b32 v12, 0x80000000\nv_cndmask_b32 v11, v12, v11, vcc")
    a("s_mul_i32 s76, s74, 7168\ns_mul_i32 s31, s28, 224\ns_add_u32 s76, s76, s31\ns_mov_b32 s75, s76")
    for i in range(8):
        a(f"buffer_load_dwordx4 v[{160+4*i}:{163+4*i}], v11, s[44:47], s75 offen {pol_gu}")
        if i < 7: a(f"s_add_u32 s75, s75, {4*7168}")
    a("s_lshl_b32 s31, s2, 21\ns_add_u32 s32, s6, s31\ns_addc_u32 s33, s7, 0\ns_mov_b32 s34, 0x200000\ns_mov_b32 s35, 0x20000")
    a("s_add_u32 s36, s8, s31\ns_addc_u32 s37, s9, 0\ns_mov_b32 s38, 0x200000\ns_mov_b32 s39, 0x20000")
    a("s_lshl_b32 s31, s3, 10\nv_add_u32 v4, s31, v6")
    a("s_mov_b32 s72, 0")
    if ser: a("s_mov_b32 s71, 0\nv_mov_b32 v255, 0")
    a("v_and_b32 v12, 1, v3\nv_lshrrev_b32 v13, 1, v3\nv_cmp_eq_u32 vcc, 1, v12\nv_mov_b32 v14, 0xffff\nv_mov_b32 v15, 0xffff0000\nv_cndmask_b32 v14, v14, v15, vcc")
    for t in range(4):
        a(f"v_cmp_eq_u32 vcc, {t}, v13\nv_cndmask_b32 v{120+t}, 0, v14, vcc")
    a("v_cmp_eq_u32 s[82:83], 1, v12\nv_and_b32 v13, 1, v13\nv_cmp_eq_u32 s[80:81], 1, v13")
    a("s_lshl_b32 s31, s3, 9\nv_lshlrev_b32 v225, 5, v3\nv_lshl_add_u32 v225, v2, 4, v225\nv_add_u32 v225, s31, v225")
    a("s_lshl_b32 s31, s3, 13\nv_lshlrev_b32 v224, 2, v1\nv_add_u32 v224, s31, v224")
    a("s_waitcnt vmcnt(16)")
    stamp(2, 2)
    for k in range(8):
        a(f"v_lshlrev_b32 v{104+2*k}, 16, v{96+k}\nv_and_b32 v{105+2*k}, 0xffff0000, v{96+k}")
    a("v_add_f32 v12, v104, v105\nv_add_f32 v13, v106, v107\nv_add_f32 v14, v108, v109\nv_add_f32 v15, v110, v111")
    a("v_add_f32 v16, v112, v113\nv_add_f32 v17, v114, v115\nv_add_f32 v18, v116, v117\nv_add_f32 v19, v118, v119")
    a("v_add_f32 v12, v12, v13\nv_add_f32 v14, v14, v15\nv_add_f32 v16, v16, v17\nv_add_f32 v18, v18, v19")
    a("v_add_f32 v12, v12, v14\nv_add_f32 v16, v16, v18\nv_add_f32 v12, v12, v16")
    wave_reduce(12, 13, "v_add_f32")
    a("v_mul_f32 v12, 0x3a800000, v12")
    for k in range(16):
        a(f"v_sub_f32 v{104+k}, v{104+k}, v12")
    a("v_mul_f32 v14, v104, v104\nv_mul_f32 v15, v105, v105\nv_mul_f32 v16, v106, v106\nv_mul_f32 v17, v107, v107")
    for k in range(4, 16):
        a(f"v_fmac_f32 v{14+k%4}, v{104+k}, v{104+k}")
    a("v_add_f32 v14, v14, v15\nv_add_f32 v16, v16, v17\nv_add_f32 v14, v14, v16")
    wave_reduce(14, 13, "v_add_f32")
    a("v_mul_f32 v14, 0x3a800000, v14")
    rbf(14); rbf(12)
    a("v_add_f32 v14, 0x3727c5ac, v14")
    rbf(14)
    a("v_sqrt_f32 v14, v14")
    rbf(14)
    a("v_rcp_f32 v14, v14\nv_lshlrev_b32 v9, 16, v9\nv_sub_f32 v9, v9, v12")
    rbf(9)
    a("v_mul_f32 v9, v9, v14\nv_cvt_pk_bf16_f32 v124, v9, v9")
    stamp(3, 2)
    a("s_mov_b32 s75, s76")
    for i in range(8):
        a(f"buffer_load_dwordx4 v[{192+4*i}:{195+4*i}], v11, s[48:51], s75 offen {pol_gu}")
        if i < 7: a(f"s_add_u32 s75, s75, {4*7168}")
    def stage1(acc, wbase):
        buildA(0, 124, 0)
        for i in range(8):
            if i < 7: buildA((i + 1) & 1, 124, i + 1)
            mfma(acc, i & 1, wbase + 4 * i, i == 0)
    a("s_waitcnt vmcnt(16)")
    stamp(4, 2)
    stage1(12, 128)
    writeD(12, RED_Q)
    a("s_waitcnt lgkmcnt(0)\ns_barrier")
    stamp(1); stamp(5, 2)
    def kslot(n):
        return 32 + 4 * (n % 16)
    def issueK(reg, s="s[32:35]"):
        a(f"buffer_load_dwordx4 v[{reg}:{reg+3}], v4, {s}, s72 offen {pol_kv}\ns_add_u32 s72, s72, 4096")
    assert 1 <= D <= 16 and DS <= 8
    for n in range(16):
        a(f"s_waitcnt vmcnt({DS-1})")
        issueK(kslot(n))
        if n == 0:
            stage1(16, 160)
        if n == DS - 1:
            stage1(20, 192)
            writeD(16, RED_G)
            writeD(20, RED_U)
    a("v_mov_b32 v126, 0xff800000\nv_mov_b32 v127, 0\ns_mov_b32 s76, %d" % SCALE)
    stamp(6, 2)
    a("s_waitcnt lgkmcnt(0)\ns_barrier")
    stamp(2)
    a(f"ds_read_b128 v[8:11], v7 offset:{QL}\ns_waitcnt lgkmcnt(0)")

    def kgroup(regs, issues, waits):
        for k in range(16):
            series(k)
            a(f"s_waitcnt vmcnt({waits[k]})")
            r = regs[k]; acc = 12 + k % 4
            a(f"v_dot2_f32_bf16 v{acc}, v{r}, v8, 0\nv_dot2_f32_bf16 v{acc}, v{r+1}, v9, v{acc}\nv_dot2_f32_bf16 v{acc}, v{r+2}, v10, v{acc}\nv_dot2_f32_bf16 v{acc}, v{r+3}, v11, v{acc}")
            if issues[k] is not None:
                if issues[k][2]: a("s_mov_b32 s72, 0")
                issueK(issues[k][0], issues[k][1])
            if k % 4 == 3:
                C = 20 + k // 4
                a("v_add_f32_dpp v16, v12, v12 row_ror:8 row_mask:0xf bank_mask:0x3")
                a("v_add_f32_dpp v17, v14, v14 row_ror:8 row_mask:0xf bank_mask:0x3")
                a("v_add_f32_dpp v16, v13, v13 row_ror:8 row_mask:0xf bank_mask:0xc")
                a("v_add_f32_dpp v17, v15, v15 row_ror:8 row_mask:0xf bank_mask:0xc")
                a(f"v_add_f32_dpp v{C}, v16, v16 row_shl:4 row_mask:0xf bank_mask:0x5")
                a(f"v_add_f32_dpp v{C}, v17, v17 row_shr:4 row_mask:0xf bank_mask:0xa")
        for C in range(20, 24):
            a(f"v_add_f32_dpp v{C}, v{C}, v{C} quad_perm:[2,3,0,1] row_mask:0xf bank_mask:0xf")
        a("v_cndmask_b32 v20, v20, v21, s[80:81]\nv_cndmask_b32 v22, v22, v23, s[80:81]")
        a("v_add_f32_dpp v20, v20, v20 quad_perm:[1,0,3,2] row_mask:0xf bank_mask:0xf")
        a("v_add_f32_dpp v22, v22, v22 quad_perm:[1,0,3,2] row_mask:0xf bank_mask:0xf")
        a("v_cndmask_b32 v18, v20, v22, s[82:83]")
        rbf(18)
        a("v_mul_f32 v18, s76, v18")
        rbf(18)
        a("v_max_f32 v126, v126, v18\nds_write_b32 v224, v18\nv_add_u32 v224, 256, v224")
    ring = [kslot(k) for k in range(16)]
    KS, VS = "s[32:35]", "s[36:39]"
    kgroup(ring, [(ring[k], KS, False) for k in range(D)] + [None] * (16 - D), [D - 1] * D + [15 - k + D for k in range(D, 16)])
    a("s_mov_b32 s73, 30")
    a.fence()
    a("L_kloop:")
    kgroup(ring, [(kslot(k + D), KS, False) for k in range(16)], [D - 1] * 16)
    a.fence()
    a("s_sub_u32 s73, s73, 1\ns_cmp_lg_u32 s73, 0\ns_cbranch_scc1 L_kloop")
    kgroup(ring, [(kslot(k + D), KS, False) for k in range(16 - D)] + [(kslot(k + D), VS, k == 16 - D) for k in range(16 - D, 16)], [D - 1] * 16)
    wave_reduce(126, 13, "v_max_f32")
    a(f"s_lshl_b32 s31, s3, 2\nv_mov_b32 v13, s31\nds_write_b32 v13, v126 offset:{MX}")
    a("v_subrev_u32 v224, 8192, v224")
    a("s_waitcnt lgkmcnt(0)\ns_barrier")
    stamp(3)
    a(f"v_mov_b32 v13, 0\nds_read_b128 v[16:19], v13 offset:{MX}\nds_read_b32 v125, v224")
    a(f"s_mul_i32 s31, s3, 112\nv_lshl_add_u32 v13, v3, 2, v2\nv_lshlrev_b32 v13, 2, v13\nv_add_u32 v13, s31, v13\nds_read_b32 v227, v13 offset:{HL}")
    a("s_mov_b32 s76, %d" % LOG2E)
    a("s_waitcnt lgkmcnt(0)")
    a("v_max_f32 v16, v16, v17\nv_max3_f32 v226, v16, v18, v19")
    def mkP():
        a("v_sub_f32 v125, v125, v226\nv_mul_f32 v125, s76, v125\nv_exp_f32 v125, v125\nv_add_f32 v127, v127, v125\nv_cvt_pk_bf16_f32 v125, v125, v125")
    mkP()
    a("v_mov_b32 v124, v125\nv_mov_b32 v12, 0\nv_mov_b32 v13, 0\nv_mov_b32 v14, 0\nv_mov_b32 v15, 0")
    lam = [4 * (((c >> 1) & 1) + 2 * (c & 1)) + [0, 2, 1, 3][c >> 2] for c in range(16)]
    inv = [lam.index(i) for i in range(16)]
    buildA(0, 124, inv[0])
    def vgroup(issues, last):
        for k in range(16):
            series(k)
            if k == 0 and not last:
                a("v_add_u32 v224, 256, v224\nds_read_b32 v125, v224")
            if k == 6 and not last:
                a("s_waitcnt lgkmcnt(0)"); mkP()
            if k < 15: buildA((k + 1) & 1, 124, inv[k + 1])
            elif not last:
                buildA(0, 125, inv[0]); a("v_mov_b32 v124, v125")
            a(f"s_waitcnt vmcnt({issues[k][0]})")
            mfma(12, k & 1, ring[k], False)
            for s in issues[k][1]: a(s)
            if last and k == 2:
                wave_reduce(127, 16, "v_add_f32")
                a(f"s_lshl_b32 s31, s3, 2\nv_mov_b32 v16, s31\nds_write_b32 v16, v127 offset:{LS}")
    def vis(k, d):
        r = kslot(k + d)
        return [f"buffer_load_dwordx4 v[{r}:{r+3}], v4, {VS}, s72 offen {pol_kv}", "s_add_u32 s72, s72, 4096"]
    a(f"s_mov_b32 s73, {31 - NB2}")
    a.fence()
    a("L_vloop:")
    vgroup([(D - 1, vis(k, D)) for k in range(16)], False)
    a.fence()
    a("s_sub_u32 s73, s73, 1\ns_cmp_lg_u32 s73, 0\ns_cbranch_scc1 L_vloop")
    if D2:
        for d in range(D, D2):
            for x in vis(0, d): a(x)
        D = D2
        if NB2:
            a(f"s_mov_b32 s73, {NB2}")
            a.fence()
            a("L_vloop2:")
            vgroup([(D - 1, vis(k, D)) for k in range(16)], False)
            a.fence()
            a("s_sub_u32 s73, s73, 1\ns_cmp_lg_u32 s73, 0\ns_cbranch_scc1 L_vloop2")
    srd(60, "s12", "s13", 4096 * 2048)
    srd(64, "s20", "s21", 3584 * 2048)
    a("v_lshl_add_u32 v10, v2, 14, v7\nv_lshl_add_u32 v11, v2, 11, v7")
    a("s_lshl_b32 s31, s28, 2\ns_add_u32 s31, s31, s3\ns_lshl_b32 s75, s31, 16\ns_mul_i32 s74, s31, %d" % (28 * 2048))
    a("s_lshl_b32 s31, s29, 8\ns_add_u32 s75, s75, s31\ns_add_u32 s74, s74, s31")
    wl = []
    for i in range(7):
        wl.append([f"buffer_load_dwordx4 v[{160+4*i}:{163+4*i}], v11, s[64:67], s74 offen {pol_w}", "s_add_u32 s74, s74, 8192"])
    for t in range(8):
        wl.append([f"buffer_load_dwordx4 v[{128+4*t}:{131+4*t}], v10, s[60:63], s75 offen {pol_w}", "s_add_u32 s75, s75, 2048"])
    iss = [(D - 1, vis(k, D)) for k in range(16 - D)]
    nissued = 0
    for k in range(16 - D, 16):
        n = (15 - k) + nissued
        take = wl[nissued:nissued + 2] if k < 15 else wl[nissued:]
        iss.append((n, sum(take, [])))
        nissued += len(take)
    vgroup(iss, True)
    writeD(12, RED_O)
    a("s_waitcnt lgkmcnt(0)\ns_barrier")
    stamp(4)
    a("v_and_b32 v16, 7, v3\nv_lshrrev_b32 v17, 3, v3\ns_lshl_b32 s31, s28, 14\ns_add_u32 s31, s31, %d" % H1)
    a("v_lshlrev_b32 v16, 11, v16\nv_add_u32 v16, s31, v16")
    a("v_lshlrev_b32 v17, 5, v17\nv_lshl_add_u32 v17, v2, 6, v17\ns_lshl_b32 s31, s3, 8\nv_add3_u32 v17, v17, s31, v16")
    a("s_waitcnt vmcnt(8)")
    buildA(0, 227, 0)
    for i in range(7):
        if i < 6: buildA((i + 1) & 1, 227, i + 1)
        mfma(20, i & 1, 160 + 4 * i, i == 0)
    writeD(20, RED_F)
    a("s_add_u32 s30, s30, 1")
    poll("L_p1", ["buffer_load_dwordx4 v[228:231], v17, s[56:59], 0 offen sc1",
                  "buffer_load_dwordx4 v[232:235], v17, s[56:59], 0 offen offset:16 sc1",
                  "buffer_load_dwordx4 v[236:239], v16, s[56:59], 0 offen offset:1024 sc1"], [229, 231, 233, 235, 237, 239], sleep=sl1)
    stamp(5)
    steps = ["quad_perm:[1,0,3,2]", "quad_perm:[2,3,0,1]", "row_half_mirror"]
    a("v_mov_b32 v240, v236")
    for s in steps: a(f"v_max_f32_dpp v240, v240, v240 {s} row_mask:0xf bank_mask:0xf")
    a("v_sub_f32 v236, v236, v240\nv_mul_f32 v236, s76, v236\nv_exp_f32 v236, v236")
    a("v_mul_f32 v238, v238, v236\nv_mul_f32 v228, v228, v236\nv_mul_f32 v230, v230, v236\nv_mul_f32 v232, v232, v236\nv_mul_f32 v234, v234, v236")
    for s in steps:
        for v in (238, 228, 230, 232, 234): a(f"v_add_f32_dpp v{v}, v{v}, v{v} {s} row_mask:0xf bank_mask:0xf")
    a("v_rcp_f32 v238, v238")
    for v in (228, 230, 232, 234): a(f"v_mul_f32 v{v}, v{v}, v238")
    for v in (228, 230, 232, 234): a(f"v_cvt_pk_bf16_f32 v{v}, v{v}, v{v}")
    seq = [(b, i) for b in range(2) for i in range(4)]
    buildA(0, 228, 0)
    for t, (b, i) in enumerate(seq):
        if t < 7:
            b2, i2 = seq[t + 1]; buildA((t + 1) & 1, 228 + 2 * i2, 8 * b2)
        mfma(16, t & 1, 128 + 4 * t, t == 0)
    writeD(16, RED_A)
    a("s_waitcnt lgkmcnt(0)\ns_barrier")
    stamp(6)
    if ser:
        a("s_add_u32 s68, s26, 0x9000000\ns_addc_u32 s69, s27, 0\ns_lshl_b32 s31, s2, 2\ns_add_u32 s31, s31, s3\ns_lshl_b32 s31, s31, 8\nv_lshlrev_b32 v16, 2, v1\nv_add_u32 v16, s31, v16")
        a("global_store_dword v16, v255, s[68:69]")
    if diag:
        a("s_waitcnt lgkmcnt(0)\ns_getreg_b32 s98, hwreg(HW_REG_HW_ID)\ns_getreg_b32 s99, hwreg(HW_REG_XCC_ID)")
        a("s_cmp_lg_u32 s3, 0\ns_cbranch_scc1 L_exit\ns_mov_b32 s31, 0\ns_branch L_stamps")
    else:
        a("s_endpgm")

    a("L_comm:")
    incomm[0] = True
    a("s_lshl_b32 s31, s29, 8\ns_lshl_b32 s75, s28, 3\ns_add_u32 s75, s75, s31\nv_mov_b32 v8, 0")
    a("buffer_load_dwordx2 v[10:11], v8, s[52:55], s75 offen")
    srd(68, "s22", "s23", 2048)
    a("v_lshlrev_b32 v9, 3, v1")
    a("s_lshl_b32 s31, s2, 10\ns_add_u32 s40, s31, %d" % H0Q)
    a("s_lshl_b32 s31, s28, 13\ns_add_u32 s41, s31, %d\ns_add_u32 s42, s41, 4096" % H0Q)
    a("s_waitcnt lgkmcnt(0)\ns_add_u32 s30, s30, 1")
    def red4(dst, off, tmp):
        for w in range(4): a(f"ds_read_b64 v[{tmp+2*w}:{tmp+2*w+1}], v9 offset:{off+512*w}")
    def sum4(dst, tmp):
        a(f"v_add_f32 v{dst}, v{tmp}, v{tmp+2}\nv_add_f32 v{dst+2}, v{tmp+1}, v{tmp+3}\nv_add_f32 v{tmp+4}, v{tmp+4}, v{tmp+6}\nv_add_f32 v{tmp+5}, v{tmp+5}, v{tmp+7}")
        a(f"v_add_f32 v{dst}, v{dst}, v{tmp+4}\nv_add_f32 v{dst+2}, v{dst+2}, v{tmp+5}")
    a("v_mov_b32 v13, s30\nv_mov_b32 v15, s30\nv_mov_b32 v17, s30\nv_mov_b32 v19, s30")
    a("s_barrier")
    stamp(1)
    red4(12, RED_Q, 20); a("s_waitcnt lgkmcnt(0)"); sum4(12, 20)
    a("buffer_store_dwordx4 v[12:15], v6, s[56:59], s40 offen sc1")
    if maskpoll:
        poll_rows("L_p0", [(f"buffer_load_dwordx4 v[{128+4*jj}:{131+4*jj}], v6, s[56:59], s{41+jj//4} offen offset:{1024*(jj%4)} sc1", 129 + 4 * jj, 131 + 4 * jj) for jj in range(8)], 4)
    else:
        poll("L_p0", [f"buffer_load_dwordx4 v[{128+4*jj}:{131+4*jj}], v6, s[56:59], s{41+jj//4} offen offset:{1024*(jj%4)} sc1" for jj in range(8)],
             [129 + 2 * i for i in range(16)])
    stamp(2)
    def sum8(base, stride):
        for o in (0, 2):
            for (x, y) in ((0, 1), (2, 3), (4, 5), (6, 7), (0, 2), (4, 6), (0, 4)):
                a(f"v_add_f32 v{base+x*stride+o}, v{base+x*stride+o}, v{base+y*stride+o}")
    sum8(128, 4)
    a(f"v_cvt_pk_bf16_f32 v128, v128, v130\nv_lshlrev_b32 v20, 2, v1\nds_write_b32 v20, v128 offset:{QL}")
    a("s_waitcnt lgkmcnt(0)\ns_barrier")
    red4(12, RED_G, 20); red4(16, RED_U, 28); a("s_waitcnt lgkmcnt(0)"); sum4(12, 20); sum4(16, 28)
    a("s_lshl_b32 s43, s2, 11\ns_add_u32 s40, s43, %d" % H0GU)
    a("buffer_store_dwordx4 v[12:15], v6, s[56:59], s40 offen sc1\nbuffer_store_dwordx4 v[16:19], v6, s[56:59], s40 offen offset:1024 sc1")
    a("s_lshl_b32 s31, s28, 14\ns_add_u32 s44, s31, %d\ns_add_u32 s45, s44, 4096\ns_add_u32 s46, s44, 8192\ns_add_u32 s47, s44, 12288" % H0GU)
    if maskpoll: a("s_sleep 100")
    poll("L_pg", [f"buffer_load_dwordx4 v[{128+4*n}:{131+4*n}], v6, s[56:59], s{44+n//4} offen offset:{1024*(n%4)} sc1" for n in range(16)],
         [129 + 2 * i for i in range(32)], sleep=(100 if maskpoll else 1))
    stamp(3)
    sum8(128, 8); sum8(132, 8)
    for v in (128, 130, 132, 134): rbf(v)
    a("s_mov_b32 s48, 0x3d372713\ns_mov_b32 s49, 0xc0135761")
    for g, u in ((128, 132), (130, 134)):
        a(f"v_mul_f32 v20, v{g}, v{g}\nv_fma_f32 v20, v20, s48, 1.0\nv_mul_f32 v20, v20, v{g}\nv_mul_f32 v20, s49, v20\nv_exp_f32 v20, v20\nv_add_f32 v20, 1.0, v20\nv_rcp_f32 v20, v20\nv_mul_f32 v{g}, v{g}, v20")
        rbf(g)
        a(f"v_mul_f32 v{g}, v{g}, v{u}")
    a(f"v_cvt_pk_bf16_f32 v20, v128, v128\nv_cvt_pk_bf16_f32 v21, v130, v130\nds_write_b64 v9, v[20:21] offset:{HL}")
    a("s_waitcnt lgkmcnt(0)\ns_barrier")
    a(f"ds_read_b128 v[20:23], v8 offset:{MX}\ns_waitcnt lgkmcnt(0)\nv_max_f32 v20, v20, v21\nv_max3_f32 v16, v20, v22, v23")
    a("s_add_u32 s40, s43, %d\ns_add_u32 s41, s43, %d" % (H1, H2))
    a("v_and_b32 v36, 31, v1\nv_lshlrev_b32 v36, 14, v36\nv_lshrrev_b32 v37, 5, v1\nv_lshl_add_u32 v36, v37, 10, v36")
    a("s_lshl_b32 s31, s29, 11\ns_lshl_b32 s42, s28, 5\ns_add_u32 s42, s42, s31\ns_add_u32 s42, s42, %d" % H2)
    a("s_waitcnt vmcnt(0)")
    a("v_lshlrev_b32 v40, 16, v10\nv_and_b32 v41, 0xffff0000, v10\nv_lshlrev_b32 v42, 16, v11\nv_and_b32 v43, 0xffff0000, v11")
    a("s_barrier")
    stamp(4)
    red4(12, RED_O, 20); a(f"ds_read_b128 v[28:31], v8 offset:{LS}\ns_waitcnt lgkmcnt(0)"); sum4(12, 20)
    a("buffer_store_dwordx4 v[12:15], v6, s[56:59], s40 offen sc1")
    a("v_add_f32 v28, v28, v29\nv_add_f32 v30, v30, v31\nv_add_f32 v18, v28, v30")
    a("s_mov_b64 exec, 1\nbuffer_store_dwordx4 v[16:19], v8, s[56:59], s40 offen offset:1024 sc1\ns_mov_b64 exec, -1")
    a("s_barrier")
    stamp(5)
    red4(12, RED_A, 20); red4(16, RED_F, 28); a("s_waitcnt lgkmcnt(0)"); sum4(12, 20); sum4(16, 28)
    a("buffer_store_dwordx4 v[12:15], v6, s[56:59], s41 offen sc1\nbuffer_store_dwordx4 v[16:19], v6, s[56:59], s41 offen offset:1024 sc1")
    poll("L_p2", ["buffer_load_dwordx4 v[128:131], v36, s[56:59], s42 offen sc1", "buffer_load_dwordx4 v[132:135], v36, s[56:59], s42 offen offset:16 sc1"],
         [129, 131, 133, 135], sleep=sl2)
    stamp(6)
    T = (128, 130, 132, 134)
    for r in (8, 4, 2, 1):
        for v in T: a(f"v_add_f32_dpp v{v}, v{v}, v{v} row_ror:{r} row_mask:0xf bank_mask:0xf")
    for v in T: a(f"v_add_f32_dpp v{v}, v{v}, v{v} row_bcast:15 row_mask:0xa bank_mask:0xf")
    for v in T: rbf(v)
    for i, v in enumerate(T): a(f"v_readlane_b32 s{44+i}, v{v}, 48")
    for i, v in enumerate(T): a(f"v_add_f32 v{v}, v{v}, v{40+i}")
    for v in T: rbf(v)
    for i, v in enumerate(T): a(f"v_add_f32 v{v}, s{44+i}, v{v}")
    a("v_cvt_pk_bf16_f32 v20, v128, v130\nv_cvt_pk_bf16_f32 v21, v132, v134")
    a("s_mov_b64 exec, 0x10000\nbuffer_store_dwordx2 v[20:21], v8, s[68:71], s75 offen")
    a("s_cmp_lg_u32 s2, 0\ns_cbranch_scc1 L_noep\nbuffer_store_dword v13, v8, s[56:59], 0 offen sc1\nL_noep:")
    if diag:
        a("s_waitcnt vmcnt(0)")
        stamp(7)
        a("s_mov_b32 s31, 64")
        a("L_stamps:")
        a("s_waitcnt lgkmcnt(0)\ns_mov_b64 exec, 1")
        if dbgout:
            a("v_mov_b32 v8, 0\ns_cmp_lg_u32 s31, 0\ns_cbranch_scc1 L_dbgc")
            for n, k in enumerate((0, 2, 3, 4, 5)):
                a(f"v_mov_b32 v12, s{84+2*k}\nv_not_b32 v13, v12\nglobal_atomic_umax v8, v12, s[24:25] offset:{8*n}\nglobal_atomic_umax v8, v13, s[24:25] offset:{8*n+4}")
            a("s_endpgm\nL_dbgc:")
            for n, k in enumerate((2, 6, 7)):
                a(f"v_mov_b32 v12, s{84+2*k}\nv_not_b32 v13, v12\nglobal_atomic_umax v8, v12, s[24:25] offset:{40+8*n}\nglobal_atomic_umax v8, v13, s[24:25] offset:{44+8*n}")
        else:
            a("s_add_u32 s26, s26, 0x8000000\ns_addc_u32 s27, s27, 0\ns_lshl_b32 s74, s2, 7\ns_add_u32 s74, s74, s31\nv_mov_b32 v8, s74")
            for q in range(4):
                for e in range(4): a(f"v_mov_b32 v{12+e}, s{84+4*q+e}")
                a(f"global_store_dwordx4 v8, v[12:15], s[26:27] offset:{16*q}")
                a("s_nop 2")
    a("L_exit:\ns_endpgm")

    out = HDR
    out += "; Override launch geometry by editing the next line (default: block=256,\n"
    out += f"; @launch grid=(256,1,1) block=(320,1,1) lds={LDS_BYTES}\n"
    out += f'.amdgcn_target "amdgcn-amd-amdhsa--gfx950"\n.text\n.globl {NAME}\n.p2align 8\n.type {NAME},@function\n{NAME}:\n'
    out += a.text()
    out += f""".section .rodata,"a"
.p2align 6
.amdhsa_kernel {NAME}
  .amdhsa_next_free_vgpr 256
  .amdhsa_next_free_sgpr 102
  .amdhsa_accum_offset 256
  .amdhsa_group_segment_fixed_size 0
  .amdhsa_kernarg_size 96
  .amdhsa_user_sgpr_count 2
  .amdhsa_user_sgpr_kernarg_segment_ptr 1
  .amdhsa_system_sgpr_workgroup_id_x 1
  .amdhsa_float_denorm_mode_32 3
.end_amdhsa_kernel
"""
    return out, LDS_BYTES

if __name__ == "__main__":
    kw = {}
    for x in sys.argv[2:]:
        k, v = x.split("=")
        try: v = int(v)
        except ValueError: pass
        kw[k] = v
    s, lds = gen(**kw)
    open(sys.argv[1], "w").write(s)
    print("lds", lds)
```

```python
import sys
from asmlib import Asm

NAME = "parallel_sum__mha_block_cached__glu_gated_geglu__decode_kernel"
HDR = open("parallel_sum__mha_block_cached__glu_gated_geglu__decode.s.ref").read().split("; Override launch")[0]

H0Q, H0GU, H1, H2 = 0x1000, 0x50000, 0xD0000, 0x150000
PHI, REF = 0x1D0000, 0x1F0000
WS_BYTES = 0x200000
SC = 0
RED_Q, RED_G, RED_U, RED_O, RED_A, RED_F = [32768 + 2048 * i for i in range(6)]
QL = 32768 + 12288
HL = QL + 256
MX = HL + 1024
LS = MX + 16
FL = LS + 16
RF = FL + 16
PH = RF + 16
LDS_BYTES = PH + 32

LOG2E = 0x3fb8aa3b
SCALE = 0x3db504f3

def gen(diag=False, G0=4, GP=8, GG=2, GR=4, slope=1, noex=0, NWT=8, CSL=8, GEX=60, fixed=0, DL='5', TH='', T0=200, TAU=220, DT=5, early=4, dbgout=0, ser=0, maskpoll=1, sl1=1, sl2=1, D=8, DS=8, D2=0, NB2=0, pol_w="nt", pol_gu="nt", pol_kv="nt"):
    a = Asm()
    def stamp(i, mode=1):
        if diag == mode or (diag and i in (0, 7)) or (diag and incomm[0]):
            a(f"s_memrealtime s[{84+2*i}:{85+2*i}]")
    incomm = [False]
    def series(k):
        if not ser: return
        if k == 0: a("s_memrealtime s[100:101]")
        if k == 5: a("s_waitcnt lgkmcnt(0)\ns_mov_b32 m0, s71\ns_nop 0\nv_writelane_b32 v255, s100, m0\ns_add_u32 s71, s71, 1")
    def srd(n, lo, hi, size):
        a(f"s_mov_b32 s{n}, {lo}\ns_mov_b32 s{n+1}, {hi}\ns_mov_b32 s{n+2}, {size}\ns_mov_b32 s{n+3}, 0x20000")
    def wave_reduce(v, t, op):
        for r in (8, 4, 2, 1):
            a(f"{op}_dpp v{v}, v{v}, v{v} row_ror:{r} row_mask:0xf bank_mask:0xf")
        a(f"v_mov_b32 v{t}, v{v}\nv_permlane16_swap_b32 v{v}, v{t}\n{op} v{v}, v{v}, v{t}")
        a(f"v_mov_b32 v{t}, v{v}\nv_permlane32_swap_b32 v{v}, v{t}\n{op} v{v}, v{v}, v{t}")
    def rbf(v):
        a(f"v_cvt_pk_bf16_f32 v{v}, v{v}, v{v}\nv_and_b32 v{v}, 0xffff0000, v{v}")
    def buildA(buf, P, c):
        base = 24 + 4 * buf
        for t in range(4):
            a(f"v_and_b32_dpp v{base+t}, v{P}, v{120+t} row_newbcast:{c} row_mask:0xf bank_mask:0xf")
    def mfma(acc, buf, breg, first):
        base = 24 + 4 * buf
        a(f"v_mfma_f32_16x16x32_bf16 v[{acc}:{acc+3}], v[{base}:{base+3}], v[{breg}:{breg+3}], " + ("0" if first else f"v[{acc}:{acc+3}]"))
    def writeD(acc, off):
        a(f"s_mov_b64 exec, s[78:79]\nds_write_b128 v225, v[{acc}:{acc+3}] offset:{off}\ns_mov_b64 exec, -1")
    def poll(label, loads, tagregs, acc=250, t1=251, t2=252, sleep=1):
        a.fence()
        a(f"s_mov_b32 s77, 0x100000")
        a(f"{label}:")
        for l in loads: a(l)
        a("s_waitcnt vmcnt(0)")
        a(f"v_xor_b32 v{acc}, s30, v{tagregs[0]}")
        rest = tagregs[1:]
        while len(rest) >= 2:
            a(f"v_xor_b32 v{t1}, s30, v{rest[0]}\nv_xor_b32 v{t2}, s30, v{rest[1]}\nv_or3_b32 v{acc}, v{acc}, v{t1}, v{t2}")
            rest = rest[2:]
        if rest:
            a(f"v_xor_b32 v{t1}, s30, v{rest[0]}\nv_or_b32 v{acc}, v{acc}, v{t1}")
        a(f"v_cmp_ne_u32 vcc, 0, v{acc}")
        a(f"s_cmp_eq_u64 vcc, 0\ns_cbranch_scc1 {label}_ok")
        if maskpoll: a("s_mov_b64 exec, vcc")
        a(f"s_sub_u32 s77, s77, 1\ns_cmp_eq_u32 s77, 0\ns_cbranch_scc1 {label}_ok\ns_sleep {sleep}\ns_branch {label}")
        a(f"{label}_ok:")
        a("s_mov_b64 exec, -1")
    def poll_rows(label, loads, sbase, sleep=1):
        a.fence()
        n = len(loads)
        a(f"s_mov_b32 s77, 0x100000\ns_mov_b32 s76, {(1 << n) - 1}")
        a(f"{label}:")
        for i, (l, _, _) in enumerate(loads):
            a(f"s_bitcmp1_b32 s76, {i}\ns_cbranch_scc0 {label}_s{i}")
            a(l)
            a(f"{label}_s{i}:")
        a("s_waitcnt vmcnt(0)")
        for i, (_, ta, tb) in enumerate(loads):
            a(f"v_xor_b32 v250, s30, v{ta}\nv_xor_b32 v251, s30, v{tb}\nv_or_b32 v250, v250, v251\nv_cmp_ne_u32 s[{sbase+2*i}:{sbase+2*i+1}], 0, v250")
        a("s_mov_b32 s76, 0")
        for i in range(n):
            a(f"s_cmp_lg_u64 s[{sbase+2*i}:{sbase+2*i+1}], 0\ns_cselect_b32 s74, {1 << i}, 0\ns_or_b32 s76, s76, s74")
        a(f"s_cmp_eq_u32 s76, 0\ns_cbranch_scc1 {label}_ok")
        a(f"s_sub_u32 s77, s77, 1\ns_cmp_eq_u32 s77, 0\ns_cbranch_scc1 {label}_ok\ns_sleep {sleep}\ns_branch {label}")
        a(f"{label}_ok:")

    a("s_cmp_ge_u32 s2, 256\ns_cbranch_scc1 L_exit")
    stamp(0)
    a("s_memrealtime s[66:67]")
    a("s_load_dwordx16 s[4:19], s[0:1], 0\ns_load_dwordx8 s[20:27], s[0:1], 64")
    a("v_lshrrev_b32 v5, 6, v0\nv_and_b32 v1, 63, v0\nv_readfirstlane_b32 s3, v5")
    a("v_lshrrev_b32 v2, 4, v1\nv_and_b32 v3, 15, v1")
    a("s_lshr_b32 s28, s2, 3\ns_and_b32 s29, s2, 7")
    a("s_mov_b32 s78, -1\ns_mov_b32 s79, 0")
    a("v_lshlrev_b32 v6, 4, v1")
    a("v_lshlrev_b32 v7, 4, v3")
    a("s_lshl_b32 s74, s29, 2\ns_add_u32 s74, s74, s3\ns_lshl_b32 s74, s74, 5")
    a("s_waitcnt lgkmcnt(0)")
    stamp(1, 2)
    a("s_load_dword s30, s[26:27], 0")
    srd(52, "s4", "s5", 2048)
    srd(56, "s26", "s27", WS_BYTES)
    a("s_cmp_eq_u32 s3, 4\ns_cbranch_scc1 L_comm")

    a("buffer_load_dwordx4 v[96:99], v6, s[52:55], 0 offen\nbuffer_load_dwordx4 v[100:103], v6, s[52:55], 0 offen offset:1024")
    a("v_and_b32 v8, 7, v3\nv_lshl_add_u32 v8, v8, 2, v2\nv_lshlrev_b32 v8, 1, v8\ns_lshl_b32 s75, s74, 1")
    a("buffer_load_ushort v9, v8, s[52:55], s75 offen")
    srd(40, "s10", "s11", 1024 * 8192)
    a("v_lshl_add_u32 v10, v2, 13, v7")
    a("s_lshl_b32 s75, s74, 13\ns_lshl_b32 s76, s28, 8\ns_add_u32 s75, s75, s76")
    for i in range(8):
        a(f"buffer_load_dwordx4 v[{128+4*i}:{131+4*i}], v10, s[40:43], s75 offen {pol_w}")
        if i < 7: a("s_add_u32 s75, s75, 32768")
    srd(44, "s16", "s17", 1024 * 7168)
    srd(48, "s18", "s19", 1024 * 7168)
    a("v_mul_u32_u24 v11, 7168, v2\nv_add_u32 v11, v11, v7")
    a("v_cmp_gt_u32 vcc, 14, v3\nv_mov_b32 v12, 0x80000000\nv_cndmask_b32 v11, v12, v11, vcc")
    a("s_mul_i32 s76, s74, 7168\ns_mul_i32 s31, s28, 224\ns_add_u32 s76, s76, s31\ns_mov_b32 s75, s76")
    def gload(i):
        a(f"buffer_load_dwordx4 v[{160+4*i}:{163+4*i}], v11, s[44:47], s75 offen {pol_gu}\ns_add_u32 s75, s75, {4*7168}")
    def uload(i):
        a(f"buffer_load_dwordx4 v[{192+4*i}:{195+4*i}], v11, s[48:51], s76 offen {pol_gu}\ns_add_u32 s76, s76, {4*7168}")
    a("s_barrier")
    a("s_lshl_b32 s31, s2, 21\ns_add_u32 s32, s6, s31\ns_addc_u32 s33, s7, 0\ns_mov_b32 s34, 0x200000\ns_mov_b32 s35, 0x20000")
    a("s_add_u32 s36, s8, s31\ns_addc_u32 s37, s9, 0\ns_mov_b32 s38, 0x200000\ns_mov_b32 s39, 0x20000")
    a("s_lshl_b32 s31, s3, 10\nv_add_u32 v4, s31, v6")
    a("s_mov_b32 s72, 0")
    if ser: a("s_mov_b32 s71, 0\nv_mov_b32 v255, 0")
    a("v_and_b32 v12, 1, v3\nv_lshrrev_b32 v13, 1, v3\nv_cmp_eq_u32 vcc, 1, v12\nv_mov_b32 v14, 0xffff\nv_mov_b32 v15, 0xffff0000\nv_cndmask_b32 v14, v14, v15, vcc")
    for t in range(4):
        a(f"v_cmp_eq_u32 vcc, {t}, v13\nv_cndmask_b32 v{120+t}, 0, v14, vcc")
    a("v_cmp_eq_u32 s[82:83], 1, v12\nv_and_b32 v13, 1, v13\nv_cmp_eq_u32 s[80:81], 1, v13")
    a("s_lshl_b32 s31, s3, 9\nv_lshlrev_b32 v225, 5, v3\nv_lshl_add_u32 v225, v2, 4, v225\nv_add_u32 v225, s31, v225")
    a("s_lshl_b32 s31, s3, 13\nv_lshlrev_b32 v224, 2, v1\nv_add_u32 v224, s31, v224")
    a("s_waitcnt vmcnt(8)")
    stamp(2, 2)
    for i in range(early): gload(i)
    for k in range(8):
        a(f"v_lshlrev_b32 v{104+2*k}, 16, v{96+k}\nv_and_b32 v{105+2*k}, 0xffff0000, v{96+k}")
    a("v_add_f32 v12, v104, v105\nv_add_f32 v13, v106, v107\nv_add_f32 v14, v108, v109\nv_add_f32 v15, v110, v111")
    a("v_add_f32 v16, v112, v113\nv_add_f32 v17, v114, v115\nv_add_f32 v18, v116, v117\nv_add_f32 v19, v118, v119")
    a("v_add_f32 v12, v12, v13\nv_add_f32 v14, v14, v15\nv_add_f32 v16, v16, v17\nv_add_f32 v18, v18, v19")
    a("v_add_f32 v12, v12, v14\nv_add_f32 v16, v16, v18\nv_add_f32 v12, v12, v16")
    wave_reduce(12, 13, "v_add_f32")
    a("v_mul_f32 v12, 0x3a800000, v12")
    for k in range(16):
        a(f"v_sub_f32 v{104+k}, v{104+k}, v12")
    a("v_mul_f32 v14, v104, v104\nv_mul_f32 v15, v105, v105\nv_mul_f32 v16, v106, v106\nv_mul_f32 v17, v107, v107")
    for k in range(4, 16):
        a(f"v_fmac_f32 v{14+k%4}, v{104+k}, v{104+k}")
    a("v_add_f32 v14, v14, v15\nv_add_f32 v16, v16, v17\nv_add_f32 v14, v14, v16")
    wave_reduce(14, 13, "v_add_f32")
    a("v_mul_f32 v14, 0x3a800000, v14")
    rbf(14); rbf(12)
    a("v_add_f32 v14, 0x3727c5ac, v14")
    rbf(14)
    a("v_sqrt_f32 v14, v14")
    rbf(14)
    a("v_rcp_f32 v14, v14\nv_lshlrev_b32 v9, 16, v9\nv_sub_f32 v9, v9, v12")
    rbf(9)
    a("v_mul_f32 v9, v9, v14\nv_cvt_pk_bf16_f32 v124, v9, v9")
    stamp(3, 2)
    def stage1(acc, wbase):
        buildA(0, 124, 0)
        for i in range(8):
            if i < 7: buildA((i + 1) & 1, 124, i + 1)
            mfma(acc, i & 1, wbase + 4 * i, i == 0)
    a(f"s_waitcnt vmcnt({early})")
    stamp(4, 2)
    for i in range(early, 8): gload(i)
    stage1(12, 128)
    writeD(12, RED_Q)
    a(f"s_lshl_b32 s31, s3, 2\nv_mov_b32 v16, s31\nv_mov_b32 v17, 1\nds_write_b32 v16, v17 offset:{FL}")
    stamp(1); stamp(5, 2)
    def kslot(n):
        n %= 32
        return 32 + 4 * n if n < 16 else 128 + 4 * (n - 16)
    def issueS(reg):
        a(f"buffer_load_dwordx4 v[{reg}:{reg+3}], v4, s[32:35], s72 offen {pol_kv}\ns_add_u32 s72, s72, 4096")
    WDR = [96, 100, 104, 108, 112, 116, 228]
    WO0 = 192
    def wsetup():
        srd(40, "s12", "s13", 4096 * 2048)
        srd(44, "s20", "s21", 3584 * 2048)
        a("v_lshl_add_u32 v240, v2, 14, v7\nv_lshl_add_u32 v241, v2, 11, v7")
        a("s_lshl_b32 s31, s28, 2\ns_add_u32 s31, s31, s3\ns_lshl_b32 s75, s31, 16\ns_mul_i32 s74, s31, %d" % (28 * 2048))
        a("s_lshl_b32 s31, s29, 8\ns_add_u32 s75, s75, s31\ns_add_u32 s74, s74, s31")
    wl_all = []
    for i in range(7):
        wl_all.append(f"buffer_load_dwordx4 v[{WDR[i]}:{WDR[i]+3}], v241, s[44:47], s74 offen {pol_w}\ns_add_u32 s74, s74, 8192")
    for t in range(8):
        wl_all.append(f"buffer_load_dwordx4 v[{WO0+4*t}:{WO0+3+4*t}], v240, s[40:43], s75 offen {pol_w}\ns_add_u32 s75, s75, 2048")
    assert DS <= 8
    for i in range(8):
        a(f"s_waitcnt vmcnt({DS-1})")
        uload(i)
    for n in range(32):
        a(f"s_waitcnt vmcnt({DS-1})")
        issueS(kslot(n))
        if n == 0:
            stage1(16, 160)
        if n == DS - 1:
            stage1(20, 192)
            writeD(16, RED_G)
            writeD(20, RED_U)
        if n == 15 and NWT < 15:
            wsetup()
            for x in wl_all[:15 - NWT]:
                a(f"s_waitcnt vmcnt({DS-1})"); a(x)
    a("v_mov_b32 v126, 0xff800000\nv_mov_b32 v127, 0\ns_mov_b32 s76, %d" % SCALE)
    stamp(6, 2)
    a("s_waitcnt lgkmcnt(0)\ns_barrier")
    stamp(2)
    a(f"ds_read_b128 v[8:11], v7 offset:{QL}\ns_waitcnt lgkmcnt(0)")
    levels = [int(x) for x in str(DL).split("-")]
    ths = [int(x) for x in str(TH).split("/")] if TH != "" else []
    assert len(ths) == len(levels) - 1
    a(f"s_mov_b32 s70, {len([t for t in ths if t < 0])}\ns_mov_b32 s69, 0\ns_mov_b32 s67, 0\ns_add_u32 s66, s66, {T0}")
    a("s_lshl_b32 s31, s3, 3\nv_mov_b32 v246, s31\nv_mov_b32 v247, 0")
    def control(k):
        if k == 7: a(f"s_memrealtime s[64:65]\nds_read_b64 v[242:243], v247 offset:{RF}")
        if k == 12:
            a("s_waitcnt lgkmcnt(0)\nv_readfirstlane_b32 s62, v242\nv_readfirstlane_b32 s63, v243")
            a("s_sub_u32 s68, s64, s69\ns_add_u32 s69, s69, %d\ns_add_u32 s67, s67, 1" % TAU)
            a(f"v_mov_b32 v244, s68\nv_mov_b32 v245, s67\nds_write_b64 v246, v[244:245] offset:{PH}")
            if fixed: a("s_sub_u32 s68, s68, s66")
            else: a("s_sub_u32 s68, s68, s62\ns_and_b32 s68, s68, s63")
            a("s_mov_b32 s70, 0")
            for i, t in enumerate(ths):
                a(f"s_cmp_gt_i32 s68, {t}\ns_addc_u32 s70, s70, 0")
    uid = [0]
    def variants(fn):
        uid[0] += 1; u = uid[0]
        a.fence()
        for i in range(1, len(levels)):
            a(f"s_cmp_eq_u32 s70, {i}\ns_cbranch_scc1 L_v{u}_{i}")
        for i, d in enumerate(levels):
            if i: a(f"L_v{u}_{i}:")
            fn(d)
            a.fence()
            if i < len(levels) - 1: a(f"s_branch L_v{u}_end")
        a(f"L_v{u}_end:")

    def kgroup(half, d):
        for k in range(16):
            series(k); control(k)
            r = kslot(16 * half + k); acc = 12 + k % 4
            a(f"v_dot2_f32_bf16 v{acc}, v{r}, v8, 0\nv_dot2_f32_bf16 v{acc}, v{r+1}, v9, v{acc}\nv_dot2_f32_bf16 v{acc}, v{r+2}, v10, v{acc}\nv_dot2_f32_bf16 v{acc}, v{r+3}, v11, v{acc}")
            a(f"s_waitcnt vmcnt({d-1})")
            issueS(r)
            if k % 4 == 3:
                C = 20 + k // 4
                a("v_add_f32_dpp v16, v12, v12 row_ror:8 row_mask:0xf bank_mask:0x3")
                a("v_add_f32_dpp v17, v14, v14 row_ror:8 row_mask:0xf bank_mask:0x3")
                a("v_add_f32_dpp v16, v13, v13 row_ror:8 row_mask:0xf bank_mask:0xc")
                a("v_add_f32_dpp v17, v15, v15 row_ror:8 row_mask:0xf bank_mask:0xc")
                a(f"v_add_f32_dpp v{C}, v16, v16 row_shl:4 row_mask:0xf bank_mask:0x5")
                a(f"v_add_f32_dpp v{C}, v17, v17 row_shr:4 row_mask:0xf bank_mask:0xa")
        for C in range(20, 24):
            a(f"v_add_f32_dpp v{C}, v{C}, v{C} quad_perm:[2,3,0,1] row_mask:0xf bank_mask:0xf")
        a("v_cndmask_b32 v20, v20, v21, s[80:81]\nv_cndmask_b32 v22, v22, v23, s[80:81]")
        a("v_add_f32_dpp v20, v20, v20 quad_perm:[1,0,3,2] row_mask:0xf bank_mask:0xf")
        a("v_add_f32_dpp v22, v22, v22 quad_perm:[1,0,3,2] row_mask:0xf bank_mask:0xf")
        a("v_cndmask_b32 v18, v20, v22, s[82:83]")
        rbf(18)
        a("v_mul_f32 v18, s76, v18")
        rbf(18)
        a("v_max_f32 v126, v126, v18\nds_write_b32 v224, v18\nv_add_u32 v224, 256, v224")
    a("s_mov_b32 s73, 16")
    a("L_kloop:")
    a("s_cmp_lg_u32 s73, 1\ns_cbranch_scc1 L_knosw\ns_mov_b32 s32, s36\ns_mov_b32 s33, s37\ns_mov_b32 s72, 0\nL_knosw:")
    variants(lambda d: kgroup(0, d))
    variants(lambda d: kgroup(1, d))
    a("s_sub_u32 s73, s73, 1\ns_cmp_lg_u32 s73, 0\ns_cbranch_scc1 L_kloop")
    wave_reduce(126, 13, "v_max_f32")
    a(f"s_lshl_b32 s31, s3, 2\nv_mov_b32 v13, s31\nds_write_b32 v13, v126 offset:{MX}")
    a("v_subrev_u32 v224, 8192, v224")
    stamp(3)
    a("ds_read_b32 v125, v224\nv_mov_b32 v226, v126")
    a("s_mov_b32 s76, %d" % LOG2E)
    a("s_waitcnt lgkmcnt(0)")
    def mkP():
        a("v_sub_f32 v125, v125, v226\nv_mul_f32 v125, s76, v125\nv_exp_f32 v125, v125\nv_add_f32 v127, v127, v125\nv_cvt_pk_bf16_f32 v125, v125, v125")
    mkP()
    a("v_mov_b32 v124, v125\nv_mov_b32 v12, 0\nv_mov_b32 v13, 0\nv_mov_b32 v14, 0\nv_mov_b32 v15, 0")
    lam = [4 * (((c >> 1) & 1) + 2 * (c & 1)) + [0, 2, 1, 3][c >> 2] for c in range(16)]
    inv = [lam.index(i) for i in range(16)]
    buildA(0, 124, inv[0])
    def vgroup(half, pre, post, last=False, ctl=True):
        for k in range(16):
            series(k)
            if ctl: control(k)
            if k == 0 and not last:
                a("v_add_u32 v224, 256, v224\nds_read_b32 v125, v224")
            if k == 6 and not last:
                a("s_waitcnt lgkmcnt(0)"); mkP()
            if k < 15: buildA((k + 1) & 1, 124, inv[k + 1])
            elif not last:
                buildA(0, 125, inv[0]); a("v_mov_b32 v124, v125")
            pre(k)
            mfma(12, k & 1, kslot(16 * half + k), False)
            post(k)
            if last and k == 2:
                wave_reduce(127, 16, "v_add_f32")
                a(f"s_lshl_b32 s31, s3, 2\nv_mov_b32 v16, s31\nds_write_b32 v16, v127 offset:{LS}")
    def vsteady(half, d):
        def post(k):
            a(f"s_waitcnt vmcnt({d-1})"); issueS(kslot(16 * half + k))
        vgroup(half, lambda k: None, post)
    a("s_mov_b32 s73, 15")
    a("L_vloop:")
    variants(lambda d: vsteady(0, d))
    variants(lambda d: vsteady(1, d))
    a("s_sub_u32 s73, s73, 1\ns_cmp_lg_u32 s73, 0\ns_cbranch_scc1 L_vloop")
    if NWT == 15: wsetup()
    wl = wl_all[15 - NWT:]
    nw = [0]
    dmax = max(levels)
    wsteps = [n for n in range(32) if (n < 32 - DT and n % 5 == 4) or n >= 32 - DT]
    def fin(half):
        def pre(k):
            n = 16 * half + k
            if n >= 32 - dmax: a(f"s_waitcnt vmcnt({31 - n + nw[0]})")
        def post(k):
            n = 16 * half + k
            if n in wsteps and nw[0] < len(wl):
                a(wl[nw[0]]); nw[0] += 1
        vgroup(half, pre, post, last=(half == 1), ctl=False)
    fin(0); fin(1)
    writeD(12, RED_O)
    for x in wl[nw[0]:]: a(x)
    a("s_waitcnt lgkmcnt(0)\ns_barrier")
    stamp(4)
    a(f"s_mul_i32 s31, s3, 112\nv_lshl_add_u32 v16, v3, 2, v2\nv_lshlrev_b32 v16, 2, v16\nv_add_u32 v16, s31, v16\nds_read_b32 v227, v16 offset:{HL}")
    a("v_and_b32 v16, 7, v3\nv_lshrrev_b32 v17, 3, v3\ns_lshl_b32 s31, s28, 14\ns_add_u32 s31, s31, %d" % H1)
    a("v_lshlrev_b32 v16, 11, v16\nv_add_u32 v16, s31, v16")
    a("v_lshlrev_b32 v17, 5, v17\nv_lshl_add_u32 v17, v2, 6, v17\ns_lshl_b32 s31, s3, 8\nv_add3_u32 v17, v17, s31, v16")
    a("s_waitcnt vmcnt(8) lgkmcnt(0)")
    buildA(0, 227, 0)
    for i in range(7):
        if i < 6: buildA((i + 1) & 1, 227, i + 1)
        mfma(20, i & 1, WDR[i], i == 0)
    writeD(20, RED_F)
    a("s_add_u32 s30, s30, 1")
    poll("L_p1", ["buffer_load_dwordx4 v[228:231], v17, s[56:59], 0 offen sc1",
                  "buffer_load_dwordx4 v[232:235], v17, s[56:59], 0 offen offset:16 sc1",
                  "buffer_load_dwordx4 v[236:239], v16, s[56:59], 0 offen offset:1024 sc1"], [229, 231, 233, 235, 237, 239], sleep=sl1)
    stamp(5)
    steps = ["quad_perm:[1,0,3,2]", "quad_perm:[2,3,0,1]", "row_half_mirror"]
    a("v_mov_b32 v240, v236")
    for s in steps: a(f"v_max_f32_dpp v240, v240, v240 {s} row_mask:0xf bank_mask:0xf")
    a("v_sub_f32 v236, v236, v240\nv_mul_f32 v236, s76, v236\nv_exp_f32 v236, v236")
    a("v_mul_f32 v238, v238, v236\nv_mul_f32 v228, v228, v236\nv_mul_f32 v230, v230, v236\nv_mul_f32 v232, v232, v236\nv_mul_f32 v234, v234, v236")
    for s in steps:
        for v in (238, 228, 230, 232, 234): a(f"v_add_f32_dpp v{v}, v{v}, v{v} {s} row_mask:0xf bank_mask:0xf")
    a("v_rcp_f32 v238, v238")
    for v in (228, 230, 232, 234): a(f"v_mul_f32 v{v}, v{v}, v238")
    for v in (228, 230, 232, 234): a(f"v_cvt_pk_bf16_f32 v{v}, v{v}, v{v}")
    seq = [(b, i) for b in range(2) for i in range(4)]
    buildA(0, 228, 0)
    for t, (b, i) in enumerate(seq):
        if t < 7:
            b2, i2 = seq[t + 1]; buildA((t + 1) & 1, 228 + 2 * i2, 8 * b2)
        mfma(16, t & 1, WO0 + 4 * t, t == 0)
    writeD(16, RED_A)
    a("s_waitcnt lgkmcnt(0)\ns_barrier")
    stamp(6)
    if ser:
        a("s_add_u32 s68, s26, 0x9000000\ns_addc_u32 s69, s27, 0\ns_lshl_b32 s31, s2, 2\ns_add_u32 s31, s31, s3\ns_lshl_b32 s31, s31, 8\nv_lshlrev_b32 v16, 2, v1\nv_add_u32 v16, s31, v16")
        a("global_store_dword v16, v255, s[68:69]")
    if diag:
        a("s_waitcnt lgkmcnt(0)\ns_getreg_b32 s98, hwreg(HW_REG_HW_ID)\ns_getreg_b32 s99, hwreg(HW_REG_XCC_ID)")
        a("s_cmp_lg_u32 s3, 0\ns_cbranch_scc1 L_exit\ns_mov_b32 s31, 0\ns_branch L_stamps")
    else:
        a("s_endpgm")

    a("L_comm:")
    incomm[0] = True
    a(f"v_mov_b32 v8, 0\nv_mov_b32 v20, 0\nv_mov_b32 v21, 0\nv_mov_b32 v22, 0\nv_mov_b32 v23, 0\nds_write_b128 v8, v[20:23] offset:{FL}\nds_write_b128 v8, v[20:23] offset:{RF}\nds_write_b128 v8, v[20:23] offset:{PH}\nds_write_b128 v8, v[20:23] offset:{PH+16}\ns_waitcnt lgkmcnt(0)\ns_barrier")
    a("s_lshl_b32 s31, s29, 8\ns_lshl_b32 s75, s28, 3\ns_add_u32 s75, s75, s31\nv_mov_b32 v8, 0")
    a("buffer_load_dwordx2 v[10:11], v8, s[52:55], s75 offen")
    srd(68, "s22", "s23", 2048)
    a("v_lshlrev_b32 v9, 3, v1")
    a("s_lshl_b32 s31, s2, 10\ns_add_u32 s40, s31, %d" % H0Q)
    a("s_lshl_b32 s31, s28, 13\ns_add_u32 s41, s31, %d\ns_add_u32 s42, s41, 4096" % H0Q)
    a("s_waitcnt lgkmcnt(0)\ns_add_u32 s30, s30, 1")
    def red4(dst, off, tmp):
        for w in range(4): a(f"ds_read_b64 v[{tmp+2*w}:{tmp+2*w+1}], v9 offset:{off+512*w}")
    def sum4(dst, tmp):
        a(f"v_add_f32 v{dst}, v{tmp}, v{tmp+2}\nv_add_f32 v{dst+2}, v{tmp+1}, v{tmp+3}\nv_add_f32 v{tmp+4}, v{tmp+4}, v{tmp+6}\nv_add_f32 v{tmp+5}, v{tmp+5}, v{tmp+7}")
        a(f"v_add_f32 v{dst}, v{dst}, v{tmp+4}\nv_add_f32 v{dst+2}, v{dst+2}, v{tmp+5}")
    a("v_mov_b32 v13, s30\nv_mov_b32 v15, s30\nv_mov_b32 v17, s30\nv_mov_b32 v19, s30")
    a.fence()
    a(f"L_fl:\nds_read_b128 v[20:23], v8 offset:{FL}\ns_waitcnt lgkmcnt(0)\nv_and_b32 v20, v20, v21\nv_and_b32 v22, v22, v23\nv_and_b32 v20, v20, v22\nv_readfirstlane_b32 s31, v20")
    a("s_cmp_eq_u32 s31, 1\ns_cbranch_scc1 L_fl_ok\ns_sleep 1\ns_branch L_fl\nL_fl_ok:")
    stamp(1)
    red4(12, RED_Q, 20); a("s_waitcnt lgkmcnt(0)"); sum4(12, 20)
    a("buffer_store_dwordx4 v[12:15], v6, s[56:59], s40 offen sc1")
    if maskpoll:
        poll_rows("L_p0", [(f"buffer_load_dwordx4 v[{128+4*jj}:{131+4*jj}], v6, s[56:59], s{41+jj//4} offen offset:{1024*(jj%4)} sc1", 129 + 4 * jj, 131 + 4 * jj) for jj in range(8)], 4)
    else:
        poll("L_p0", [f"buffer_load_dwordx4 v[{128+4*jj}:{131+4*jj}], v6, s[56:59], s{41+jj//4} offen offset:{1024*(jj%4)} sc1" for jj in range(8)],
             [129 + 2 * i for i in range(16)])
    stamp(2)
    def sum8(base, stride):
        for o in (0, 2):
            for (x, y) in ((0, 1), (2, 3), (4, 5), (6, 7), (0, 2), (4, 6), (0, 4)):
                a(f"v_add_f32 v{base+x*stride+o}, v{base+x*stride+o}, v{base+y*stride+o}")
    sum8(128, 4)
    a(f"v_cvt_pk_bf16_f32 v128, v128, v130\nv_lshlrev_b32 v20, 2, v1\nds_write_b32 v20, v128 offset:{QL}")
    a("s_waitcnt lgkmcnt(0)\ns_barrier")
    red4(12, RED_G, 20); red4(16, RED_U, 28); a("s_waitcnt lgkmcnt(0)"); sum4(12, 20); sum4(16, 28)
    a("s_lshl_b32 s43, s2, 11\ns_add_u32 s40, s43, %d" % H0GU)
    a("buffer_store_dwordx4 v[12:15], v6, s[56:59], s40 offen sc1\nbuffer_store_dwordx4 v[16:19], v6, s[56:59], s40 offen offset:1024 sc1")
    a("s_lshl_b32 s31, s28, 14\ns_add_u32 s44, s31, %d\ns_add_u32 s45, s44, 4096\ns_add_u32 s46, s44, 8192\ns_add_u32 s47, s44, 12288" % H0GU)
    if maskpoll: a("s_sleep 100")
    poll("L_pg", [f"buffer_load_dwordx4 v[{128+4*n}:{131+4*n}], v6, s[56:59], s{44+n//4} offen offset:{1024*(n%4)} sc1" for n in range(16)],
         [129 + 2 * i for i in range(32)], sleep=(100 if maskpoll else 1))
    stamp(3)
    sum8(128, 8); sum8(132, 8)
    for v in (128, 130, 132, 134): rbf(v)
    a("s_mov_b32 s48, 0x3d372713\ns_mov_b32 s49, 0xc0135761")
    for g, u in ((128, 132), (130, 134)):
        a(f"v_mul_f32 v20, v{g}, v{g}\nv_fma_f32 v20, v20, s48, 1.0\nv_mul_f32 v20, v20, v{g}\nv_mul_f32 v20, s49, v20\nv_exp_f32 v20, v20\nv_add_f32 v20, 1.0, v20\nv_rcp_f32 v20, v20\nv_mul_f32 v{g}, v{g}, v20")
        rbf(g)
        a(f"v_mul_f32 v{g}, v{g}, v{u}")
    a(f"v_cvt_pk_bf16_f32 v20, v128, v128\nv_cvt_pk_bf16_f32 v21, v130, v130\nds_write_b64 v9, v[20:21] offset:{HL}")
    sh = GP.bit_length() - 1
    assert GP == 1 << sh
    a("v_lshlrev_b32 v50, 7, v1")
    a(f"s_mov_b32 s44, {G0}\ns_mov_b32 s45, {G0+GG}\ns_mov_b32 s46, {G0+GR}\ns_mov_b32 s47, 0\ns_mov_b32 s51, 0\ns_mov_b32 s52, 0\ns_mov_b32 s53, 0\ns_mov_b32 s54, 0")
    a("s_xor_b32 s55, s28, s29\ns_and_b32 s55, s55, 3")
    a("s_lshr_b32 s48, s2, 2\ns_lshl_b32 s48, s48, 7\ns_add_u32 s48, s48, %d\ns_mov_b32 s49, %d" % (PHI, PHI))
    a("s_lshl_b32 s50, s29, 7\ns_add_u32 s50, s50, %d\ns_mov_b32 s60, %d" % (REF, REF))
    a("s_cmp_eq_u32 s2, 0\ns_cselect_b32 s45, s45, -1")
    if noex: a("s_mov_b32 s44, -1\ns_mov_b32 s45, -1\ns_mov_b32 s46, -1")
    a.fence()
    a("L_ctl:")
    a(f"ds_read_b128 v[20:23], v8 offset:{PH}\nds_read_b128 v[24:27], v8 offset:{PH+16}\ns_waitcnt lgkmcnt(0)")
    a("v_min_u32 v21, v21, v23\nv_min3_u32 v21, v21, v25, v27\nv_readfirstlane_b32 s31, v21")
    a(f"s_cmp_ge_u32 s31, {GEX}\ns_cbranch_scc1 L_ctl_end\ns_cmp_eq_u32 s31, s47\ns_cbranch_scc1 L_ctl_sleep\ns_mov_b32 s47, s31")
    a("v_sub_u32 v22, v22, v20\nv_sub_u32 v24, v24, v20\nv_sub_u32 v26, v26, v20\nv_add3_u32 v22, v22, v24, v26\nv_ashrrev_i32 v22, 2, v22\nv_add_u32 v12, v20, v22")
    a(f"s_cmp_lt_u32 s47, s44\ns_cbranch_scc1 L_ctl_g\ns_add_u32 s44, s44, {GP}\ns_cmp_lg_u32 s55, 0\ns_cbranch_scc1 L_ctl_g")
    a("s_mov_b64 exec, 1\nbuffer_store_dwordx2 v[12:13], v8, s[56:59], s48 offen sc1\ns_mov_b64 exec, -1\ns_add_u32 s48, s48, 8192")
    a("L_ctl_g:")
    a("s_cmp_lt_u32 s47, s45\ns_cbranch_scc1 L_ctl_rd")
    a("buffer_load_dwordx2 v[20:21], v50, s[56:59], s49 offen sc1\ns_waitcnt vmcnt(0)")
    a("v_cmp_ne_u32 vcc, s30, v21\ns_cmp_lg_u64 vcc, 0\ns_cbranch_scc1 L_ctl_rd")
    a("v_sub_u32 v20, v20, v12")
    wave_reduce(20, 21, "v_add_u32")
    a("v_ashrrev_i32 v20, 6, v20\nv_add_u32 v14, v12, v20")
    a("s_mov_b64 exec, 0xff\nbuffer_store_dwordx2 v[14:15], v50, s[56:59], s60 offen sc1\ns_mov_b64 exec, -1")
    a(f"s_add_u32 s45, s45, {GP}\ns_add_u32 s49, s49, 8192\ns_add_u32 s60, s60, 1024")
    a.fence()
    a("L_ctl_rd:")
    a("s_cmp_lt_u32 s47, s46\ns_cbranch_scc1 L_ctl_up")
    a("s_mov_b64 exec, 1\nbuffer_load_dwordx2 v[28:29], v8, s[56:59], s50 offen sc1\ns_waitcnt vmcnt(0)\nv_readfirstlane_b32 s31, v29\nv_readfirstlane_b32 s61, v28\ns_mov_b64 exec, -1")
    a("s_cmp_lg_u32 s31, s30\ns_cbranch_scc1 L_ctl_up")
    a("s_sub_u32 s52, s61, s51\ns_and_b32 s52, s52, s54")
    if not slope: a("s_mov_b32 s52, 0")
    a(f"s_mov_b32 s51, s61\ns_sub_u32 s53, s46, {GR + 1}\ns_mov_b32 s54, -1\ns_add_u32 s46, s46, {GP}\ns_add_u32 s50, s50, 1024")
    a("L_ctl_up:")
    a(f"s_sub_u32 s31, s47, s53\ns_mul_i32 s31, s31, s52\ns_ashr_i32 s31, s31, {sh}\ns_add_u32 s31, s31, s51")
    a(f"v_mov_b32 v30, s31\nv_mov_b32 v31, s54\nds_write_b64 v8, v[30:31] offset:{RF}")
    a(f"L_ctl_sleep:\ns_sleep {CSL}\ns_branch L_ctl")
    a("L_ctl_end:")
    a(f"ds_read_b128 v[44:47], v8 offset:{MX}\ns_waitcnt lgkmcnt(0)\nv_max_f32 v20, v44, v45\nv_max3_f32 v16, v20, v46, v47\ns_mov_b32 s31, {LOG2E}")
    for w in range(4): a(f"v_sub_f32 v{44+w}, v{44+w}, v16\nv_mul_f32 v{44+w}, s31, v{44+w}\nv_exp_f32 v{44+w}, v{44+w}")
    a("s_add_u32 s40, s43, %d\ns_add_u32 s41, s43, %d" % (H1, H2))
    a("v_and_b32 v36, 31, v1\nv_lshlrev_b32 v36, 14, v36\nv_lshrrev_b32 v37, 5, v1\nv_lshl_add_u32 v36, v37, 10, v36")
    a("s_lshl_b32 s31, s29, 11\ns_lshl_b32 s42, s28, 5\ns_add_u32 s42, s42, s31\ns_add_u32 s42, s42, %d" % H2)
    a("s_waitcnt vmcnt(0)")
    a("v_lshlrev_b32 v40, 16, v10\nv_and_b32 v41, 0xffff0000, v10\nv_lshlrev_b32 v42, 16, v11\nv_and_b32 v43, 0xffff0000, v11")
    a("s_barrier")
    stamp(4)
    red4(12, RED_O, 20); a(f"ds_read_b128 v[28:31], v8 offset:{LS}\ns_waitcnt lgkmcnt(0)")
    a("v_mul_f32 v12, v20, v44\nv_mul_f32 v14, v21, v44\nv_mul_f32 v18, v28, v44")
    for w in range(1, 4): a(f"v_fmac_f32 v12, v{20+2*w}, v{44+w}\nv_fmac_f32 v14, v{21+2*w}, v{44+w}\nv_fmac_f32 v18, v{28+w}, v{44+w}")
    a("buffer_store_dwordx4 v[12:15], v6, s[56:59], s40 offen sc1")
    a("s_mov_b64 exec, 1\nbuffer_store_dwordx4 v[16:19], v8, s[56:59], s40 offen offset:1024 sc1\ns_mov_b64 exec, -1")
    a("s_barrier")
    stamp(5)
    red4(12, RED_A, 20); red4(16, RED_F, 28); a("s_waitcnt lgkmcnt(0)"); sum4(12, 20); sum4(16, 28)
    a("buffer_store_dwordx4 v[12:15], v6, s[56:59], s41 offen sc1\nbuffer_store_dwordx4 v[16:19], v6, s[56:59], s41 offen offset:1024 sc1")
    poll("L_p2", ["buffer_load_dwordx4 v[128:131], v36, s[56:59], s42 offen sc1", "buffer_load_dwordx4 v[132:135], v36, s[56:59], s42 offen offset:16 sc1"],
         [129, 131, 133, 135], sleep=sl2)
    stamp(6)
    T = (128, 130, 132, 134)
    for r in (8, 4, 2, 1):
        for v in T: a(f"v_add_f32_dpp v{v}, v{v}, v{v} row_ror:{r} row_mask:0xf bank_mask:0xf")
    for v in T: a(f"v_add_f32_dpp v{v}, v{v}, v{v} row_bcast:15 row_mask:0xa bank_mask:0xf")
    for v in T: rbf(v)
    for i, v in enumerate(T): a(f"v_readlane_b32 s{44+i}, v{v}, 48")
    for i, v in enumerate(T): a(f"v_add_f32 v{v}, v{v}, v{40+i}")
    for v in T: rbf(v)
    for i, v in enumerate(T): a(f"v_add_f32 v{v}, s{44+i}, v{v}")
    a("v_cvt_pk_bf16_f32 v20, v128, v130\nv_cvt_pk_bf16_f32 v21, v132, v134")
    a("s_mov_b64 exec, 0x10000\nbuffer_store_dwordx2 v[20:21], v8, s[68:71], s75 offen")
    a("s_cmp_lg_u32 s2, 0\ns_cbranch_scc1 L_noep\nbuffer_store_dword v13, v8, s[56:59], 0 offen sc1\nL_noep:")
    if diag:
        a("s_waitcnt vmcnt(0)")
        stamp(7)
        a("s_mov_b32 s31, 64")
        a("L_stamps:")
        a("s_waitcnt lgkmcnt(0)\ns_mov_b64 exec, 1")
        if dbgout:
            a("v_mov_b32 v8, 0\ns_cmp_lg_u32 s31, 0\ns_cbranch_scc1 L_dbgc")
            for n, k in enumerate((0, 2, 3, 4, 5)):
                a(f"v_mov_b32 v12, s{84+2*k}\nv_not_b32 v13, v12\nglobal_atomic_umax v8, v12, s[24:25] offset:{8*n}\nglobal_atomic_umax v8, v13, s[24:25] offset:{8*n+4}")
            a("s_endpgm\nL_dbgc:")
            for n, k in enumerate((2, 6, 7)):
                a(f"v_mov_b32 v12, s{84+2*k}\nv_not_b32 v13, v12\nglobal_atomic_umax v8, v12, s[24:25] offset:{40+8*n}\nglobal_atomic_umax v8, v13, s[24:25] offset:{44+8*n}")
        else:
            a("s_add_u32 s26, s26, 0x8000000\ns_addc_u32 s27, s27, 0\ns_lshl_b32 s74, s2, 7\ns_add_u32 s74, s74, s31\nv_mov_b32 v8, s74")
            for q in range(4):
                for e in range(4): a(f"v_mov_b32 v{12+e}, s{84+4*q+e}")
                a(f"global_store_dwordx4 v8, v[12:15], s[26:27] offset:{16*q}")
                a("s_nop 2")
    a("L_exit:\ns_endpgm")

    out = HDR
    out += "; Override launch geometry by editing the next line (default: block=256,\n"
    out += f"; @launch grid=(256,1,1) block=(320,1,1) lds={LDS_BYTES}\n"
    out += f'.amdgcn_target "amdgcn-amd-amdhsa--gfx950"\n.text\n.globl {NAME}\n.p2align 8\n.type {NAME},@function\n{NAME}:\n'
    out += a.text()
    out += f""".section .rodata,"a"
.p2align 6
.amdhsa_kernel {NAME}
  .amdhsa_next_free_vgpr 256
  .amdhsa_next_free_sgpr 102
  .amdhsa_accum_offset 256
  .amdhsa_group_segment_fixed_size 0
  .amdhsa_kernarg_size 96
  .amdhsa_user_sgpr_count 2
  .amdhsa_user_sgpr_kernarg_segment_ptr 1
  .amdhsa_system_sgpr_workgroup_id_x 1
  .amdhsa_float_denorm_mode_32 3
.end_amdhsa_kernel
"""
    return out, LDS_BYTES

if __name__ == "__main__":
    kw = {}
    for x in sys.argv[2:]:
        k, v = x.split("=")
        try: v = int(v)
        except ValueError: pass
        kw[k] = v
    s, lds = gen(**kw)
    open(sys.argv[1], "w").write(s)
    print("lds", lds)
```

```python
import sys
from asmlib import Asm

NAME = "parallel_sum__mha_block_cached__glu_gated_geglu__decode_kernel"
HDR = open("parallel_sum__mha_block_cached__glu_gated_geglu__decode.s.ref").read().split("; Override launch")[0]

H0Q, H0GU, H1, H2 = 0x1000, 0x50000, 0xD0000, 0x150000
PHI, REF = 0x1D0000, 0x1F0000
WS_BYTES = 0x200000
SC = 0
RED_Q, RED_G, RED_U, RED_O, RED_A, RED_F = [32768 + 2048 * i for i in range(6)]
QL = 32768 + 12288
HL = QL + 256
MX = HL + 1024
LS = MX + 16
FL = LS + 16
RF = FL + 16
PH = RF + 16
LDS_BYTES = PH + 32

LOG2E = 0x3fb8aa3b
SCALE = 0x3db504f3

def gen(diag=False, spin=0, spinwg=-1, G0=4, GP=8, GG=2, GR=4, slope=1, noex=0, NWT=8, CSL=8, GEX=60, fixed=0, DL='5', TH='', T0=200, TAU=220, DT=5, early=4, dbgout=0, ser=0, maskpoll=1, sl1=1, sl2=1, D=8, DS=8, D2=0, NB2=0, pol_w="nt", pol_gu="nt", pol_kv="nt"):
    a = Asm()
    def stamp(i, mode=1):
        if diag == mode or (diag and i in (0, 7)) or (diag and incomm[0]):
            a(f"s_memrealtime s[{84+2*i}:{85+2*i}]")
    incomm = [False]
    def series(k):
        if not ser: return
        if k == 0: a("s_memrealtime s[100:101]")
        if k == 5: a("s_waitcnt lgkmcnt(0)\ns_mov_b32 m0, s71\ns_nop 0\nv_writelane_b32 v255, s100, m0\ns_add_u32 s71, s71, 1")
    def srd(n, lo, hi, size):
        a(f"s_mov_b32 s{n}, {lo}\ns_mov_b32 s{n+1}, {hi}\ns_mov_b32 s{n+2}, {size}\ns_mov_b32 s{n+3}, 0x20000")
    def wave_reduce(v, t, op):
        for r in (8, 4, 2, 1):
            a(f"{op}_dpp v{v}, v{v}, v{v} row_ror:{r} row_mask:0xf bank_mask:0xf")
        a(f"v_mov_b32 v{t}, v{v}\nv_permlane16_swap_b32 v{v}, v{t}\n{op} v{v}, v{v}, v{t}")
        a(f"v_mov_b32 v{t}, v{v}\nv_permlane32_swap_b32 v{v}, v{t}\n{op} v{v}, v{v}, v{t}")
    def rbf(v):
        a(f"v_cvt_pk_bf16_f32 v{v}, v{v}, v{v}\nv_and_b32 v{v}, 0xffff0000, v{v}")
    def buildA(buf, P, c):
        base = 24 + 4 * buf
        for t in range(4):
            a(f"v_and_b32_dpp v{base+t}, v{P}, v{120+t} row_newbcast:{c} row_mask:0xf bank_mask:0xf")
    def mfma(acc, buf, breg, first):
        base = 24 + 4 * buf
        a(f"v_mfma_f32_16x16x32_bf16 v[{acc}:{acc+3}], v[{base}:{base+3}], v[{breg}:{breg+3}], " + ("0" if first else f"v[{acc}:{acc+3}]"))
    def writeD(acc, off):
        a(f"s_mov_b64 exec, s[78:79]\nds_write_b128 v225, v[{acc}:{acc+3}] offset:{off}\ns_mov_b64 exec, -1")
    def poll(label, loads, tagregs, acc=250, t1=251, t2=252, sleep=1):
        a.fence()
        a(f"s_mov_b32 s77, 0x100000")
        a(f"{label}:")
        for l in loads: a(l)
        a("s_waitcnt vmcnt(0)")
        a(f"v_xor_b32 v{acc}, s30, v{tagregs[0]}")
        rest = tagregs[1:]
        while len(rest) >= 2:
            a(f"v_xor_b32 v{t1}, s30, v{rest[0]}\nv_xor_b32 v{t2}, s30, v{rest[1]}\nv_or3_b32 v{acc}, v{acc}, v{t1}, v{t2}")
            rest = rest[2:]
        if rest:
            a(f"v_xor_b32 v{t1}, s30, v{rest[0]}\nv_or_b32 v{acc}, v{acc}, v{t1}")
        a(f"v_cmp_ne_u32 vcc, 0, v{acc}")
        a(f"s_cmp_eq_u64 vcc, 0\ns_cbranch_scc1 {label}_ok")
        if maskpoll: a("s_mov_b64 exec, vcc")
        a(f"s_sub_u32 s77, s77, 1\ns_cmp_eq_u32 s77, 0\ns_cbranch_scc1 {label}_ok\ns_sleep {sleep}\ns_branch {label}")
        a(f"{label}_ok:")
        a("s_mov_b64 exec, -1")
    def poll_rows(label, loads, sbase, sleep=1):
        a.fence()
        n = len(loads)
        a(f"s_mov_b32 s77, 0x100000\ns_mov_b32 s76, {(1 << n) - 1}")
        a(f"{label}:")
        for i, (l, _, _) in enumerate(loads):
            a(f"s_bitcmp1_b32 s76, {i}\ns_cbranch_scc0 {label}_s{i}")
            a(l)
            a(f"{label}_s{i}:")
        a("s_waitcnt vmcnt(0)")
        for i, (_, ta, tb) in enumerate(loads):
            a(f"v_xor_b32 v250, s30, v{ta}\nv_xor_b32 v251, s30, v{tb}\nv_or_b32 v250, v250, v251\nv_cmp_ne_u32 s[{sbase+2*i}:{sbase+2*i+1}], 0, v250")
        a("s_mov_b32 s76, 0")
        for i in range(n):
            a(f"s_cmp_lg_u64 s[{sbase+2*i}:{sbase+2*i+1}], 0\ns_cselect_b32 s74, {1 << i}, 0\ns_or_b32 s76, s76, s74")
        a(f"s_cmp_eq_u32 s76, 0\ns_cbranch_scc1 {label}_ok")
        a(f"s_sub_u32 s77, s77, 1\ns_cmp_eq_u32 s77, 0\ns_cbranch_scc1 {label}_ok\ns_sleep {sleep}\ns_branch {label}")
        a(f"{label}_ok:")

    a("s_cmp_ge_u32 s2, 256\ns_cbranch_scc1 L_exit")
    stamp(0)
    a("s_memrealtime s[66:67]")
    a("s_load_dwordx16 s[4:19], s[0:1], 0\ns_load_dwordx8 s[20:27], s[0:1], 64")
    a("v_lshrrev_b32 v5, 6, v0\nv_and_b32 v1, 63, v0\nv_readfirstlane_b32 s3, v5")
    a("v_lshrrev_b32 v2, 4, v1\nv_and_b32 v3, 15, v1")
    a("s_lshr_b32 s28, s2, 3\ns_and_b32 s29, s2, 7")
    a("s_mov_b32 s78, -1\ns_mov_b32 s79, 0")
    a("v_lshlrev_b32 v6, 4, v1")
    a("v_lshlrev_b32 v7, 4, v3")
    a("s_lshl_b32 s74, s29, 2\ns_add_u32 s74, s74, s3\ns_lshl_b32 s74, s74, 5")
    a("s_waitcnt lgkmcnt(0)")
    stamp(1, 2)
    a("s_load_dword s30, s[26:27], 0")
    srd(52, "s4", "s5", 2048)
    srd(56, "s26", "s27", WS_BYTES)
    a("s_cmp_eq_u32 s3, 4\ns_cbranch_scc1 L_comm")

    a("buffer_load_dwordx4 v[96:99], v6, s[52:55], 0 offen\nbuffer_load_dwordx4 v[100:103], v6, s[52:55], 0 offen offset:1024")
    a("v_and_b32 v8, 7, v3\nv_lshl_add_u32 v8, v8, 2, v2\nv_lshlrev_b32 v8, 1, v8\ns_lshl_b32 s75, s74, 1")
    a("buffer_load_ushort v9, v8, s[52:55], s75 offen")
    srd(40, "s10", "s11", 1024 * 8192)
    a("v_lshl_add_u32 v10, v2, 13, v7")
    a("s_lshl_b32 s75, s74, 13\ns_lshl_b32 s76, s28, 8\ns_add_u32 s75, s75, s76")
    for i in range(8):
        a(f"buffer_load_dwordx4 v[{128+4*i}:{131+4*i}], v10, s[40:43], s75 offen {pol_w}")
        if i < 7: a("s_add_u32 s75, s75, 32768")
    srd(44, "s16", "s17", 1024 * 7168)
    srd(48, "s18", "s19", 1024 * 7168)
    a("v_mul_u32_u24 v11, 7168, v2\nv_add_u32 v11, v11, v7")
    a("v_cmp_gt_u32 vcc, 14, v3\nv_mov_b32 v12, 0x80000000\nv_cndmask_b32 v11, v12, v11, vcc")
    a("s_mul_i32 s76, s74, 7168\ns_mul_i32 s31, s28, 224\ns_add_u32 s76, s76, s31\ns_mov_b32 s75, s76")
    def gload(i):
        a(f"buffer_load_dwordx4 v[{160+4*i}:{163+4*i}], v11, s[44:47], s75 offen {pol_gu}\ns_add_u32 s75, s75, {4*7168}")
    def uload(i):
        a(f"buffer_load_dwordx4 v[{192+4*i}:{195+4*i}], v11, s[48:51], s76 offen {pol_gu}\ns_add_u32 s76, s76, {4*7168}")
    a("s_barrier")
    a("s_lshl_b32 s31, s2, 21\ns_add_u32 s32, s6, s31\ns_addc_u32 s33, s7, 0\ns_mov_b32 s34, 0x200000\ns_mov_b32 s35, 0x20000")
    a("s_add_u32 s36, s8, s31\ns_addc_u32 s37, s9, 0\ns_mov_b32 s38, 0x200000\ns_mov_b32 s39, 0x20000")
    a("s_lshl_b32 s31, s3, 10\nv_add_u32 v4, s31, v6")
    a("s_mov_b32 s72, 0")
    if ser: a("s_mov_b32 s71, 0\nv_mov_b32 v255, 0")
    a("v_and_b32 v12, 1, v3\nv_lshrrev_b32 v13, 1, v3\nv_cmp_eq_u32 vcc, 1, v12\nv_mov_b32 v14, 0xffff\nv_mov_b32 v15, 0xffff0000\nv_cndmask_b32 v14, v14, v15, vcc")
    for t in range(4):
        a(f"v_cmp_eq_u32 vcc, {t}, v13\nv_cndmask_b32 v{120+t}, 0, v14, vcc")
    a("v_cmp_eq_u32 s[82:83], 1, v12\nv_and_b32 v13, 1, v13\nv_cmp_eq_u32 s[80:81], 1, v13")
    a("s_lshl_b32 s31, s3, 9\nv_lshlrev_b32 v225, 5, v3\nv_lshl_add_u32 v225, v2, 4, v225\nv_add_u32 v225, s31, v225")
    a("s_lshl_b32 s31, s3, 13\nv_lshlrev_b32 v224, 2, v1\nv_add_u32 v224, s31, v224")
    a("s_waitcnt vmcnt(8)")
    stamp(2, 2)
    for i in range(early): gload(i)
    for k in range(8):
        a(f"v_lshlrev_b32 v{104+2*k}, 16, v{96+k}\nv_and_b32 v{105+2*k}, 0xffff0000, v{96+k}")
    a("v_add_f32 v12, v104, v105\nv_add_f32 v13, v106, v107\nv_add_f32 v14, v108, v109\nv_add_f32 v15, v110, v111")
    a("v_add_f32 v16, v112, v113\nv_add_f32 v17, v114, v115\nv_add_f32 v18, v116, v117\nv_add_f32 v19, v118, v119")
    a("v_add_f32 v12, v12, v13\nv_add_f32 v14, v14, v15\nv_add_f32 v16, v16, v17\nv_add_f32 v18, v18, v19")
    a("v_add_f32 v12, v12, v14\nv_add_f32 v16, v16, v18\nv_add_f32 v12, v12, v16")
    wave_reduce(12, 13, "v_add_f32")
    a("v_mul_f32 v12, 0x3a800000, v12")
    for k in range(16):
        a(f"v_sub_f32 v{104+k}, v{104+k}, v12")
    a("v_mul_f32 v14, v104, v104\nv_mul_f32 v15, v105, v105\nv_mul_f32 v16, v106, v106\nv_mul_f32 v17, v107, v107")
    for k in range(4, 16):
        a(f"v_fmac_f32 v{14+k%4}, v{104+k}, v{104+k}")
    a("v_add_f32 v14, v14, v15\nv_add_f32 v16, v16, v17\nv_add_f32 v14, v14, v16")
    wave_reduce(14, 13, "v_add_f32")
    a("v_mul_f32 v14, 0x3a800000, v14")
    rbf(14); rbf(12)
    a("v_add_f32 v14, 0x3727c5ac, v14")
    rbf(14)
    a("v_sqrt_f32 v14, v14")
    rbf(14)
    a("v_rcp_f32 v14, v14\nv_lshlrev_b32 v9, 16, v9\nv_sub_f32 v9, v9, v12")
    rbf(9)
    a("v_mul_f32 v9, v9, v14\nv_cvt_pk_bf16_f32 v124, v9, v9")
    stamp(3, 2)
    def stage1(acc, wbase):
        buildA(0, 124, 0)
        for i in range(8):
            if i < 7: buildA((i + 1) & 1, 124, i + 1)
            mfma(acc, i & 1, wbase + 4 * i, i == 0)
    a(f"s_waitcnt vmcnt({early})")
    stamp(4, 2)
    for i in range(early, 8): gload(i)
    stage1(12, 128)
    writeD(12, RED_Q)
    a(f"s_lshl_b32 s31, s3, 2\nv_mov_b32 v16, s31\nv_mov_b32 v17, 1\nds_write_b32 v16, v17 offset:{FL}")
    stamp(1); stamp(5, 2)
    def kslot(n):
        n %= 32
        return 32 + 4 * n if n < 16 else 128 + 4 * (n - 16)
    def issueS(reg):
        a(f"buffer_load_dwordx4 v[{reg}:{reg+3}], v4, s[32:35], s72 offen {pol_kv}\ns_add_u32 s72, s72, 4096")
    WDR = [96, 100, 104, 108, 112, 116, 228]
    WO0 = 192
    def wsetup():
        srd(40, "s12", "s13", 4096 * 2048)
        srd(44, "s20", "s21", 3584 * 2048)
        a("v_lshl_add_u32 v240, v2, 14, v7\nv_lshl_add_u32 v241, v2, 11, v7")
        a("s_lshl_b32 s31, s28, 2\ns_add_u32 s31, s31, s3\ns_lshl_b32 s75, s31, 16\ns_mul_i32 s74, s31, %d" % (28 * 2048))
        a("s_lshl_b32 s31, s29, 8\ns_add_u32 s75, s75, s31\ns_add_u32 s74, s74, s31")
    wl_all = []
    for i in range(7):
        wl_all.append(f"buffer_load_dwordx4 v[{WDR[i]}:{WDR[i]+3}], v241, s[44:47], s74 offen {pol_w}\ns_add_u32 s74, s74, 8192")
    for t in range(8):
        wl_all.append(f"buffer_load_dwordx4 v[{WO0+4*t}:{WO0+3+4*t}], v240, s[40:43], s75 offen {pol_w}\ns_add_u32 s75, s75, 2048")
    assert DS <= 8
    for i in range(8):
        a(f"s_waitcnt vmcnt({DS-1})")
        uload(i)
    for n in range(32):
        a(f"s_waitcnt vmcnt({DS-1})")
        issueS(kslot(n))
        if n == 0:
            stage1(16, 160)
        if n == DS - 1:
            stage1(20, 192)
            writeD(16, RED_G)
            writeD(20, RED_U)
        if n == 15 and NWT < 15:
            wsetup()
            for x in wl_all[:15 - NWT]:
                a(f"s_waitcnt vmcnt({DS-1})"); a(x)
    a("v_mov_b32 v126, 0xff800000\nv_mov_b32 v127, 0\ns_mov_b32 s76, %d" % SCALE)
    stamp(6, 2)
    a("s_waitcnt lgkmcnt(0)\ns_barrier")
    stamp(2)
    a(f"ds_read_b128 v[8:11], v7 offset:{QL}\ns_waitcnt lgkmcnt(0)")
    levels = [int(x) for x in str(DL).split("-")]
    ths = [int(x) for x in str(TH).split("/")] if TH != "" else []
    assert len(ths) == len(levels) - 1
    a(f"s_mov_b32 s70, {len([t for t in ths if t < 0])}\ns_mov_b32 s69, 0\ns_mov_b32 s67, 0\ns_add_u32 s66, s66, {T0}")
    a("s_lshl_b32 s31, s3, 3\nv_mov_b32 v246, s31\nv_mov_b32 v247, 0")
    def control(k):
        if k == 7: a(f"s_memrealtime s[64:65]\nds_read_b64 v[242:243], v247 offset:{RF}")
        if k == 12:
            a("s_waitcnt lgkmcnt(0)\nv_readfirstlane_b32 s62, v242\nv_readfirstlane_b32 s63, v243")
            a("s_sub_u32 s68, s64, s69\ns_add_u32 s69, s69, %d\ns_add_u32 s67, s67, 1" % TAU)
            a(f"v_mov_b32 v244, s68\nv_mov_b32 v245, s67\nds_write_b64 v246, v[244:245] offset:{PH}")
            if fixed: a("s_sub_u32 s68, s68, s66")
            else: a("s_sub_u32 s68, s68, s62\ns_and_b32 s68, s68, s63")
            a("s_mov_b32 s70, 0")
            for i, t in enumerate(ths):
                a(f"s_cmp_gt_i32 s68, {t}\ns_addc_u32 s70, s70, 0")
    uid = [0]
    def variants(fn):
        uid[0] += 1; u = uid[0]
        a.fence()
        for i in range(1, len(levels)):
            a(f"s_cmp_eq_u32 s70, {i}\ns_cbranch_scc1 L_v{u}_{i}")
        for i, d in enumerate(levels):
            if i: a(f"L_v{u}_{i}:")
            fn(d)
            a.fence()
            if i < len(levels) - 1: a(f"s_branch L_v{u}_end")
        a(f"L_v{u}_end:")

    def kgroup(half, d):
        for k in range(16):
            series(k); control(k)
            r = kslot(16 * half + k); acc = 12 + k % 4
            a(f"v_dot2_f32_bf16 v{acc}, v{r}, v8, 0\nv_dot2_f32_bf16 v{acc}, v{r+1}, v9, v{acc}\nv_dot2_f32_bf16 v{acc}, v{r+2}, v10, v{acc}\nv_dot2_f32_bf16 v{acc}, v{r+3}, v11, v{acc}")
            a(f"s_waitcnt vmcnt({d-1})")
            issueS(r)
            if k % 4 == 3:
                C = 20 + k // 4
                a("v_add_f32_dpp v16, v12, v12 row_ror:8 row_mask:0xf bank_mask:0x3")
                a("v_add_f32_dpp v17, v14, v14 row_ror:8 row_mask:0xf bank_mask:0x3")
                a("v_add_f32_dpp v16, v13, v13 row_ror:8 row_mask:0xf bank_mask:0xc")
                a("v_add_f32_dpp v17, v15, v15 row_ror:8 row_mask:0xf bank_mask:0xc")
                a(f"v_add_f32_dpp v{C}, v16, v16 row_shl:4 row_mask:0xf bank_mask:0x5")
                a(f"v_add_f32_dpp v{C}, v17, v17 row_shr:4 row_mask:0xf bank_mask:0xa")
        for C in range(20, 24):
            a(f"v_add_f32_dpp v{C}, v{C}, v{C} quad_perm:[2,3,0,1] row_mask:0xf bank_mask:0xf")
        a("v_cndmask_b32 v20, v20, v21, s[80:81]\nv_cndmask_b32 v22, v22, v23, s[80:81]")
        a("v_add_f32_dpp v20, v20, v20 quad_perm:[1,0,3,2] row_mask:0xf bank_mask:0xf")
        a("v_add_f32_dpp v22, v22, v22 quad_perm:[1,0,3,2] row_mask:0xf bank_mask:0xf")
        a("v_cndmask_b32 v18, v20, v22, s[82:83]")
        rbf(18)
        a("v_mul_f32 v18, s76, v18")
        rbf(18)
        a("v_max_f32 v126, v126, v18\nds_write_b32 v224, v18\nv_add_u32 v224, 256, v224")
    a("s_mov_b32 s73, 16")
    a("L_kloop:")
    a("s_cmp_lg_u32 s73, 1\ns_cbranch_scc1 L_knosw\ns_mov_b32 s32, s36\ns_mov_b32 s33, s37\ns_mov_b32 s72, 0\nL_knosw:")
    variants(lambda d: kgroup(0, d))
    variants(lambda d: kgroup(1, d))
    a("s_sub_u32 s73, s73, 1\ns_cmp_lg_u32 s73, 0\ns_cbranch_scc1 L_kloop")
    wave_reduce(126, 13, "v_max_f32")
    a(f"s_lshl_b32 s31, s3, 2\nv_mov_b32 v13, s31\nds_write_b32 v13, v126 offset:{MX}")
    a("v_subrev_u32 v224, 8192, v224")
    stamp(3)
    a("ds_read_b32 v125, v224\nv_mov_b32 v226, v126")
    a("s_mov_b32 s76, %d" % LOG2E)
    a("s_waitcnt lgkmcnt(0)")
    def mkP():
        a("v_sub_f32 v125, v125, v226\nv_mul_f32 v125, s76, v125\nv_exp_f32 v125, v125\nv_add_f32 v127, v127, v125\nv_cvt_pk_bf16_f32 v125, v125, v125")
    mkP()
    a("v_mov_b32 v124, v125\nv_mov_b32 v12, 0\nv_mov_b32 v13, 0\nv_mov_b32 v14, 0\nv_mov_b32 v15, 0")
    lam = [4 * (((c >> 1) & 1) + 2 * (c & 1)) + [0, 2, 1, 3][c >> 2] for c in range(16)]
    inv = [lam.index(i) for i in range(16)]
    buildA(0, 124, inv[0])
    def vgroup(half, pre, post, last=False, ctl=True):
        for k in range(16):
            series(k)
            if ctl: control(k)
            if k == 0 and not last:
                a("v_add_u32 v224, 256, v224\nds_read_b32 v125, v224")
            if k == 6 and not last:
                a("s_waitcnt lgkmcnt(0)"); mkP()
            if k < 15: buildA((k + 1) & 1, 124, inv[k + 1])
            elif not last:
                buildA(0, 125, inv[0]); a("v_mov_b32 v124, v125")
            pre(k)
            mfma(12, k & 1, kslot(16 * half + k), False)
            post(k)
            if last and k == 2:
                wave_reduce(127, 16, "v_add_f32")
                a(f"s_lshl_b32 s31, s3, 2\nv_mov_b32 v16, s31\nds_write_b32 v16, v127 offset:{LS}")
    def vsteady(half, d):
        def post(k):
            a(f"s_waitcnt vmcnt({d-1})"); issueS(kslot(16 * half + k))
        vgroup(half, lambda k: None, post)
    a("s_mov_b32 s73, 15")
    a("L_vloop:")
    variants(lambda d: vsteady(0, d))
    variants(lambda d: vsteady(1, d))
    a("s_sub_u32 s73, s73, 1\ns_cmp_lg_u32 s73, 0\ns_cbranch_scc1 L_vloop")
    if NWT == 15: wsetup()
    wl = wl_all[15 - NWT:]
    nw = [0]
    dmax = max(levels)
    wsteps = [n for n in range(32) if (n < 32 - DT and n % 5 == 4) or n >= 32 - DT]
    def fin(half):
        def pre(k):
            n = 16 * half + k
            if n >= 32 - dmax: a(f"s_waitcnt vmcnt({31 - n + nw[0]})")
        def post(k):
            n = 16 * half + k
            if n in wsteps and nw[0] < len(wl):
                a(wl[nw[0]]); nw[0] += 1
        vgroup(half, pre, post, last=(half == 1), ctl=False)
    fin(0); fin(1)
    writeD(12, RED_O)
    for x in wl[nw[0]:]: a(x)
    a("s_waitcnt lgkmcnt(0)\ns_barrier")
    stamp(4)
    a(f"s_mul_i32 s31, s3, 112\nv_lshl_add_u32 v16, v3, 2, v2\nv_lshlrev_b32 v16, 2, v16\nv_add_u32 v16, s31, v16\nds_read_b32 v227, v16 offset:{HL}")
    a("v_and_b32 v16, 7, v3\nv_lshrrev_b32 v17, 3, v3\ns_lshl_b32 s31, s28, 14\ns_add_u32 s31, s31, %d" % H1)
    a("v_lshlrev_b32 v16, 11, v16\nv_add_u32 v16, s31, v16")
    a("v_lshlrev_b32 v17, 5, v17\nv_lshl_add_u32 v17, v2, 6, v17\ns_lshl_b32 s31, s3, 8\nv_add3_u32 v17, v17, s31, v16")
    a("s_waitcnt vmcnt(8) lgkmcnt(0)")
    buildA(0, 227, 0)
    for i in range(7):
        if i < 6: buildA((i + 1) & 1, 227, i + 1)
        mfma(20, i & 1, WDR[i], i == 0)
    writeD(20, RED_F)
    a("s_add_u32 s30, s30, 1")
    poll("L_p1", ["buffer_load_dwordx4 v[228:231], v17, s[56:59], 0 offen sc1",
                  "buffer_load_dwordx4 v[232:235], v17, s[56:59], 0 offen offset:16 sc1",
                  "buffer_load_dwordx4 v[236:239], v16, s[56:59], 0 offen offset:1024 sc1"], [229, 231, 233, 235, 237, 239], sleep=sl1)
    stamp(5)
    steps = ["quad_perm:[1,0,3,2]", "quad_perm:[2,3,0,1]", "row_half_mirror"]
    a("v_mov_b32 v240, v236")
    for s in steps: a(f"v_max_f32_dpp v240, v240, v240 {s} row_mask:0xf bank_mask:0xf")
    a("v_sub_f32 v236, v236, v240\nv_mul_f32 v236, s76, v236\nv_exp_f32 v236, v236")
    a("v_mul_f32 v238, v238, v236\nv_mul_f32 v228, v228, v236\nv_mul_f32 v230, v230, v236\nv_mul_f32 v232, v232, v236\nv_mul_f32 v234, v234, v236")
    for s in steps:
        for v in (238, 228, 230, 232, 234): a(f"v_add_f32_dpp v{v}, v{v}, v{v} {s} row_mask:0xf bank_mask:0xf")
    a("v_rcp_f32 v238, v238")
    for v in (228, 230, 232, 234): a(f"v_mul_f32 v{v}, v{v}, v238")
    for v in (228, 230, 232, 234): a(f"v_cvt_pk_bf16_f32 v{v}, v{v}, v{v}")
    seq = [(b, i) for b in range(2) for i in range(4)]
    buildA(0, 228, 0)
    for t, (b, i) in enumerate(seq):
        if t < 7:
            b2, i2 = seq[t + 1]; buildA((t + 1) & 1, 228 + 2 * i2, 8 * b2)
        mfma(16, t & 1, WO0 + 4 * t, t == 0)
    writeD(16, RED_A)
    a("s_waitcnt lgkmcnt(0)\ns_barrier")
    stamp(6)
    if ser:
        a("s_add_u32 s68, s26, 0x9000000\ns_addc_u32 s69, s27, 0\ns_lshl_b32 s31, s2, 2\ns_add_u32 s31, s31, s3\ns_lshl_b32 s31, s31, 8\nv_lshlrev_b32 v16, 2, v1\nv_add_u32 v16, s31, v16")
        a("global_store_dword v16, v255, s[68:69]")
    if diag:
        a("s_waitcnt lgkmcnt(0)\ns_getreg_b32 s98, hwreg(HW_REG_HW_ID)\ns_getreg_b32 s99, hwreg(HW_REG_XCC_ID)")
        a("s_cmp_lg_u32 s3, 0\ns_cbranch_scc1 L_exit\ns_mov_b32 s31, 0\ns_branch L_stamps")
    else:
        a("s_endpgm")

    a("L_comm:")
    incomm[0] = True
    a(f"v_mov_b32 v8, 0\nv_mov_b32 v20, 0\nv_mov_b32 v21, 0\nv_mov_b32 v22, 0\nv_mov_b32 v23, 0\nds_write_b128 v8, v[20:23] offset:{FL}\nds_write_b128 v8, v[20:23] offset:{RF}\nds_write_b128 v8, v[20:23] offset:{PH}\nds_write_b128 v8, v[20:23] offset:{PH+16}\ns_waitcnt lgkmcnt(0)\ns_barrier")
    a("s_lshl_b32 s31, s29, 8\ns_lshl_b32 s75, s28, 3\ns_add_u32 s75, s75, s31\nv_mov_b32 v8, 0")
    a("buffer_load_dwordx2 v[10:11], v8, s[52:55], s75 offen")
    srd(68, "s22", "s23", 2048)
    a("v_lshlrev_b32 v9, 3, v1")
    a("s_lshl_b32 s31, s2, 10\ns_add_u32 s40, s31, %d" % H0Q)
    a("s_lshl_b32 s31, s28, 13\ns_add_u32 s41, s31, %d\ns_add_u32 s42, s41, 4096" % H0Q)
    a("s_waitcnt lgkmcnt(0)\ns_add_u32 s30, s30, 1")
    def red4(dst, off, tmp):
        for w in range(4): a(f"ds_read_b64 v[{tmp+2*w}:{tmp+2*w+1}], v9 offset:{off+512*w}")
    def sum4(dst, tmp):
        a(f"v_add_f32 v{dst}, v{tmp}, v{tmp+2}\nv_add_f32 v{dst+2}, v{tmp+1}, v{tmp+3}\nv_add_f32 v{tmp+4}, v{tmp+4}, v{tmp+6}\nv_add_f32 v{tmp+5}, v{tmp+5}, v{tmp+7}")
        a(f"v_add_f32 v{dst}, v{dst}, v{tmp+4}\nv_add_f32 v{dst+2}, v{dst+2}, v{tmp+5}")
    a("v_mov_b32 v13, s30\nv_mov_b32 v15, s30\nv_mov_b32 v17, s30\nv_mov_b32 v19, s30")
    a.fence()
    a(f"L_fl:\nds_read_b128 v[20:23], v8 offset:{FL}\ns_waitcnt lgkmcnt(0)\nv_and_b32 v20, v20, v21\nv_and_b32 v22, v22, v23\nv_and_b32 v20, v20, v22\nv_readfirstlane_b32 s31, v20")
    a("s_cmp_eq_u32 s31, 1\ns_cbranch_scc1 L_fl_ok\ns_sleep 1\ns_branch L_fl\nL_fl_ok:")
    stamp(1)
    red4(12, RED_Q, 20); a("s_waitcnt lgkmcnt(0)"); sum4(12, 20)
    a("buffer_store_dwordx4 v[12:15], v6, s[56:59], s40 offen sc1")
    if maskpoll:
        poll_rows("L_p0", [(f"buffer_load_dwordx4 v[{128+4*jj}:{131+4*jj}], v6, s[56:59], s{41+jj//4} offen offset:{1024*(jj%4)} sc1", 129 + 4 * jj, 131 + 4 * jj) for jj in range(8)], 4)
    else:
        poll("L_p0", [f"buffer_load_dwordx4 v[{128+4*jj}:{131+4*jj}], v6, s[56:59], s{41+jj//4} offen offset:{1024*(jj%4)} sc1" for jj in range(8)],
             [129 + 2 * i for i in range(16)])
    stamp(2)
    def sum8(base, stride):
        for o in (0, 2):
            for (x, y) in ((0, 1), (2, 3), (4, 5), (6, 7), (0, 2), (4, 6), (0, 4)):
                a(f"v_add_f32 v{base+x*stride+o}, v{base+x*stride+o}, v{base+y*stride+o}")
    sum8(128, 4)
    a(f"v_cvt_pk_bf16_f32 v128, v128, v130\nv_lshlrev_b32 v20, 2, v1\nds_write_b32 v20, v128 offset:{QL}")
    a("s_waitcnt lgkmcnt(0)\ns_barrier")
    red4(12, RED_G, 20); red4(16, RED_U, 28); a("s_waitcnt lgkmcnt(0)"); sum4(12, 20); sum4(16, 28)
    a("s_lshl_b32 s43, s2, 11\ns_add_u32 s40, s43, %d" % H0GU)
    a("buffer_store_dwordx4 v[12:15], v6, s[56:59], s40 offen sc1\nbuffer_store_dwordx4 v[16:19], v6, s[56:59], s40 offen offset:1024 sc1")
    a("s_lshl_b32 s31, s28, 14\ns_add_u32 s44, s31, %d\ns_add_u32 s45, s44, 4096\ns_add_u32 s46, s44, 8192\ns_add_u32 s47, s44, 12288" % H0GU)
    if maskpoll: a("s_sleep 100")
    poll("L_pg", [f"buffer_load_dwordx4 v[{128+4*n}:{131+4*n}], v6, s[56:59], s{44+n//4} offen offset:{1024*(n%4)} sc1" for n in range(16)],
         [129 + 2 * i for i in range(32)], sleep=(100 if maskpoll else 1))
    stamp(3)
    sum8(128, 8); sum8(132, 8)
    for v in (128, 130, 132, 134): rbf(v)
    a("s_mov_b32 s48, 0x3d372713\ns_mov_b32 s49, 0xc0135761")
    for g, u in ((128, 132), (130, 134)):
        a(f"v_mul_f32 v20, v{g}, v{g}\nv_fma_f32 v20, v20, s48, 1.0\nv_mul_f32 v20, v20, v{g}\nv_mul_f32 v20, s49, v20\nv_exp_f32 v20, v20\nv_add_f32 v20, 1.0, v20\nv_rcp_f32 v20, v20\nv_mul_f32 v{g}, v{g}, v20")
        rbf(g)
        a(f"v_mul_f32 v{g}, v{g}, v{u}")
    a(f"v_cvt_pk_bf16_f32 v20, v128, v128\nv_cvt_pk_bf16_f32 v21, v130, v130\nds_write_b64 v9, v[20:21] offset:{HL}")
    sh = GP.bit_length() - 1
    assert GP == 1 << sh
    a("v_lshlrev_b32 v50, 7, v1")
    a(f"s_mov_b32 s44, {G0}\ns_mov_b32 s45, {G0+GG}\ns_mov_b32 s46, {G0+GR}\ns_mov_b32 s47, 0\ns_mov_b32 s51, 0\ns_mov_b32 s52, 0\ns_mov_b32 s53, 0\ns_mov_b32 s54, 0")
    a("s_xor_b32 s55, s28, s29\ns_and_b32 s55, s55, 3")
    a("s_lshr_b32 s48, s2, 2\ns_lshl_b32 s48, s48, 7\ns_add_u32 s48, s48, %d\ns_mov_b32 s49, %d" % (PHI, PHI))
    a("s_lshl_b32 s50, s29, 7\ns_add_u32 s50, s50, %d\ns_mov_b32 s60, %d" % (REF, REF))
    a("s_cmp_eq_u32 s2, 0\ns_cselect_b32 s45, s45, -1")
    if noex: a("s_mov_b32 s44, -1\ns_mov_b32 s45, -1\ns_mov_b32 s46, -1")
    a.fence()
    a("L_ctl:")
    a(f"ds_read_b128 v[20:23], v8 offset:{PH}\nds_read_b128 v[24:27], v8 offset:{PH+16}\ns_waitcnt lgkmcnt(0)")
    a("v_min_u32 v21, v21, v23\nv_min3_u32 v21, v21, v25, v27\nv_readfirstlane_b32 s31, v21")
    a(f"s_cmp_ge_u32 s31, {GEX}\ns_cbranch_scc1 L_ctl_end\ns_cmp_eq_u32 s31, s47\ns_cbranch_scc1 L_ctl_sleep\ns_mov_b32 s47, s31")
    a("v_sub_u32 v22, v22, v20\nv_sub_u32 v24, v24, v20\nv_sub_u32 v26, v26, v20\nv_add3_u32 v22, v22, v24, v26\nv_ashrrev_i32 v22, 2, v22\nv_add_u32 v12, v20, v22")
    a(f"s_cmp_lt_u32 s47, s44\ns_cbranch_scc1 L_ctl_g\ns_add_u32 s44, s44, {GP}\ns_cmp_lg_u32 s55, 0\ns_cbranch_scc1 L_ctl_g")
    a("s_mov_b64 exec, 1\nbuffer_store_dwordx2 v[12:13], v8, s[56:59], s48 offen sc1\ns_mov_b64 exec, -1\ns_add_u32 s48, s48, 8192")
    a("L_ctl_g:")
    a("s_cmp_lt_u32 s47, s45\ns_cbranch_scc1 L_ctl_rd")
    a("buffer_load_dwordx2 v[20:21], v50, s[56:59], s49 offen sc1\ns_waitcnt vmcnt(0)")
    a("v_cmp_ne_u32 vcc, s30, v21\ns_cmp_lg_u64 vcc, 0\ns_cbranch_scc1 L_ctl_rd")
    a("v_sub_u32 v20, v20, v12")
    wave_reduce(20, 21, "v_add_u32")
    a("v_ashrrev_i32 v20, 6, v20\nv_add_u32 v14, v12, v20")
    a("s_mov_b64 exec, 0xff\nbuffer_store_dwordx2 v[14:15], v50, s[56:59], s60 offen sc1\ns_mov_b64 exec, -1")
    a(f"s_add_u32 s45, s45, {GP}\ns_add_u32 s49, s49, 8192\ns_add_u32 s60, s60, 1024")
    a.fence()
    a("L_ctl_rd:")
    a("s_cmp_lt_u32 s47, s46\ns_cbranch_scc1 L_ctl_up")
    a("s_mov_b64 exec, 1\nbuffer_load_dwordx2 v[28:29], v8, s[56:59], s50 offen sc1\ns_waitcnt vmcnt(0)\nv_readfirstlane_b32 s31, v29\nv_readfirstlane_b32 s61, v28\ns_mov_b64 exec, -1")
    a("s_cmp_lg_u32 s31, s30\ns_cbranch_scc1 L_ctl_up")
    a("s_sub_u32 s52, s61, s51\ns_and_b32 s52, s52, s54")
    if not slope: a("s_mov_b32 s52, 0")
    a(f"s_mov_b32 s51, s61\ns_sub_u32 s53, s46, {GR + 1}\ns_mov_b32 s54, -1\ns_add_u32 s46, s46, {GP}\ns_add_u32 s50, s50, 1024")
    a("L_ctl_up:")
    a(f"s_sub_u32 s31, s47, s53\ns_mul_i32 s31, s31, s52\ns_ashr_i32 s31, s31, {sh}\ns_add_u32 s31, s31, s51")
    a(f"v_mov_b32 v30, s31\nv_mov_b32 v31, s54\nds_write_b64 v8, v[30:31] offset:{RF}")
    a(f"L_ctl_sleep:\ns_sleep {CSL}\ns_branch L_ctl")
    a("L_ctl_end:")
    a(f"ds_read_b128 v[44:47], v8 offset:{MX}\ns_waitcnt lgkmcnt(0)\nv_max_f32 v20, v44, v45\nv_max3_f32 v16, v20, v46, v47\ns_mov_b32 s31, {LOG2E}")
    for w in range(4): a(f"v_sub_f32 v{44+w}, v{44+w}, v16\nv_mul_f32 v{44+w}, s31, v{44+w}\nv_exp_f32 v{44+w}, v{44+w}")
    a("s_add_u32 s40, s43, %d\ns_add_u32 s41, s43, %d" % (H1, H2))
    a("v_and_b32 v36, 31, v1\nv_lshlrev_b32 v36, 14, v36\nv_lshrrev_b32 v37, 5, v1\nv_lshl_add_u32 v36, v37, 10, v36")
    a("s_lshl_b32 s31, s29, 11\ns_lshl_b32 s42, s28, 5\ns_add_u32 s42, s42, s31\ns_add_u32 s42, s42, %d" % H2)
    a("s_waitcnt vmcnt(0)")
    a("v_lshlrev_b32 v40, 16, v10\nv_and_b32 v41, 0xffff0000, v10\nv_lshlrev_b32 v42, 16, v11\nv_and_b32 v43, 0xffff0000, v11")
    a("s_barrier")
    stamp(4)
    red4(12, RED_O, 20); a(f"ds_read_b128 v[28:31], v8 offset:{LS}\ns_waitcnt lgkmcnt(0)")
    a("v_mul_f32 v12, v20, v44\nv_mul_f32 v14, v21, v44\nv_mul_f32 v18, v28, v44")
    for w in range(1, 4): a(f"v_fmac_f32 v12, v{20+2*w}, v{44+w}\nv_fmac_f32 v14, v{21+2*w}, v{44+w}\nv_fmac_f32 v18, v{28+w}, v{44+w}")
    a("buffer_store_dwordx4 v[12:15], v6, s[56:59], s40 offen sc1")
    a("s_mov_b64 exec, 1\nbuffer_store_dwordx4 v[16:19], v8, s[56:59], s40 offen offset:1024 sc1\ns_mov_b64 exec, -1")
    a("s_barrier")
    stamp(5)
    red4(12, RED_A, 20); red4(16, RED_F, 28); a("s_waitcnt lgkmcnt(0)"); sum4(12, 20); sum4(16, 28)
    a("buffer_store_dwordx4 v[12:15], v6, s[56:59], s41 offen sc1\nbuffer_store_dwordx4 v[16:19], v6, s[56:59], s41 offen offset:1024 sc1")
    poll("L_p2", ["buffer_load_dwordx4 v[128:131], v36, s[56:59], s42 offen sc1", "buffer_load_dwordx4 v[132:135], v36, s[56:59], s42 offen offset:16 sc1"],
         [129, 131, 133, 135], sleep=sl2)
    stamp(6)
    T = (128, 130, 132, 134)
    for r in (8, 4, 2, 1):
        for v in T: a(f"v_add_f32_dpp v{v}, v{v}, v{v} row_ror:{r} row_mask:0xf bank_mask:0xf")
    for v in T: a(f"v_add_f32_dpp v{v}, v{v}, v{v} row_bcast:15 row_mask:0xa bank_mask:0xf")
    for v in T: rbf(v)
    for i, v in enumerate(T): a(f"v_readlane_b32 s{44+i}, v{v}, 48")
    for i, v in enumerate(T): a(f"v_add_f32 v{v}, v{v}, v{40+i}")
    for v in T: rbf(v)
    for i, v in enumerate(T): a(f"v_add_f32 v{v}, s{44+i}, v{v}")
    a("v_cvt_pk_bf16_f32 v20, v128, v130\nv_cvt_pk_bf16_f32 v21, v132, v134")
    a("s_mov_b64 exec, 0x10000\nbuffer_store_dwordx2 v[20:21], v8, s[68:71], s75 offen")
    a("s_cmp_lg_u32 s2, 0\ns_cbranch_scc1 L_noep\nbuffer_store_dword v13, v8, s[56:59], 0 offen sc1\nL_noep:")
    if spin:
        if spinwg >= 0: a(f"s_cmp_lg_u32 s2, {spinwg}\ns_cbranch_scc1 L_exit")
        a(f"L_spin:\ns_memrealtime s[64:65]\ns_waitcnt lgkmcnt(0)\ns_sub_u32 s64, s64, s66\ns_cmp_lt_u32 s64, {spin}\ns_cbranch_scc1 L_spin")
    if diag:
        a("s_waitcnt vmcnt(0)")
        stamp(7)
        a("s_mov_b32 s31, 64")
        a("L_stamps:")
        a("s_waitcnt lgkmcnt(0)\ns_mov_b64 exec, 1")
        if dbgout:
            a("v_mov_b32 v8, 0\ns_cmp_lg_u32 s31, 0\ns_cbranch_scc1 L_dbgc")
            for n, k in enumerate((0, 2, 3, 4, 5)):
                a(f"v_mov_b32 v12, s{84+2*k}\nv_not_b32 v13, v12\nglobal_atomic_umax v8, v12, s[24:25] offset:{8*n}\nglobal_atomic_umax v8, v13, s[24:25] offset:{8*n+4}")
            a("s_endpgm\nL_dbgc:")
            for n, k in enumerate((2, 6, 7)):
                a(f"v_mov_b32 v12, s{84+2*k}\nv_not_b32 v13, v12\nglobal_atomic_umax v8, v12, s[24:25] offset:{40+8*n}\nglobal_atomic_umax v8, v13, s[24:25] offset:{44+8*n}")
        else:
            a("s_add_u32 s26, s26, 0x8000000\ns_addc_u32 s27, s27, 0\ns_lshl_b32 s74, s2, 7\ns_add_u32 s74, s74, s31\nv_mov_b32 v8, s74")
            for q in range(4):
                for e in range(4): a(f"v_mov_b32 v{12+e}, s{84+4*q+e}")
                a(f"global_store_dwordx4 v8, v[12:15], s[26:27] offset:{16*q}")
                a("s_nop 2")
    a("L_exit:\ns_endpgm")

    out = HDR
    out += "; Override launch geometry by editing the next line (default: block=256,\n"
    out += f"; @launch grid=(256,1,1) block=(320,1,1) lds={LDS_BYTES}\n"
    out += f'.amdgcn_target "amdgcn-amd-amdhsa--gfx950"\n.text\n.globl {NAME}\n.p2align 8\n.type {NAME},@function\n{NAME}:\n'
    out += a.text()
    out += f""".section .rodata,"a"
.p2align 6
.amdhsa_kernel {NAME}
  .amdhsa_next_free_vgpr 256
  .amdhsa_next_free_sgpr 102
  .amdhsa_accum_offset 256
  .amdhsa_group_segment_fixed_size 0
  .amdhsa_kernarg_size 96
  .amdhsa_user_sgpr_count 2
  .amdhsa_user_sgpr_kernarg_segment_ptr 1
  .amdhsa_system_sgpr_workgroup_id_x 1
  .amdhsa_float_denorm_mode_32 3
.end_amdhsa_kernel
"""
    return out, LDS_BYTES

if __name__ == "__main__":
    kw = {}
    for x in sys.argv[2:]:
        k, v = x.split("=")
        try: v = int(v)
        except ValueError: pass
        kw[k] = v
    s, lds = gen(**kw)
    open(sys.argv[1], "w").write(s)
    print("lds", lds)
```

```python
import sys
from asmlib import Asm

NAME = "parallel_sum__mha_block_cached__glu_gated_geglu__decode_kernel"
HDR = open("parallel_sum__mha_block_cached__glu_gated_geglu__decode.s.ref").read().split("; Override launch")[0]

H0Q, H0GU, H1, H2A, H2F = 0x1000, 0x50000, 0x90000, 0xD0000, 0xF0000
PHI, REF = 0x1D0000, 0x1F0000
WS_BYTES = 0x200000
SC = 0
RED_Q, RED_G, RED_U, RED_A, RED_O, RED_L = [32768 + 2048 * i for i in range(6)]
QL = 32768 + 12288
HL = QL + 256
MX = HL + 1024
LS = MX + 16
FL = LS + 16
RF = FL + 16
PH = RF + 16
LDS_BYTES = PH + 32

LOG2E = 0x3fb8aa3b
SCALE = 0x3db504f3

def gen(diag=False, MAP='rrww01234Bjjj', XK=0, IL=0, WI=1, qdelay=0, perm=0, qfl='sc1', tfl='sc1', WDF=3, warm=0, gufl='sc1+nt', nogu=0, noq=0, gudelay=0, spin=0, spinwg=-1, G0=4, GP=8, GG=2, GR=4, slope=1, noex=0, NWT=8, CSL=8, GEX=60, fixed=0, DL='5', TH='', T0=200, TAU=220, DT=5, early=4, dbgout=0, ser=0, maskpoll=1, sl1=1, sl2=1, D=8, DS=8, D2=0, NB2=0, pol_w="nt", pol_gu="nt", pol_kv="nt"):
    a = Asm()
    def stamp(i, mode=1):
        if diag == mode or (diag and i in (0, 7)) or (diag and incomm[0]):
            a(f"s_memrealtime s[{84+2*i}:{85+2*i}]")
    incomm = [False]
    def series(k):
        if not ser: return
        if k == 0: a("s_memrealtime s[100:101]")
        if k == 5: a("s_waitcnt lgkmcnt(0)\ns_mov_b32 m0, s71\ns_nop 0\nv_writelane_b32 v255, s100, m0\ns_add_u32 s71, s71, 1")
    def srd(n, lo, hi, size):
        a(f"s_mov_b32 s{n}, {lo}\ns_mov_b32 s{n+1}, {hi}\ns_mov_b32 s{n+2}, {size}\ns_mov_b32 s{n+3}, 0x20000")
    def wave_reduce(v, t, op):
        for r in (8, 4, 2, 1):
            a(f"{op}_dpp v{v}, v{v}, v{v} row_ror:{r} row_mask:0xf bank_mask:0xf")
        a(f"v_mov_b32 v{t}, v{v}\nv_permlane16_swap_b32 v{v}, v{t}\n{op} v{v}, v{v}, v{t}")
        a(f"v_mov_b32 v{t}, v{v}\nv_permlane32_swap_b32 v{v}, v{t}\n{op} v{v}, v{v}, v{t}")
    def rbf(v):
        a(f"v_cvt_pk_bf16_f32 v{v}, v{v}, v{v}\nv_and_b32 v{v}, 0xffff0000, v{v}")
    def buildA(buf, P, c):
        base = 24 + 4 * buf
        for t in range(4):
            a(f"v_and_b32_dpp v{base+t}, v{P}, v{120+t} row_newbcast:{c} row_mask:0xf bank_mask:0xf")
    def mfma(acc, buf, breg, first):
        base = 24 + 4 * buf
        a(f"v_mfma_f32_16x16x32_bf16 v[{acc}:{acc+3}], v[{base}:{base+3}], v[{breg}:{breg+3}], " + ("0" if first else f"v[{acc}:{acc+3}]"))
    def writeD(acc, off):
        a(f"s_mov_b64 exec, s[78:79]\nds_write_b128 v225, v[{acc}:{acc+3}] offset:{off}\ns_mov_b64 exec, -1")
    def poll(label, loads, tagregs, acc=250, t1=251, t2=252, sleep=1):
        a.fence()
        a(f"s_mov_b32 s77, 0x100000")
        a(f"{label}:")
        for l in loads: a(l)
        a("s_waitcnt vmcnt(0)")
        a(f"v_xor_b32 v{acc}, s30, v{tagregs[0]}")
        rest = tagregs[1:]
        while len(rest) >= 2:
            a(f"v_xor_b32 v{t1}, s30, v{rest[0]}\nv_xor_b32 v{t2}, s30, v{rest[1]}\nv_or3_b32 v{acc}, v{acc}, v{t1}, v{t2}")
            rest = rest[2:]
        if rest:
            a(f"v_xor_b32 v{t1}, s30, v{rest[0]}\nv_or_b32 v{acc}, v{acc}, v{t1}")
        a(f"v_cmp_ne_u32 vcc, 0, v{acc}")
        a(f"s_cmp_eq_u64 vcc, 0\ns_cbranch_scc1 {label}_ok")
        if maskpoll: a("s_mov_b64 exec, vcc")
        a(f"s_sub_u32 s77, s77, 1\ns_cmp_eq_u32 s77, 0\ns_cbranch_scc1 {label}_ok\ns_sleep {sleep}\ns_branch {label}")
        a(f"{label}_ok:")
        a("s_mov_b64 exec, -1")
    def pollc(label, loads, regs, acc=250, sleep=1, ex0="-1", mid=None):
        a.fence()
        a(f"s_mov_b32 s77, 0x100000")
        a(f"{label}:")
        for l in loads: a(l)
        a("s_waitcnt vmcnt(0)")
        a(f"v_xor_b32 v{acc}, s30, v{regs[0]}")
        for r in regs[1:]: a(f"v_bitop3_b32 v{acc}, v{r}, s30, v{acc} bitop3:0xbe")
        a(f"v_and_b32 v{acc}, 0xff, v{acc}\nv_cmp_ne_u32 vcc, 0, v{acc}")
        a(f"s_cmp_eq_u64 vcc, 0\ns_cbranch_scc1 {label}_ok\ns_mov_b64 exec, vcc")
        a(f"s_sub_u32 s77, s77, 1\ns_cmp_eq_u32 s77, 0\ns_cbranch_scc1 {label}_ok")
        if sleep: a(f"s_sleep {sleep}")
        a(f"s_branch {label}")
        a(f"{label}_ok:")
        a("s_mov_b64 exec, -1")
    def masks():
        a("v_and_b32 v12, 1, v3\nv_lshrrev_b32 v13, 1, v3\nv_cmp_eq_u32 vcc, 1, v12\nv_mov_b32 v14, 0xffff\nv_mov_b32 v15, 0xffff0000\nv_cndmask_b32 v14, v14, v15, vcc")
        for t in range(4):
            a(f"v_cmp_eq_u32 vcc, {t}, v13\nv_cndmask_b32 v{120+t}, 0, v14, vcc")
    def poll_rows(label, loads, sbase, sleep=1):
        a.fence()
        n = len(loads)
        a(f"s_mov_b32 s77, 0x100000\ns_mov_b32 s76, {(1 << n) - 1}")
        a(f"{label}:")
        for i, (l, _, _) in enumerate(loads):
            a(f"s_bitcmp1_b32 s76, {i}\ns_cbranch_scc0 {label}_s{i}")
            a(l)
            a(f"{label}_s{i}:")
        a("s_waitcnt vmcnt(0)")
        for i, (_, ta, tb) in enumerate(loads):
            a(f"v_xor_b32 v250, s30, v{ta}\nv_xor_b32 v251, s30, v{tb}\nv_or_b32 v250, v250, v251\nv_cmp_ne_u32 s[{sbase+2*i}:{sbase+2*i+1}], 0, v250")
        a("s_mov_b32 s76, 0")
        for i in range(n):
            a(f"s_cmp_lg_u64 s[{sbase+2*i}:{sbase+2*i+1}], 0\ns_cselect_b32 s74, {1 << i}, 0\ns_or_b32 s76, s76, s74")
        a(f"s_cmp_eq_u32 s76, 0\ns_cbranch_scc1 {label}_ok")
        a(f"s_sub_u32 s77, s77, 1\ns_cmp_eq_u32 s77, 0\ns_cbranch_scc1 {label}_ok\ns_sleep {sleep}\ns_branch {label}")
        a(f"{label}_ok:")

    a("s_cmp_ge_u32 s2, 256\ns_cbranch_scc1 L_exit")
    stamp(0)
    a("s_memrealtime s[66:67]")
    a("s_load_dwordx16 s[4:19], s[0:1], 0\ns_load_dwordx8 s[20:27], s[0:1], 64")
    a("v_lshrrev_b32 v5, 6, v0\nv_and_b32 v1, 63, v0\nv_readfirstlane_b32 s3, v5")
    a("v_lshrrev_b32 v2, 4, v1\nv_and_b32 v3, 15, v1")
    if perm == 1: a("s_and_b32 s28, s2, 7\ns_lshl_b32 s28, s28, 5\ns_lshr_b32 s2, s2, 3\ns_add_u32 s2, s2, s28")
    a("s_lshr_b32 s28, s2, 3\ns_and_b32 s29, s2, 7")
    a("s_mov_b32 s78, -1\ns_mov_b32 s79, 0")
    a("v_lshlrev_b32 v6, 4, v1")
    a("v_lshlrev_b32 v7, 4, v3")
    a("s_lshl_b32 s74, s29, 2\ns_add_u32 s74, s74, s3\ns_lshl_b32 s74, s74, 5")
    a("s_waitcnt lgkmcnt(0)")
    stamp(1, 2)
    a("s_load_dword s30, s[26:27], 0")
    srd(52, "s4", "s5", 2048)
    srd(56, "s26", "s27", WS_BYTES)
    a("s_cmp_eq_u32 s3, 4\ns_cbranch_scc1 L_comm")

    a("buffer_load_dwordx4 v[96:99], v6, s[52:55], 0 offen\nbuffer_load_dwordx4 v[100:103], v6, s[52:55], 0 offen offset:1024")
    a("v_and_b32 v8, 7, v3\nv_lshl_add_u32 v8, v8, 2, v2\nv_lshlrev_b32 v8, 1, v8\ns_lshl_b32 s75, s74, 1")
    a("buffer_load_ushort v9, v8, s[52:55], s75 offen")
    srd(40, "s10", "s11", 1024 * 8192)
    a("v_lshl_add_u32 v10, v2, 13, v7")
    a("s_lshl_b32 s75, s74, 13\ns_lshl_b32 s76, s28, 8\ns_add_u32 s75, s75, s76")
    for i in range(8):
        a(f"buffer_load_dwordx4 v[{128+4*i}:{131+4*i}], v10, s[40:43], s75 offen {pol_w}")
        if i < 7: a("s_add_u32 s75, s75, 32768")
    srd(44, "s16", "s17", 1024 * 7168)
    srd(48, "s18", "s19", 1024 * 7168)
    a("v_mul_u32_u24 v11, 7168, v2\nv_add_u32 v11, v11, v7")
    a("v_cmp_gt_u32 vcc, 14, v3\nv_mov_b32 v12, 0x80000000\nv_cndmask_b32 v11, v12, v11, vcc")
    a("s_mul_i32 s76, s74, 7168\ns_mul_i32 s31, s28, 224\ns_add_u32 s76, s76, s31\ns_mov_b32 s75, s76")
    def gload(i):
        a(f"buffer_load_dwordx4 v[{160+4*i}:{163+4*i}], v11, s[44:47], s75 offen {pol_gu}\ns_add_u32 s75, s75, {4*7168}")
    def uload(i):
        a(f"buffer_load_dwordx4 v[{192+4*i}:{195+4*i}], v11, s[48:51], s76 offen {pol_gu}\ns_add_u32 s76, s76, {4*7168}")
    a("s_barrier")
    pos = {"r": [], "w": [], "n": [0] * 5, "j": [], "B": []}
    bit = 8
    for ch in str(MAP):
        if ch.isdigit(): pos["n"][int(ch)] = bit
        else: pos[ch].append(bit)
        bit += 4 if ch == "B" else 1
    assert bit == 24 and len(pos["w"]) == 2 and len(pos["r"]) == 2 and len(pos["j"]) == 3 and len(set(pos["n"])) == 5
    def spread(sreg, bits, dst):
        a(f"s_mov_b32 {dst}, 0")
        for i, b in enumerate(bits):
            a(f"s_bfe_u32 s38, {sreg}, {(1 << 16) | i}\ns_lshl_b32 s38, s38, {b}\ns_or_b32 {dst}, {dst}, s38")
    spread("s29", pos["j"], "s39")
    a("s_lshl_b32 s31, s28, 24\ns_add_u32 s31, s31, s39\ns_sub_u32 s34, 0x1000000, s39")
    a("s_add_u32 s32, s6, s31\ns_addc_u32 s33, s7, 0\ns_mov_b32 s35, 0x20000")
    a("s_add_u32 s36, s8, s31\ns_addc_u32 s37, s9, 0")
    spread("s3", pos["w"], "s39")
    a(f"v_and_b32 v4, 1, v2\nv_lshlrev_b32 v4, {pos['r'][0]}, v4\nv_lshrrev_b32 v5, 1, v2\nv_lshl_add_u32 v4, v5, {pos['r'][1]}, v4\nv_add3_u32 v4, v4, s39, v7")
    if XK == 1: a("s_and_b32 s60, s2, 31")
    if XK == 2: a("s_mov_b32 s60, s28")
    if XK == 3: a("s_lshl_b32 s60, s29, 2")
    if XK == 4: a("s_lshl_b32 s60, s29, 2\ns_xor_b32 s60, s60, s28")
    if XK == 5: a("s_mul_i32 s60, s2, 0x9e3779b1\ns_lshr_b32 s60, s60, 27")
    if XK == 6: a("s_lshl_b32 s60, s28, 2\ns_and_b32 s60, s60, 28")
    if XK:
        spread("s60", pos["n"], "s61")
    fn = [sum(((n >> i) & 1) << b for i, b in enumerate(pos["n"])) for n in range(32)] + [1 << pos["B"][0]]
    a("s_mov_b32 s72, 0")
    if XK: a("s_mov_b32 s60, s61")
    if ser: a("s_mov_b32 s71, 0\nv_mov_b32 v255, 0")
    masks()
    a("v_cmp_eq_u32 s[82:83], 1, v12\nv_and_b32 v13, 1, v13\nv_cmp_eq_u32 s[80:81], 1, v13")
    a("s_lshl_b32 s31, s3, 9\nv_lshlrev_b32 v225, 5, v3\nv_lshl_add_u32 v225, v2, 4, v225\nv_add_u32 v225, s31, v225")
    a("s_lshl_b32 s31, s3, 13\nv_lshlrev_b32 v224, 2, v1\nv_add_u32 v224, s31, v224")
    a("s_waitcnt vmcnt(8)")
    stamp(2, 2)
    for i in range(early): gload(i)
    for k in range(8):
        a(f"v_lshlrev_b32 v{104+2*k}, 16, v{96+k}\nv_and_b32 v{105+2*k}, 0xffff0000, v{96+k}")
    a("v_add_f32 v12, v104, v105\nv_add_f32 v13, v106, v107\nv_add_f32 v14, v108, v109\nv_add_f32 v15, v110, v111")
    a("v_add_f32 v16, v112, v113\nv_add_f32 v17, v114, v115\nv_add_f32 v18, v116, v117\nv_add_f32 v19, v118, v119")
    a("v_add_f32 v12, v12, v13\nv_add_f32 v14, v14, v15\nv_add_f32 v16, v16, v17\nv_add_f32 v18, v18, v19")
    a("v_add_f32 v12, v12, v14\nv_add_f32 v16, v16, v18\nv_add_f32 v12, v12, v16")
    wave_reduce(12, 13, "v_add_f32")
    a("v_mul_f32 v12, 0x3a800000, v12")
    for k in range(16):
        a(f"v_sub_f32 v{104+k}, v{104+k}, v12")
    a("v_mul_f32 v14, v104, v104\nv_mul_f32 v15, v105, v105\nv_mul_f32 v16, v106, v106\nv_mul_f32 v17, v107, v107")
    for k in range(4, 16):
        a(f"v_fmac_f32 v{14+k%4}, v{104+k}, v{104+k}")
    a("v_add_f32 v14, v14, v15\nv_add_f32 v16, v16, v17\nv_add_f32 v14, v14, v16")
    wave_reduce(14, 13, "v_add_f32")
    a("v_mul_f32 v14, 0x3a800000, v14")
    rbf(14); rbf(12)
    a("v_add_f32 v14, 0x3727c5ac, v14")
    rbf(14)
    a("v_sqrt_f32 v14, v14")
    rbf(14)
    a("v_rcp_f32 v14, v14\nv_lshlrev_b32 v9, 16, v9\nv_sub_f32 v9, v9, v12")
    rbf(9)
    a("v_mul_f32 v9, v9, v14\nv_cvt_pk_bf16_f32 v124, v9, v9")
    stamp(3, 2)
    def stage1(acc, wbase):
        buildA(0, 124, 0)
        for i in range(8):
            if i < 7: buildA((i + 1) & 1, 124, i + 1)
            mfma(acc, i & 1, wbase + 4 * i, i == 0)
    a(f"s_waitcnt vmcnt({early})")
    stamp(4, 2)
    for i in range(early, 8): gload(i)
    stage1(12, 128)
    writeD(12, RED_Q)
    a(f"s_lshl_b32 s31, s3, 2\nv_mov_b32 v16, s31\nv_mov_b32 v17, 1\nds_write_b32 v16, v17 offset:{FL}")
    stamp(1); stamp(5, 2)
    def kslot(n):
        n %= 32
        return 32 + 4 * n if n < 16 else 128 + 4 * (n - 16)
    slot_of = {kslot(n): n for n in range(32)}
    def issueS(reg):
        n = slot_of[reg]
        inc = (fn[n + 1] - fn[n]) & 0xffffffff
        if XK:
            a(f"buffer_load_dwordx4 v[{reg}:{reg+3}], v4, s[32:35], s60 offen {pol_kv}\ns_add_u32 s72, s72, {inc}\ns_xor_b32 s60, s72, s61")
        else:
            a(f"buffer_load_dwordx4 v[{reg}:{reg+3}], v4, s[32:35], s72 offen {pol_kv}\ns_add_u32 s72, s72, {inc}")
    WO0 = 192
    def wsetup():
        srd(40, "s12", "s13", 4096 * 2048)
        a("v_lshl_add_u32 v240, v2, 14, v7")
        a("s_lshl_b32 s31, s28, 2\ns_add_u32 s31, s31, s3\ns_lshl_b32 s75, s31, 16\ns_lshl_b32 s31, s29, 8\ns_add_u32 s75, s75, s31")
        a("v_and_b32 v232, 7, v3\nv_lshrrev_b32 v233, 3, v3\ns_lshl_b32 s31, s28, 13\ns_add_u32 s31, s31, %d" % H1)
        a("v_lshlrev_b32 v232, 10, v232\nv_add_u32 v232, s31, v232")
        a("v_lshlrev_b32 v233, 4, v233\nv_lshl_add_u32 v233, v2, 5, v233\ns_lshl_b32 s31, s3, 7\nv_add3_u32 v233, v233, s31, v232")
        a("s_add_u32 s30, s30, 1")
    wl_all = []
    for t in range(8):
        wl_all.append(f"buffer_load_dwordx4 v[{WO0+4*t}:{WO0+3+4*t}], v240, s[40:43], s75 offen {pol_w}\ns_add_u32 s75, s75, 2048")
    assert DS <= 8
    for i in range(8):
        a(f"s_waitcnt vmcnt({DS-1})")
        uload(i)
    for n in range(32):
        a(f"s_waitcnt vmcnt({DS-1})")
        issueS(kslot(n))
        if n == 0:
            stage1(16, 160)
        if n == DS - 1:
            stage1(20, 192)
            writeD(16, RED_G)
            writeD(20, RED_U)
        if n == 15:
            a("s_waitcnt lgkmcnt(0)")
            wsetup()
            for x in wl_all[:8 - NWT]:
                a(f"s_waitcnt vmcnt({DS-1})"); a(x)
    a("v_mov_b32 v126, 0xff800000\nv_mov_b32 v127, 0\ns_mov_b32 s76, %d" % SCALE)
    stamp(6, 2)
    a("s_waitcnt lgkmcnt(0)\ns_barrier")
    stamp(2)
    a(f"ds_read_b128 v[8:11], v7 offset:{QL}\ns_waitcnt lgkmcnt(0)")
    levels = [int(x) for x in str(DL).split("-")]
    ths = [int(x) for x in str(TH).split("/")] if TH != "" else []
    assert len(ths) == len(levels) - 1
    a(f"s_mov_b32 s70, {len([t for t in ths if t < 0])}\ns_mov_b32 s69, 0\ns_mov_b32 s67, 0\ns_add_u32 s66, s66, {T0}")
    a("s_lshl_b32 s31, s3, 3\nv_mov_b32 v246, s31\nv_mov_b32 v247, 0")
    def control(k):
        if k == 7: a(f"s_memrealtime s[64:65]\nds_read_b64 v[242:243], v247 offset:{RF}")
        if k == 12:
            a("s_waitcnt lgkmcnt(0)\nv_readfirstlane_b32 s62, v242\nv_readfirstlane_b32 s63, v243")
            a("s_sub_u32 s68, s64, s69\ns_add_u32 s69, s69, %d\ns_add_u32 s67, s67, 1" % TAU)
            a(f"v_mov_b32 v244, s68\nv_mov_b32 v245, s67\nds_write_b64 v246, v[244:245] offset:{PH}")
            if fixed: a("s_sub_u32 s68, s68, s66")
            else: a("s_sub_u32 s68, s68, s62\ns_and_b32 s68, s68, s63")
            a("s_mov_b32 s70, 0")
            for i, t in enumerate(ths):
                a(f"s_cmp_gt_i32 s68, {t}\ns_addc_u32 s70, s70, 0")
    uid = [0]
    def variants(fn):
        uid[0] += 1; u = uid[0]
        a.fence()
        for i in range(1, len(levels)):
            a(f"s_cmp_eq_u32 s70, {i}\ns_cbranch_scc1 L_v{u}_{i}")
        for i, d in enumerate(levels):
            if i: a(f"L_v{u}_{i}:")
            fn(d)
            a.fence()
            if i < len(levels) - 1: a(f"s_branch L_v{u}_end")
        a(f"L_v{u}_end:")

    def kgroup(half, d):
        for k in range(16):
            series(k); control(k)
            r = kslot(16 * half + k); acc = 12 + k % 4
            a(f"v_dot2_f32_bf16 v{acc}, v{r}, v8, 0\nv_dot2_f32_bf16 v{acc}, v{r+1}, v9, v{acc}\nv_dot2_f32_bf16 v{acc}, v{r+2}, v10, v{acc}\nv_dot2_f32_bf16 v{acc}, v{r+3}, v11, v{acc}")
            a(f"s_waitcnt vmcnt({d-1})")
            issueS(r)
            if k % 4 == 3:
                C = 20 + k // 4
                a("v_add_f32_dpp v16, v12, v12 row_ror:8 row_mask:0xf bank_mask:0x3")
                a("v_add_f32_dpp v17, v14, v14 row_ror:8 row_mask:0xf bank_mask:0x3")
                a("v_add_f32_dpp v16, v13, v13 row_ror:8 row_mask:0xf bank_mask:0xc")
                a("v_add_f32_dpp v17, v15, v15 row_ror:8 row_mask:0xf bank_mask:0xc")
                a(f"v_add_f32_dpp v{C}, v16, v16 row_shl:4 row_mask:0xf bank_mask:0x5")
                a(f"v_add_f32_dpp v{C}, v17, v17 row_shr:4 row_mask:0xf bank_mask:0xa")
        for C in range(20, 24):
            a(f"v_add_f32_dpp v{C}, v{C}, v{C} quad_perm:[2,3,0,1] row_mask:0xf bank_mask:0xf")
        a("v_cndmask_b32 v20, v20, v21, s[80:81]\nv_cndmask_b32 v22, v22, v23, s[80:81]")
        a("v_add_f32_dpp v20, v20, v20 quad_perm:[1,0,3,2] row_mask:0xf bank_mask:0xf")
        a("v_add_f32_dpp v22, v22, v22 quad_perm:[1,0,3,2] row_mask:0xf bank_mask:0xf")
        a("v_cndmask_b32 v18, v20, v22, s[82:83]")
        rbf(18)
        a("v_mul_f32 v18, s76, v18")
        rbf(18)
        a("v_max_f32 v126, v126, v18\nds_write_b32 v224, v18\nv_add_u32 v224, 256, v224")
    a("s_mov_b32 s73, 16")
    a("L_kloop:")
    a("s_cmp_lg_u32 s73, 1\ns_cbranch_scc1 L_knosw\ns_mov_b32 s32, s36\ns_mov_b32 s33, s37\ns_mov_b32 s72, 0\n" + ("s_mov_b32 s60, s61\n" if XK else "") + "L_knosw:")
    variants(lambda d: kgroup(0, d))
    variants(lambda d: kgroup(1, d))
    a("s_sub_u32 s73, s73, 1\ns_cmp_lg_u32 s73, 0\ns_cbranch_scc1 L_kloop")
    wave_reduce(126, 13, "v_max_f32")
    a(f"s_lshl_b32 s31, s3, 2\nv_mov_b32 v13, s31\nds_write_b32 v13, v126 offset:{MX}")
    a("v_subrev_u32 v224, 8192, v224")
    stamp(3)
    a("ds_read_b32 v125, v224\nv_mov_b32 v226, v126")
    a("s_mov_b32 s76, %d" % LOG2E)
    a("s_waitcnt lgkmcnt(0)")
    def mkP():
        a("v_sub_f32 v125, v125, v226\nv_mul_f32 v125, s76, v125\nv_exp_f32 v125, v125\nv_add_f32 v127, v127, v125\nv_cvt_pk_bf16_f32 v125, v125, v125")
    mkP()
    a("v_mov_b32 v124, v125\nv_mov_b32 v12, 0\nv_mov_b32 v13, 0\nv_mov_b32 v14, 0\nv_mov_b32 v15, 0")
    lam = [4 * (((c >> 1) & 1) + 2 * (c & 1)) + [0, 2, 1, 3][c >> 2] for c in range(16)]
    inv = [lam.index(i) for i in range(16)]
    buildA(0, 124, inv[0])
    def vgroup(half, pre, post, last=False, ctl=True):
        for k in range(16):
            series(k)
            if ctl: control(k)
            if k == 0 and not last:
                a("v_add_u32 v224, 256, v224\nds_read_b32 v125, v224")
            if k == 6 and not last:
                a("s_waitcnt lgkmcnt(0)"); mkP()
            if k < 15: buildA((k + 1) & 1, 124, inv[k + 1])
            elif not last:
                buildA(0, 125, inv[0]); a("v_mov_b32 v124, v125")
            pre(k)
            mfma(12, k & 1, kslot(16 * half + k), False)
            post(k)
            if last and k == 2:
                wave_reduce(127, 16, "v_add_f32")
                a(f"s_lshl_b32 s31, s3, 9\nv_mov_b32 v20, s31\nv_mov_b32 v16, v127\nv_mov_b32 v17, 0\nv_mov_b32 v18, 0\nv_mov_b32 v19, 0\nds_write_b128 v20, v[16:19] offset:{RED_L}")
    def vsteady(half, d):
        def post(k):
            a(f"s_waitcnt vmcnt({d-1})"); issueS(kslot(16 * half + k))
        vgroup(half, lambda k: None, post)
    a("s_mov_b32 s73, 15")
    a("L_vloop:")
    variants(lambda d: vsteady(0, d))
    variants(lambda d: vsteady(1, d))
    a("s_sub_u32 s73, s73, 1\ns_cmp_lg_u32 s73, 0\ns_cbranch_scc1 L_vloop")
    wl = wl_all[8 - NWT:]
    nw = [0]
    dmax = max(levels)
    wsteps = [n for n in range(32) if (n < 32 - DT and n % 5 == 4) or n >= 32 - DT]
    def fin(half):
        def pre(k):
            n = 16 * half + k
            if n >= 32 - dmax: a(f"s_waitcnt vmcnt({31 - n + nw[0]})")
        def post(k):
            n = 16 * half + k
            if n in wsteps and nw[0] < len(wl):
                a(wl[nw[0]]); nw[0] += 1
        vgroup(half, pre, post, last=(half == 1), ctl=False)
    a("L_tail0:")
    fin(0); fin(1)
    writeD(12, RED_O)
    for x in wl[nw[0]:]: a(x)
    a("s_waitcnt lgkmcnt(0)\ns_barrier")
    stamp(4)
    pollc("L_p1", ["buffer_load_dwordx4 v[228:231], v233, s[56:59], 0 offen sc1",
                   "buffer_load_dwordx2 v[236:237], v232, s[56:59], 0 offen offset:512 sc1"], [228, 229, 230, 231, 236, 237], sleep=sl1)
    stamp(5)
    steps = ["quad_perm:[1,0,3,2]", "quad_perm:[2,3,0,1]", "row_half_mirror"]
    O4 = (228, 229, 230, 231)
    a("v_and_b32 v237, 0xffffff00, v237\nv_mov_b32 v240, v237")
    for s in steps: a(f"v_max_f32_dpp v240, v240, v240 {s} row_mask:0xf bank_mask:0xf")
    a("v_sub_f32 v237, v237, v240\nv_mul_f32 v237, s76, v237\nv_exp_f32 v237, v237")
    for v in (236,) + O4: a(f"v_mul_f32 v{v}, v{v}, v237")
    for s in steps:
        for v in (236,) + O4: a(f"v_add_f32_dpp v{v}, v{v}, v{v} {s} row_mask:0xf bank_mask:0xf")
    a("v_rcp_f32 v236, v236")
    for v in O4: a(f"v_mul_f32 v{v}, v{v}, v236")
    for v in O4: a(f"v_cvt_pk_bf16_f32 v{v}, v{v}, v{v}")
    seq = [(b, i) for b in range(2) for i in range(4)]
    buildA(0, 228, 0)
    for t, (b, i) in enumerate(seq):
        if t < 7:
            b2, i2 = seq[t + 1]; buildA((t + 1) & 1, 228 + i2, 8 * b2)
        mfma(16, t & 1, WO0 + 4 * t, t == 0)
    writeD(16, RED_A)
    a("s_waitcnt lgkmcnt(0)\ns_barrier")
    stamp(6)
    if ser:
        a("s_add_u32 s68, s26, 0x9000000\ns_addc_u32 s69, s27, 0\ns_lshl_b32 s31, s2, 2\ns_add_u32 s31, s31, s3\ns_lshl_b32 s31, s31, 8\nv_lshlrev_b32 v16, 2, v1\nv_add_u32 v16, s31, v16")
        a("global_store_dword v16, v255, s[68:69]")
    if diag:
        a("s_waitcnt lgkmcnt(0)\ns_getreg_b32 s98, hwreg(HW_REG_HW_ID)\ns_getreg_b32 s99, hwreg(HW_REG_XCC_ID)")
        a("s_cmp_lg_u32 s3, 0\ns_cbranch_scc1 L_exit\ns_mov_b32 s31, 0\ns_branch L_stamps")
    else:
        a("s_endpgm")

    a("L_comm:")
    incomm[0] = True
    a(f"v_mov_b32 v8, 0\nv_mov_b32 v20, 0\nv_mov_b32 v21, 0\nv_mov_b32 v22, 0\nv_mov_b32 v23, 0\nds_write_b128 v8, v[20:23] offset:{FL}\nds_write_b128 v8, v[20:23] offset:{RF}\nds_write_b128 v8, v[20:23] offset:{PH}\nds_write_b128 v8, v[20:23] offset:{PH+16}\ns_waitcnt lgkmcnt(0)\ns_barrier")
    a("s_lshl_b32 s31, s29, 8\ns_and_b32 s75, s28, 3\ns_lshl_b32 s75, s75, 6\ns_add_u32 s75, s75, s31")
    a("v_and_b32 v37, 7, v1\nv_lshlrev_b32 v38, 3, v37")
    a("buffer_load_dwordx2 v[10:11], v38, s[52:55], s75 offen")
    masks()
    srd(68, "s22", "s23", 2048)
    a("v_lshlrev_b32 v9, 3, v1")
    a("s_lshl_b32 s31, s2, 10\ns_add_u32 s40, s31, %d" % H0Q)
    a("s_lshl_b32 s31, s28, 13\ns_add_u32 s41, s31, %d\ns_add_u32 s42, s41, 4096" % H0Q)
    a("s_waitcnt lgkmcnt(0)\ns_add_u32 s30, s30, 1")
    def red4(dst, off, tmp):
        for w in range(4): a(f"ds_read_b64 v[{tmp+2*w}:{tmp+2*w+1}], v9 offset:{off+512*w}")
    def sum4(dst, tmp):
        a(f"v_add_f32 v{dst}, v{tmp}, v{tmp+2}\nv_add_f32 v{dst+2}, v{tmp+1}, v{tmp+3}\nv_add_f32 v{tmp+4}, v{tmp+4}, v{tmp+6}\nv_add_f32 v{tmp+5}, v{tmp+5}, v{tmp+7}")
        a(f"v_add_f32 v{dst}, v{dst}, v{tmp+4}\nv_add_f32 v{dst+2}, v{dst+2}, v{tmp+5}")
    a("v_mov_b32 v13, s30\nv_mov_b32 v15, s30\nv_mov_b32 v17, s30\nv_mov_b32 v19, s30")
    a.fence()
    a(f"L_fl:\nds_read_b128 v[20:23], v8 offset:{FL}\ns_waitcnt lgkmcnt(0)\nv_and_b32 v20, v20, v21\nv_and_b32 v22, v22, v23\nv_and_b32 v20, v20, v22\nv_readfirstlane_b32 s31, v20")
    a("s_cmp_eq_u32 s31, 1\ns_cbranch_scc1 L_fl_ok\ns_sleep 1\ns_branch L_fl\nL_fl_ok:")
    stamp(1)
    red4(12, RED_Q, 20); a("s_waitcnt lgkmcnt(0)"); sum4(12, 20)
    if noq != 1: a("buffer_store_dwordx4 v[12:15], v6, s[56:59], s40 offen " + qfl.replace("+", " "))
    if qdelay: a(f"s_sleep {qdelay}")
    if noq:
        pass
    elif maskpoll:
        poll_rows("L_p0", [(f"buffer_load_dwordx4 v[{128+4*jj}:{131+4*jj}], v6, s[56:59], s{41+jj//4} offen offset:{1024*(jj%4)} sc1", 129 + 4 * jj, 131 + 4 * jj) for jj in range(8)], 4)
    else:
        poll("L_p0", [f"buffer_load_dwordx4 v[{128+4*jj}:{131+4*jj}], v6, s[56:59], s{41+jj//4} offen offset:{1024*(jj%4)} sc1" for jj in range(8)],
             [129 + 2 * i for i in range(16)])
    stamp(2)
    def sum8(base, stride):
        for o in (0, 2):
            for (x, y) in ((0, 1), (2, 3), (4, 5), (6, 7), (0, 2), (4, 6), (0, 4)):
                a(f"v_add_f32 v{base+x*stride+o}, v{base+x*stride+o}, v{base+y*stride+o}")
    sum8(128, 4)
    a(f"v_cvt_pk_bf16_f32 v128, v128, v130\nv_lshlrev_b32 v20, 2, v1\nds_write_b32 v20, v128 offset:{QL}")
    a("s_waitcnt lgkmcnt(0)\ns_barrier")
    def tag4(v):
        for i in range(4): a(f"v_bfi_b32 v{v+i}, s61, v13, v{v+i}")
    a("s_mov_b32 s61, 0xff")
    red4(0, RED_G, 20); red4(0, RED_U, 28); a("s_waitcnt lgkmcnt(0)")
    for d, t in ((16, 20), (18, 28)):
        a(f"v_add_f32 v{d}, v{t}, v{t+2}\nv_add_f32 v{d+1}, v{t+1}, v{t+3}\nv_add_f32 v{t+4}, v{t+4}, v{t+6}\nv_add_f32 v{t+5}, v{t+5}, v{t+7}")
        a(f"v_add_f32 v{d}, v{d}, v{t+4}\nv_add_f32 v{d+1}, v{d+1}, v{t+5}")
    tag4(16)
    a("s_lshl_b32 s43, s2, 10\ns_add_u32 s40, s43, %d\ns_mov_b32 s62, -1\ns_mov_b32 s63, 0xffffff" % H0GU)
    a("s_mov_b64 exec, s[62:63]\nbuffer_store_dwordx4 v[16:19], v6, s[56:59], s40 offen %s\ns_mov_b64 exec, -1" % gufl.replace("+", " "))
    srd(44, "s20", "s21", 3584 * 2048)
    a("v_lshl_add_u32 v20, v2, 11, v7\ns_mul_i32 s74, s28, %d\ns_lshl_b32 s31, s29, 8\ns_add_u32 s74, s74, s31" % (112 * 2048))
    for i in range(28):
        if i >= WDF: a(f"s_waitcnt vmcnt({WDF-1})")
        a(f"buffer_load_dwordx4 v[{128+4*i}:{131+4*i}], v20, s[44:47], s74 offen {pol_w}\ns_add_u32 s74, s74, 8192")
    a("s_lshl_b32 s31, s28, 13\ns_add_u32 s41, s31, %d\ns_add_u32 s42, s41, 4096" % H0GU)
    a("s_mov_b64 exec, s[62:63]")
    pollc("L_pg", [f"buffer_load_dwordx4 v[{64+4*n}:{67+4*n}], v6, s[56:59], s{41+n//4} offen offset:{1024*(n%4)} sc1" for n in range(8)],
          list(range(64, 96)), sleep=50)
    stamp(3)
    for o in range(4):
        for (x, y) in ((0, 1), (2, 3), (4, 5), (6, 7), (0, 2), (4, 6), (0, 4)):
            a(f"v_add_f32 v{64+4*x+o}, v{64+4*x+o}, v{64+4*y+o}")
    for v in (64, 65, 66, 67): rbf(v)
    a("s_mov_b32 s48, 0x3d372713\ns_mov_b32 s49, 0xc0135761")
    for g, u in ((64, 66), (65, 67)):
        a(f"v_mul_f32 v20, v{g}, v{g}\nv_fma_f32 v20, v20, s48, 1.0\nv_mul_f32 v20, v20, v{g}\nv_mul_f32 v20, s49, v20\nv_exp_f32 v20, v20\nv_add_f32 v20, 1.0, v20\nv_rcp_f32 v20, v20\nv_mul_f32 v{g}, v{g}, v20")
        rbf(g)
        a(f"v_mul_f32 v{g}, v{g}, v{u}")
    a(f"v_cvt_pk_bf16_f32 v20, v64, v64\nv_cvt_pk_bf16_f32 v21, v65, v65\nds_write_b64 v9, v[20:21] offset:{HL}")
    a(f"v_lshl_add_u32 v20, v2, 2, v7\nds_read_b32 v56, v20 offset:{HL}\nds_read_b32 v57, v20 offset:{HL+256}\ns_waitcnt lgkmcnt(0)")
    buildA(0, 56, 0)
    for i in range(28):
        if i < 27: buildA((i + 1) & 1, 56 + (i + 1) // 16, (i + 1) % 16)
        mfma(52, i & 1, 128 + 4 * i, i == 0)
    tag4(52)
    sh = GP.bit_length() - 1
    assert GP == 1 << sh
    a("v_lshlrev_b32 v50, 7, v1")
    a(f"s_mov_b32 s44, {G0}\ns_mov_b32 s45, {G0+GG}\ns_mov_b32 s46, {G0+GR}\ns_mov_b32 s47, 0\ns_mov_b32 s51, 0\ns_mov_b32 s52, 0\ns_mov_b32 s53, 0\ns_mov_b32 s54, 0")
    a("s_xor_b32 s55, s28, s29\ns_and_b32 s55, s55, 3")
    a("s_lshr_b32 s48, s2, 2\ns_lshl_b32 s48, s48, 7\ns_add_u32 s48, s48, %d\ns_mov_b32 s49, %d" % (PHI, PHI))
    a("s_lshl_b32 s50, s29, 7\ns_add_u32 s50, s50, %d\ns_mov_b32 s60, %d" % (REF, REF))
    a("s_cmp_eq_u32 s2, 0\ns_cselect_b32 s45, s45, -1")
    if noex: a("s_mov_b32 s44, -1\ns_mov_b32 s45, -1\ns_mov_b32 s46, -1")
    a.fence()
    a("L_ctl:")
    a(f"ds_read_b128 v[20:23], v8 offset:{PH}\nds_read_b128 v[24:27], v8 offset:{PH+16}\ns_waitcnt lgkmcnt(0)")
    a("v_min_u32 v21, v21, v23\nv_min3_u32 v21, v21, v25, v27\nv_readfirstlane_b32 s31, v21")
    a(f"s_cmp_ge_u32 s31, {GEX}\ns_cbranch_scc1 L_ctl_end\ns_cmp_eq_u32 s31, s47\ns_cbranch_scc1 L_ctl_sleep\ns_mov_b32 s47, s31")
    a("v_sub_u32 v22, v22, v20\nv_sub_u32 v24, v24, v20\nv_sub_u32 v26, v26, v20\nv_add3_u32 v22, v22, v24, v26\nv_ashrrev_i32 v22, 2, v22\nv_add_u32 v12, v20, v22")
    a(f"s_cmp_lt_u32 s47, s44\ns_cbranch_scc1 L_ctl_g\ns_add_u32 s44, s44, {GP}\ns_cmp_lg_u32 s55, 0\ns_cbranch_scc1 L_ctl_g")
    a("s_mov_b64 exec, 1\nbuffer_store_dwordx2 v[12:13], v8, s[56:59], s48 offen sc1\ns_mov_b64 exec, -1\ns_add_u32 s48, s48, 8192")
    a("L_ctl_g:")
    a("s_cmp_lt_u32 s47, s45\ns_cbranch_scc1 L_ctl_rd")
    a("buffer_load_dwordx2 v[20:21], v50, s[56:59], s49 offen sc1\ns_waitcnt vmcnt(0)")
    a("v_cmp_ne_u32 vcc, s30, v21\ns_cmp_lg_u64 vcc, 0\ns_cbranch_scc1 L_ctl_rd")
    a("v_sub_u32 v20, v20, v12")
    wave_reduce(20, 21, "v_add_u32")
    a("v_ashrrev_i32 v20, 6, v20\nv_add_u32 v14, v12, v20")
    a("s_mov_b64 exec, 0xff\nbuffer_store_dwordx2 v[14:15], v50, s[56:59], s60 offen sc1\ns_mov_b64 exec, -1")
    a(f"s_add_u32 s45, s45, {GP}\ns_add_u32 s49, s49, 8192\ns_add_u32 s60, s60, 1024")
    a.fence()
    a("L_ctl_rd:")
    a("s_cmp_lt_u32 s47, s46\ns_cbranch_scc1 L_ctl_up")
    a("s_mov_b64 exec, 1\nbuffer_load_dwordx2 v[28:29], v8, s[56:59], s50 offen sc1\ns_waitcnt vmcnt(0)\nv_readfirstlane_b32 s31, v29\nv_readfirstlane_b32 s64, v28\ns_mov_b64 exec, -1")
    a("s_cmp_lg_u32 s31, s30\ns_cbranch_scc1 L_ctl_up")
    a("s_sub_u32 s52, s64, s51\ns_and_b32 s52, s52, s54")
    if not slope: a("s_mov_b32 s52, 0")
    a(f"s_mov_b32 s51, s64\ns_sub_u32 s53, s46, {GR + 1}\ns_mov_b32 s54, -1\ns_add_u32 s46, s46, {GP}\ns_add_u32 s50, s50, 1024")
    a("L_ctl_up:")
    a(f"s_sub_u32 s31, s47, s53\ns_mul_i32 s31, s31, s52\ns_ashr_i32 s31, s31, {sh}\ns_add_u32 s31, s31, s51")
    a(f"v_mov_b32 v30, s31\nv_mov_b32 v31, s54\nds_write_b64 v8, v[30:31] offset:{RF}")
    a(f"L_ctl_sleep:\ns_sleep {CSL}\ns_branch L_ctl")
    a("L_ctl_end:")
    a(f"ds_read_b128 v[44:47], v8 offset:{MX}\ns_waitcnt lgkmcnt(0)\nv_max_f32 v20, v44, v45\nv_max3_f32 v16, v20, v46, v47\ns_mov_b32 s31, {LOG2E}")
    for w in range(4): a(f"v_sub_f32 v{44+w}, v{44+w}, v16\nv_mul_f32 v{44+w}, s31, v{44+w}\nv_exp_f32 v{44+w}, v{44+w}")
    a("s_add_u32 s40, s43, %d\ns_lshl_b32 s31, s2, 9\ns_add_u32 s41, s31, %d\ns_add_u32 s42, s31, %d" % (H1, H2A, H2F))
    a("v_lshlrev_b32 v39, 5, v3\nv_lshl_add_u32 v39, v2, 4, v39")
    a("v_cmp_eq_u32 vcc, 32, v1\nv_mov_b32 v20, 2048\nv_cndmask_b32 v48, v6, v20, vcc\nv_cndmask_b32 v49, 0, v16, vcc")
    a("s_mov_b32 s63, 1")
    a("v_lshrrev_b32 v36, 3, v1\nv_lshlrev_b32 v36, 12, v36\nv_lshl_add_u32 v36, v37, 4, v36")
    a("s_lshl_b32 s31, s29, 9\ns_lshl_b32 s44, s28, 7\ns_add_u32 s44, s44, s31\ns_add_u32 s44, s44, %d" % H2A)
    for i in range(1, 8): a(f"s_add_u32 s{44+i}, s44, {32768*i}")
    assert H2F == H2A + 4 * 32768
    a("v_lshlrev_b32 v40, 16, v10\nv_and_b32 v41, 0xffff0000, v10\nv_lshlrev_b32 v42, 16, v11\nv_and_b32 v43, 0xffff0000, v11")
    if warm:
        a("s_getpc_b64 s[64:65]\nL_pc:\ns_sub_u32 s64, s64, L_pc-L_tail0\ns_subb_u32 s65, s65, 0")
        for i in range(warm): a(f"global_load_dwordx4 v[64:67], v6, s[64:65]\ns_add_u32 s64, s64, 1024\ns_addc_u32 s65, s65, 0")
        a("s_waitcnt vmcnt(0)")
    tf = tfl.replace("+", " ")
    a("s_barrier")
    stamp(4)
    a("s_mov_b64 exec, s[62:63]")
    for w in range(4): a(f"ds_read_b128 v[{20+4*w}:{23+4*w}], v48 offset:{RED_O+512*w}")
    a("s_waitcnt lgkmcnt(0)")
    a("v_mul_f32 v16, v20, v44\nv_fma_f32 v17, v21, v44, v49\nv_mul_f32 v18, v22, v44\nv_mul_f32 v19, v23, v44")
    for w in range(1, 4):
        for i in range(4): a(f"v_fmac_f32 v{16+i}, v{20+4*w+i}, v{44+w}")
    tag4(16)
    a(f"buffer_store_dwordx4 v[16:19], v6, s[56:59], s40 offen {tf}")
    a(f"s_mov_b64 exec, s[78:79]\nbuffer_store_dwordx4 v[52:55], v39, s[56:59], s42 offen {tf}")
    a("s_barrier")
    stamp(5)
    for w in range(4): a(f"ds_read_b128 v[{20+4*w}:{23+4*w}], v6 offset:{RED_A+512*w}")
    a("s_waitcnt lgkmcnt(0)")
    for i in range(4): a(f"v_add_f32 v{20+i}, v{20+i}, v{24+i}\nv_add_f32 v{28+i}, v{28+i}, v{32+i}")
    for i in range(4): a(f"v_add_f32 v{60+i}, v{20+i}, v{28+i}")
    tag4(60)
    a(f"buffer_store_dwordx4 v[60:63], v6, s[56:59], s41 offen {tf}\ns_mov_b64 exec, -1")
    if diag:
        a("s_cmp_lt_u32 s28, 4\ns_cbranch_scc1 L_cons"); stamp(6); a("s_branch L_noep\nL_cons:")
    else:
        a("s_cmp_ge_u32 s28, 4\ns_cbranch_scc1 " + ("L_noep" if spin else "L_exit"))
    def xred(b):
        for i in range(4): a(f"v_add_f32 v{b+i}, v{b+i}, v{b+4+i}\nv_add_f32 v{b+8+i}, v{b+8+i}, v{b+12+i}")
        for i in range(4): a(f"v_add_f32 v{b+i}, v{b+i}, v{b+8+i}")
        for i in range(4): a(f"v_add_f32_dpp v{b+i}, v{b+i}, v{b+i} row_ror:8 row_mask:0xf bank_mask:0xf")
        for op in ("v_permlane16_swap_b32", "v_permlane32_swap_b32"):
            for i in range(4): a(f"v_mov_b32 v{b+4+i}, v{b+i}")
            for i in range(4): a(f"{op} v{b+i}, v{b+4+i}")
            for i in range(4): a(f"v_add_f32 v{b+i}, v{b+i}, v{b+4+i}")
        for i in range(4): rbf(b + i)
    pollc("L_pf", [f"buffer_load_dwordx4 v[{144+4*i}:{147+4*i}], v36, s[56:59], s{48+i} offen sc1" for i in range(4)], list(range(144, 160)), sleep=sl2)
    xred(144)
    pollc("L_p2", [f"buffer_load_dwordx4 v[{128+4*i}:{131+4*i}], v36, s[56:59], s{44+i} offen sc1" for i in range(4)], list(range(128, 144)), sleep=sl2)
    stamp(6)
    xred(128)
    for i in range(4): a(f"v_add_f32 v{128+i}, v{128+i}, v{40+i}")
    for i in range(4): rbf(128 + i)
    for i in range(4): a(f"v_add_f32 v{128+i}, v{128+i}, v{144+i}")
    a("v_cvt_pk_bf16_f32 v20, v128, v129\nv_cvt_pk_bf16_f32 v21, v130, v131")
    a("s_mov_b64 exec, 0xff\nbuffer_store_dwordx2 v[20:21], v38, s[68:71], s75 offen\ns_mov_b64 exec, 1")
    a("s_cmp_lg_u32 s2, 0\ns_cbranch_scc1 L_noep\nbuffer_store_dword v13, v8, s[56:59], 0 offen sc1\nL_noep:")
    if spin:
        if spinwg >= 0: a(f"s_cmp_lg_u32 s2, {spinwg}\ns_cbranch_scc1 L_exit")
        a(f"L_spin:\ns_memrealtime s[64:65]\ns_waitcnt lgkmcnt(0)\ns_sub_u32 s64, s64, s66\ns_cmp_lt_u32 s64, {spin}\ns_cbranch_scc1 L_spin")
    if diag:
        a("s_waitcnt vmcnt(0)")
        stamp(7)
        a("s_mov_b32 s31, 64")
        a("L_stamps:")
        a("s_waitcnt lgkmcnt(0)\ns_mov_b64 exec, 1")
        if dbgout:
            a("v_mov_b32 v8, 0\ns_cmp_lg_u32 s31, 0\ns_cbranch_scc1 L_dbgc")
            for n, k in enumerate((0, 2, 3, 4, 5)):
                a(f"v_mov_b32 v12, s{84+2*k}\nv_not_b32 v13, v12\nglobal_atomic_umax v8, v12, s[24:25] offset:{8*n}\nglobal_atomic_umax v8, v13, s[24:25] offset:{8*n+4}")
            a("s_endpgm\nL_dbgc:")
            for n, k in enumerate((2, 6, 7)):
                a(f"v_mov_b32 v12, s{84+2*k}\nv_not_b32 v13, v12\nglobal_atomic_umax v8, v12, s[24:25] offset:{40+8*n}\nglobal_atomic_umax v8, v13, s[24:25] offset:{44+8*n}")
        else:
            a("s_add_u32 s26, s26, 0x8000000\ns_addc_u32 s27, s27, 0\ns_lshl_b32 s74, s2, 7\ns_add_u32 s74, s74, s31\nv_mov_b32 v8, s74")
            for q in range(4):
                for e in range(4): a(f"v_mov_b32 v{12+e}, s{84+4*q+e}")
                a(f"global_store_dwordx4 v8, v[12:15], s[26:27] offset:{16*q}")
                a("s_nop 2")
    a("L_exit:\ns_endpgm")

    out = HDR
    out += "; Override launch geometry by editing the next line (default: block=256,\n"
    out += f"; @launch grid=(256,1,1) block=(320,1,1) lds={LDS_BYTES}\n"
    out += f'.amdgcn_target "amdgcn-amd-amdhsa--gfx950"\n.text\n.globl {NAME}\n.p2align 8\n.type {NAME},@function\n{NAME}:\n'
    out += a.text()
    out += f""".section .rodata,"a"
.p2align 6
.amdhsa_kernel {NAME}
  .amdhsa_next_free_vgpr 256
  .amdhsa_next_free_sgpr 102
  .amdhsa_accum_offset 256
  .amdhsa_group_segment_fixed_size 0
  .amdhsa_kernarg_size 96
  .amdhsa_user_sgpr_count 2
  .amdhsa_user_sgpr_kernarg_segment_ptr 1
  .amdhsa_system_sgpr_workgroup_id_x 1
  .amdhsa_float_denorm_mode_32 3
.end_amdhsa_kernel
"""
    return out, LDS_BYTES

if __name__ == "__main__":
    kw = {}
    for x in sys.argv[2:]:
        k, v = x.split("=")
        try: v = int(v)
        except ValueError: pass
        kw[k] = v
    s, lds = gen(**kw)
    open(sys.argv[1], "w").write(s)
    print("lds", lds)
```

```python
import sys
from asmlib import Asm

NAME = "parallel_sum__mha_block_cached__glu_gated_geglu__decode_kernel"
HDR = open("parallel_sum__mha_block_cached__glu_gated_geglu__decode.s.ref").read().split("; Override launch")[0]

H0Q, H0GU, H1, H2A, H2F = 0x1000, 0x50000, 0x90000, 0xD0000, 0xF0000
PHI, REF = 0x1D0000, 0x1F0000
WS_BYTES = 0x200000
SC = 0
RED_Q, RED_G, RED_U, RED_A, RED_O, RED_L = [32768 + 2048 * i for i in range(6)]
QL = 32768 + 12288
HL = QL + 256
MX = HL + 1024
LS = MX + 16
FL = LS + 16
RF = FL + 16
PH = RF + 16
LDS_BYTES = PH + 32

LOG2E = 0x3fb8aa3b
SCALE = 0x3db504f3

def gen(diag=False, JD=0, MS=0, PT=0, PP=0, FW=0, KB=0, NBG=0, DB=12, MAP='rrww01234Bjjj', XK=0, IL=0, WI=1, qdelay=0, perm=0, qfl='sc1', tfl='sc1', WDF=3, warm=0, gufl='sc1+nt', nogu=0, noq=0, gudelay=0, spin=0, spinwg=-1, G0=4, GP=8, GG=2, GR=4, slope=1, noex=0, NWT=8, CSL=8, GEX=60, fixed=0, DL='5', TH='', T0=200, TAU=220, DT=5, early=4, dbgout=0, ser=0, maskpoll=1, sl1=1, sl2=1, D=8, DS=8, D2=0, NB2=0, pol_w="nt", pol_gu="nt", pol_kv="nt"):
    a = Asm()
    def stamp(i, mode=1):
        if diag == mode or (diag and i in (0, 7)) or (diag and incomm[0]):
            a(f"s_memrealtime s[{84+2*i}:{85+2*i}]")
    incomm = [False]
    def series(k):
        if not ser: return
        if k == 0: a("s_memrealtime s[100:101]")
        if k == 5: a("s_waitcnt lgkmcnt(0)\ns_mov_b32 m0, s71\ns_nop 0\nv_writelane_b32 v255, s100, m0\ns_add_u32 s71, s71, 1")
    def srd(n, lo, hi, size):
        a(f"s_mov_b32 s{n}, {lo}\ns_mov_b32 s{n+1}, {hi}\ns_mov_b32 s{n+2}, {size}\ns_mov_b32 s{n+3}, 0x20000")
    def wave_reduce(v, t, op):
        for r in (8, 4, 2, 1):
            a(f"{op}_dpp v{v}, v{v}, v{v} row_ror:{r} row_mask:0xf bank_mask:0xf")
        a(f"v_mov_b32 v{t}, v{v}\nv_permlane16_swap_b32 v{v}, v{t}\n{op} v{v}, v{v}, v{t}")
        a(f"v_mov_b32 v{t}, v{v}\nv_permlane32_swap_b32 v{v}, v{t}\n{op} v{v}, v{v}, v{t}")
    def rbf(v):
        a(f"v_cvt_pk_bf16_f32 v{v}, v{v}, v{v}\nv_and_b32 v{v}, 0xffff0000, v{v}")
    def buildA(buf, P, c):
        base = 24 + 4 * buf
        for t in range(4):
            a(f"v_and_b32_dpp v{base+t}, v{P}, v{120+t} row_newbcast:{c} row_mask:0xf bank_mask:0xf")
    def mfma(acc, buf, breg, first):
        base = 24 + 4 * buf
        a(f"v_mfma_f32_16x16x32_bf16 v[{acc}:{acc+3}], v[{base}:{base+3}], v[{breg}:{breg+3}], " + ("0" if first else f"v[{acc}:{acc+3}]"))
    def writeD(acc, off):
        a(f"s_mov_b64 exec, s[78:79]\nds_write_b128 v225, v[{acc}:{acc+3}] offset:{off}\ns_mov_b64 exec, -1")
    def poll(label, loads, tagregs, acc=250, t1=251, t2=252, sleep=1):
        a.fence()
        a(f"s_mov_b32 s77, 0x100000")
        a(f"{label}:")
        for l in loads: a(l)
        a("s_waitcnt vmcnt(0)")
        a(f"v_xor_b32 v{acc}, s30, v{tagregs[0]}")
        rest = tagregs[1:]
        while len(rest) >= 2:
            a(f"v_xor_b32 v{t1}, s30, v{rest[0]}\nv_xor_b32 v{t2}, s30, v{rest[1]}\nv_or3_b32 v{acc}, v{acc}, v{t1}, v{t2}")
            rest = rest[2:]
        if rest:
            a(f"v_xor_b32 v{t1}, s30, v{rest[0]}\nv_or_b32 v{acc}, v{acc}, v{t1}")
        a(f"v_cmp_ne_u32 vcc, 0, v{acc}")
        a(f"s_cmp_eq_u64 vcc, 0\ns_cbranch_scc1 {label}_ok")
        if maskpoll: a("s_mov_b64 exec, vcc")
        a(f"s_sub_u32 s77, s77, 1\ns_cmp_eq_u32 s77, 0\ns_cbranch_scc1 {label}_ok\ns_sleep {sleep}\ns_branch {label}")
        a(f"{label}_ok:")
        a("s_mov_b64 exec, -1")
    def pollc(label, loads, regs, full=(), acc=250, sleep=1):
        a.fence()
        a(f"s_mov_b32 s77, 0x100000")
        a(f"{label}:")
        for l in loads: a(l)
        a("s_waitcnt vmcnt(0)")
        a(f"v_xor_b32 v{acc}, s30, v{regs[0]}")
        for r in regs[1:]: a(f"v_bitop3_b32 v{acc}, v{r}, s30, v{acc} bitop3:0xbe")
        a(f"v_and_b32 v{acc}, 0xff, v{acc}")
        for r in full: a(f"v_bitop3_b32 v{acc}, v{r}, s30, v{acc} bitop3:0xbe")
        a(f"v_cmp_ne_u32 vcc, 0, v{acc}")
        a(f"s_cmp_eq_u64 vcc, 0\ns_cbranch_scc1 {label}_ok")
        a(f"s_sub_u32 s77, s77, 1\ns_cmp_eq_u32 s77, 0\ns_cbranch_scc1 {label}_ok")
        if sleep: a(f"s_sleep {sleep}")
        a(f"s_branch {label}")
        a(f"{label}_ok:")
        a("s_mov_b64 exec, -1")
    def pollp(label, mk, setA, setB, nlow, acc=250, gap=2):
        def check(regs):
            a(f"v_xor_b32 v{acc}, s30, v{regs[0]}")
            for r in regs[1:nlow]: a(f"v_bitop3_b32 v{acc}, v{r}, s30, v{acc} bitop3:0xbe")
            a(f"v_and_b32 v{acc}, 0xff, v{acc}")
            for r in regs[nlow:]: a(f"v_bitop3_b32 v{acc}, v{r}, s30, v{acc} bitop3:0xbe")
            a(f"v_cmp_ne_u32 vcc, 0, v{acc}\ns_cmp_eq_u64 vcc, 0")
        n = len(mk(setA))
        a.fence()
        a("s_mov_b32 s77, 0x100000")
        for l in mk(setA): a(l)
        a(f"s_sleep {gap}")
        a(f"{label}:")
        for l in mk(setB): a(l)
        a(f"s_waitcnt vmcnt({n})")
        check(setA)
        a(f"s_cbranch_scc1 {label}_ok")
        for l in mk(setA): a(l)
        a(f"s_waitcnt vmcnt({n})")
        check(setB)
        a(f"s_cbranch_scc1 {label}_b")
        a(f"s_sub_u32 s77, s77, 1\ns_cmp_lg_u32 s77, 0\ns_cbranch_scc1 {label}")
        a(f"{label}_b:")
        return
    def masks():
        a("v_and_b32 v12, 1, v3\nv_lshrrev_b32 v13, 1, v3\nv_cmp_eq_u32 vcc, 1, v12\nv_mov_b32 v14, 0xffff\nv_mov_b32 v15, 0xffff0000\nv_cndmask_b32 v14, v14, v15, vcc")
        for t in range(4):
            a(f"v_cmp_eq_u32 vcc, {t}, v13\nv_cndmask_b32 v{120+t}, 0, v14, vcc")
    def poll_rows(label, loads, sbase, sleep=1):
        a.fence()
        n = len(loads)
        a(f"s_mov_b32 s77, 0x100000\ns_mov_b32 s76, {(1 << n) - 1}")
        a(f"{label}:")
        for i, (l, _, _) in enumerate(loads):
            a(f"s_bitcmp1_b32 s76, {i}\ns_cbranch_scc0 {label}_s{i}")
            a(l)
            a(f"{label}_s{i}:")
        a("s_waitcnt vmcnt(0)")
        for i, (_, ta, tb) in enumerate(loads):
            a(f"v_xor_b32 v250, s30, v{ta}\nv_xor_b32 v251, s30, v{tb}\nv_or_b32 v250, v250, v251\nv_cmp_ne_u32 s[{sbase+2*i}:{sbase+2*i+1}], 0, v250")
        a("s_mov_b32 s76, 0")
        for i in range(n):
            a(f"s_cmp_lg_u64 s[{sbase+2*i}:{sbase+2*i+1}], 0\ns_cselect_b32 s74, {1 << i}, 0\ns_or_b32 s76, s76, s74")
        a(f"s_cmp_eq_u32 s76, 0\ns_cbranch_scc1 {label}_ok")
        a(f"s_sub_u32 s77, s77, 1\ns_cmp_eq_u32 s77, 0\ns_cbranch_scc1 {label}_ok\ns_sleep {sleep}\ns_branch {label}")
        a(f"{label}_ok:")

    a("s_cmp_ge_u32 s2, 256\ns_cbranch_scc1 L_exit")
    stamp(0)
    a("s_memrealtime s[66:67]")
    a("s_load_dwordx16 s[4:19], s[0:1], 0\ns_load_dwordx8 s[20:27], s[0:1], 64")
    a("v_lshrrev_b32 v5, 6, v0\nv_and_b32 v1, 63, v0\nv_readfirstlane_b32 s3, v5")
    a("v_lshrrev_b32 v2, 4, v1\nv_and_b32 v3, 15, v1")
    if perm == 1: a("s_and_b32 s28, s2, 7\ns_lshl_b32 s28, s28, 5\ns_lshr_b32 s2, s2, 3\ns_add_u32 s2, s2, s28")
    a("s_lshr_b32 s28, s2, 3\ns_and_b32 s29, s2, 7")
    a("s_mov_b32 s78, -1\ns_mov_b32 s79, 0")
    a("v_lshlrev_b32 v6, 4, v1")
    a("v_lshlrev_b32 v7, 4, v3")
    a("s_lshl_b32 s74, s29, 2\ns_add_u32 s74, s74, s3\ns_lshl_b32 s74, s74, 5")
    a("s_waitcnt lgkmcnt(0)")
    stamp(1, 2)
    a("s_load_dword s30, s[26:27], 0")
    srd(52, "s4", "s5", 2048)
    srd(56, "s26", "s27", WS_BYTES)
    a("s_cmp_eq_u32 s3, 4\ns_cbranch_scc1 L_comm")

    a("buffer_load_dwordx4 v[96:99], v6, s[52:55], 0 offen\nbuffer_load_dwordx4 v[100:103], v6, s[52:55], 0 offen offset:1024")
    a("v_and_b32 v8, 7, v3\nv_lshl_add_u32 v8, v8, 2, v2\nv_lshlrev_b32 v8, 1, v8\ns_lshl_b32 s75, s74, 1")
    a("buffer_load_ushort v9, v8, s[52:55], s75 offen")
    srd(40, "s10", "s11", 1024 * 8192)
    a("v_lshl_add_u32 v10, v2, 13, v7")
    a("s_lshl_b32 s75, s74, 13\ns_lshl_b32 s76, s28, 8\ns_add_u32 s75, s75, s76")
    for i in range(8):
        a(f"buffer_load_dwordx4 v[{128+4*i}:{131+4*i}], v10, s[40:43], s75 offen {pol_w}")
        if i < 7: a("s_add_u32 s75, s75, 32768")
    srd(44, "s16", "s17", 1024 * 7168)
    srd(48, "s18", "s19", 1024 * 7168)
    a("v_mul_u32_u24 v11, 7168, v2\nv_add_u32 v11, v11, v7")
    a("v_cmp_gt_u32 vcc, 14, v3\nv_mov_b32 v12, 0x80000000\nv_cndmask_b32 v11, v12, v11, vcc")
    a("s_mul_i32 s76, s74, 7168\ns_mul_i32 s31, s28, 224\ns_add_u32 s76, s76, s31\ns_mov_b32 s75, s76")
    def gload(i):
        a(f"buffer_load_dwordx4 v[{160+4*i}:{163+4*i}], v11, s[44:47], s75 offen {pol_gu}\ns_add_u32 s75, s75, {4*7168}")
    def uload(i):
        a(f"buffer_load_dwordx4 v[{192+4*i}:{195+4*i}], v11, s[48:51], s76 offen {pol_gu}\ns_add_u32 s76, s76, {4*7168}")
    a("s_barrier")
    pos = {"r": [], "w": [], "n": [0] * 5, "j": [], "B": []}
    bit = 8
    for ch in str(MAP):
        if ch.isdigit(): pos["n"][int(ch)] = bit
        else: pos[ch].append(bit)
        bit += 4 if ch == "B" else 1
    assert bit == 24 and len(pos["w"]) == 2 and len(pos["r"]) == 2 and len(pos["j"]) == 3 and len(set(pos["n"])) == 5
    def spread(sreg, bits, dst):
        a(f"s_mov_b32 {dst}, 0")
        for i, b in enumerate(bits):
            a(f"s_bfe_u32 s38, {sreg}, {(1 << 16) | i}\ns_lshl_b32 s38, s38, {b}\ns_or_b32 {dst}, {dst}, s38")
    spread("s29", pos["j"], "s39")
    a("s_lshl_b32 s31, s28, 24\ns_add_u32 s31, s31, s39\ns_sub_u32 s34, 0x1000000, s39")
    a("s_add_u32 s32, s6, s31\ns_addc_u32 s33, s7, 0\ns_mov_b32 s35, 0x20000")
    a("s_add_u32 s36, s8, s31\ns_addc_u32 s37, s9, 0")
    spread("s3", pos["w"], "s39")
    a(f"v_and_b32 v4, 1, v2\nv_lshlrev_b32 v4, {pos['r'][0]}, v4\nv_lshrrev_b32 v5, 1, v2\nv_lshl_add_u32 v4, v5, {pos['r'][1]}, v4\nv_add3_u32 v4, v4, s39, v7")
    if XK == 1: a("s_and_b32 s60, s2, 31")
    if XK == 2: a("s_mov_b32 s60, s28")
    if XK == 3: a("s_lshl_b32 s60, s29, 2")
    if XK == 4: a("s_lshl_b32 s60, s29, 2\ns_xor_b32 s60, s60, s28")
    if XK == 5: a("s_mul_i32 s60, s2, 0x9e3779b1\ns_lshr_b32 s60, s60, 27")
    if XK == 6: a("s_lshl_b32 s60, s28, 2\ns_and_b32 s60, s60, 28")
    if XK:
        spread("s60", pos["n"], "s61")
    fn = [sum(((n >> i) & 1) << b for i, b in enumerate(pos["n"])) for n in range(32)] + [1 << pos["B"][0]]
    a("s_mov_b32 s72, 0")
    if XK: a("s_mov_b32 s60, s61")
    if ser: a("s_mov_b32 s71, 0\nv_mov_b32 v255, 0")
    masks()
    a("v_cmp_eq_u32 s[82:83], 1, v12\nv_and_b32 v13, 1, v13\nv_cmp_eq_u32 s[80:81], 1, v13")
    a("s_lshl_b32 s31, s3, 9\nv_lshlrev_b32 v225, 5, v3\nv_lshl_add_u32 v225, v2, 4, v225\nv_add_u32 v225, s31, v225")
    a("s_lshl_b32 s31, s3, 13\nv_lshlrev_b32 v224, 2, v1\nv_add_u32 v224, s31, v224")
    a("s_waitcnt vmcnt(8)")
    stamp(2, 2)
    for i in range(early): gload(i)
    for k in range(8):
        a(f"v_lshlrev_b32 v{104+2*k}, 16, v{96+k}\nv_and_b32 v{105+2*k}, 0xffff0000, v{96+k}")
    a("v_add_f32 v12, v104, v105\nv_add_f32 v13, v106, v107\nv_add_f32 v14, v108, v109\nv_add_f32 v15, v110, v111")
    a("v_add_f32 v16, v112, v113\nv_add_f32 v17, v114, v115\nv_add_f32 v18, v116, v117\nv_add_f32 v19, v118, v119")
    a("v_add_f32 v12, v12, v13\nv_add_f32 v14, v14, v15\nv_add_f32 v16, v16, v17\nv_add_f32 v18, v18, v19")
    a("v_add_f32 v12, v12, v14\nv_add_f32 v16, v16, v18\nv_add_f32 v12, v12, v16")
    wave_reduce(12, 13, "v_add_f32")
    a("v_mul_f32 v12, 0x3a800000, v12")
    for k in range(16):
        a(f"v_sub_f32 v{104+k}, v{104+k}, v12")
    a("v_mul_f32 v14, v104, v104\nv_mul_f32 v15, v105, v105\nv_mul_f32 v16, v106, v106\nv_mul_f32 v17, v107, v107")
    for k in range(4, 16):
        a(f"v_fmac_f32 v{14+k%4}, v{104+k}, v{104+k}")
    a("v_add_f32 v14, v14, v15\nv_add_f32 v16, v16, v17\nv_add_f32 v14, v14, v16")
    wave_reduce(14, 13, "v_add_f32")
    a("v_mul_f32 v14, 0x3a800000, v14")
    rbf(14); rbf(12)
    a("v_add_f32 v14, 0x3727c5ac, v14")
    rbf(14)
    a("v_sqrt_f32 v14, v14")
    rbf(14)
    a("v_rcp_f32 v14, v14\nv_lshlrev_b32 v9, 16, v9\nv_sub_f32 v9, v9, v12")
    rbf(9)
    a("v_mul_f32 v9, v9, v14\nv_cvt_pk_bf16_f32 v124, v9, v9")
    stamp(3, 2)
    def stage1(acc, wbase):
        buildA(0, 124, 0)
        for i in range(8):
            if i < 7: buildA((i + 1) & 1, 124, i + 1)
            mfma(acc, i & 1, wbase + 4 * i, i == 0)
    a(f"s_waitcnt vmcnt({early})")
    stamp(4, 2)
    for i in range(early, 8): gload(i)
    stage1(12, 128)
    writeD(12, RED_Q)
    a(f"s_lshl_b32 s31, s3, 2\nv_mov_b32 v16, s31\nv_mov_b32 v17, 1\nds_write_b32 v16, v17 offset:{FL}")
    stamp(1); stamp(5, 2)
    def kslot(n):
        n %= 32
        return 32 + 4 * n if n < 16 else 128 + 4 * (n - 16)
    slot_of = {kslot(n): n for n in range(32)}
    def issueS(reg):
        n = slot_of[reg]
        inc = (fn[n + 1] - fn[n]) & 0xffffffff
        if XK:
            a(f"buffer_load_dwordx4 v[{reg}:{reg+3}], v4, s[32:35], s60 offen {pol_kv}\ns_add_u32 s72, s72, {inc}\ns_xor_b32 s60, s72, s61")
        else:
            a(f"buffer_load_dwordx4 v[{reg}:{reg+3}], v4, s[32:35], s72 offen {pol_kv}\ns_add_u32 s72, s72, {inc}")
    WO0 = 192
    def wsetup():
        srd(40, "s12", "s13", 4096 * 2048)
        a("v_lshl_add_u32 v240, v2, 14, v7")
        a("s_lshl_b32 s31, s28, 2\ns_add_u32 s31, s31, s3\ns_lshl_b32 s75, s31, 16\ns_lshl_b32 s31, s29, 8\ns_add_u32 s75, s75, s31")
        a("v_and_b32 v232, 7, v3\nv_lshrrev_b32 v233, 3, v3\ns_lshl_b32 s31, s28, 13\ns_add_u32 s31, s31, %d" % H1)
        a("v_lshlrev_b32 v232, 10, v232\nv_add_u32 v232, s31, v232")
        a("v_lshlrev_b32 v233, 4, v233\nv_lshl_add_u32 v233, v2, 5, v233\ns_lshl_b32 s31, s3, 7\nv_add3_u32 v233, v233, s31, v232")
        a("s_add_u32 s30, s30, 1")
    wl_all = []
    for t in range(8):
        wl_all.append(f"buffer_load_dwordx4 v[{WO0+4*t}:{WO0+3+4*t}], v240, s[40:43], s75 offen {pol_w}\ns_add_u32 s75, s75, 2048")
    assert DS <= 8
    for i in range(8):
        a(f"s_waitcnt vmcnt({DS-1})")
        uload(i)
    for n in range(32):
        a(f"s_waitcnt vmcnt({DS-1})")
        issueS(kslot(n))
        if n == 0:
            stage1(16, 160)
        if n == DS - 1:
            stage1(20, 192)
            writeD(16, RED_G)
            writeD(20, RED_U)
        if n == 15:
            a("s_waitcnt lgkmcnt(0)")
            wsetup()
            for x in wl_all[:8 - NWT]:
                a(f"s_waitcnt vmcnt({DS-1})"); a(x)
    a("v_mov_b32 v126, 0xff800000\nv_mov_b32 v127, 0\ns_mov_b32 s76, %d" % SCALE)
    stamp(6, 2)
    a("s_waitcnt lgkmcnt(0)\ns_barrier")
    stamp(2)
    a(f"ds_read_b128 v[8:11], v7 offset:{QL}\ns_waitcnt lgkmcnt(0)")
    levels = [int(x) for x in str(DL).split("-")]
    ths = [int(x) for x in str(TH).split("/")] if TH != "" else []
    assert len(ths) == len(levels) - 1
    a(f"s_mov_b32 s70, {len([t for t in ths if t < 0])}\ns_mov_b32 s69, 0\ns_mov_b32 s67, 0\ns_add_u32 s66, s66, {T0}")
    a("s_lshl_b32 s31, s3, 3\nv_mov_b32 v246, s31\nv_mov_b32 v247, 0")
    def control(k):
        if k == 7: a(f"s_memrealtime s[64:65]\nds_read_b64 v[242:243], v247 offset:{RF}")
        if k == 12:
            a("s_waitcnt lgkmcnt(0)\nv_readfirstlane_b32 s62, v242\nv_readfirstlane_b32 s63, v243")
            a("s_sub_u32 s68, s64, s69\ns_add_u32 s69, s69, %d\ns_add_u32 s67, s67, 1" % TAU)
            a(f"v_mov_b32 v244, s68\nv_mov_b32 v245, s67\nds_write_b64 v246, v[244:245] offset:{PH}")
            if fixed: a("s_sub_u32 s68, s68, s66")
            else: a("s_sub_u32 s68, s68, s62\ns_and_b32 s68, s68, s63")
            a("s_mov_b32 s70, 0")
            for i, t in enumerate(ths):
                a(f"s_cmp_gt_i32 s68, {t}\ns_addc_u32 s70, s70, 0")
    uid = [0]
    def variants(fn):
        uid[0] += 1; u = uid[0]
        a.fence()
        for i in range(1, len(levels)):
            a(f"s_cmp_eq_u32 s70, {i}\ns_cbranch_scc1 L_v{u}_{i}")
        for i, d in enumerate(levels):
            if i: a(f"L_v{u}_{i}:")
            fn(d)
            a.fence()
            if i < len(levels) - 1: a(f"s_branch L_v{u}_end")
        a(f"L_v{u}_end:")

    def kgroup(half, d):
        for k in range(16):
            series(k); control(k)
            r = kslot(16 * half + k); acc = 12 + k % 4
            a(f"v_dot2_f32_bf16 v{acc}, v{r}, v8, 0\nv_dot2_f32_bf16 v{acc}, v{r+1}, v9, v{acc}\nv_dot2_f32_bf16 v{acc}, v{r+2}, v10, v{acc}\nv_dot2_f32_bf16 v{acc}, v{r+3}, v11, v{acc}")
            a(f"s_waitcnt vmcnt({d-1})")
            issueS(r)
            if k % 4 == 3:
                C = 20 + k // 4
                a("v_add_f32_dpp v16, v12, v12 row_ror:8 row_mask:0xf bank_mask:0x3")
                a("v_add_f32_dpp v17, v14, v14 row_ror:8 row_mask:0xf bank_mask:0x3")
                a("v_add_f32_dpp v16, v13, v13 row_ror:8 row_mask:0xf bank_mask:0xc")
                a("v_add_f32_dpp v17, v15, v15 row_ror:8 row_mask:0xf bank_mask:0xc")
                a(f"v_add_f32_dpp v{C}, v16, v16 row_shl:4 row_mask:0xf bank_mask:0x5")
                a(f"v_add_f32_dpp v{C}, v17, v17 row_shr:4 row_mask:0xf bank_mask:0xa")
        for C in range(20, 24):
            a(f"v_add_f32_dpp v{C}, v{C}, v{C} quad_perm:[2,3,0,1] row_mask:0xf bank_mask:0xf")
        a("v_cndmask_b32 v20, v20, v21, s[80:81]\nv_cndmask_b32 v22, v22, v23, s[80:81]")
        a("v_add_f32_dpp v20, v20, v20 quad_perm:[1,0,3,2] row_mask:0xf bank_mask:0xf")
        a("v_add_f32_dpp v22, v22, v22 quad_perm:[1,0,3,2] row_mask:0xf bank_mask:0xf")
        a("v_cndmask_b32 v18, v20, v22, s[82:83]")
        rbf(18)
        a("v_mul_f32 v18, s76, v18")
        rbf(18)
        a("v_max_f32 v126, v126, v18\nds_write_b32 v224, v18\nv_add_u32 v224, 256, v224")
    a("s_mov_b32 s73, 16")
    a("L_kloop:")
    a("s_cmp_lg_u32 s73, 1\ns_cbranch_scc1 L_knosw\ns_mov_b32 s32, s36\ns_mov_b32 s33, s37\ns_mov_b32 s72, 0\n" + ("s_mov_b32 s60, s61\n" if XK else "") + "L_knosw:")
    variants(lambda d: kgroup(0, d))
    if KB: a(f"s_cmp_eq_u32 s73, 1\ns_cselect_b32 s70, {len(levels)-1}, s70")
    variants(lambda d: kgroup(1, d))
    a("s_sub_u32 s73, s73, 1\ns_cmp_lg_u32 s73, 0\ns_cbranch_scc1 L_kloop")
    wave_reduce(126, 13, "v_max_f32")
    a(f"s_lshl_b32 s31, s3, 2\nv_mov_b32 v13, s31\nds_write_b32 v13, v126 offset:{MX}")
    a("v_subrev_u32 v224, 8192, v224")
    stamp(3)
    a("ds_read_b32 v125, v224\nv_mov_b32 v226, v126")
    a("s_mov_b32 s76, %d" % LOG2E)
    a("s_waitcnt lgkmcnt(0)")
    def mkP():
        a("v_sub_f32 v125, v125, v226\nv_mul_f32 v125, s76, v125\nv_exp_f32 v125, v125\nv_add_f32 v127, v127, v125\nv_cvt_pk_bf16_f32 v125, v125, v125")
    mkP()
    a("v_mov_b32 v124, v125\nv_mov_b32 v12, 0\nv_mov_b32 v13, 0\nv_mov_b32 v14, 0\nv_mov_b32 v15, 0")
    lam = [4 * (((c >> 1) & 1) + 2 * (c & 1)) + [0, 2, 1, 3][c >> 2] for c in range(16)]
    inv = [lam.index(i) for i in range(16)]
    buildA(0, 124, inv[0])
    def vgroup(half, pre, post, last=False, ctl=True):
        for k in range(16):
            series(k)
            if ctl: control(k)
            if k == 0 and not last:
                a("v_add_u32 v224, 256, v224\nds_read_b32 v125, v224")
            if k == 6 and not last:
                a("s_waitcnt lgkmcnt(0)"); mkP()
            if k < 15: buildA((k + 1) & 1, 124, inv[k + 1])
            elif not last:
                buildA(0, 125, inv[0]); a("v_mov_b32 v124, v125")
            pre(k)
            mfma(12, k & 1, kslot(16 * half + k), False)
            post(k)
            if last and k == 2:
                wave_reduce(127, 16, "v_add_f32")
                a(f"s_lshl_b32 s31, s3, 9\nv_mov_b32 v20, s31\nv_mov_b32 v16, v127\nv_mov_b32 v17, 0\nv_mov_b32 v18, 0\nv_mov_b32 v19, 0\nds_write_b128 v20, v[16:19] offset:{RED_L}")
    def vsteady(half, d):
        def post(k):
            a(f"s_waitcnt vmcnt({d-1})"); issueS(kslot(16 * half + k))
        vgroup(half, lambda k: None, post)
    a(f"s_mov_b32 s73, {15 - (NBG + 1) // 2}")
    a("L_vloop:")
    variants(lambda d: vsteady(0, d))
    variants(lambda d: vsteady(1, d))
    a("s_sub_u32 s73, s73, 1\ns_cmp_lg_u32 s73, 0\ns_cbranch_scc1 L_vloop")
    if NBG % 2: variants(lambda d: vsteady(0, d))
    for i in range(NBG): vsteady((NBG + i) % 2, DB)
    wl = wl_all[8 - NWT:]
    nw = [0]
    dmax = DB if NBG else max(levels)
    wsteps = [n for n in range(32) if (n < 32 - DT and n % 5 == 4) or n >= 32 - DT]
    def fin(half):
        def pre(k):
            n = 16 * half + k
            if n >= 32 - dmax: a(f"s_waitcnt vmcnt({31 - n + nw[0]})")
        def post(k):
            n = 16 * half + k
            if n in wsteps and nw[0] < len(wl):
                a(wl[nw[0]]); nw[0] += 1
        vgroup(half, pre, post, last=(half == 1), ctl=False)
    a("L_tail0:")
    fin(0); fin(1)
    writeD(12, RED_O)
    for x in wl[nw[0]:]: a(x)
    a("s_waitcnt lgkmcnt(0)\ns_barrier")
    stamp(4)
    pollc("L_p1", ["buffer_load_dwordx4 v[228:231], v233, s[56:59], 0 offen sc1",
                   "buffer_load_dwordx4 v[236:239], v232, s[56:59], 0 offen offset:512 sc1"], [228, 229, 230, 231, 236, 237], full=(238, 239), sleep=sl1)
    stamp(5)
    steps = ["quad_perm:[1,0,3,2]", "quad_perm:[2,3,0,1]", "row_half_mirror"]
    O4 = (228, 229, 230, 231)
    a("v_and_b32 v237, 0xffffff00, v237\nv_mov_b32 v240, v237")
    for s in steps: a(f"v_max_f32_dpp v240, v240, v240 {s} row_mask:0xf bank_mask:0xf")
    a("v_sub_f32 v237, v237, v240\nv_mul_f32 v237, s76, v237\nv_exp_f32 v237, v237")
    for v in (236,) + O4: a(f"v_mul_f32 v{v}, v{v}, v237")
    for s in steps:
        for v in (236,) + O4: a(f"v_add_f32_dpp v{v}, v{v}, v{v} {s} row_mask:0xf bank_mask:0xf")
    a("v_rcp_f32 v236, v236")
    for v in O4: a(f"v_mul_f32 v{v}, v{v}, v236")
    for v in O4: a(f"v_cvt_pk_bf16_f32 v{v}, v{v}, v{v}")
    seq = [(b, i) for b in range(2) for i in range(4)]
    buildA(0, 228, 0)
    for t, (b, i) in enumerate(seq):
        if t < 7:
            b2, i2 = seq[t + 1]; buildA((t + 1) & 1, 228 + i2, 8 * b2)
        mfma(16, t & 1, WO0 + 4 * t, t == 0)
    writeD(16, RED_A)
    a("s_waitcnt lgkmcnt(0)\ns_barrier")
    stamp(6)
    if ser:
        a("s_add_u32 s68, s26, 0x9000000\ns_addc_u32 s69, s27, 0\ns_lshl_b32 s31, s2, 2\ns_add_u32 s31, s31, s3\ns_lshl_b32 s31, s31, 8\nv_lshlrev_b32 v16, 2, v1\nv_add_u32 v16, s31, v16")
        a("global_store_dword v16, v255, s[68:69]")
    if diag:
        a("s_waitcnt lgkmcnt(0)\ns_getreg_b32 s98, hwreg(HW_REG_HW_ID)\ns_getreg_b32 s99, hwreg(HW_REG_XCC_ID)")
        a("s_cmp_lg_u32 s3, 0\ns_cbranch_scc1 L_exit\ns_mov_b32 s31, 0\ns_branch L_stamps")
    else:
        a("s_endpgm")

    a("L_comm:")
    incomm[0] = True
    a(f"v_mov_b32 v8, 0\nv_mov_b32 v20, 0\nv_mov_b32 v21, 0\nv_mov_b32 v22, 0\nv_mov_b32 v23, 0\nds_write_b128 v8, v[20:23] offset:{FL}\nds_write_b128 v8, v[20:23] offset:{RF}\nds_write_b128 v8, v[20:23] offset:{PH}\nds_write_b128 v8, v[20:23] offset:{PH+16}\ns_waitcnt lgkmcnt(0)\ns_barrier")
    a("s_lshl_b32 s31, s29, 8\ns_and_b32 s75, s28, 3\ns_lshl_b32 s75, s75, 6\ns_add_u32 s75, s75, s31")
    a("v_and_b32 v37, 7, v1\nv_lshlrev_b32 v38, 3, v37")
    a("buffer_load_dwordx2 v[10:11], v38, s[52:55], s75 offen")
    masks()
    srd(68, "s22", "s23", 2048)
    a("v_lshlrev_b32 v9, 3, v1")
    a("s_lshl_b32 s31, s2, 10\ns_add_u32 s40, s31, %d" % H0Q)
    a("s_lshl_b32 s31, s28, 13\ns_add_u32 s41, s31, %d\ns_add_u32 s42, s41, 4096" % H0Q)
    a("s_waitcnt lgkmcnt(0)\ns_add_u32 s30, s30, 1")
    def red4(dst, off, tmp):
        for w in range(4): a(f"ds_read_b64 v[{tmp+2*w}:{tmp+2*w+1}], v9 offset:{off+512*w}")
    def sum4(dst, tmp):
        a(f"v_add_f32 v{dst}, v{tmp}, v{tmp+2}\nv_add_f32 v{dst+2}, v{tmp+1}, v{tmp+3}\nv_add_f32 v{tmp+4}, v{tmp+4}, v{tmp+6}\nv_add_f32 v{tmp+5}, v{tmp+5}, v{tmp+7}")
        a(f"v_add_f32 v{dst}, v{dst}, v{tmp+4}\nv_add_f32 v{dst+2}, v{dst+2}, v{tmp+5}")
    a("v_mov_b32 v13, s30\nv_mov_b32 v15, s30\nv_mov_b32 v17, s30\nv_mov_b32 v19, s30")
    a.fence()
    a(f"L_fl:\nds_read_b128 v[20:23], v8 offset:{FL}\ns_waitcnt lgkmcnt(0)\nv_and_b32 v20, v20, v21\nv_and_b32 v22, v22, v23\nv_and_b32 v20, v20, v22\nv_readfirstlane_b32 s31, v20")
    a("s_cmp_eq_u32 s31, 1\ns_cbranch_scc1 L_fl_ok\ns_sleep 1\ns_branch L_fl\nL_fl_ok:")
    stamp(1)
    red4(12, RED_Q, 20); a("s_waitcnt lgkmcnt(0)"); sum4(12, 20)
    if noq != 1: a("buffer_store_dwordx4 v[12:15], v6, s[56:59], s40 offen " + qfl.replace("+", " "))
    if qdelay: a(f"s_sleep {qdelay}")
    if noq:
        pass
    elif maskpoll:
        poll_rows("L_p0", [(f"buffer_load_dwordx4 v[{128+4*jj}:{131+4*jj}], v6, s[56:59], s{41+jj//4} offen offset:{1024*(jj%4)} sc1", 129 + 4 * jj, 131 + 4 * jj) for jj in range(8)], 4)
    else:
        poll("L_p0", [f"buffer_load_dwordx4 v[{128+4*jj}:{131+4*jj}], v6, s[56:59], s{41+jj//4} offen offset:{1024*(jj%4)} sc1" for jj in range(8)],
             [129 + 2 * i for i in range(16)])
    stamp(2)
    def sum8(base, stride):
        for o in (0, 2):
            for (x, y) in ((0, 1), (2, 3), (4, 5), (6, 7), (0, 2), (4, 6), (0, 4)):
                a(f"v_add_f32 v{base+x*stride+o}, v{base+x*stride+o}, v{base+y*stride+o}")
    sum8(128, 4)
    a(f"v_cvt_pk_bf16_f32 v128, v128, v130\nv_lshlrev_b32 v20, 2, v1\nds_write_b32 v20, v128 offset:{QL}")
    a("s_waitcnt lgkmcnt(0)\ns_barrier")
    def tag4(v):
        for i in range(4): a(f"v_bfi_b32 v{v+i}, s61, v13, v{v+i}")
    a("s_mov_b32 s61, 0xff")
    red4(0, RED_G, 20); red4(0, RED_U, 28); a("s_waitcnt lgkmcnt(0)")
    for d, t in ((16, 20), (18, 28)):
        a(f"v_add_f32 v{d}, v{t}, v{t+2}\nv_add_f32 v{d+1}, v{t+1}, v{t+3}\nv_add_f32 v{t+4}, v{t+4}, v{t+6}\nv_add_f32 v{t+5}, v{t+5}, v{t+7}")
        a(f"v_add_f32 v{d}, v{d}, v{t+4}\nv_add_f32 v{d+1}, v{d+1}, v{t+5}")
    tag4(16)
    a("s_lshl_b32 s43, s2, 10\ns_add_u32 s40, s43, %d\ns_mov_b32 s62, -1\ns_mov_b32 s63, 0xffffff" % H0GU)
    a("s_mov_b64 exec, s[62:63]\nbuffer_store_dwordx4 v[16:19], v6, s[56:59], s40 offen %s\ns_mov_b64 exec, -1" % gufl.replace("+", " "))
    srd(44, "s20", "s21", 3584 * 2048)
    a("v_lshl_add_u32 v20, v2, 11, v7\ns_mul_i32 s74, s28, %d\ns_lshl_b32 s31, s29, 8\ns_add_u32 s74, s74, s31" % (112 * 2048))
    for i in range(28):
        if i >= WDF: a(f"s_waitcnt vmcnt({WDF-1})")
        a(f"buffer_load_dwordx4 v[{128+4*i}:{131+4*i}], v20, s[44:47], s74 offen {pol_w}\ns_add_u32 s74, s74, 8192")
    a("s_lshl_b32 s31, s28, 13\ns_add_u32 s41, s31, %d\ns_add_u32 s42, s41, 4096" % H0GU)
    a("s_mov_b64 exec, s[62:63]")
    pollc("L_pg", [f"buffer_load_dwordx4 v[{64+4*n}:{67+4*n}], v6, s[56:59], s{41+n//4} offen offset:{1024*(n%4)} sc1" for n in range(8)],
          list(range(64, 96)), sleep=50)
    stamp(3)
    for o in range(4):
        for (x, y) in ((0, 1), (2, 3), (4, 5), (6, 7), (0, 2), (4, 6), (0, 4)):
            a(f"v_add_f32 v{64+4*x+o}, v{64+4*x+o}, v{64+4*y+o}")
    for v in (64, 65, 66, 67): rbf(v)
    a("s_mov_b32 s48, 0x3d372713\ns_mov_b32 s49, 0xc0135761")
    for g, u in ((64, 66), (65, 67)):
        a(f"v_mul_f32 v20, v{g}, v{g}\nv_fma_f32 v20, v20, s48, 1.0\nv_mul_f32 v20, v20, v{g}\nv_mul_f32 v20, s49, v20\nv_exp_f32 v20, v20\nv_add_f32 v20, 1.0, v20\nv_rcp_f32 v20, v20\nv_mul_f32 v{g}, v{g}, v20")
        rbf(g)
        a(f"v_mul_f32 v{g}, v{g}, v{u}")
    a(f"v_cvt_pk_bf16_f32 v20, v64, v64\nv_cvt_pk_bf16_f32 v21, v65, v65\nds_write_b64 v9, v[20:21] offset:{HL}")
    a(f"v_lshl_add_u32 v20, v2, 2, v7\nds_read_b32 v56, v20 offset:{HL}\nds_read_b32 v57, v20 offset:{HL+256}\ns_waitcnt lgkmcnt(0)")
    buildA(0, 56, 0)
    for i in range(28):
        if i < 27: buildA((i + 1) & 1, 56 + (i + 1) // 16, (i + 1) % 16)
        mfma(52, i & 1, 128 + 4 * i, i == 0)
    tag4(52)
    if FW == 2:
        a("v_lshlrev_b32 v39, 5, v3\nv_lshl_add_u32 v39, v2, 4, v39\ns_lshl_b32 s31, s2, 9\ns_add_u32 s42, s31, %d" % H2F)
        a("s_mov_b64 exec, s[78:79]\nbuffer_store_dwordx4 v[52:55], v39, s[56:59], s42 offen sc1 nt\ns_mov_b64 exec, -1")
    sh = GP.bit_length() - 1
    assert GP == 1 << sh
    a("v_lshlrev_b32 v50, 7, v1")
    a(f"s_mov_b32 s44, {G0}\ns_mov_b32 s45, {G0+GG}\ns_mov_b32 s46, {G0+GR}\ns_mov_b32 s47, 0\ns_mov_b32 s51, 0\ns_mov_b32 s52, 0\ns_mov_b32 s53, 0\ns_mov_b32 s54, 0")
    a("s_xor_b32 s55, s28, s29\ns_and_b32 s55, s55, 3")
    a("s_lshr_b32 s48, s2, 2\ns_lshl_b32 s48, s48, 7\ns_add_u32 s48, s48, %d\ns_mov_b32 s49, %d" % (PHI, PHI))
    a("s_lshl_b32 s50, s29, 7\ns_add_u32 s50, s50, %d\ns_mov_b32 s60, %d" % (REF, REF))
    a("s_cmp_eq_u32 s2, 0\ns_cselect_b32 s45, s45, -1")
    a("s_mov_b32 s4, 0\ns_mov_b32 s5, 0\ns_mov_b32 s6, 0\ns_mov_b32 s7, 0")
    if noex: a("s_mov_b32 s44, -1\ns_mov_b32 s45, -1\ns_mov_b32 s46, -1")
    a.fence()
    a("L_ctl:")
    a(f"ds_read_b128 v[20:23], v8 offset:{PH}\nds_read_b128 v[24:27], v8 offset:{PH+16}\ns_waitcnt lgkmcnt(0)")
    a("v_min_u32 v21, v21, v23\nv_min3_u32 v21, v21, v25, v27\nv_readfirstlane_b32 s31, v21")
    a(f"s_cmp_ge_u32 s31, {GEX}\ns_cbranch_scc1 L_ctl_end\ns_cmp_eq_u32 s31, s47\ns_cbranch_scc1 L_ctl_sleep\ns_mov_b32 s47, s31")
    a("v_sub_u32 v22, v22, v20\nv_sub_u32 v24, v24, v20\nv_sub_u32 v26, v26, v20\nv_add3_u32 v22, v22, v24, v26\nv_ashrrev_i32 v22, 2, v22\nv_add_u32 v12, v20, v22")
    if JD:
        a(f"v_readfirstlane_b32 s8, v12\ns_sub_u32 s9, s8, s5\ns_and_b32 s9, s9, s54\ns_mov_b32 s5, s4\ns_mov_b32 s4, s8")
        a(f"s_cmp_gt_i32 s9, {JD}\ns_cbranch_scc0 L_ctl_nj\ns_add_u32 s51, s51, s9\ns_add_u32 s6, s6, s9\ns_mov_b32 s5, s8\nL_ctl_nj:")
    a(f"s_cmp_lt_u32 s47, s44\ns_cbranch_scc1 L_ctl_g\ns_mov_b32 s6, 0\ns_add_u32 s44, s44, {GP}\ns_cmp_lg_u32 s55, 0\ns_cbranch_scc1 L_ctl_g")
    a("s_mov_b64 exec, 1\nbuffer_store_dwordx2 v[12:13], v8, s[56:59], s48 offen sc1\ns_mov_b64 exec, -1\ns_add_u32 s48, s48, 8192")
    a("L_ctl_g:")
    a("s_cmp_lt_u32 s47, s45\ns_cbranch_scc1 L_ctl_rd")
    a("buffer_load_dwordx2 v[20:21], v50, s[56:59], s49 offen sc1\ns_waitcnt vmcnt(0)")
    a("v_cmp_ne_u32 vcc, s30, v21\ns_cmp_lg_u64 vcc, 0\ns_cbranch_scc1 L_ctl_rd")
    a("v_sub_u32 v20, v20, v12")
    wave_reduce(20, 21, "v_add_u32")
    a("v_ashrrev_i32 v20, 6, v20\nv_add_u32 v14, v12, v20")
    a("s_mov_b64 exec, 0xff\nbuffer_store_dwordx2 v[14:15], v50, s[56:59], s60 offen sc1\ns_mov_b64 exec, -1")
    a(f"s_add_u32 s45, s45, {GP}\ns_add_u32 s49, s49, 8192\ns_add_u32 s60, s60, 1024")
    a.fence()
    a("L_ctl_rd:")
    a("s_cmp_lt_u32 s47, s46\ns_cbranch_scc1 L_ctl_up")
    a("s_mov_b64 exec, 1\nbuffer_load_dwordx2 v[28:29], v8, s[56:59], s50 offen sc1\ns_waitcnt vmcnt(0)\nv_readfirstlane_b32 s31, v29\nv_readfirstlane_b32 s64, v28\ns_mov_b64 exec, -1")
    a("s_cmp_lg_u32 s31, s30\ns_cbranch_scc1 L_ctl_up")
    a("s_add_u32 s64, s64, s6\ns_sub_u32 s52, s64, s51\ns_and_b32 s52, s52, s54")
    if MS: a("s_mov_b32 s9, s52\ns_min_i32 s52, s52, s7\ns_mov_b32 s7, s9")
    if not slope: a("s_mov_b32 s52, 0")
    a(f"s_mov_b32 s51, s64\ns_sub_u32 s53, s46, {GR + 1}\ns_mov_b32 s54, -1\ns_add_u32 s46, s46, {GP}\ns_add_u32 s50, s50, 1024")
    a("L_ctl_up:")
    a(f"s_sub_u32 s31, s47, s53\ns_mul_i32 s31, s31, s52\ns_ashr_i32 s31, s31, {sh}\ns_add_u32 s31, s31, s51")
    a(f"v_mov_b32 v30, s31\nv_mov_b32 v31, s54\nds_write_b64 v8, v[30:31] offset:{RF}")
    a(f"L_ctl_sleep:\ns_sleep {CSL}\ns_branch L_ctl")
    a("L_ctl_end:")
    a(f"ds_read_b128 v[44:47], v8 offset:{MX}\ns_waitcnt lgkmcnt(0)\nv_max_f32 v20, v44, v45\nv_max3_f32 v16, v20, v46, v47\ns_mov_b32 s31, {LOG2E}")
    for w in range(4): a(f"v_sub_f32 v{44+w}, v{44+w}, v16\nv_mul_f32 v{44+w}, s31, v{44+w}\nv_exp_f32 v{44+w}, v{44+w}")
    a("s_add_u32 s40, s43, %d\ns_lshl_b32 s31, s2, 9\ns_add_u32 s41, s31, %d\ns_add_u32 s42, s31, %d" % (H1, H2A, H2F))
    a("v_lshlrev_b32 v39, 5, v3\nv_lshl_add_u32 v39, v2, 4, v39")
    a("v_cmp_eq_u32 vcc, 32, v1\nv_mov_b32 v20, 2048\nv_cndmask_b32 v48, v6, v20, vcc\nv_cndmask_b32 v49, 0, v16, vcc\nv_mov_b32 v20, 0xff\nv_cndmask_b32 v51, v20, -1, vcc")
    a("s_mov_b32 s63, 1")
    a("v_lshrrev_b32 v36, 3, v1\nv_lshlrev_b32 v36, 12, v36\nv_lshl_add_u32 v36, v37, 4, v36")
    a("s_lshl_b32 s31, s29, 9\ns_lshl_b32 s44, s28, 7\ns_add_u32 s44, s44, s31\ns_add_u32 s44, s44, %d" % H2A)
    for i in range(1, 8): a(f"s_add_u32 s{44+i}, s44, {32768*i}")
    assert H2F == H2A + 4 * 32768
    a("v_lshlrev_b32 v40, 16, v10\nv_and_b32 v41, 0xffff0000, v10\nv_lshlrev_b32 v42, 16, v11\nv_and_b32 v43, 0xffff0000, v11")
    if PT:
        pf = "sc1" if PT == 1 else ""
        a(f"s_mov_b64 exec, s[62:63]\nbuffer_load_dwordx4 v[64:67], v6, s[56:59], s40 offen {pf}\ns_mov_b64 exec, s[78:79]\nbuffer_load_dwordx4 v[68:71], v6, s[56:59], s41 offen {pf}")
        if FW != 2: a(f"buffer_load_dwordx4 v[72:75], v6, s[56:59], s42 offen {pf}")
        a("s_mov_b64 exec, -1")
    if warm:
        a("s_getpc_b64 s[64:65]\nL_pc:\ns_sub_u32 s64, s64, L_pc-L_tail0\ns_subb_u32 s65, s65, 0")
        for i in range(warm): a(f"global_load_dwordx4 v[64:67], v6, s[64:65]\ns_add_u32 s64, s64, 1024\ns_addc_u32 s65, s65, 0")
        a("s_waitcnt vmcnt(0)")
    def xred(b):
        for i in range(4): a(f"v_add_f32 v{b+i}, v{b+i}, v{b+4+i}\nv_add_f32 v{b+8+i}, v{b+8+i}, v{b+12+i}")
        for i in range(4): a(f"v_add_f32 v{b+i}, v{b+i}, v{b+8+i}")
        for i in range(4): a(f"v_add_f32_dpp v{b+i}, v{b+i}, v{b+i} row_ror:8 row_mask:0xf bank_mask:0xf")
        for op in ("v_permlane16_swap_b32", "v_permlane32_swap_b32"):
            for i in range(4): a(f"v_mov_b32 v{b+4+i}, v{b+i}")
            for i in range(4): a(f"{op} v{b+i}, v{b+4+i}")
            for i in range(4): a(f"v_add_f32 v{b+i}, v{b+i}, v{b+4+i}")
        for i in range(4): rbf(b + i)
    def ffn_gather():
        pollc("L_pf", [f"buffer_load_dwordx4 v[{144+4*i}:{147+4*i}], v36, s[56:59], s{48+i} offen sc1" for i in range(4)], list(range(144, 160)), sleep=sl2)
        xred(144)
    if FW == 2:
        a("s_cmp_ge_u32 s28, 4\ns_cbranch_scc1 L_nf")
        ffn_gather()
        a.fence()
        a("L_nf:")
    tf = tfl.replace("+", " ")
    a("s_barrier")
    stamp(4)
    a("s_mov_b64 exec, s[62:63]")
    for w in range(4): a(f"ds_read_b128 v[{20+4*w}:{23+4*w}], v48 offset:{RED_O+512*w}")
    a("s_waitcnt lgkmcnt(0)")
    a("v_mul_f32 v16, v20, v44\nv_fma_f32 v17, v21, v44, v49\nv_mul_f32 v18, v22, v44\nv_mul_f32 v19, v23, v44")
    for w in range(1, 4):
        for i in range(4): a(f"v_fmac_f32 v{16+i}, v{20+4*w+i}, v{44+w}")
    a("v_bfi_b32 v16, s61, v13, v16\nv_bfi_b32 v17, s61, v13, v17\nv_bfi_b32 v18, v51, v13, v18\nv_bfi_b32 v19, v51, v13, v19")
    a(f"buffer_store_dwordx4 v[16:19], v6, s[56:59], s40 offen {tf}")
    a("s_mov_b64 exec, s[78:79]")
    if FW == 0: a(f"buffer_store_dwordx4 v[52:55], v39, s[56:59], s42 offen {tf}")
    a("s_barrier")
    stamp(5)
    for w in range(4): a(f"ds_read_b128 v[{20+4*w}:{23+4*w}], v6 offset:{RED_A+512*w}")
    if FW == 1: a(f"buffer_store_dwordx4 v[52:55], v39, s[56:59], s42 offen {tf}")
    a("s_waitcnt lgkmcnt(0)")
    for i in range(4): a(f"v_add_f32 v{20+i}, v{20+i}, v{24+i}\nv_add_f32 v{28+i}, v{28+i}, v{32+i}")
    for i in range(4): a(f"v_add_f32 v{60+i}, v{20+i}, v{28+i}")
    tag4(60)
    a(f"buffer_store_dwordx4 v[60:63], v6, s[56:59], s41 offen {tf}\ns_mov_b64 exec, -1")
    if diag:
        a("s_cmp_lt_u32 s28, 4\ns_cbranch_scc1 L_cons"); stamp(6); a("s_branch L_noep\nL_cons:")
    else:
        a("s_cmp_ge_u32 s28, 4\ns_cbranch_scc1 " + ("L_noep" if spin else "L_exit"))
    if FW != 2: ffn_gather()
    pollc("L_p2", [f"buffer_load_dwordx4 v[{128+4*i}:{131+4*i}], v36, s[56:59], s{44+i} offen sc1" for i in range(4)], list(range(128, 144)), sleep=sl2)
    stamp(6)
    xred(128)
    for i in range(4): a(f"v_add_f32 v{128+i}, v{128+i}, v{40+i}")
    for i in range(4): rbf(128 + i)
    for i in range(4): a(f"v_add_f32 v{128+i}, v{128+i}, v{144+i}")
    a("v_cvt_pk_bf16_f32 v20, v128, v129\nv_cvt_pk_bf16_f32 v21, v130, v131")
    a("s_mov_b64 exec, 0xff\nbuffer_store_dwordx2 v[20:21], v38, s[68:71], s75 offen\ns_mov_b64 exec, 1")
    a("s_cmp_lg_u32 s2, 0\ns_cbranch_scc1 L_noep\nbuffer_store_dword v13, v8, s[56:59], 0 offen sc1\nL_noep:")
    if spin:
        if spinwg >= 0: a(f"s_cmp_lg_u32 s2, {spinwg}\ns_cbranch_scc1 L_exit")
        a(f"L_spin:\ns_memrealtime s[64:65]\ns_waitcnt lgkmcnt(0)\ns_sub_u32 s64, s64, s66\ns_cmp_lt_u32 s64, {spin}\ns_cbranch_scc1 L_spin")
    if diag:
        a("s_waitcnt vmcnt(0)")
        stamp(7)
        a("s_mov_b32 s31, 64")
        a("L_stamps:")
        a("s_waitcnt lgkmcnt(0)\ns_mov_b64 exec, 1")
        if dbgout:
            a("v_mov_b32 v8, 0\ns_cmp_lg_u32 s31, 0\ns_cbranch_scc1 L_dbgc")
            for n, k in enumerate((0, 2, 3, 4, 5)):
                a(f"v_mov_b32 v12, s{84+2*k}\nv_not_b32 v13, v12\nglobal_atomic_umax v8, v12, s[24:25] offset:{8*n}\nglobal_atomic_umax v8, v13, s[24:25] offset:{8*n+4}")
            a("s_endpgm\nL_dbgc:")
            for n, k in enumerate((2, 6, 7)):
                a(f"v_mov_b32 v12, s{84+2*k}\nv_not_b32 v13, v12\nglobal_atomic_umax v8, v12, s[24:25] offset:{40+8*n}\nglobal_atomic_umax v8, v13, s[24:25] offset:{44+8*n}")
        else:
            a("s_add_u32 s26, s26, 0x8000000\ns_addc_u32 s27, s27, 0\ns_lshl_b32 s74, s2, 7\ns_add_u32 s74, s74, s31\nv_mov_b32 v8, s74")
            for q in range(4):
                for e in range(4): a(f"v_mov_b32 v{12+e}, s{84+4*q+e}")
                a(f"global_store_dwordx4 v8, v[12:15], s[26:27] offset:{16*q}")
                a("s_nop 2")
    a("L_exit:\ns_endpgm")

    out = HDR
    out += "; Override launch geometry by editing the next line (default: block=256,\n"
    out += f"; @launch grid=(256,1,1) block=(320,1,1) lds={LDS_BYTES}\n"
    out += f'.amdgcn_target "amdgcn-amd-amdhsa--gfx950"\n.text\n.globl {NAME}\n.p2align 8\n.type {NAME},@function\n{NAME}:\n'
    out += a.text()
    out += f""".section .rodata,"a"
.p2align 6
.amdhsa_kernel {NAME}
  .amdhsa_next_free_vgpr 256
  .amdhsa_next_free_sgpr 102
  .amdhsa_accum_offset 256
  .amdhsa_group_segment_fixed_size 0
  .amdhsa_kernarg_size 96
  .amdhsa_user_sgpr_count 2
  .amdhsa_user_sgpr_kernarg_segment_ptr 1
  .amdhsa_system_sgpr_workgroup_id_x 1
  .amdhsa_float_denorm_mode_32 3
.end_amdhsa_kernel
"""
    return out, LDS_BYTES

if __name__ == "__main__":
    kw = {}
    for x in sys.argv[2:]:
        k, v = x.split("=")
        try: v = int(v)
        except ValueError: pass
        kw[k] = v
    s, lds = gen(**kw)
    open(sys.argv[1], "w").write(s)
    print("lds", lds)
```

```python
import sys
from asmlib import Asm

NAME = "parallel_sum__mha_block_cached__glu_gated_geglu__decode_kernel"
HDR = open("parallel_sum__mha_block_cached__glu_gated_geglu__decode.s.ref").read().split("; Override launch")[0]

H0Q, H0GU, H1, H2A, H2F = 0x1000, 0x50000, 0x90000, 0xD0000, 0xF0000
LOFF = 0x40000
PHI, REF = 0x1D0000, 0x1F0000
WS_BYTES = 0x200000
SC = 0
RED_Q, RED_G, RED_U, RED_A, RED_O, RED_L = [32768 + 2048 * i for i in range(6)]
QL = 32768 + 12288
HL = QL + 256
MX = HL + 1024
LS = MX + 16
FL = LS + 16
FG = FL + 16
QF = FG + 16
RF = QF + 16
PH = RF + 16
LDS_BYTES = PH + 32

LOG2E = 0x3fb8aa3b
SCALE = 0x3db504f3

def gen(diag=False, LOC=1, h1l='sc1+nt', PD=1, QTO=8, fakex=0, LP=0, LN=16, lsl=0, gul='sc1', ql='sc1', exs='sc1', exl='sc1', WDW=0, CP=0, NB2F=1, GF=6, touch=0, DS0=0, KE=0, JD=0, MS=0, PT=0, PP=0, FW=0, KB=0, NBG=0, DB=12, MAP='rrww01234Bjjj', XK=0, IL=0, WI=1, qdelay=0, perm=0, qfl='sc1', tfl='sc1', WDF=3, warm=0, gufl='sc1+nt', nogu=0, noq=0, gudelay=0, spin=0, spinwg=-1, G0=4, GP=8, GG=2, GR=4, slope=1, noex=0, NWT=8, CSL=8, GEX=60, fixed=0, DL='5', TH='', T0=200, TAU=220, DT=5, early=4, dbgout=0, ser=0, maskpoll=1, sl1=1, sl2=1, D=8, DS=8, D2=0, NB2=0, pol_w="nt", pol_gu="nt", pol_kv="nt"):
    a = Asm()
    def stamp(i, mode=1):
        if diag == mode or (diag and i in (0, 7)) or (diag and incomm[0]):
            a(f"s_memrealtime s[{84+2*i}:{85+2*i}]")
    incomm = [False]
    def series(k):
        if not ser: return
        if k == 0: a("s_memrealtime s[100:101]")
        if k == 5: a("s_waitcnt lgkmcnt(0)\ns_mov_b32 m0, s71\ns_nop 0\nv_writelane_b32 v255, s100, m0\ns_add_u32 s71, s71, 1")
    def srd(n, lo, hi, size):
        a(f"s_mov_b32 s{n}, {lo}\ns_mov_b32 s{n+1}, {hi}\ns_mov_b32 s{n+2}, {size}\ns_mov_b32 s{n+3}, 0x20000")
    def wave_reduce(v, t, op):
        for r in (8, 4, 2, 1):
            a(f"{op}_dpp v{v}, v{v}, v{v} row_ror:{r} row_mask:0xf bank_mask:0xf")
        a(f"v_mov_b32 v{t}, v{v}\nv_permlane16_swap_b32 v{v}, v{t}\n{op} v{v}, v{v}, v{t}")
        a(f"v_mov_b32 v{t}, v{v}\nv_permlane32_swap_b32 v{v}, v{t}\n{op} v{v}, v{v}, v{t}")
    def rbf(v):
        a(f"v_cvt_pk_bf16_f32 v{v}, v{v}, v{v}\nv_and_b32 v{v}, 0xffff0000, v{v}")
    def buildA(buf, P, c):
        base = 24 + 4 * buf
        for t in range(4):
            a(f"v_and_b32_dpp v{base+t}, v{P}, v{120+t} row_newbcast:{c} row_mask:0xf bank_mask:0xf")
    def mfma(acc, buf, breg, first):
        base = 24 + 4 * buf
        a(f"v_mfma_f32_16x16x32_bf16 v[{acc}:{acc+3}], v[{base}:{base+3}], v[{breg}:{breg+3}], " + ("0" if first else f"v[{acc}:{acc+3}]"))
    def writeD(acc, off):
        a(f"s_mov_b64 exec, s[78:79]\nds_write_b128 v225, v[{acc}:{acc+3}] offset:{off}\ns_mov_b64 exec, -1")
    def poll(label, loads, tagregs, acc=250, t1=251, t2=252, sleep=1):
        a.fence()
        a(f"s_mov_b32 s77, 0x100000")
        a(f"{label}:")
        for l in loads: a(l)
        a("s_waitcnt vmcnt(0)")
        a(f"v_xor_b32 v{acc}, s30, v{tagregs[0]}")
        rest = tagregs[1:]
        while len(rest) >= 2:
            a(f"v_xor_b32 v{t1}, s30, v{rest[0]}\nv_xor_b32 v{t2}, s30, v{rest[1]}\nv_or3_b32 v{acc}, v{acc}, v{t1}, v{t2}")
            rest = rest[2:]
        if rest:
            a(f"v_xor_b32 v{t1}, s30, v{rest[0]}\nv_or_b32 v{acc}, v{acc}, v{t1}")
        a(f"v_cmp_ne_u32 vcc, 0, v{acc}")
        a(f"s_cmp_eq_u64 vcc, 0\ns_cbranch_scc1 {label}_ok")
        if maskpoll: a("s_mov_b64 exec, vcc")
        a(f"s_sub_u32 s77, s77, 1\ns_cmp_eq_u32 s77, 0\ns_cbranch_scc1 {label}_ok\ns_sleep {sleep}\ns_branch {label}")
        a(f"{label}_ok:")
        a("s_mov_b64 exec, -1")
    def pollc(label, loads, regs, full=(), acc=250, sleep=1, tries=0x100000, fail=None):
        a.fence()
        a(f"s_mov_b32 s77, {tries}")
        a(f"{label}:")
        for l in loads: a(l)
        a("s_waitcnt vmcnt(0)")
        a(f"v_xor_b32 v{acc}, s30, v{regs[0]}")
        for r in regs[1:]: a(f"v_bitop3_b32 v{acc}, v{r}, s30, v{acc} bitop3:0xbe")
        a(f"v_and_b32 v{acc}, 0xff, v{acc}")
        for r in full: a(f"v_bitop3_b32 v{acc}, v{r}, s30, v{acc} bitop3:0xbe")
        a(f"v_cmp_ne_u32 vcc, 0, v{acc}")
        a(f"s_cmp_eq_u64 vcc, 0\ns_cbranch_scc1 {label}_ok")
        a(f"s_sub_u32 s77, s77, 1\ns_cmp_eq_u32 s77, 0\ns_cbranch_scc1 {fail or label + '_ok'}")
        if sleep: a(f"s_sleep {sleep}")
        a(f"s_branch {label}")
        a(f"{label}_ok:")
        a("s_mov_b64 exec, -1")
    def pollp(label, mk, setA, setB, nlow, acc=250, gap=2):
        def check(regs):
            a(f"v_xor_b32 v{acc}, s30, v{regs[0]}")
            for r in regs[1:nlow]: a(f"v_bitop3_b32 v{acc}, v{r}, s30, v{acc} bitop3:0xbe")
            a(f"v_and_b32 v{acc}, 0xff, v{acc}")
            for r in regs[nlow:]: a(f"v_bitop3_b32 v{acc}, v{r}, s30, v{acc} bitop3:0xbe")
            a(f"v_cmp_ne_u32 vcc, 0, v{acc}\ns_cmp_eq_u64 vcc, 0")
        n = len(mk(setA))
        a.fence()
        a("s_mov_b32 s77, 0x100000")
        for l in mk(setA): a(l)
        a(f"s_sleep {gap}")
        a(f"{label}:")
        for l in mk(setB): a(l)
        a(f"s_waitcnt vmcnt({n})")
        check(setA)
        a(f"s_cbranch_scc1 {label}_ok")
        for l in mk(setA): a(l)
        a(f"s_waitcnt vmcnt({n})")
        check(setB)
        a(f"s_cbranch_scc1 {label}_b")
        a(f"s_sub_u32 s77, s77, 1\ns_cmp_lg_u32 s77, 0\ns_cbranch_scc1 {label}")
        a(f"{label}_b:")
        return
    def masks():
        a("v_and_b32 v12, 1, v3\nv_lshrrev_b32 v13, 1, v3\nv_cmp_eq_u32 vcc, 1, v12\nv_mov_b32 v14, 0xffff\nv_mov_b32 v15, 0xffff0000\nv_cndmask_b32 v14, v14, v15, vcc")
        for t in range(4):
            a(f"v_cmp_eq_u32 vcc, {t}, v13\nv_cndmask_b32 v{120+t}, 0, v14, vcc")
    def poll_rows(label, loads, sbase, sleep=1, tagreg="s30", mask=None, hook=None):
        a.fence()
        n = len(loads)
        a(f"s_mov_b32 s77, 0x100000\ns_mov_b32 s76, {(1 << n) - 1}")
        a(f"{label}:")
        for i, (l, _, _) in enumerate(loads):
            a(f"s_bitcmp1_b32 s76, {i}\ns_cbranch_scc0 {label}_s{i}")
            a(l)
            a(f"{label}_s{i}:")
        a("s_waitcnt vmcnt(0)")
        for i, (_, ta, tb) in enumerate(loads):
            a(f"v_xor_b32 v250, {tagreg}, v{ta}\nv_bitop3_b32 v250, v{tb}, {tagreg}, v250 bitop3:0xbe")
            if mask: a(f"v_and_b32 v250, {mask}, v250")
            a(f"v_cmp_ne_u32 s[{sbase+2*i}:{sbase+2*i+1}], 0, v250")
        a("s_mov_b32 s76, 0")
        for i in range(n):
            a(f"s_cmp_lg_u64 s[{sbase+2*i}:{sbase+2*i+1}], 0\ns_cselect_b32 s74, {1 << i}, 0\ns_or_b32 s76, s76, s74")
        a(f"s_cmp_eq_u32 s76, 0\ns_cbranch_scc1 {label}_ok")
        if hook:
            a(f"s_cmp_lg_u32 s77, {0x100000 - QTO}\ns_cbranch_scc1 {label}_nh\n{hook}\n{label}_nh:")
        a(f"s_sub_u32 s77, s77, 1\ns_cmp_eq_u32 s77, 0\ns_cbranch_scc1 {label}_ok\ns_sleep {sleep}\ns_branch {label}")
        a(f"{label}_ok:")

    a("s_cmp_ge_u32 s2, 256\ns_cbranch_scc1 L_exit")
    stamp(0)
    a("s_memrealtime s[66:67]")
    a("s_load_dwordx16 s[4:19], s[0:1], 0\ns_load_dwordx8 s[20:27], s[0:1], 64")
    a("v_lshrrev_b32 v5, 6, v0\nv_and_b32 v1, 63, v0\nv_readfirstlane_b32 s3, v5")
    a("v_lshrrev_b32 v2, 4, v1\nv_and_b32 v3, 15, v1")
    if perm == 1: a("s_and_b32 s28, s2, 7\ns_lshl_b32 s28, s28, 5\ns_lshr_b32 s2, s2, 3\ns_add_u32 s2, s2, s28")
    a("s_lshr_b32 s28, s2, 3\ns_and_b32 s29, s2, 7")
    a("s_mov_b32 s78, -1\ns_mov_b32 s79, 0")
    a("v_lshlrev_b32 v6, 4, v1")
    a("v_lshlrev_b32 v7, 4, v3")
    a("s_lshl_b32 s74, s29, 2\ns_add_u32 s74, s74, s3\ns_lshl_b32 s74, s74, 5")
    a("s_waitcnt lgkmcnt(0)")
    stamp(1, 2)
    a("s_load_dword s30, s[26:27], 0")
    srd(52, "s4", "s5", 2048)
    srd(56, "s26", "s27", WS_BYTES)
    a("s_cmp_eq_u32 s3, 4\ns_cbranch_scc1 L_comm")

    a("buffer_load_dwordx4 v[96:99], v6, s[52:55], 0 offen\nbuffer_load_dwordx4 v[100:103], v6, s[52:55], 0 offen offset:1024")
    a("v_and_b32 v8, 7, v3\nv_lshl_add_u32 v8, v8, 2, v2\nv_lshlrev_b32 v8, 1, v8\ns_lshl_b32 s75, s74, 1")
    a("buffer_load_ushort v9, v8, s[52:55], s75 offen")
    srd(40, "s10", "s11", 1024 * 8192)
    a("v_lshl_add_u32 v10, v2, 13, v7")
    a("s_lshl_b32 s75, s74, 13\ns_lshl_b32 s76, s28, 8\ns_add_u32 s75, s75, s76")
    for i in range(8):
        a(f"buffer_load_dwordx4 v[{128+4*i}:{131+4*i}], v10, s[40:43], s75 offen {pol_w}")
        if i < 7: a("s_add_u32 s75, s75, 32768")
    srd(44, "s16", "s17", 1024 * 7168)
    srd(48, "s18", "s19", 1024 * 7168)
    a("v_mul_u32_u24 v11, 7168, v2\nv_add_u32 v11, v11, v7")
    a("v_cmp_gt_u32 vcc, 14, v3\nv_mov_b32 v12, 0x80000000\nv_cndmask_b32 v11, v12, v11, vcc")
    a("s_mul_i32 s76, s74, 7168\ns_mul_i32 s31, s28, 224\ns_add_u32 s76, s76, s31\ns_mov_b32 s75, s76")
    def gload(i):
        a(f"buffer_load_dwordx4 v[{160+4*i}:{163+4*i}], v11, s[44:47], s75 offen {pol_gu}\ns_add_u32 s75, s75, {4*7168}")
    def uload(i):
        a(f"buffer_load_dwordx4 v[{192+4*i}:{195+4*i}], v11, s[48:51], s76 offen {pol_gu}\ns_add_u32 s76, s76, {4*7168}")
    a("s_barrier")
    pos = {"r": [], "w": [], "n": [0] * 5, "j": [], "B": []}
    bit = 8
    for ch in str(MAP):
        if ch.isdigit(): pos["n"][int(ch)] = bit
        else: pos[ch].append(bit)
        bit += 4 if ch == "B" else 1
    assert bit == 24 and len(pos["w"]) == 2 and len(pos["r"]) == 2 and len(pos["j"]) == 3 and len(set(pos["n"])) == 5
    def spread(sreg, bits, dst):
        a(f"s_mov_b32 {dst}, 0")
        for i, b in enumerate(bits):
            a(f"s_bfe_u32 s38, {sreg}, {(1 << 16) | i}\ns_lshl_b32 s38, s38, {b}\ns_or_b32 {dst}, {dst}, s38")
    spread("s29", pos["j"], "s39")
    a("s_lshl_b32 s31, s28, 24\ns_add_u32 s31, s31, s39\ns_sub_u32 s34, 0x1000000, s39")
    a("s_add_u32 s32, s6, s31\ns_addc_u32 s33, s7, 0\ns_mov_b32 s35, 0x20000")
    a("s_add_u32 s36, s8, s31\ns_addc_u32 s37, s9, 0")
    spread("s3", pos["w"], "s39")
    a(f"v_and_b32 v4, 1, v2\nv_lshlrev_b32 v4, {pos['r'][0]}, v4\nv_lshrrev_b32 v5, 1, v2\nv_lshl_add_u32 v4, v5, {pos['r'][1]}, v4\nv_add3_u32 v4, v4, s39, v7")
    if XK == 1: a("s_and_b32 s60, s2, 31")
    if XK == 2: a("s_mov_b32 s60, s28")
    if XK == 3: a("s_lshl_b32 s60, s29, 2")
    if XK == 4: a("s_lshl_b32 s60, s29, 2\ns_xor_b32 s60, s60, s28")
    if XK == 5: a("s_mul_i32 s60, s2, 0x9e3779b1\ns_lshr_b32 s60, s60, 27")
    if XK == 6: a("s_lshl_b32 s60, s28, 2\ns_and_b32 s60, s60, 28")
    if XK:
        spread("s60", pos["n"], "s61")
    fn = [sum(((n >> i) & 1) << b for i, b in enumerate(pos["n"])) for n in range(32)] + [1 << pos["B"][0]]
    a("s_mov_b32 s72, 0")
    if XK: a("s_mov_b32 s60, s61")
    if ser: a("s_mov_b32 s71, 0\nv_mov_b32 v255, 0")
    masks()
    a("v_cmp_eq_u32 s[82:83], 1, v12\nv_and_b32 v13, 1, v13\nv_cmp_eq_u32 s[80:81], 1, v13")
    a("s_lshl_b32 s31, s3, 9\nv_lshlrev_b32 v225, 5, v3\nv_lshl_add_u32 v225, v2, 4, v225\nv_add_u32 v225, s31, v225")
    a("s_lshl_b32 s31, s3, 13\nv_lshlrev_b32 v224, 2, v1\nv_add_u32 v224, s31, v224")
    a("s_waitcnt vmcnt(8)")
    stamp(2, 2)
    for i in range(early): gload(i)
    for k in range(8):
        a(f"v_lshlrev_b32 v{104+2*k}, 16, v{96+k}\nv_and_b32 v{105+2*k}, 0xffff0000, v{96+k}")
    a("v_add_f32 v12, v104, v105\nv_add_f32 v13, v106, v107\nv_add_f32 v14, v108, v109\nv_add_f32 v15, v110, v111")
    a("v_add_f32 v16, v112, v113\nv_add_f32 v17, v114, v115\nv_add_f32 v18, v116, v117\nv_add_f32 v19, v118, v119")
    a("v_add_f32 v12, v12, v13\nv_add_f32 v14, v14, v15\nv_add_f32 v16, v16, v17\nv_add_f32 v18, v18, v19")
    a("v_add_f32 v12, v12, v14\nv_add_f32 v16, v16, v18\nv_add_f32 v12, v12, v16")
    wave_reduce(12, 13, "v_add_f32")
    a("v_mul_f32 v12, 0x3a800000, v12")
    for k in range(16):
        a(f"v_sub_f32 v{104+k}, v{104+k}, v12")
    a("v_mul_f32 v14, v104, v104\nv_mul_f32 v15, v105, v105\nv_mul_f32 v16, v106, v106\nv_mul_f32 v17, v107, v107")
    for k in range(4, 16):
        a(f"v_fmac_f32 v{14+k%4}, v{104+k}, v{104+k}")
    a("v_add_f32 v14, v14, v15\nv_add_f32 v16, v16, v17\nv_add_f32 v14, v14, v16")
    wave_reduce(14, 13, "v_add_f32")
    a("v_mul_f32 v14, 0x3a800000, v14")
    rbf(14); rbf(12)
    a("v_add_f32 v14, 0x3727c5ac, v14")
    rbf(14)
    a("v_sqrt_f32 v14, v14")
    rbf(14)
    a("v_rcp_f32 v14, v14\nv_lshlrev_b32 v9, 16, v9\nv_sub_f32 v9, v9, v12")
    rbf(9)
    a("v_mul_f32 v9, v9, v14\nv_cvt_pk_bf16_f32 v124, v9, v9")
    stamp(3, 2)
    def stage1(acc, wbase):
        buildA(0, 124, 0)
        for i in range(8):
            if i < 7: buildA((i + 1) & 1, 124, i + 1)
            mfma(acc, i & 1, wbase + 4 * i, i == 0)
    a(f"s_waitcnt vmcnt({early})")
    stamp(4, 2)
    for i in range(early, 8): gload(i)
    stage1(12, 128)
    writeD(12, RED_Q)
    a(f"s_lshl_b32 s31, s3, 2\nv_mov_b32 v16, s31\nv_mov_b32 v17, 1\nds_write_b32 v16, v17 offset:{FL}")
    stamp(1); stamp(5, 2)
    def kslot(n):
        n %= 32
        return 32 + 4 * n if n < 16 else 128 + 4 * (n - 16)
    slot_of = {kslot(n): n for n in range(32)}
    def issueS(reg):
        n = slot_of[reg]
        inc = (fn[n + 1] - fn[n]) & 0xffffffff
        if XK:
            a(f"buffer_load_dwordx4 v[{reg}:{reg+3}], v4, s[32:35], s60 offen {pol_kv}\ns_add_u32 s72, s72, {inc}\ns_xor_b32 s60, s72, s61")
        else:
            a(f"buffer_load_dwordx4 v[{reg}:{reg+3}], v4, s[32:35], s72 offen {pol_kv}\ns_add_u32 s72, s72, {inc}")
    WO0 = 192
    def wsetup():
        srd(40, "s12", "s13", 4096 * 2048)
        a("v_lshl_add_u32 v240, v2, 14, v7")
        a("s_lshl_b32 s31, s28, 2\ns_add_u32 s31, s31, s3\ns_lshl_b32 s75, s31, 16\ns_lshl_b32 s31, s29, 8\ns_add_u32 s75, s75, s31")
        a("v_and_b32 v232, 7, v3\nv_lshrrev_b32 v233, 3, v3\ns_lshl_b32 s31, s28, 13\ns_add_u32 s31, s31, %d" % H1)
        a("v_lshlrev_b32 v232, 10, v232\nv_add_u32 v232, s31, v232")
        a("v_lshlrev_b32 v233, 4, v233\nv_lshl_add_u32 v233, v2, 5, v233\ns_lshl_b32 s31, s3, 7\nv_add3_u32 v233, v233, s31, v232")
        a("s_add_u32 s30, s30, 1")
    wl_all = []
    for t in range(8):
        wl_all.append(f"buffer_load_dwordx4 v[{WO0+4*t}:{WO0+3+4*t}], v240, s[40:43], s75 offen {pol_w}\ns_add_u32 s75, s75, 2048")
    assert DS <= 8
    stamp(1, 3)
    for i in range(8):
        a(f"s_waitcnt vmcnt({DS-1})")
        uload(i)
    stamp(2, 3)
    for n in range(32):
        a(f"s_waitcnt vmcnt({(DS0 if (DS0 and n >= 16) else DS)-1})")
        issueS(kslot(n))
        if n % 8 == 7: stamp(3 + n // 8, 3)
        if n == 0:
            stage1(16, 160)
        if n == DS - 1:
            stage1(20, 192)
            writeD(16, RED_G)
            writeD(20, RED_U)
            if NB2F: a(f"s_lshl_b32 s31, s3, 2\nv_mov_b32 v16, s31\nv_mov_b32 v17, 1\nds_write_b32 v16, v17 offset:{FG}")
        if n == 15:
            a("s_waitcnt lgkmcnt(0)")
            wsetup()
            for x in wl_all[:8 - NWT]:
                a(f"s_waitcnt vmcnt({DS-1})"); a(x)
    a("v_mov_b32 v126, 0xff800000\nv_mov_b32 v127, 0\ns_mov_b32 s76, %d" % SCALE)
    stamp(6, 2)
    if NB2F:
        a("v_mov_b32 v247, 0")
        a.fence()
        a(f"L_qw:\nds_read_b32 v16, v247 offset:{QF}\nds_read_b128 v[8:11], v7 offset:{QL}\ns_waitcnt lgkmcnt(0)\nv_readfirstlane_b32 s31, v16")
        a("s_cmp_eq_u32 s31, 1\ns_cbranch_scc1 L_qw_ok\ns_sleep 1\ns_branch L_qw\nL_qw_ok:")
        stamp(2)
    else:
        a("s_waitcnt lgkmcnt(0)\ns_barrier")
        stamp(2)
        a(f"ds_read_b128 v[8:11], v7 offset:{QL}\ns_waitcnt lgkmcnt(0)")
    levels = [int(x) for x in str(DL).split("-")]
    ths = [int(x) for x in str(TH).split("/")] if TH != "" else []
    assert len(ths) == len(levels) - 1
    a(f"s_mov_b32 s70, {len([t for t in ths if t < 0])}\ns_mov_b32 s69, 0\ns_mov_b32 s67, 0\ns_add_u32 s66, s66, {T0}")
    a("s_lshl_b32 s31, s3, 3\nv_mov_b32 v246, s31\nv_mov_b32 v247, 0")
    def control(k):
        if k == 7: a(f"s_memrealtime s[64:65]\nds_read_b64 v[242:243], v247 offset:{RF}")
        if k == 12:
            a("s_waitcnt lgkmcnt(0)\nv_readfirstlane_b32 s62, v242\nv_readfirstlane_b32 s63, v243")
            a("s_sub_u32 s68, s64, s69\ns_add_u32 s69, s69, %d\ns_add_u32 s67, s67, 1" % TAU)
            a(f"v_mov_b32 v244, s68\nv_mov_b32 v245, s67\nds_write_b64 v246, v[244:245] offset:{PH}")
            if fixed: a("s_sub_u32 s68, s68, s66")
            else: a("s_sub_u32 s68, s68, s62\ns_and_b32 s68, s68, s63")
            a("s_mov_b32 s70, 0")
            for i, t in enumerate(ths):
                a(f"s_cmp_gt_i32 s68, {t}\ns_addc_u32 s70, s70, 0")
    uid = [0]
    def variants(fn):
        uid[0] += 1; u = uid[0]
        a.fence()
        for i in range(1, len(levels)):
            a(f"s_cmp_eq_u32 s70, {i}\ns_cbranch_scc1 L_v{u}_{i}")
        for i, d in enumerate(levels):
            if i: a(f"L_v{u}_{i}:")
            fn(d)
            a.fence()
            if i < len(levels) - 1: a(f"s_branch L_v{u}_end")
        a(f"L_v{u}_end:")

    def kgroup(half, d):
        for k in range(16):
            series(k); control(k)
            r = kslot(16 * half + k); acc = 12 + k % 4
            a(f"v_dot2_f32_bf16 v{acc}, v{r}, v8, 0\nv_dot2_f32_bf16 v{acc}, v{r+1}, v9, v{acc}\nv_dot2_f32_bf16 v{acc}, v{r+2}, v10, v{acc}\nv_dot2_f32_bf16 v{acc}, v{r+3}, v11, v{acc}")
            a(f"s_waitcnt vmcnt({d-1})")
            issueS(r)
            if k % 4 == 3:
                C = 20 + k // 4
                a("v_add_f32_dpp v16, v12, v12 row_ror:8 row_mask:0xf bank_mask:0x3")
                a("v_add_f32_dpp v17, v14, v14 row_ror:8 row_mask:0xf bank_mask:0x3")
                a("v_add_f32_dpp v16, v13, v13 row_ror:8 row_mask:0xf bank_mask:0xc")
                a("v_add_f32_dpp v17, v15, v15 row_ror:8 row_mask:0xf bank_mask:0xc")
                a(f"v_add_f32_dpp v{C}, v16, v16 row_shl:4 row_mask:0xf bank_mask:0x5")
                a(f"v_add_f32_dpp v{C}, v17, v17 row_shr:4 row_mask:0xf bank_mask:0xa")
        for C in range(20, 24):
            a(f"v_add_f32_dpp v{C}, v{C}, v{C} quad_perm:[2,3,0,1] row_mask:0xf bank_mask:0xf")
        a("v_cndmask_b32 v20, v20, v21, s[80:81]\nv_cndmask_b32 v22, v22, v23, s[80:81]")
        a("v_add_f32_dpp v20, v20, v20 quad_perm:[1,0,3,2] row_mask:0xf bank_mask:0xf")
        a("v_add_f32_dpp v22, v22, v22 quad_perm:[1,0,3,2] row_mask:0xf bank_mask:0xf")
        a("v_cndmask_b32 v18, v20, v22, s[82:83]")
        rbf(18)
        a("v_mul_f32 v18, s76, v18")
        rbf(18)
        a("v_max_f32 v126, v126, v18\nds_write_b32 v224, v18\nv_add_u32 v224, 256, v224")
    a("s_mov_b32 s73, 16")
    a("L_kloop:")
    a("s_cmp_lg_u32 s73, 1\ns_cbranch_scc1 L_knosw\ns_mov_b32 s32, s36\ns_mov_b32 s33, s37\ns_mov_b32 s72, 0\n" + ("s_mov_b32 s60, s61\n" if XK else "") + "L_knosw:")
    variants(lambda d: kgroup(0, d))
    if KB: a(f"s_cmp_eq_u32 s73, 1\ns_cselect_b32 s70, {len(levels)-1}, s70")
    variants(lambda d: kgroup(1, d))
    a("s_sub_u32 s73, s73, 1\ns_cmp_lg_u32 s73, 0\ns_cbranch_scc1 L_kloop")
    wave_reduce(126, 13, "v_max_f32")
    a(f"s_lshl_b32 s31, s3, 2\nv_mov_b32 v13, s31\nds_write_b32 v13, v126 offset:{MX}")
    a("v_subrev_u32 v224, 8192, v224")
    stamp(3)
    a("ds_read_b32 v125, v224\nv_mov_b32 v226, v126")
    a("s_mov_b32 s76, %d" % LOG2E)
    a("s_waitcnt lgkmcnt(0)")
    def mkP():
        a("v_sub_f32 v125, v125, v226\nv_mul_f32 v125, s76, v125\nv_exp_f32 v125, v125\nv_add_f32 v127, v127, v125\nv_cvt_pk_bf16_f32 v125, v125, v125")
    mkP()
    a("v_mov_b32 v124, v125\nv_mov_b32 v12, 0\nv_mov_b32 v13, 0\nv_mov_b32 v14, 0\nv_mov_b32 v15, 0")
    lam = [4 * (((c >> 1) & 1) + 2 * (c & 1)) + [0, 2, 1, 3][c >> 2] for c in range(16)]
    inv = [lam.index(i) for i in range(16)]
    buildA(0, 124, inv[0])
    def vgroup(half, pre, post, last=False, ctl=True):
        for k in range(16):
            series(k)
            if ctl: control(k)
            if k == 0 and not last:
                a("v_add_u32 v224, 256, v224\nds_read_b32 v125, v224")
            if k == 6 and not last:
                a("s_waitcnt lgkmcnt(0)"); mkP()
            if k < 15: buildA((k + 1) & 1, 124, inv[k + 1])
            elif not last:
                buildA(0, 125, inv[0]); a("v_mov_b32 v124, v125")
            pre(k)
            mfma(12, k & 1, kslot(16 * half + k), False)
            post(k)
            if last and k == 2:
                wave_reduce(127, 16, "v_add_f32")
                a(f"s_lshl_b32 s31, s3, 9\nv_mov_b32 v20, s31\nv_mov_b32 v16, v127\nv_mov_b32 v17, 0\nv_mov_b32 v18, 0\nv_mov_b32 v19, 0\nds_write_b128 v20, v[16:19] offset:{RED_L}")
    def vsteady(half, d):
        def post(k):
            a(f"s_waitcnt vmcnt({d-1})"); issueS(kslot(16 * half + k))
        vgroup(half, lambda k: None, post)
    a(f"s_mov_b32 s73, {15 - (NBG + 1) // 2}")
    a("L_vloop:")
    variants(lambda d: vsteady(0, d))
    variants(lambda d: vsteady(1, d))
    a("s_sub_u32 s73, s73, 1\ns_cmp_lg_u32 s73, 0\ns_cbranch_scc1 L_vloop")
    if NBG % 2: variants(lambda d: vsteady(0, d))
    for i in range(NBG): vsteady((NBG + i) % 2, DB)
    wl = wl_all[8 - NWT:]
    nw = [0]
    dmax = DB if NBG else max(levels)
    wsteps = [n for n in range(32) if (n < 32 - DT and n % 5 == 4) or n >= 32 - DT]
    def fin(half):
        def pre(k):
            n = 16 * half + k
            if n >= 32 - dmax: a(f"s_waitcnt vmcnt({31 - n + nw[0]})")
        def post(k):
            n = 16 * half + k
            if n in wsteps and nw[0] < len(wl):
                a(wl[nw[0]]); nw[0] += 1
        vgroup(half, pre, post, last=(half == 1), ctl=False)
    a("L_tail0:")
    fin(0); fin(1)
    writeD(12, RED_O)
    for x in wl[nw[0]:]: a(x)
    a("s_waitcnt lgkmcnt(0)\ns_barrier")
    stamp(4)
    pollc("L_p1", ["buffer_load_dwordx4 v[228:231], v233, s[56:59], 0 offen " + h1l.replace("+", " "),
                   "buffer_load_dwordx4 v[236:239], v232, s[56:59], 0 offen offset:512 " + h1l.replace("+", " ")], [228, 229, 230, 231, 236, 237], full=(238, 239), sleep=sl1)
    stamp(5)
    steps = ["quad_perm:[1,0,3,2]", "quad_perm:[2,3,0,1]", "row_half_mirror"]
    O4 = (228, 229, 230, 231)
    a("v_and_b32 v237, 0xffffff00, v237\nv_mov_b32 v240, v237")
    for s in steps: a(f"v_max_f32_dpp v240, v240, v240 {s} row_mask:0xf bank_mask:0xf")
    a("v_sub_f32 v237, v237, v240\nv_mul_f32 v237, s76, v237\nv_exp_f32 v237, v237")
    for v in (236,) + O4: a(f"v_mul_f32 v{v}, v{v}, v237")
    for s in steps:
        for v in (236,) + O4: a(f"v_add_f32_dpp v{v}, v{v}, v{v} {s} row_mask:0xf bank_mask:0xf")
    a("v_rcp_f32 v236, v236")
    for v in O4: a(f"v_mul_f32 v{v}, v{v}, v236")
    for v in O4: a(f"v_cvt_pk_bf16_f32 v{v}, v{v}, v{v}")
    seq = [(b, i) for b in range(2) for i in range(4)]
    buildA(0, 228, 0)
    for t, (b, i) in enumerate(seq):
        if t < 7:
            b2, i2 = seq[t + 1]; buildA((t + 1) & 1, 228 + i2, 8 * b2)
        mfma(16, t & 1, WO0 + 4 * t, t == 0)
    writeD(16, RED_A)
    a("s_waitcnt lgkmcnt(0)\ns_barrier")
    stamp(6)
    if LP:
        a("s_cmp_lg_u32 s3, 0\ns_cbranch_scc1 L_norem\ns_mov_b64 exec, s[78:79]")
        for w in range(4): a(f"ds_read_b128 v[{32+4*w}:{35+4*w}], v6 offset:{RED_A+512*w}")
        a("s_lshl_b32 s31, s2, 9\ns_add_u32 s31, s31, %d\ns_mov_b32 s62, 0xff\nv_mov_b32 v20, s30\ns_waitcnt lgkmcnt(0)" % H2A)
        for i in range(4): a(f"v_add_f32 v{32+i}, v{32+i}, v{36+i}\nv_add_f32 v{40+i}, v{40+i}, v{44+i}")
        for i in range(4): a(f"v_add_f32 v{32+i}, v{32+i}, v{40+i}")
        for i in range(4): a(f"v_bfi_b32 v{32+i}, s62, v20, v{32+i}")
        a("buffer_store_dwordx4 v[32:35], v6, s[56:59], s31 offen sc1\ns_mov_b64 exec, -1")
        a.fence()
        a("L_norem:")
    if ser:
        a("s_add_u32 s68, s26, 0x9000000\ns_addc_u32 s69, s27, 0\ns_lshl_b32 s31, s2, 2\ns_add_u32 s31, s31, s3\ns_lshl_b32 s31, s31, 8\nv_lshlrev_b32 v16, 2, v1\nv_add_u32 v16, s31, v16")
        a("global_store_dword v16, v255, s[68:69]")
    if diag:
        a("s_waitcnt lgkmcnt(0)\ns_getreg_b32 s98, hwreg(HW_REG_HW_ID)\ns_getreg_b32 s99, hwreg(HW_REG_XCC_ID)")
        a("s_cmp_lg_u32 s3, 0\ns_cbranch_scc1 L_exit\ns_mov_b32 s31, 0\ns_branch L_stamps")
    else:
        a("s_endpgm")

    a("L_comm:")
    incomm[0] = True
    a(f"v_mov_b32 v8, 0\nv_mov_b32 v20, 0\nv_mov_b32 v21, 0\nv_mov_b32 v22, 0\nv_mov_b32 v23, 0\nds_write_b128 v8, v[20:23] offset:{FL}\nds_write_b128 v8, v[20:23] offset:{FG}\nds_write_b128 v8, v[20:23] offset:{QF}\nds_write_b128 v8, v[20:23] offset:{RF}\nds_write_b128 v8, v[20:23] offset:{PH}\nds_write_b128 v8, v[20:23] offset:{PH+16}\ns_waitcnt lgkmcnt(0)\ns_barrier")
    a("s_lshl_b32 s31, s29, 8\ns_and_b32 s75, s28, 3\ns_lshl_b32 s75, s75, 6\ns_add_u32 s75, s75, s31")
    a("v_and_b32 v37, 7, v1\nv_lshlrev_b32 v38, 3, v37")
    a("buffer_load_dwordx2 v[10:11], v38, s[52:55], s75 offen")
    def wdload():
        srd(36, "s20", "s21", 3584 * 2048)
        a("v_lshl_add_u32 v58, v2, 11, v7\ns_mul_i32 s35, s28, %d\ns_lshl_b32 s31, s29, 8\ns_add_u32 s35, s35, s31" % (112 * 2048))
        for i in range(28):
            if i >= WDF: a(f"s_waitcnt vmcnt({WDF-1})")
            a(f"buffer_load_dwordx4 v[{128+4*i}:{131+4*i}], v58, s[36:39], s35 offen {pol_w}\ns_add_u32 s35, s35, 8192")
    if CP:
        a("s_and_b32 s34, s2, 31" if perm == 1 else "s_mov_b32 s34, s28")
        a(f"s_cmp_ge_u32 s34, {CP}\ns_cbranch_scc1 L_nocp")
        a(f"s_getpc_b64 s[32:33]\nL_pc0:\ns_sub_u32 s32, s32, L_pc0-{NAME}\ns_subb_u32 s33, s33, 0\ns_lshl_b32 s31, s34, 13\ns_add_u32 s32, s32, s31\ns_addc_u32 s33, s33, 0")
        for i in range(8): a(f"global_load_dwordx4 v[{64+4*i}:{67+4*i}], v6, s[32:33]\ns_add_u32 s32, s32, 1024\ns_addc_u32 s33, s33, 0")
        a("L_nocp:")
    if WDW == 1: wdload()
    if touch:
        a("s_mov_b64 exec, 1")
        a("s_lshl_b32 s31, s28, 24\ns_add_u32 s32, s6, s31\ns_addc_u32 s33, s7, 0\nglobal_load_dword v20, v8, s[32:33] nt")
        a("s_mul_i32 s31, s29, %d\ns_add_u32 s32, s16, s31\ns_addc_u32 s33, s17, 0\nglobal_load_dword v21, v8, s[32:33] nt" % (128 * 7168))
        a("s_add_u32 s32, s18, s31\ns_addc_u32 s33, s19, 0\nglobal_load_dword v22, v8, s[32:33] nt")
        a("global_load_dword v23, v8, s[26:27] nt")
        a("s_mov_b64 exec, -1")
    masks()
    srd(68, "s22", "s23", 2048)
    a("v_lshlrev_b32 v9, 3, v1")
    a("s_lshl_b32 s31, s2, 10\ns_add_u32 s40, s31, %d" % H0Q)
    a("s_lshl_b32 s31, s28, 13\ns_add_u32 s41, s31, %d\ns_add_u32 s42, s41, 4096" % H0Q)
    a("s_waitcnt lgkmcnt(0)\ns_add_u32 s30, s30, 1")
    def red4(dst, off, tmp):
        for w in range(4): a(f"ds_read_b64 v[{tmp+2*w}:{tmp+2*w+1}], v9 offset:{off+512*w}")
    def sum4(dst, tmp):
        a(f"v_add_f32 v{dst}, v{tmp}, v{tmp+2}\nv_add_f32 v{dst+2}, v{tmp+1}, v{tmp+3}\nv_add_f32 v{tmp+4}, v{tmp+4}, v{tmp+6}\nv_add_f32 v{tmp+5}, v{tmp+5}, v{tmp+7}")
        a(f"v_add_f32 v{dst}, v{dst}, v{tmp+4}\nv_add_f32 v{dst+2}, v{dst+2}, v{tmp+5}")
    a("v_mov_b32 v13, s30\nv_mov_b32 v15, s30\nv_mov_b32 v17, s30\nv_mov_b32 v19, s30")
    a.fence()
    a(f"L_fl:\nds_read_b128 v[20:23], v8 offset:{FL}\ns_waitcnt lgkmcnt(0)\nv_and_b32 v20, v20, v21\nv_and_b32 v22, v22, v23\nv_and_b32 v20, v20, v22\nv_readfirstlane_b32 s31, v20")
    a("s_cmp_eq_u32 s31, 1\ns_cbranch_scc1 L_fl_ok\ns_sleep 1\ns_branch L_fl\nL_fl_ok:")
    stamp(1)
    red4(12, RED_Q, 20); a("s_waitcnt lgkmcnt(0)"); sum4(12, 20)
    if LOC:
        a("s_getreg_b32 s65, hwreg(HW_REG_XCC_ID)\ns_and_b32 s65, s65, 15")
        if fakex: a("s_mov_b32 s65, s29")
        a("s_lshl_b32 s65, s65, 28\ns_and_b32 s31, s30, 0xfffffff\ns_or_b32 s65, s65, s31\nv_mov_b32 v13, s65\nv_mov_b32 v15, s65")
        a("buffer_store_dwordx4 v[12:15], v6, s[56:59], s40 offen")
        if WDW == 2: wdload()
        up = "buffer_store_dwordx4 v[12:15], v6, s[56:59], s40 offen sc1"
        poll_rows("L_p0", [(f"buffer_load_dwordx4 v[{64+4*jj}:{67+4*jj}], v6, s[56:59], s{41+jj//4} offen offset:{1024*(jj%4)} {ql.replace('+', ' ')}", 65 + 4 * jj, 67 + 4 * jj) for jj in range(8)], 4,
                  tagreg="s65", mask="0xfffffff", hook=up)
        a("v_xor_b32 v250, s65, v65")
        for jj in range(1, 8): a(f"v_bitop3_b32 v250, v{65+4*jj}, s65, v250 bitop3:0xbe")
        a("v_cmp_ne_u32 vcc, 0, v250\ns_cmp_eq_u64 vcc, 0\ns_cselect_b32 s11, 1, 0\ns_cbranch_scc1 L_qloc")
        a(up)
        a("L_qloc:\ns_nop 1\nv_mov_b32 v13, s30\nv_mov_b32 v15, s30")
    else:
        if noq != 1: a("buffer_store_dwordx4 v[12:15], v6, s[56:59], s40 offen " + qfl.replace("+", " "))
        if qdelay: a(f"s_sleep {qdelay}")
        if WDW == 2: wdload()
        if noq:
            pass
        elif maskpoll:
            poll_rows("L_p0", [(f"buffer_load_dwordx4 v[{64+4*jj}:{67+4*jj}], v6, s[56:59], s{41+jj//4} offen offset:{1024*(jj%4)} {ql.replace('+', ' ')}", 65 + 4 * jj, 67 + 4 * jj) for jj in range(8)], 4)
        else:
            poll("L_p0", [f"buffer_load_dwordx4 v[{128+4*jj}:{131+4*jj}], v6, s[56:59], s{41+jj//4} offen offset:{1024*(jj%4)} sc1" for jj in range(8)],
                 [129 + 2 * i for i in range(16)])
    stamp(2)
    def sum8(base, stride):
        for o in (0, 2):
            for (x, y) in ((0, 1), (2, 3), (4, 5), (6, 7), (0, 2), (4, 6), (0, 4)):
                a(f"v_add_f32 v{base+x*stride+o}, v{base+x*stride+o}, v{base+y*stride+o}")
    sum8(64, 4)
    a(f"v_cvt_pk_bf16_f32 v64, v64, v66\nv_lshlrev_b32 v20, 2, v1\nds_write_b32 v20, v64 offset:{QL}")
    if NB2F:
        a(f"v_mov_b32 v20, 1\nds_write_b32 v8, v20 offset:{QF}")
        a.fence()
        a(f"L_fg:\nds_read_b128 v[20:23], v8 offset:{FG}\ns_waitcnt lgkmcnt(0)\nv_and_b32 v20, v20, v21\nv_and_b32 v22, v22, v23\nv_and_b32 v20, v20, v22\nv_readfirstlane_b32 s31, v20")
        a("s_cmp_eq_u32 s31, 1\ns_cbranch_scc1 L_fg_ok\ns_sleep 2\ns_branch L_fg\nL_fg_ok:")
    else:
        a("s_waitcnt lgkmcnt(0)\ns_barrier")
    def tag4(v):
        for i in range(4): a(f"v_bfi_b32 v{v+i}, s61, v13, v{v+i}")
    a("s_mov_b32 s61, 0xff")
    red4(0, RED_G, 20); red4(0, RED_U, 28); a("s_waitcnt lgkmcnt(0)")
    for d, t in ((16, 20), (18, 28)):
        a(f"v_add_f32 v{d}, v{t}, v{t+2}\nv_add_f32 v{d+1}, v{t+1}, v{t+3}\nv_add_f32 v{t+4}, v{t+4}, v{t+6}\nv_add_f32 v{t+5}, v{t+5}, v{t+7}")
        a(f"v_add_f32 v{d}, v{d}, v{t+4}\nv_add_f32 v{d+1}, v{d+1}, v{t+5}")
    tag4(16)
    a("s_lshl_b32 s43, s2, 10\ns_add_u32 s40, s43, %d\ns_mov_b32 s62, -1\ns_mov_b32 s63, 0xffffff" % H0GU)
    a("s_mov_b64 exec, s[62:63]")
    if LOC:
        a("s_cmp_eq_u32 s11, 1\ns_cbranch_scc1 L_gs_l\nbuffer_store_dwordx4 v[16:19], v6, s[56:59], s40 offen sc1\ns_branch L_gs_e\nL_gs_l:\nbuffer_store_dwordx4 v[16:19], v6, s[56:59], s40 offen\nL_gs_e:")
    else:
        a("buffer_store_dwordx4 v[16:19], v6, s[56:59], s40 offen " + gufl.replace("+", " "))
    a("s_mov_b64 exec, -1")
    def ffn():
        if WDW == 0: wdload()
        a("s_lshl_b32 s31, s28, 13\ns_add_u32 s18, s31, %d\ns_add_u32 s19, s18, 4096" % H0GU)
        a("s_mov_b64 exec, s[62:63]")
        pollc("L_pg", [f"buffer_load_dwordx4 v[{64+4*n}:{67+4*n}], v6, s[56:59], s{18+n//4} offen offset:{1024*(n%4)} {gul.replace('+', ' ')}" for n in range(8)],
              list(range(64, 96)), sleep=50)
        stamp(3)
        for o in range(4):
            for (x, y) in ((0, 1), (2, 3), (4, 5), (6, 7), (0, 2), (4, 6), (0, 4)):
                a(f"v_add_f32 v{64+4*x+o}, v{64+4*x+o}, v{64+4*y+o}")
        for v in (64, 65, 66, 67): rbf(v)
        a("s_mov_b32 s16, 0x3d372713\ns_mov_b32 s17, 0xc0135761")
        for g, u in ((64, 66), (65, 67)):
            a(f"v_mul_f32 v20, v{g}, v{g}\nv_fma_f32 v20, v20, s16, 1.0\nv_mul_f32 v20, v20, v{g}\nv_mul_f32 v20, s17, v20\nv_exp_f32 v20, v20\nv_add_f32 v20, 1.0, v20\nv_rcp_f32 v20, v20\nv_mul_f32 v{g}, v{g}, v20")
            rbf(g)
            a(f"v_mul_f32 v{g}, v{g}, v{u}")
        a(f"v_cvt_pk_bf16_f32 v20, v64, v64\nv_cvt_pk_bf16_f32 v21, v65, v65\nds_write_b64 v9, v[20:21] offset:{HL}")
        a(f"v_lshl_add_u32 v20, v2, 2, v7\nds_read_b32 v56, v20 offset:{HL}\nds_read_b32 v57, v20 offset:{HL+256}\ns_waitcnt lgkmcnt(0)")
        buildA(0, 56, 0)
        for i in range(28):
            if i < 27: buildA((i + 1) & 1, 56 + (i + 1) // 16, (i + 1) % 16)
            mfma(52, i & 1, 128 + 4 * i, i == 0)
        tag4(52)
        if FW == 2:
            a("v_lshlrev_b32 v39, 5, v3\nv_lshl_add_u32 v39, v2, 4, v39\ns_lshl_b32 s31, s2, 9\ns_add_u32 s42, s31, %d" % H2F)
            a("s_mov_b64 exec, s[78:79]\nbuffer_store_dwordx4 v[52:55], v39, s[56:59], s42 offen sc1 nt\ns_mov_b64 exec, -1")
    if not GF: ffn()
    sh = GP.bit_length() - 1
    assert GP == 1 << sh
    a("v_lshlrev_b32 v50, 7, v1")
    a(f"s_mov_b32 s44, {G0}\ns_mov_b32 s45, {G0+GG}\ns_mov_b32 s46, {G0+GR}\ns_mov_b32 s47, 0\ns_mov_b32 s51, 0\ns_mov_b32 s52, 0\ns_mov_b32 s53, 0\ns_mov_b32 s54, 0")
    a("s_xor_b32 s55, s28, s29\ns_and_b32 s55, s55, 3")
    a("s_lshr_b32 s48, s2, 2\ns_lshl_b32 s48, s48, 7\ns_add_u32 s48, s48, %d\ns_mov_b32 s49, %d" % (PHI, PHI))
    a("s_lshr_b32 s50, s28, 2" if perm == 1 else "s_mov_b32 s50, s29")
    a("s_lshl_b32 s50, s50, 7\ns_add_u32 s50, s50, %d\ns_mov_b32 s60, %d" % (REF, REF))
    a("s_cmp_eq_u32 s2, 0\ns_cselect_b32 s45, s45, -1")
    a("s_mov_b32 s4, 0\ns_mov_b32 s5, 0\ns_mov_b32 s6, 0\ns_mov_b32 s7, 0\ns_mov_b32 s10, %d" % GF)
    if noex: a("s_mov_b32 s44, -1\ns_mov_b32 s45, -1\ns_mov_b32 s46, -1")
    a.fence()
    a("L_ctl:")
    a(f"ds_read_b128 v[20:23], v8 offset:{PH}\nds_read_b128 v[24:27], v8 offset:{PH+16}\ns_waitcnt lgkmcnt(0)")
    a("v_min_u32 v21, v21, v23\nv_min3_u32 v21, v21, v25, v27\nv_readfirstlane_b32 s31, v21")
    if GF: a(f"s_cmp_eq_u32 s10, -1\ns_cbranch_scc0 L_ctl_c")
    a(f"s_cmp_ge_u32 s31, {GEX}\ns_cbranch_scc1 L_ctl_end\nL_ctl_c:\ns_cmp_eq_u32 s31, s47\ns_cbranch_scc1 L_ctl_sleep\ns_mov_b32 s47, s31")
    a("v_sub_u32 v22, v22, v20\nv_sub_u32 v24, v24, v20\nv_sub_u32 v26, v26, v20\nv_add3_u32 v22, v22, v24, v26\nv_ashrrev_i32 v22, 2, v22\nv_add_u32 v12, v20, v22")
    if JD:
        a(f"v_readfirstlane_b32 s8, v12\ns_sub_u32 s9, s8, s5\ns_and_b32 s9, s9, s54\ns_mov_b32 s5, s4\ns_mov_b32 s4, s8")
        a(f"s_cmp_gt_i32 s9, {JD}\ns_cbranch_scc0 L_ctl_nj\ns_add_u32 s51, s51, s9\ns_add_u32 s6, s6, s9\ns_mov_b32 s5, s8\nL_ctl_nj:")
    a(f"s_cmp_lt_u32 s47, s44\ns_cbranch_scc1 L_ctl_g\ns_mov_b32 s6, 0\ns_add_u32 s44, s44, {GP}\ns_cmp_lg_u32 s55, 0\ns_cbranch_scc1 L_ctl_g")
    a("s_mov_b64 exec, 1\nbuffer_store_dwordx2 v[12:13], v8, s[56:59], s48 offen " + exs.replace("+", " ") + "\ns_mov_b64 exec, -1\ns_add_u32 s48, s48, 8192")
    a("L_ctl_g:")
    a("s_cmp_lt_u32 s47, s45\ns_cbranch_scc1 L_ctl_rd")
    a("buffer_load_dwordx2 v[20:21], v50, s[56:59], s49 offen " + exl.replace("+", " ") + "\ns_waitcnt vmcnt(0)")
    a("v_cmp_ne_u32 vcc, s30, v21\ns_cmp_lg_u64 vcc, 0\ns_cbranch_scc1 L_ctl_rd")
    a("v_sub_u32 v20, v20, v12")
    wave_reduce(20, 21, "v_add_u32")
    a("v_ashrrev_i32 v20, 6, v20\nv_add_u32 v14, v12, v20")
    a("s_mov_b64 exec, 0xff\nbuffer_store_dwordx2 v[14:15], v50, s[56:59], s60 offen " + exs.replace("+", " ") + "\ns_mov_b64 exec, -1")
    a(f"s_add_u32 s45, s45, {GP}\ns_add_u32 s49, s49, 8192\ns_add_u32 s60, s60, 1024")
    a.fence()
    a("L_ctl_rd:")
    a("s_cmp_lt_u32 s47, s46\ns_cbranch_scc1 L_ctl_up")
    a("s_mov_b64 exec, 1\nbuffer_load_dwordx2 v[28:29], v8, s[56:59], s50 offen " + exl.replace("+", " ") + "\ns_waitcnt vmcnt(0)\nv_readfirstlane_b32 s31, v29\nv_readfirstlane_b32 s64, v28\ns_mov_b64 exec, -1")
    a("s_cmp_lg_u32 s31, s30\ns_cbranch_scc1 L_ctl_up")
    a("s_add_u32 s64, s64, s6\ns_sub_u32 s52, s64, s51\ns_and_b32 s52, s52, s54")
    if MS: a("s_mov_b32 s9, s52\ns_min_i32 s52, s52, s7\ns_mov_b32 s7, s9")
    if not slope: a("s_mov_b32 s52, 0")
    a(f"s_mov_b32 s51, s64\ns_sub_u32 s53, s46, {GR + 1}\ns_mov_b32 s54, -1\ns_add_u32 s46, s46, {GP}\ns_add_u32 s50, s50, 1024")
    a("L_ctl_up:")
    a(f"s_sub_u32 s31, s47, s53\ns_mul_i32 s31, s31, s52\ns_ashr_i32 s31, s31, {sh}\ns_add_u32 s31, s31, s51")
    a(f"v_mov_b32 v30, s31\nv_mov_b32 v31, s54\nds_write_b64 v8, v[30:31] offset:{RF}")
    if GF:
        a("s_cmp_lt_u32 s47, s10\ns_cbranch_scc1 L_ctl_sleep\ns_mov_b32 s10, -1")
        ffn()
        a.fence()
    a(f"L_ctl_sleep:\ns_sleep {CSL}\ns_branch L_ctl")
    a("L_ctl_end:")
    a(f"ds_read_b128 v[44:47], v8 offset:{MX}\ns_waitcnt lgkmcnt(0)\nv_max_f32 v20, v44, v45\nv_max3_f32 v16, v20, v46, v47\ns_mov_b32 s31, {LOG2E}")
    for w in range(4): a(f"v_sub_f32 v{44+w}, v{44+w}, v16\nv_mul_f32 v{44+w}, s31, v{44+w}\nv_exp_f32 v{44+w}, v{44+w}")
    a("s_add_u32 s40, s43, %d\ns_lshl_b32 s31, s2, 9\ns_add_u32 s41, s31, %d\ns_add_u32 s42, s31, %d" % (H1, H2A, H2F))
    a("v_lshlrev_b32 v39, 5, v3\nv_lshl_add_u32 v39, v2, 4, v39")
    a("v_cmp_eq_u32 vcc, 32, v1\nv_mov_b32 v20, 2048\nv_cndmask_b32 v48, v6, v20, vcc\nv_cndmask_b32 v49, 0, v16, vcc\nv_mov_b32 v20, 0xff\nv_cndmask_b32 v51, v20, -1, vcc")
    a("s_mov_b32 s63, 1")
    a("v_lshrrev_b32 v36, 3, v1\nv_lshlrev_b32 v36, 12, v36\nv_lshl_add_u32 v36, v37, 4, v36")
    a("s_lshl_b32 s31, s29, 9\ns_lshl_b32 s44, s28, 7\ns_add_u32 s44, s44, s31\ns_add_u32 s44, s44, %d" % H2A)
    for i in range(1, 8): a(f"s_add_u32 s{44+i}, s44, {32768*i}")
    assert H2F == H2A + 4 * 32768
    a("v_lshlrev_b32 v40, 16, v10\nv_and_b32 v41, 0xffff0000, v10\nv_lshlrev_b32 v42, 16, v11\nv_and_b32 v43, 0xffff0000, v11")
    if LOC and PD:
        a("s_cmp_lg_u32 s11, 1\ns_cbranch_scc1 L_npd\nv_not_b32 v60, v13\nv_not_b32 v61, v13\nv_not_b32 v62, v13\nv_not_b32 v63, v13")
        a("s_mov_b32 s64, -1\ns_mov_b32 s65, 0xff\ns_mov_b64 exec, s[64:65]\nbuffer_store_dwordx4 v[60:63], v6, s[56:59], s40 offen\ns_mov_b64 exec, -1\nL_npd:")
    if PT:
        pf = "sc1" if PT == 1 else ""
        a(f"s_mov_b64 exec, s[62:63]\nbuffer_load_dwordx4 v[64:67], v6, s[56:59], s40 offen {pf}\ns_mov_b64 exec, s[78:79]\nbuffer_load_dwordx4 v[68:71], v6, s[56:59], s41 offen {pf}")
        if FW != 2: a(f"buffer_load_dwordx4 v[72:75], v6, s[56:59], s42 offen {pf}")
        a("s_mov_b64 exec, -1")
    if warm:
        a("s_getpc_b64 s[64:65]\nL_pc:\ns_sub_u32 s64, s64, L_pc-L_tail0\ns_subb_u32 s65, s65, 0")
        for i in range(warm): a(f"global_load_dwordx4 v[64:67], v6, s[64:65]\ns_add_u32 s64, s64, 1024\ns_addc_u32 s65, s65, 0")
        a("s_waitcnt vmcnt(0)")
    def xred(b):
        for i in range(4): a(f"v_add_f32 v{b+i}, v{b+i}, v{b+4+i}\nv_add_f32 v{b+8+i}, v{b+8+i}, v{b+12+i}")
        for i in range(4): a(f"v_add_f32 v{b+i}, v{b+i}, v{b+8+i}")
        for i in range(4): a(f"v_add_f32_dpp v{b+i}, v{b+i}, v{b+i} row_ror:8 row_mask:0xf bank_mask:0xf")
        for op in ("v_permlane16_swap_b32", "v_permlane32_swap_b32"):
            for i in range(4): a(f"v_mov_b32 v{b+4+i}, v{b+i}")
            for i in range(4): a(f"{op} v{b+i}, v{b+4+i}")
            for i in range(4): a(f"v_add_f32 v{b+i}, v{b+i}, v{b+4+i}")
        for i in range(4): rbf(b + i)
    def ffn_gather():
        pollc("L_pf", [f"buffer_load_dwordx4 v[{144+4*i}:{147+4*i}], v36, s[56:59], s{48+i} offen sc1" for i in range(4)], list(range(144, 160)), sleep=sl2)
        xred(144)
    if FW == 2:
        a("s_cmp_ge_u32 s28, 4\ns_cbranch_scc1 L_nf")
        ffn_gather()
        a.fence()
        a("L_nf:")
    if LP:
        a(f"s_add_u32 s12, s41, {LOFF}\ns_add_u32 s13, s42, {LOFF}\nv_add_u32 v59, {LOFF}, v36")
        a("v_not_b32 v60, v13\nv_not_b32 v61, v13\nv_not_b32 v62, v13\nv_not_b32 v63, v13")
        a("s_mov_b64 exec, s[78:79]\nbuffer_store_dwordx4 v[52:55], v39, s[56:59], s13 offen\nbuffer_store_dwordx4 v[60:63], v6, s[56:59], s12 offen\ns_mov_b64 exec, -1")
        a("s_mov_b32 s14, 0")
        a("s_barrier")
        stamp(4)
        a("s_mov_b64 exec, s[62:63]")
        for w in range(4): a(f"ds_read_b128 v[{20+4*w}:{23+4*w}], v48 offset:{RED_O+512*w}")
        a("s_waitcnt lgkmcnt(0)")
        a("v_mul_f32 v16, v20, v44\nv_fma_f32 v17, v21, v44, v49\nv_mul_f32 v18, v22, v44\nv_mul_f32 v19, v23, v44")
        for w in range(1, 4):
            for i in range(4): a(f"v_fmac_f32 v{16+i}, v{20+4*w+i}, v{44+w}")
        a("v_bfi_b32 v16, s61, v13, v16\nv_bfi_b32 v17, s61, v13, v17\nv_bfi_b32 v18, v51, v13, v18\nv_bfi_b32 v19, v51, v13, v19")
        a("buffer_store_dwordx4 v[16:19], v6, s[56:59], s40 offen sc1")
        a("s_cmp_ge_u32 s28, 4\ns_cbranch_scc1 L_b5")
        a("s_mov_b64 exec, s[78:79]\nbuffer_store_dwordx4 v[52:55], v39, s[56:59], s42 offen sc1\ns_mov_b64 exec, -1")
        pollc("L_lf", [f"buffer_load_dwordx4 v[{144+4*i}:{147+4*i}], v59, s[56:59], s{48+i} offen sc1" for i in range(4)], list(range(144, 160)), sleep=0, tries=1, fail="L_b5")
        xred(144)
        a("s_mov_b32 s14, 1")
        a.fence()
        a("L_b5:\ns_mov_b64 exec, s[78:79]")
        a("s_barrier")
        stamp(5)
        for w in range(4): a(f"ds_read_b128 v[{20+4*w}:{23+4*w}], v6 offset:{RED_A+512*w}")
        a("s_waitcnt lgkmcnt(0)")
        for i in range(4): a(f"v_add_f32 v{20+i}, v{20+i}, v{24+i}\nv_add_f32 v{28+i}, v{28+i}, v{32+i}")
        for i in range(4): a(f"v_add_f32 v{60+i}, v{20+i}, v{28+i}")
        tag4(60)
        a("buffer_store_dwordx4 v[60:63], v6, s[56:59], s12 offen")
        a("s_cmp_lt_u32 s28, 4\ns_cbranch_scc1 L_cons")
        a("buffer_store_dwordx4 v[52:55], v39, s[56:59], s42 offen sc1")
        if diag: stamp(6); a("s_branch L_noep")
        else: a("s_branch L_noep" if spin else "s_endpgm")
        a("L_cons:\ns_mov_b64 exec, -1")
        a("s_cmp_eq_u32 s14, 0\ns_cbranch_scc1 L_fbf")
        pollc("L_la", [f"buffer_load_dwordx4 v[{128+4*i}:{131+4*i}], v59, s[56:59], s{44+i} offen sc1" for i in range(4)], list(range(128, 144)), sleep=lsl, tries=LN, fail="L_fba")
        a("s_branch L_fin")
        a("L_fbf:")
        ffn_gather()
        a.fence()
        a("L_fba:")
        pollc("L_p2", [f"buffer_load_dwordx4 v[{128+4*i}:{131+4*i}], v36, s[56:59], s{44+i} offen sc1" for i in range(4)], list(range(128, 144)), sleep=sl2)
        a("L_fin:")
    else:
        tf = tfl.replace("+", " ")
        a("s_barrier")
        stamp(4)
        a("s_mov_b64 exec, s[62:63]")
        for w in range(4): a(f"ds_read_b128 v[{20+4*w}:{23+4*w}], v48 offset:{RED_O+512*w}")
        a("s_waitcnt lgkmcnt(0)")
        a("v_mul_f32 v16, v20, v44\nv_fma_f32 v17, v21, v44, v49\nv_mul_f32 v18, v22, v44\nv_mul_f32 v19, v23, v44")
        for w in range(1, 4):
            for i in range(4): a(f"v_fmac_f32 v{16+i}, v{20+4*w+i}, v{44+w}")
        a("v_bfi_b32 v16, s61, v13, v16\nv_bfi_b32 v17, s61, v13, v17\nv_bfi_b32 v18, v51, v13, v18\nv_bfi_b32 v19, v51, v13, v19")
        if LOC:
            a("s_cmp_eq_u32 s11, 1\ns_cbranch_scc1 L_hs_l\nbuffer_store_dwordx4 v[16:19], v6, s[56:59], s40 offen sc1\ns_branch L_hs_e\nL_hs_l:\nbuffer_store_dwordx4 v[16:19], v6, s[56:59], s40 offen\nL_hs_e:")
        else:
            a("buffer_store_dwordx4 v[16:19], v6, s[56:59], s40 offen " + tf)
        a("s_mov_b64 exec, s[78:79]")
        if FW == 0: a(f"buffer_store_dwordx4 v[52:55], v39, s[56:59], s42 offen {tf}")
        a("s_barrier")
        stamp(5)
        for w in range(4): a(f"ds_read_b128 v[{20+4*w}:{23+4*w}], v6 offset:{RED_A+512*w}")
        if FW == 1: a(f"buffer_store_dwordx4 v[52:55], v39, s[56:59], s42 offen {tf}")
        a("s_waitcnt lgkmcnt(0)")
        for i in range(4): a(f"v_add_f32 v{20+i}, v{20+i}, v{24+i}\nv_add_f32 v{28+i}, v{28+i}, v{32+i}")
        for i in range(4): a(f"v_add_f32 v{60+i}, v{20+i}, v{28+i}")
        tag4(60)
        a(f"buffer_store_dwordx4 v[60:63], v6, s[56:59], s41 offen {tf}\ns_mov_b64 exec, -1")
        if diag:
            a("s_cmp_lt_u32 s28, 4\ns_cbranch_scc1 L_cons"); stamp(6); a("s_branch L_noep\nL_cons:")
        else:
            a("s_cmp_ge_u32 s28, 4\ns_cbranch_scc1 " + ("L_noep" if spin else "L_exit"))
        if FW != 2: ffn_gather()
        pollc("L_p2", [f"buffer_load_dwordx4 v[{128+4*i}:{131+4*i}], v36, s[56:59], s{44+i} offen sc1" for i in range(4)], list(range(128, 144)), sleep=sl2)
    stamp(6)
    xred(128)
    for i in range(4): a(f"v_add_f32 v{128+i}, v{128+i}, v{40+i}")
    for i in range(4): rbf(128 + i)
    for i in range(4): a(f"v_add_f32 v{128+i}, v{128+i}, v{144+i}")
    a("v_cvt_pk_bf16_f32 v20, v128, v129\nv_cvt_pk_bf16_f32 v21, v130, v131")
    a("s_mov_b64 exec, 0xff\nbuffer_store_dwordx2 v[20:21], v38, s[68:71], s75 offen\ns_mov_b64 exec, 1")
    a("s_cmp_lg_u32 s2, 0\ns_cbranch_scc1 L_noep\nbuffer_store_dword v13, v8, s[56:59], 0 offen sc1\nL_noep:")
    if spin:
        if spinwg >= 0: a(f"s_cmp_lg_u32 s2, {spinwg}\ns_cbranch_scc1 L_exit")
        a(f"L_spin:\ns_memrealtime s[64:65]\ns_waitcnt lgkmcnt(0)\ns_sub_u32 s64, s64, s66\ns_cmp_lt_u32 s64, {spin}\ns_cbranch_scc1 L_spin")
    if diag:
        a("s_waitcnt vmcnt(0)")
        stamp(7)
        a("s_mov_b32 s31, 64")
        a("L_stamps:")
        a("s_waitcnt lgkmcnt(0)\ns_mov_b64 exec, 1")
        if dbgout:
            a("v_mov_b32 v8, 0\ns_cmp_lg_u32 s31, 0\ns_cbranch_scc1 L_dbgc")
            for n, k in enumerate((0, 2, 3, 4, 5)):
                a(f"v_mov_b32 v12, s{84+2*k}\nv_not_b32 v13, v12\nglobal_atomic_umax v8, v12, s[24:25] offset:{8*n}\nglobal_atomic_umax v8, v13, s[24:25] offset:{8*n+4}")
            a("s_endpgm\nL_dbgc:")
            for n, k in enumerate((2, 6, 7)):
                a(f"v_mov_b32 v12, s{84+2*k}\nv_not_b32 v13, v12\nglobal_atomic_umax v8, v12, s[24:25] offset:{40+8*n}\nglobal_atomic_umax v8, v13, s[24:25] offset:{44+8*n}")
        else:
            a("s_add_u32 s26, s26, 0x8000000\ns_addc_u32 s27, s27, 0\ns_lshl_b32 s74, s2, 7\ns_add_u32 s74, s74, s31\nv_mov_b32 v8, s74")
            for q in range(4):
                for e in range(4): a(f"v_mov_b32 v{12+e}, s{84+4*q+e}")
                a(f"global_store_dwordx4 v8, v[12:15], s[26:27] offset:{16*q}")
                a("s_nop 2")
    a("L_exit:\ns_endpgm")

    out = HDR
    out += "; Override launch geometry by editing the next line (default: block=256,\n"
    out += f"; @launch grid=(256,1,1) block=(320,1,1) lds={LDS_BYTES}\n"
    out += f'.amdgcn_target "amdgcn-amd-amdhsa--gfx950"\n.text\n.globl {NAME}\n.p2align 8\n.type {NAME},@function\n{NAME}:\n'
    out += a.text()
    out += f""".section .rodata,"a"
.p2align 6
.amdhsa_kernel {NAME}
  .amdhsa_next_free_vgpr 256
  .amdhsa_next_free_sgpr 102
  .amdhsa_accum_offset 256
  .amdhsa_group_segment_fixed_size 0
  .amdhsa_kernarg_size 96
  .amdhsa_user_sgpr_count 2
  .amdhsa_user_sgpr_kernarg_segment_ptr 1
  .amdhsa_system_sgpr_workgroup_id_x 1
  .amdhsa_float_denorm_mode_32 3
.end_amdhsa_kernel
"""
    return out, LDS_BYTES

if __name__ == "__main__":
    kw = {}
    for x in sys.argv[2:]:
        k, v = x.split("=")
        try: v = int(v)
        except ValueError: pass
        kw[k] = v
    s, lds = gen(**kw)
    open(sys.argv[1], "w").write(s)
    print("lds", lds)
```

```python
import sys
from asmlib import Asm

NAME = "parallel_sum__mha_block_cached__glu_gated_geglu__decode_kernel"
HDR = open("parallel_sum__mha_block_cached__glu_gated_geglu__decode.s.ref").read().split("; Override launch")[0]

H0Q, H0GU, H1, H2A, H2F = 0x1000, 0x50000, 0x90000, 0xD0000, 0xF0000
LOFF = 0x40000
PHI, REF = 0x1D0000, 0x1F0000
WS_BYTES = 0x200000
SC = 0
RED_Q, RED_G, RED_U, RED_A, RED_O, RED_L = [32768 + 2048 * i for i in range(6)]
QL = 32768 + 12288
HL = QL + 256
MX = HL + 1024
LS = MX + 16
FL = LS + 16
FG = FL + 16
QF = FG + 16
RF = QF + 16
PH = RF + 16
LDS_BYTES = PH + 32

LOG2E = 0x3fb8aa3b
SCALE = 0x3db504f3

def gen(diag=False, GA=0, TL=0, NREP=8, RP=0, NREF=64, GP2=0, skipw='', HP=0, gap=2, T4=0, L4=2, LOC=1, h1l='sc1+nt', PD=1, QTO=8, fakex=0, LP=0, LN=16, lsl=0, gul='sc1', ql='sc1', exs='sc1', exl='sc1', WDW=0, CP=0, NB2F=1, GF=6, touch=0, DS0=0, KE=0, JD=0, MS=0, PT=0, PP=0, FW=0, KB=0, NBG=0, DB=12, MAP='rrww01234Bjjj', XK=0, IL=0, WI=1, qdelay=0, perm=0, qfl='sc1', tfl='sc1', WDF=3, warm=0, gufl='sc1+nt', nogu=0, noq=0, gudelay=0, spin=0, spinwg=-1, G0=4, GP=8, GG=2, GR=4, slope=1, noex=0, NWT=8, CSL=8, GEX=60, fixed=0, DL='5', TH='', T0=200, TAU=220, DT=5, early=4, dbgout=0, ser=0, maskpoll=1, sl1=1, sl2=1, D=8, DS=8, D2=0, NB2=0, pol_w="nt", pol_gu="nt", pol_kv="nt"):
    a = Asm()
    def stamp(i, mode=1):
        if diag == mode or (diag and i in (0, 7)) or (diag and incomm[0]):
            a(f"s_memrealtime s[{84+2*i}:{85+2*i}]")
    incomm = [False]
    def series(k):
        if not ser: return
        if k == 0: a("s_memrealtime s[100:101]")
        if k == 5: a("s_waitcnt lgkmcnt(0)\ns_mov_b32 m0, s71\ns_nop 0\nv_writelane_b32 v255, s100, m0\ns_add_u32 s71, s71, 1")
    def srd(n, lo, hi, size):
        a(f"s_mov_b32 s{n}, {lo}\ns_mov_b32 s{n+1}, {hi}\ns_mov_b32 s{n+2}, {size}\ns_mov_b32 s{n+3}, 0x20000")
    def wave_reduce(v, t, op):
        for r in (8, 4, 2, 1):
            a(f"{op}_dpp v{v}, v{v}, v{v} row_ror:{r} row_mask:0xf bank_mask:0xf")
        a(f"v_mov_b32 v{t}, v{v}\nv_permlane16_swap_b32 v{v}, v{t}\n{op} v{v}, v{v}, v{t}")
        a(f"v_mov_b32 v{t}, v{v}\nv_permlane32_swap_b32 v{v}, v{t}\n{op} v{v}, v{v}, v{t}")
    def rbf(v):
        a(f"v_cvt_pk_bf16_f32 v{v}, v{v}, v{v}\nv_and_b32 v{v}, 0xffff0000, v{v}")
    def buildA(buf, P, c):
        base = 24 + 4 * buf
        for t in range(4):
            a(f"v_and_b32_dpp v{base+t}, v{P}, v{120+t} row_newbcast:{c} row_mask:0xf bank_mask:0xf")
    def mfma(acc, buf, breg, first):
        base = 24 + 4 * buf
        a(f"v_mfma_f32_16x16x32_bf16 v[{acc}:{acc+3}], v[{base}:{base+3}], v[{breg}:{breg+3}], " + ("0" if first else f"v[{acc}:{acc+3}]"))
    def writeD(acc, off):
        a(f"s_mov_b64 exec, s[78:79]\nds_write_b128 v225, v[{acc}:{acc+3}] offset:{off}\ns_mov_b64 exec, -1")
    def poll(label, loads, tagregs, acc=250, t1=251, t2=252, sleep=1):
        a.fence()
        a(f"s_mov_b32 s77, 0x100000")
        a(f"{label}:")
        for l in loads: a(l)
        a("s_waitcnt vmcnt(0)")
        a(f"v_xor_b32 v{acc}, s30, v{tagregs[0]}")
        rest = tagregs[1:]
        while len(rest) >= 2:
            a(f"v_xor_b32 v{t1}, s30, v{rest[0]}\nv_xor_b32 v{t2}, s30, v{rest[1]}\nv_or3_b32 v{acc}, v{acc}, v{t1}, v{t2}")
            rest = rest[2:]
        if rest:
            a(f"v_xor_b32 v{t1}, s30, v{rest[0]}\nv_or_b32 v{acc}, v{acc}, v{t1}")
        a(f"v_cmp_ne_u32 vcc, 0, v{acc}")
        a(f"s_cmp_eq_u64 vcc, 0\ns_cbranch_scc1 {label}_ok")
        if maskpoll: a("s_mov_b64 exec, vcc")
        a(f"s_sub_u32 s77, s77, 1\ns_cmp_eq_u32 s77, 0\ns_cbranch_scc1 {label}_ok\ns_sleep {sleep}\ns_branch {label}")
        a(f"{label}_ok:")
        a("s_mov_b64 exec, -1")
    def pollc(label, loads, regs, full=(), acc=250, sleep=1, tries=0x100000, fail=None):
        a.fence()
        a(f"s_mov_b32 s77, {tries}")
        a(f"{label}:")
        for l in loads: a(l)
        a("s_waitcnt vmcnt(0)")
        a(f"v_xor_b32 v{acc}, s30, v{regs[0]}")
        for r in regs[1:]: a(f"v_bitop3_b32 v{acc}, v{r}, s30, v{acc} bitop3:0xbe")
        a(f"v_and_b32 v{acc}, 0xff, v{acc}")
        for r in full: a(f"v_bitop3_b32 v{acc}, v{r}, s30, v{acc} bitop3:0xbe")
        a(f"v_cmp_ne_u32 vcc, 0, v{acc}")
        a(f"s_cmp_eq_u64 vcc, 0\ns_cbranch_scc1 {label}_ok")
        a(f"s_sub_u32 s77, s77, 1\ns_cmp_eq_u32 s77, 0\ns_cbranch_scc1 {fail or label + '_ok'}")
        if sleep: a(f"s_sleep {sleep}")
        a(f"s_branch {label}")
        a(f"{label}_ok:")
        a("s_mov_b64 exec, -1")
    def pollp(label, mk, setA, setB, nlow, acc=250, gap=2):
        def check(regs):
            a(f"v_xor_b32 v{acc}, s30, v{regs[0]}")
            for r in regs[1:nlow]: a(f"v_bitop3_b32 v{acc}, v{r}, s30, v{acc} bitop3:0xbe")
            a(f"v_and_b32 v{acc}, 0xff, v{acc}")
            for r in regs[nlow:]: a(f"v_bitop3_b32 v{acc}, v{r}, s30, v{acc} bitop3:0xbe")
            a(f"v_cmp_ne_u32 vcc, 0, v{acc}\ns_cmp_eq_u64 vcc, 0")
        n = len(mk(setA))
        a.fence()
        a("s_mov_b32 s77, 0x100000")
        for l in mk(setA): a(l)
        a(f"s_sleep {gap}")
        a(f"{label}:")
        for l in mk(setB): a(l)
        a(f"s_waitcnt vmcnt({n})")
        check(setA)
        a(f"s_cbranch_scc1 {label}_ok")
        for l in mk(setA): a(l)
        a(f"s_waitcnt vmcnt({n})")
        check(setB)
        a(f"s_cbranch_scc1 {label}_b")
        a(f"s_sub_u32 s77, s77, 1\ns_cmp_lg_u32 s77, 0\ns_cbranch_scc1 {label}")
        a(f"{label}_b:")
        return
    def masks():
        a("v_and_b32 v12, 1, v3\nv_lshrrev_b32 v13, 1, v3\nv_cmp_eq_u32 vcc, 1, v12\nv_mov_b32 v14, 0xffff\nv_mov_b32 v15, 0xffff0000\nv_cndmask_b32 v14, v14, v15, vcc")
        for t in range(4):
            a(f"v_cmp_eq_u32 vcc, {t}, v13\nv_cndmask_b32 v{120+t}, 0, v14, vcc")
    def poll_rows(label, loads, sbase, sleep=1, tagreg="s30", mask=None, hook=None):
        a.fence()
        n = len(loads)
        a(f"s_mov_b32 s77, 0x100000\ns_mov_b32 s76, {(1 << n) - 1}")
        a(f"{label}:")
        for i, (l, _, _) in enumerate(loads):
            a(f"s_bitcmp1_b32 s76, {i}\ns_cbranch_scc0 {label}_s{i}")
            a(l)
            a(f"{label}_s{i}:")
        a("s_waitcnt vmcnt(0)")
        for i, (_, ta, tb) in enumerate(loads):
            a(f"v_xor_b32 v250, {tagreg}, v{ta}\nv_bitop3_b32 v250, v{tb}, {tagreg}, v250 bitop3:0xbe")
            if mask: a(f"v_and_b32 v250, {mask}, v250")
            a(f"v_cmp_ne_u32 s[{sbase+2*i}:{sbase+2*i+1}], 0, v250")
        a("s_mov_b32 s76, 0")
        for i in range(n):
            a(f"s_cmp_lg_u64 s[{sbase+2*i}:{sbase+2*i+1}], 0\ns_cselect_b32 s74, {1 << i}, 0\ns_or_b32 s76, s76, s74")
        a(f"s_cmp_eq_u32 s76, 0\ns_cbranch_scc1 {label}_ok")
        if hook:
            a(f"s_cmp_lg_u32 s77, {0x100000 - QTO}\ns_cbranch_scc1 {label}_nh\n{hook}\n{label}_nh:")
        a(f"s_sub_u32 s77, s77, 1\ns_cmp_eq_u32 s77, 0\ns_cbranch_scc1 {label}_ok\ns_sleep {sleep}\ns_branch {label}")
        a(f"{label}_ok:")

    a("s_cmp_ge_u32 s2, 256\ns_cbranch_scc1 L_exit")
    stamp(0)
    a("s_memrealtime s[66:67]")
    a("s_load_dwordx16 s[4:19], s[0:1], 0\ns_load_dwordx8 s[20:27], s[0:1], 64")
    a("v_lshrrev_b32 v5, 6, v0\nv_and_b32 v1, 63, v0\nv_readfirstlane_b32 s3, v5")
    a("v_lshrrev_b32 v2, 4, v1\nv_and_b32 v3, 15, v1")
    if perm == 1: a("s_and_b32 s28, s2, 7\ns_lshl_b32 s28, s28, 5\ns_lshr_b32 s2, s2, 3\ns_add_u32 s2, s2, s28")
    a("s_lshr_b32 s28, s2, 3\ns_and_b32 s29, s2, 7")
    a("s_mov_b32 s78, -1\ns_mov_b32 s79, 0")
    a("v_lshlrev_b32 v6, 4, v1")
    a("v_lshlrev_b32 v7, 4, v3")
    a("s_lshl_b32 s74, s29, 2\ns_add_u32 s74, s74, s3\ns_lshl_b32 s74, s74, 5")
    a("s_waitcnt lgkmcnt(0)")
    stamp(1, 2)
    a("s_load_dword s30, s[26:27], 0")
    srd(52, "s4", "s5", 2048)
    srd(56, "s26", "s27", WS_BYTES)
    a("s_cmp_eq_u32 s3, 4\ns_cbranch_scc1 L_comm")

    a("buffer_load_dwordx4 v[96:99], v6, s[52:55], 0 offen\nbuffer_load_dwordx4 v[100:103], v6, s[52:55], 0 offen offset:1024")
    a("v_and_b32 v8, 7, v3\nv_lshl_add_u32 v8, v8, 2, v2\nv_lshlrev_b32 v8, 1, v8\ns_lshl_b32 s75, s74, 1")
    a("buffer_load_ushort v9, v8, s[52:55], s75 offen")
    srd(40, "s10", "s11", 0 if "q" in skipw else 1024 * 8192)
    a("v_lshl_add_u32 v10, v2, 13, v7")
    a("s_lshl_b32 s75, s74, 13\ns_lshl_b32 s76, s28, 8\ns_add_u32 s75, s75, s76")
    for i in range(8):
        a(f"buffer_load_dwordx4 v[{128+4*i}:{131+4*i}], v10, s[40:43], s75 offen {pol_w}")
        if i < 7: a("s_add_u32 s75, s75, 32768")
    srd(44, "s16", "s17", 0 if "g" in skipw else 1024 * 7168)
    srd(48, "s18", "s19", 0 if "g" in skipw else 1024 * 7168)
    a("v_mul_u32_u24 v11, 7168, v2\nv_add_u32 v11, v11, v7")
    a("v_cmp_gt_u32 vcc, 14, v3\nv_mov_b32 v12, 0x80000000\nv_cndmask_b32 v11, v12, v11, vcc")
    a("s_mul_i32 s76, s74, 7168\ns_mul_i32 s31, s28, 224\ns_add_u32 s76, s76, s31\ns_mov_b32 s75, s76")
    def gload(i):
        a(f"buffer_load_dwordx4 v[{160+4*i}:{163+4*i}], v11, s[44:47], s75 offen {pol_gu}\ns_add_u32 s75, s75, {4*7168}")
    def uload(i):
        a(f"buffer_load_dwordx4 v[{192+4*i}:{195+4*i}], v11, s[48:51], s76 offen {pol_gu}\ns_add_u32 s76, s76, {4*7168}")
    a("s_barrier")
    pos = {"r": [], "w": [], "n": [0] * 5, "j": [], "b": []}
    bit = 8
    for ch in str(MAP).replace("B", "bbbb"):
        if ch.isdigit(): pos["n"][int(ch)] = bit
        else: pos[ch].append(bit)
        bit += 1
    assert bit == 24 and len(pos["w"]) == 2 and len(pos["r"]) == 2 and len(pos["j"]) == 3 and len(set(pos["n"])) == 5 and len(pos["b"]) == 4
    maskB = sum(1 << b for b in pos["b"])
    contig = pos["b"][3] - pos["b"][0] == 3
    def spread(sreg, bits, dst):
        a(f"s_mov_b32 {dst}, 0")
        for i, b in enumerate(bits):
            a(f"s_bfe_u32 s38, {sreg}, {(1 << 16) | i}\ns_lshl_b32 s38, s38, {b}\ns_or_b32 {dst}, {dst}, s38")
    spread("s29", pos["j"], "s39")
    a("s_lshl_b32 s31, s28, 24\ns_add_u32 s31, s31, s39\ns_sub_u32 s34, 0x1000000, s39")
    a("s_add_u32 s32, s6, s31\ns_addc_u32 s33, s7, 0\ns_mov_b32 s35, 0x20000")
    a("s_add_u32 s36, s8, s31\ns_addc_u32 s37, s9, 0")
    spread("s3", pos["w"], "s39")
    a(f"v_and_b32 v4, 1, v2\nv_lshlrev_b32 v4, {pos['r'][0]}, v4\nv_lshrrev_b32 v5, 1, v2\nv_lshl_add_u32 v4, v5, {pos['r'][1]}, v4\nv_add3_u32 v4, v4, s39, v7")
    if XK == 1: a("s_and_b32 s60, s2, 31")
    if XK == 2: a("s_mov_b32 s60, s28")
    if XK == 3: a("s_lshl_b32 s60, s29, 2")
    if XK == 4: a("s_lshl_b32 s60, s29, 2\ns_xor_b32 s60, s60, s28")
    if XK == 5: a("s_mul_i32 s60, s2, 0x9e3779b1\ns_lshr_b32 s60, s60, 27")
    if XK == 6: a("s_lshl_b32 s60, s28, 2\ns_and_b32 s60, s60, 28")
    if XK == 7: a("s_and_b32 s60, s28, 28")
    if XK == 8: a("s_and_b32 s60, s28, 3")
    if XK == 9: a("s_lshr_b32 s60, s28, 3")
    if XK == 10: a("s_mul_i32 s60, s28, 0x9e3779b1\ns_lshr_b32 s60, s60, 27")
    if XK == 11: a("s_mov_b32 s60, s3")
    if XK == 12: a("s_and_b32 s60, s29, 1\ns_lshl_b32 s60, s60, 1\ns_xor_b32 s60, s60, s3")
    if XK:
        spread("s60", pos["n"], "s61")
    fn = [sum(((n >> i) & 1) << b for i, b in enumerate(pos["n"])) for n in range(32)] + [1 << pos["b"][0]]
    a("s_mov_b32 s72, 0")
    if XK: a("s_mov_b32 s60, s61")
    if ser: a("s_mov_b32 s71, 0\nv_mov_b32 v255, 0")
    masks()
    a("v_cmp_eq_u32 s[82:83], 1, v12\nv_and_b32 v13, 1, v13\nv_cmp_eq_u32 s[80:81], 1, v13")
    a("s_lshl_b32 s31, s3, 9\nv_lshlrev_b32 v225, 5, v3\nv_lshl_add_u32 v225, v2, 4, v225\nv_add_u32 v225, s31, v225")
    a("s_lshl_b32 s31, s3, 13\nv_lshlrev_b32 v224, 2, v1\nv_add_u32 v224, s31, v224")
    a("s_waitcnt vmcnt(8)")
    stamp(2, 2)
    for i in range(early): gload(i)
    for k in range(8):
        a(f"v_lshlrev_b32 v{104+2*k}, 16, v{96+k}\nv_and_b32 v{105+2*k}, 0xffff0000, v{96+k}")
    a("v_add_f32 v12, v104, v105\nv_add_f32 v13, v106, v107\nv_add_f32 v14, v108, v109\nv_add_f32 v15, v110, v111")
    a("v_add_f32 v16, v112, v113\nv_add_f32 v17, v114, v115\nv_add_f32 v18, v116, v117\nv_add_f32 v19, v118, v119")
    a("v_add_f32 v12, v12, v13\nv_add_f32 v14, v14, v15\nv_add_f32 v16, v16, v17\nv_add_f32 v18, v18, v19")
    a("v_add_f32 v12, v12, v14\nv_add_f32 v16, v16, v18\nv_add_f32 v12, v12, v16")
    wave_reduce(12, 13, "v_add_f32")
    a("v_mul_f32 v12, 0x3a800000, v12")
    for k in range(16):
        a(f"v_sub_f32 v{104+k}, v{104+k}, v12")
    a("v_mul_f32 v14, v104, v104\nv_mul_f32 v15, v105, v105\nv_mul_f32 v16, v106, v106\nv_mul_f32 v17, v107, v107")
    for k in range(4, 16):
        a(f"v_fmac_f32 v{14+k%4}, v{104+k}, v{104+k}")
    a("v_add_f32 v14, v14, v15\nv_add_f32 v16, v16, v17\nv_add_f32 v14, v14, v16")
    wave_reduce(14, 13, "v_add_f32")
    a("v_mul_f32 v14, 0x3a800000, v14")
    rbf(14); rbf(12)
    a("v_add_f32 v14, 0x3727c5ac, v14")
    rbf(14)
    a("v_sqrt_f32 v14, v14")
    rbf(14)
    a("v_rcp_f32 v14, v14\nv_lshlrev_b32 v9, 16, v9\nv_sub_f32 v9, v9, v12")
    rbf(9)
    a("v_mul_f32 v9, v9, v14\nv_cvt_pk_bf16_f32 v124, v9, v9")
    stamp(3, 2)
    def stage1(acc, wbase):
        buildA(0, 124, 0)
        for i in range(8):
            if i < 7: buildA((i + 1) & 1, 124, i + 1)
            mfma(acc, i & 1, wbase + 4 * i, i == 0)
    a(f"s_waitcnt vmcnt({early})")
    stamp(4, 2)
    for i in range(early, 8): gload(i)
    stage1(12, 128)
    writeD(12, RED_Q)
    a(f"s_lshl_b32 s31, s3, 2\nv_mov_b32 v16, s31\nv_mov_b32 v17, 1\nds_write_b32 v16, v17 offset:{FL}")
    stamp(1); stamp(5, 2)
    def kslot(n):
        n %= 32
        return 32 + 4 * n if n < 16 else 128 + 4 * (n - 16)
    slot_of = {kslot(n): n for n in range(32)}
    def issueS(reg):
        n = slot_of[reg]
        inc = (fn[n + 1] - fn[n]) & 0xffffffff
        if n == 31 and not contig:
            assert not XK
            a(f"buffer_load_dwordx4 v[{reg}:{reg+3}], v4, s[32:35], s72 offen {pol_kv}\ns_or_b32 s72, s72, {(~maskB) & 0xffffffff}\ns_add_u32 s72, s72, 1\ns_and_b32 s72, s72, {maskB}")
            return
        if XK:
            a(f"buffer_load_dwordx4 v[{reg}:{reg+3}], v4, s[32:35], s60 offen {pol_kv}\ns_add_u32 s72, s72, {inc}\ns_xor_b32 s60, s72, s61")
        else:
            a(f"buffer_load_dwordx4 v[{reg}:{reg+3}], v4, s[32:35], s72 offen {pol_kv}\ns_add_u32 s72, s72, {inc}")
    WO0 = 192
    def wsetup():
        srd(40, "s12", "s13", 0 if "o" in skipw else 4096 * 2048)
        a("v_lshl_add_u32 v240, v2, 14, v7")
        a("s_lshl_b32 s31, s28, 2\ns_add_u32 s31, s31, s3\ns_lshl_b32 s75, s31, 16\ns_lshl_b32 s31, s29, 8\ns_add_u32 s75, s75, s31")
        a("v_and_b32 v232, 7, v3\nv_lshrrev_b32 v233, 3, v3\ns_lshl_b32 s31, s28, 13\ns_add_u32 s31, s31, %d" % H1)
        a("v_lshlrev_b32 v232, 10, v232\nv_add_u32 v232, s31, v232")
        a("v_lshlrev_b32 v233, 4, v233\nv_lshl_add_u32 v233, v2, 5, v233\ns_lshl_b32 s31, s3, 7\nv_add3_u32 v233, v233, s31, v232")
        a("s_add_u32 s30, s30, 1")
    wl_all = []
    for t in range(8):
        wl_all.append(f"buffer_load_dwordx4 v[{WO0+4*t}:{WO0+3+4*t}], v240, s[40:43], s75 offen {pol_w}\ns_add_u32 s75, s75, 2048")
    assert DS <= 8
    stamp(1, 3)
    for i in range(8):
        a(f"s_waitcnt vmcnt({DS-1})")
        uload(i)
    stamp(2, 3)
    for n in range(32):
        a(f"s_waitcnt vmcnt({(DS0 if (DS0 and n >= 16) else DS)-1})")
        issueS(kslot(n))
        if n % 8 == 7: stamp(3 + n // 8, 3)
        if n == 0:
            stage1(16, 160)
        if n == DS - 1:
            stage1(20, 192)
            writeD(16, RED_G)
            writeD(20, RED_U)
            if NB2F: a(f"s_lshl_b32 s31, s3, 2\nv_mov_b32 v16, s31\nv_mov_b32 v17, 1\nds_write_b32 v16, v17 offset:{FG}")
        if n == 15:
            a("s_waitcnt lgkmcnt(0)")
            wsetup()
            for x in wl_all[:8 - NWT]:
                a(f"s_waitcnt vmcnt({DS-1})"); a(x)
    a("v_mov_b32 v126, 0xff800000\nv_mov_b32 v127, 0\ns_mov_b32 s76, %d" % SCALE)
    stamp(6, 2)
    if NB2F:
        a("v_mov_b32 v247, 0")
        a.fence()
        a(f"L_qw:\nds_read_b32 v16, v247 offset:{QF}\nds_read_b128 v[8:11], v7 offset:{QL}\ns_waitcnt lgkmcnt(0)\nv_readfirstlane_b32 s31, v16")
        a("s_cmp_eq_u32 s31, 1\ns_cbranch_scc1 L_qw_ok\ns_sleep 1\ns_branch L_qw\nL_qw_ok:")
        stamp(2)
    else:
        a("s_waitcnt lgkmcnt(0)\ns_barrier")
        stamp(2)
        a(f"ds_read_b128 v[8:11], v7 offset:{QL}\ns_waitcnt lgkmcnt(0)")
    levels = [float(x.replace("h", ".5").replace("q", ".25").replace("t", ".75")) for x in str(DL).split("-")]
    def wv(d, k):
        f = d - int(d)
        up = (f == 0.5 and k % 2 == 1) or (f == 0.25 and k % 4 == 3) or (f == 0.75 and k % 4 != 0)
        return int(d) - 1 + (1 if up else 0)
    ths = [int(x) for x in str(TH).split("/")] if TH != "" else []
    assert len(ths) == len(levels) - 1
    a(f"s_mov_b32 s70, {len([t for t in ths if t < 0])}\ns_mov_b32 s69, 0\ns_mov_b32 s67, 0\ns_add_u32 s66, s66, {T0}")
    a("s_lshl_b32 s31, s3, 3\nv_mov_b32 v246, s31\nv_mov_b32 v247, 0")
    def control(k):
        if k == 7: a(f"s_memrealtime s[64:65]\nds_read_b64 v[242:243], v247 offset:{RF}")
        if k == 12:
            a("s_waitcnt lgkmcnt(0)\nv_readfirstlane_b32 s62, v242\nv_readfirstlane_b32 s63, v243")
            a("s_sub_u32 s68, s64, s69\ns_add_u32 s69, s69, %d\ns_add_u32 s67, s67, 1" % TAU)
            a(f"v_mov_b32 v244, s68\nv_mov_b32 v245, s67\nds_write_b64 v246, v[244:245] offset:{PH}")
            if fixed: a("s_sub_u32 s68, s68, s66")
            else: a("s_sub_u32 s68, s68, s62\ns_and_b32 s68, s68, s63")
            a("s_mov_b32 s70, 0")
            for i, t in enumerate(ths):
                a(f"s_cmp_gt_i32 s68, {t}\ns_addc_u32 s70, s70, 0")
            if T4: a(f"s_cmp_gt_i32 s68, {T4}\ns_cselect_b32 s70, {L4}, s70")
    uid = [0]
    def variants(fn):
        uid[0] += 1; u = uid[0]
        a.fence()
        for i in range(1, len(levels)):
            a(f"s_cmp_eq_u32 s70, {i}\ns_cbranch_scc1 L_v{u}_{i}")
        for i, d in enumerate(levels):
            if i: a(f"L_v{u}_{i}:")
            fn(d)
            a.fence()
            if i < len(levels) - 1: a(f"s_branch L_v{u}_end")
        a(f"L_v{u}_end:")

    def kgroup(half, d):
        for k in range(16):
            series(k); control(k)
            r = kslot(16 * half + k); acc = 12 + k % 4
            a(f"v_dot2_f32_bf16 v{acc}, v{r}, v8, 0\nv_dot2_f32_bf16 v{acc}, v{r+1}, v9, v{acc}\nv_dot2_f32_bf16 v{acc}, v{r+2}, v10, v{acc}\nv_dot2_f32_bf16 v{acc}, v{r+3}, v11, v{acc}")
            a(f"s_waitcnt vmcnt({wv(d, k)})")
            issueS(r)
            if k % 4 == 3:
                C = 20 + k // 4
                a("v_add_f32_dpp v16, v12, v12 row_ror:8 row_mask:0xf bank_mask:0x3")
                a("v_add_f32_dpp v17, v14, v14 row_ror:8 row_mask:0xf bank_mask:0x3")
                a("v_add_f32_dpp v16, v13, v13 row_ror:8 row_mask:0xf bank_mask:0xc")
                a("v_add_f32_dpp v17, v15, v15 row_ror:8 row_mask:0xf bank_mask:0xc")
                a(f"v_add_f32_dpp v{C}, v16, v16 row_shl:4 row_mask:0xf bank_mask:0x5")
                a(f"v_add_f32_dpp v{C}, v17, v17 row_shr:4 row_mask:0xf bank_mask:0xa")
        for C in range(20, 24):
            a(f"v_add_f32_dpp v{C}, v{C}, v{C} quad_perm:[2,3,0,1] row_mask:0xf bank_mask:0xf")
        a("v_cndmask_b32 v20, v20, v21, s[80:81]\nv_cndmask_b32 v22, v22, v23, s[80:81]")
        a("v_add_f32_dpp v20, v20, v20 quad_perm:[1,0,3,2] row_mask:0xf bank_mask:0xf")
        a("v_add_f32_dpp v22, v22, v22 quad_perm:[1,0,3,2] row_mask:0xf bank_mask:0xf")
        a("v_cndmask_b32 v18, v20, v22, s[82:83]")
        rbf(18)
        a("v_mul_f32 v18, s76, v18")
        rbf(18)
        a("v_max_f32 v126, v126, v18\nds_write_b32 v224, v18\nv_add_u32 v224, 256, v224")
    a("s_mov_b32 s73, 16")
    a("L_kloop:")
    a("s_cmp_lg_u32 s73, 1\ns_cbranch_scc1 L_knosw\ns_mov_b32 s32, s36\ns_mov_b32 s33, s37\ns_mov_b32 s72, 0\n" + ("s_mov_b32 s60, s61\n" if XK else "") + "L_knosw:")
    variants(lambda d: kgroup(0, d))
    if KB: a(f"s_cmp_eq_u32 s73, 1\ns_cselect_b32 s70, {len(levels)-1}, s70")
    variants(lambda d: kgroup(1, d))
    a("s_sub_u32 s73, s73, 1\ns_cmp_lg_u32 s73, 0\ns_cbranch_scc1 L_kloop")
    wave_reduce(126, 13, "v_max_f32")
    a(f"s_lshl_b32 s31, s3, 2\nv_mov_b32 v13, s31\nds_write_b32 v13, v126 offset:{MX}")
    a("v_subrev_u32 v224, 8192, v224")
    stamp(3)
    a("ds_read_b32 v125, v224\nv_mov_b32 v226, v126")
    a("s_mov_b32 s76, %d" % LOG2E)
    a("s_waitcnt lgkmcnt(0)")
    def mkP():
        a("v_sub_f32 v125, v125, v226\nv_mul_f32 v125, s76, v125\nv_exp_f32 v125, v125\nv_add_f32 v127, v127, v125\nv_cvt_pk_bf16_f32 v125, v125, v125")
    mkP()
    a("v_mov_b32 v124, v125\nv_mov_b32 v12, 0\nv_mov_b32 v13, 0\nv_mov_b32 v14, 0\nv_mov_b32 v15, 0")
    lam = [4 * (((c >> 1) & 1) + 2 * (c & 1)) + [0, 2, 1, 3][c >> 2] for c in range(16)]
    inv = [lam.index(i) for i in range(16)]
    buildA(0, 124, inv[0])
    def vgroup(half, pre, post, last=False, ctl=True):
        for k in range(16):
            series(k)
            if ctl: control(k)
            if k == 0 and not last:
                a("v_add_u32 v224, 256, v224\nds_read_b32 v125, v224")
            if k == 6 and not last:
                a("s_waitcnt lgkmcnt(0)"); mkP()
            if k < 15: buildA((k + 1) & 1, 124, inv[k + 1])
            elif not last:
                buildA(0, 125, inv[0]); a("v_mov_b32 v124, v125")
            pre(k)
            mfma(12, k & 1, kslot(16 * half + k), False)
            post(k)
            if last and k == 2:
                wave_reduce(127, 16, "v_add_f32")
                a(f"s_lshl_b32 s31, s3, 9\nv_mov_b32 v20, s31\nv_mov_b32 v16, v127\nv_mov_b32 v17, 0\nv_mov_b32 v18, 0\nv_mov_b32 v19, 0\nds_write_b128 v20, v[16:19] offset:{RED_L}")
    def vsteady(half, d):
        def post(k):
            a(f"s_waitcnt vmcnt({wv(d, k)})"); issueS(kslot(16 * half + k))
        vgroup(half, lambda k: None, post)
    a(f"s_mov_b32 s73, {15 - (NBG + 1) // 2}")
    a("L_vloop:")
    variants(lambda d: vsteady(0, d))
    variants(lambda d: vsteady(1, d))
    a("s_sub_u32 s73, s73, 1\ns_cmp_lg_u32 s73, 0\ns_cbranch_scc1 L_vloop")
    if NBG % 2: variants(lambda d: vsteady(0, d))
    for i in range(NBG): vsteady((NBG + i) % 2, DB)
    wl = wl_all[8 - NWT:]
    nw = [0]
    dmax = DB if NBG else int(max(levels) + 0.99)
    wsteps = [n for n in range(32) if (n < 32 - DT and n % 5 == 4) or n >= 32 - DT]
    def fin(half):
        def pre(k):
            n = 16 * half + k
            if n >= 32 - dmax: a(f"s_waitcnt vmcnt({31 - n + nw[0]})")
        def post(k):
            n = 16 * half + k
            if n in wsteps and nw[0] < len(wl):
                a(wl[nw[0]]); nw[0] += 1
        vgroup(half, pre, post, last=(half == 1), ctl=False)
    a("L_tail0:")
    fin(0); fin(1)
    writeD(12, RED_O)
    for x in wl[nw[0]:]: a(x)
    a("s_waitcnt lgkmcnt(0)\ns_barrier")
    stamp(4)
    pollc("L_p1", ["buffer_load_dwordx4 v[228:231], v233, s[56:59], 0 offen " + h1l.replace("+", " "),
                   "buffer_load_dwordx4 v[236:239], v232, s[56:59], 0 offen offset:512 " + h1l.replace("+", " ")], [228, 229, 230, 231, 236, 237], full=(238, 239), sleep=sl1)
    stamp(5)
    steps = ["quad_perm:[1,0,3,2]", "quad_perm:[2,3,0,1]", "row_half_mirror"]
    O4 = (228, 229, 230, 231)
    a("v_and_b32 v237, 0xffffff00, v237\nv_mov_b32 v240, v237")
    for s in steps: a(f"v_max_f32_dpp v240, v240, v240 {s} row_mask:0xf bank_mask:0xf")
    a("v_sub_f32 v237, v237, v240\nv_mul_f32 v237, s76, v237\nv_exp_f32 v237, v237")
    for v in (236,) + O4: a(f"v_mul_f32 v{v}, v{v}, v237")
    for s in steps:
        for v in (236,) + O4: a(f"v_add_f32_dpp v{v}, v{v}, v{v} {s} row_mask:0xf bank_mask:0xf")
    a("v_rcp_f32 v236, v236")
    for v in O4: a(f"v_mul_f32 v{v}, v{v}, v236")
    for v in O4: a(f"v_cvt_pk_bf16_f32 v{v}, v{v}, v{v}")
    seq = [(b, i) for b in range(2) for i in range(4)]
    buildA(0, 228, 0)
    for t, (b, i) in enumerate(seq):
        if t < 7:
            b2, i2 = seq[t + 1]; buildA((t + 1) & 1, 228 + i2, 8 * b2)
        mfma(16, t & 1, WO0 + 4 * t, t == 0)
    writeD(16, RED_A)
    a("s_waitcnt lgkmcnt(0)\ns_barrier")
    stamp(6)
    if LP:
        a("s_cmp_lg_u32 s3, 0\ns_cbranch_scc1 L_norem\ns_mov_b64 exec, s[78:79]")
        for w in range(4): a(f"ds_read_b128 v[{32+4*w}:{35+4*w}], v6 offset:{RED_A+512*w}")
        a("s_lshl_b32 s31, s2, 9\ns_add_u32 s31, s31, %d\ns_mov_b32 s62, 0xff\nv_mov_b32 v20, s30\ns_waitcnt lgkmcnt(0)" % H2A)
        for i in range(4): a(f"v_add_f32 v{32+i}, v{32+i}, v{36+i}\nv_add_f32 v{40+i}, v{40+i}, v{44+i}")
        for i in range(4): a(f"v_add_f32 v{32+i}, v{32+i}, v{40+i}")
        for i in range(4): a(f"v_bfi_b32 v{32+i}, s62, v20, v{32+i}")
        a("buffer_store_dwordx4 v[32:35], v6, s[56:59], s31 offen sc1\ns_mov_b64 exec, -1")
        a.fence()
        a("L_norem:")
    if ser:
        a("s_add_u32 s68, s26, 0x9000000\ns_addc_u32 s69, s27, 0\ns_lshl_b32 s31, s2, 2\ns_add_u32 s31, s31, s3\ns_lshl_b32 s31, s31, 8\nv_lshlrev_b32 v16, 2, v1\nv_add_u32 v16, s31, v16")
        a("global_store_dword v16, v255, s[68:69]")
    if diag:
        a("s_waitcnt lgkmcnt(0)\ns_getreg_b32 s98, hwreg(HW_REG_HW_ID)\ns_getreg_b32 s99, hwreg(HW_REG_XCC_ID)")
        a("s_cmp_lg_u32 s3, 0\ns_cbranch_scc1 L_exit\ns_mov_b32 s31, 0\ns_branch L_stamps")
    else:
        a("s_endpgm")

    a("L_comm:")
    incomm[0] = True
    a(f"v_mov_b32 v8, 0\nv_mov_b32 v20, 0\nv_mov_b32 v21, 0\nv_mov_b32 v22, 0\nv_mov_b32 v23, 0\nds_write_b128 v8, v[20:23] offset:{FL}\nds_write_b128 v8, v[20:23] offset:{FG}\nds_write_b128 v8, v[20:23] offset:{QF}\nds_write_b128 v8, v[20:23] offset:{RF}\nds_write_b128 v8, v[20:23] offset:{PH}\nds_write_b128 v8, v[20:23] offset:{PH+16}\ns_waitcnt lgkmcnt(0)\ns_barrier")
    a("s_lshl_b32 s31, s29, 8\ns_and_b32 s75, s28, 3\ns_lshl_b32 s75, s75, 6\ns_add_u32 s75, s75, s31")
    a("v_and_b32 v37, 7, v1\nv_lshlrev_b32 v38, 3, v37")
    a("buffer_load_dwordx2 v[10:11], v38, s[52:55], s75 offen")
    if TL:
        a("s_lshl_b32 s31, s28, 24\ns_add_u32 s72, s8, s31\ns_addc_u32 s73, s9, 0\ns_lshl_b32 s31, s28, 18\ns_add_u32 s80, s12, s31\ns_addc_u32 s81, s13, 0\ns_mov_b32 s82, 27")
    def wdload():
        srd(36, "s20", "s21", 0 if "d" in skipw else 3584 * 2048)
        a("v_lshl_add_u32 v58, v2, 11, v7\ns_mul_i32 s35, s28, %d\ns_lshl_b32 s31, s29, 8\ns_add_u32 s35, s35, s31" % (112 * 2048))
        for i in range(28):
            if i >= WDF: a(f"s_waitcnt vmcnt({WDF-1})")
            a(f"buffer_load_dwordx4 v[{128+4*i}:{131+4*i}], v58, s[36:39], s35 offen {pol_w}\ns_add_u32 s35, s35, 8192")
    if CP:
        a("s_and_b32 s34, s2, 31" if perm == 1 else "s_mov_b32 s34, s28")
        a(f"s_cmp_ge_u32 s34, {CP}\ns_cbranch_scc1 L_nocp")
        a(f"s_getpc_b64 s[32:33]\nL_pc0:\ns_sub_u32 s32, s32, L_pc0-{NAME}\ns_subb_u32 s33, s33, 0\ns_lshl_b32 s31, s34, 13\nv_add_u32 v20, s31, v6\ns_mov_b32 s31, L_exit-{NAME}-16")
        for i in range(8): a(f"v_min_u32 v{21+i}, s31, v20\nglobal_load_dwordx4 v[{64+4*i}:{67+4*i}], v{21+i}, s[32:33]\nv_add_u32 v20, 1024, v20")
        a("L_nocp:")
    if WDW == 1: wdload()
    if touch:
        a("s_mov_b64 exec, 1")
        a("s_lshl_b32 s31, s28, 24\ns_add_u32 s32, s6, s31\ns_addc_u32 s33, s7, 0\nglobal_load_dword v20, v8, s[32:33] nt")
        a("s_mul_i32 s31, s29, %d\ns_add_u32 s32, s16, s31\ns_addc_u32 s33, s17, 0\nglobal_load_dword v21, v8, s[32:33] nt" % (128 * 7168))
        a("s_add_u32 s32, s18, s31\ns_addc_u32 s33, s19, 0\nglobal_load_dword v22, v8, s[32:33] nt")
        a("global_load_dword v23, v8, s[26:27] nt")
        a("s_mov_b64 exec, -1")
    masks()
    srd(68, "s22", "s23", 2048)
    a("v_lshlrev_b32 v9, 3, v1")
    a("s_lshl_b32 s31, s2, 10\ns_add_u32 s40, s31, %d" % H0Q)
    a("s_lshl_b32 s31, s28, 13\ns_add_u32 s41, s31, %d\ns_add_u32 s42, s41, 4096" % H0Q)
    a("s_waitcnt lgkmcnt(0)\ns_add_u32 s30, s30, 1")
    def red4(dst, off, tmp):
        for w in range(4): a(f"ds_read_b64 v[{tmp+2*w}:{tmp+2*w+1}], v9 offset:{off+512*w}")
    def sum4(dst, tmp):
        a(f"v_add_f32 v{dst}, v{tmp}, v{tmp+2}\nv_add_f32 v{dst+2}, v{tmp+1}, v{tmp+3}\nv_add_f32 v{tmp+4}, v{tmp+4}, v{tmp+6}\nv_add_f32 v{tmp+5}, v{tmp+5}, v{tmp+7}")
        a(f"v_add_f32 v{dst}, v{dst}, v{tmp+4}\nv_add_f32 v{dst+2}, v{dst+2}, v{tmp+5}")
    a("v_mov_b32 v13, s30\nv_mov_b32 v15, s30\nv_mov_b32 v17, s30\nv_mov_b32 v19, s30")
    a.fence()
    a(f"L_fl:\nds_read_b128 v[20:23], v8 offset:{FL}\ns_waitcnt lgkmcnt(0)\nv_and_b32 v20, v20, v21\nv_and_b32 v22, v22, v23\nv_and_b32 v20, v20, v22\nv_readfirstlane_b32 s31, v20")
    a("s_cmp_eq_u32 s31, 1\ns_cbranch_scc1 L_fl_ok\ns_sleep 1\ns_branch L_fl\nL_fl_ok:")
    stamp(1)
    red4(12, RED_Q, 20); a("s_waitcnt lgkmcnt(0)"); sum4(12, 20)
    if LOC:
        a("s_getreg_b32 s65, hwreg(HW_REG_XCC_ID)\ns_and_b32 s65, s65, 15")
        if fakex: a("s_mov_b32 s65, s29")
        a("s_lshl_b32 s65, s65, 28\ns_and_b32 s31, s30, 0xfffffff\ns_or_b32 s65, s65, s31\nv_mov_b32 v13, s65\nv_mov_b32 v15, s65")
        a("buffer_store_dwordx4 v[12:15], v6, s[56:59], s40 offen")
        if WDW == 2: wdload()
        up = "buffer_store_dwordx4 v[12:15], v6, s[56:59], s40 offen sc1"
        poll_rows("L_p0", [(f"buffer_load_dwordx4 v[{64+4*jj}:{67+4*jj}], v6, s[56:59], s{41+jj//4} offen offset:{1024*(jj%4)} {ql.replace('+', ' ')}", 65 + 4 * jj, 67 + 4 * jj) for jj in range(8)], 4,
                  tagreg="s65", mask="0xfffffff", hook=up)
        a("v_xor_b32 v250, s65, v65")
        for jj in range(1, 8): a(f"v_bitop3_b32 v250, v{65+4*jj}, s65, v250 bitop3:0xbe")
        a("v_cmp_ne_u32 vcc, 0, v250\ns_cmp_eq_u64 vcc, 0\ns_cselect_b32 s11, 1, 0\ns_cbranch_scc1 L_qloc")
        a(up)
        a("L_qloc:\ns_nop 1\nv_mov_b32 v13, s30\nv_mov_b32 v15, s30")
    else:
        if noq != 1: a("buffer_store_dwordx4 v[12:15], v6, s[56:59], s40 offen " + qfl.replace("+", " "))
        if qdelay: a(f"s_sleep {qdelay}")
        if WDW == 2: wdload()
        if noq:
            pass
        elif maskpoll:
            poll_rows("L_p0", [(f"buffer_load_dwordx4 v[{64+4*jj}:{67+4*jj}], v6, s[56:59], s{41+jj//4} offen offset:{1024*(jj%4)} {ql.replace('+', ' ')}", 65 + 4 * jj, 67 + 4 * jj) for jj in range(8)], 4)
        else:
            poll("L_p0", [f"buffer_load_dwordx4 v[{128+4*jj}:{131+4*jj}], v6, s[56:59], s{41+jj//4} offen offset:{1024*(jj%4)} sc1" for jj in range(8)],
                 [129 + 2 * i for i in range(16)])
    stamp(2)
    def sum8(base, stride):
        for o in (0, 2):
            for (x, y) in ((0, 1), (2, 3), (4, 5), (6, 7), (0, 2), (4, 6), (0, 4)):
                a(f"v_add_f32 v{base+x*stride+o}, v{base+x*stride+o}, v{base+y*stride+o}")
    sum8(64, 4)
    a(f"v_cvt_pk_bf16_f32 v64, v64, v66\nv_lshlrev_b32 v20, 2, v1\nds_write_b32 v20, v64 offset:{QL}")
    if NB2F:
        a(f"v_mov_b32 v20, 1\nds_write_b32 v8, v20 offset:{QF}")
        a.fence()
        a(f"L_fg:\nds_read_b128 v[20:23], v8 offset:{FG}\ns_waitcnt lgkmcnt(0)\nv_and_b32 v20, v20, v21\nv_and_b32 v22, v22, v23\nv_and_b32 v20, v20, v22\nv_readfirstlane_b32 s31, v20")
        a("s_cmp_eq_u32 s31, 1\ns_cbranch_scc1 L_fg_ok\ns_sleep 2\ns_branch L_fg\nL_fg_ok:")
    else:
        a("s_waitcnt lgkmcnt(0)\ns_barrier")
    def tag4(v):
        for i in range(4): a(f"v_bfi_b32 v{v+i}, s61, v13, v{v+i}")
    a("s_mov_b32 s61, 0xff")
    red4(0, RED_G, 20); red4(0, RED_U, 28); a("s_waitcnt lgkmcnt(0)")
    for d, t in ((16, 20), (18, 28)):
        a(f"v_add_f32 v{d}, v{t}, v{t+2}\nv_add_f32 v{d+1}, v{t+1}, v{t+3}\nv_add_f32 v{t+4}, v{t+4}, v{t+6}\nv_add_f32 v{t+5}, v{t+5}, v{t+7}")
        a(f"v_add_f32 v{d}, v{d}, v{t+4}\nv_add_f32 v{d+1}, v{d+1}, v{t+5}")
    tag4(16)
    a("s_lshl_b32 s43, s2, 10\ns_add_u32 s40, s43, %d\ns_mov_b32 s62, -1\ns_mov_b32 s63, 0xffffff" % H0GU)
    a("s_mov_b64 exec, s[62:63]")
    if LOC:
        a("s_cmp_eq_u32 s11, 1\ns_cbranch_scc1 L_gs_l\nbuffer_store_dwordx4 v[16:19], v6, s[56:59], s40 offen sc1\ns_branch L_gs_e\nL_gs_l:\nbuffer_store_dwordx4 v[16:19], v6, s[56:59], s40 offen\nL_gs_e:")
    else:
        a("buffer_store_dwordx4 v[16:19], v6, s[56:59], s40 offen " + gufl.replace("+", " "))
    a("s_mov_b64 exec, -1")
    def ffn():
        if WDW == 0: wdload()
        a("s_lshl_b32 s31, s28, 13\ns_add_u32 s18, s31, %d\ns_add_u32 s19, s18, 4096" % H0GU)
        a("s_mov_b64 exec, s[62:63]")
        pollc("L_pg", [f"buffer_load_dwordx4 v[{64+4*n}:{67+4*n}], v6, s[56:59], s{18+n//4} offen offset:{1024*(n%4)} {gul.replace('+', ' ')}" for n in range(8)],
              list(range(64, 96)), sleep=50)
        stamp(3)
        for o in range(4):
            for (x, y) in ((0, 1), (2, 3), (4, 5), (6, 7), (0, 2), (4, 6), (0, 4)):
                a(f"v_add_f32 v{64+4*x+o}, v{64+4*x+o}, v{64+4*y+o}")
        for v in (64, 65, 66, 67): rbf(v)
        a("s_mov_b32 s16, 0x3d372713\ns_mov_b32 s17, 0xc0135761")
        for g, u in ((64, 66), (65, 67)):
            a(f"v_mul_f32 v20, v{g}, v{g}\nv_fma_f32 v20, v20, s16, 1.0\nv_mul_f32 v20, v20, v{g}\nv_mul_f32 v20, s17, v20\nv_exp_f32 v20, v20\nv_add_f32 v20, 1.0, v20\nv_rcp_f32 v20, v20\nv_mul_f32 v{g}, v{g}, v20")
            rbf(g)
            a(f"v_mul_f32 v{g}, v{g}, v{u}")
        a(f"v_cvt_pk_bf16_f32 v20, v64, v64\nv_cvt_pk_bf16_f32 v21, v65, v65\nds_write_b64 v9, v[20:21] offset:{HL}")
        a(f"v_lshl_add_u32 v20, v2, 2, v7\nds_read_b32 v56, v20 offset:{HL}\nds_read_b32 v57, v20 offset:{HL+256}\ns_waitcnt lgkmcnt(0)")
        buildA(0, 56, 0)
        for i in range(28):
            if i < 27: buildA((i + 1) & 1, 56 + (i + 1) // 16, (i + 1) % 16)
            mfma(52, i & 1, 128 + 4 * i, i == 0)
        tag4(52)
        if FW == 2:
            a("v_lshlrev_b32 v39, 5, v3\nv_lshl_add_u32 v39, v2, 4, v39\ns_lshl_b32 s31, s2, 9\ns_add_u32 s42, s31, %d" % H2F)
            a("s_mov_b64 exec, s[78:79]\nbuffer_store_dwordx4 v[52:55], v39, s[56:59], s42 offen sc1 nt\ns_mov_b64 exec, -1")
    if not GF: ffn()
    def bump(r, first):
        if not GA: return f"s_add_u32 s{r}, s{r}, {GP}"
        return f"s_cmp_eq_u32 s{r}, {first}\ns_cselect_b32 s9, {GA}, {GP}\ns_add_u32 s{r}, s{r}, s9"
    sh = GP.bit_length() - 1
    assert GP == 1 << sh
    a("v_lshlrev_b32 v50, 7, v1")
    a(f"s_mov_b32 s44, {G0}\ns_mov_b32 s45, {G0+GG}\ns_mov_b32 s46, {G0+GR}\ns_mov_b32 s47, 0\ns_mov_b32 s51, 0\ns_mov_b32 s52, 0\ns_mov_b32 s53, 0\ns_mov_b32 s54, 0")
    if NREF == 64: a("s_xor_b32 s55, s28, s29\ns_and_b32 s55, s55, 3")
    if NREF == 32: a("s_xor_b32 s55, s28, s29\ns_and_b32 s55, s55, 7")
    if NREF == 16: a("s_lshr_b32 s55, s2, 4\ns_xor_b32 s55, s55, s2\ns_and_b32 s55, s55, 15")
    if NREF == 8: a("s_lshr_b32 s55, s2, 5\ns_mul_i32 s55, s55, 5\ns_xor_b32 s55, s55, s2\ns_and_b32 s55, s55, 31")
    rsh = {64: 2, 32: 3, 16: 4, 8: 5}[NREF]
    if NREF < 64: a(f"v_and_b32 v50, {NREF-1}, v1\nv_lshlrev_b32 v50, 7, v50")
    a(f"s_lshr_b32 s48, s2, {rsh}")
    a("s_lshl_b32 s48, s48, 7\ns_add_u32 s48, s48, %d\ns_mov_b32 s49, %d" % (PHI, PHI))
    a("s_mov_b32 s50, 0" if NREP == 1 else "s_lshr_b32 s50, s28, 2" if perm == 1 else "s_mov_b32 s50, s29")
    a("s_lshl_b32 s50, s50, 7\ns_add_u32 s50, s50, %d\ns_mov_b32 s60, %d" % (REF, REF))
    a("s_cmp_eq_u32 s2, 0\ns_cselect_b32 s45, s45, -1")
    a("s_mov_b32 s4, 0\ns_mov_b32 s5, 0\ns_mov_b32 s6, 0\ns_mov_b32 s7, 0\ns_mov_b32 s10, %d" % GF)
    if noex: a("s_mov_b32 s44, -1\ns_mov_b32 s45, -1\ns_mov_b32 s46, -1")
    a.fence()
    a("L_ctl:")
    a(f"ds_read_b128 v[20:23], v8 offset:{PH}\nds_read_b128 v[24:27], v8 offset:{PH+16}\ns_waitcnt lgkmcnt(0)")
    a("v_min_u32 v21, v21, v23\nv_min3_u32 v21, v21, v25, v27\nv_readfirstlane_b32 s31, v21")
    if GF: a(f"s_cmp_eq_u32 s10, -1\ns_cbranch_scc0 L_ctl_c")
    a(f"s_cmp_ge_u32 s31, {GEX}\ns_cbranch_scc1 L_ctl_end\nL_ctl_c:\ns_cmp_eq_u32 s31, s47\ns_cbranch_scc1 L_ctl_sleep\ns_mov_b32 s47, s31")
    a("v_sub_u32 v22, v22, v20\nv_sub_u32 v24, v24, v20\nv_sub_u32 v26, v26, v20\nv_add3_u32 v22, v22, v24, v26\nv_ashrrev_i32 v22, 2, v22\nv_add_u32 v12, v20, v22")
    if JD:
        a(f"v_readfirstlane_b32 s8, v12\ns_sub_u32 s9, s8, s5\ns_and_b32 s9, s9, s54\ns_mov_b32 s5, s4\ns_mov_b32 s4, s8")
        a(f"s_cmp_gt_i32 s9, {JD}\ns_cbranch_scc0 L_ctl_nj\ns_add_u32 s51, s51, s9\ns_add_u32 s6, s6, s9\ns_mov_b32 s5, s8\nL_ctl_nj:")
    a(f"s_cmp_lt_u32 s47, s44\ns_cbranch_scc1 L_ctl_g\ns_mov_b32 s6, 0\n{bump(44, G0)}\ns_cmp_lg_u32 s55, 0\ns_cbranch_scc1 L_ctl_g")
    a("s_mov_b64 exec, 1\nbuffer_store_dwordx2 v[12:13], v8, s[56:59], s48 offen " + exs.replace("+", " ") + "\ns_mov_b64 exec, -1\ns_add_u32 s48, s48, 8192")
    a("L_ctl_g:")
    a("s_cmp_lt_u32 s47, s45\ns_cbranch_scc1 L_ctl_rd")
    a("buffer_load_dwordx2 v[20:21], v50, s[56:59], s49 offen " + exl.replace("+", " ") + "\ns_waitcnt vmcnt(0)")
    a("v_cmp_ne_u32 vcc, s30, v21\ns_cmp_lg_u64 vcc, 0\ns_cbranch_scc1 L_ctl_rd")
    a("v_sub_u32 v20, v20, v12")
    wave_reduce(20, 21, "v_add_u32")
    a("v_ashrrev_i32 v20, 6, v20\nv_add_u32 v14, v12, v20")
    a(("s_mov_b64 exec, 0xff" if NREP == 8 else "s_mov_b64 exec, 1") + "\nbuffer_store_dwordx2 v[14:15], v50, s[56:59], s60 offen " + exs.replace("+", " ") + "\ns_mov_b64 exec, -1")
    a(f"{bump(45, G0 + GG)}\ns_add_u32 s49, s49, 8192\ns_add_u32 s60, s60, 1024")
    a.fence()
    a("L_ctl_rd:")
    a("s_cmp_lt_u32 s47, s46\ns_cbranch_scc1 L_ctl_up")
    if RP == 1:
        a("s_mov_b64 exec, 1\ns_cmp_eq_u32 s47, s46\ns_cbranch_scc1 L_ctl_r1\nbuffer_load_dwordx2 v[28:29], v8, s[56:59], s50 offen sc1\ns_branch L_ctl_r2")
        a("L_ctl_r1:\nbuffer_load_dwordx2 v[28:29], v8, s[56:59], s50 offen\nL_ctl_r2:")
        a("s_waitcnt vmcnt(0)\nv_readfirstlane_b32 s31, v29\nv_readfirstlane_b32 s64, v28\ns_mov_b64 exec, -1")
    elif RP == 2:
        a("s_cmp_eq_u32 s47, s46\ns_cbranch_scc1 L_ctl_r1")
        a("s_mov_b64 exec, 1\nbuffer_load_dwordx2 v[28:29], v8, s[56:59], s50 offen sc1\ns_waitcnt vmcnt(0)\nv_readfirstlane_b32 s65, v29\nv_readfirstlane_b32 s64, v28\ns_mov_b64 exec, -1\ns_nop 3\ns_branch L_ctl_r2")
        a("L_ctl_r1:\ns_load_dwordx2 s[64:65], s[26:27], s50\ns_waitcnt lgkmcnt(0)\nL_ctl_r2:\ns_mov_b32 s31, s65")
    else:
        a("s_mov_b64 exec, 1\nbuffer_load_dwordx2 v[28:29], v8, s[56:59], s50 offen " + exl.replace("+", " ") + "\ns_waitcnt vmcnt(0)\nv_readfirstlane_b32 s31, v29\nv_readfirstlane_b32 s64, v28\ns_mov_b64 exec, -1")
    a("s_cmp_lg_u32 s31, s30\ns_cbranch_scc1 L_ctl_up")
    a("s_add_u32 s64, s64, s6\ns_sub_u32 s52, s64, s51\ns_and_b32 s52, s52, s54")
    if MS: a("s_mov_b32 s9, s52\ns_min_i32 s52, s52, s7\ns_mov_b32 s7, s9")
    if MS == 2: a("s_cmp_lt_i32 s52, 40\ns_cselect_b32 s52, 0, s52")
    if not slope: a("s_mov_b32 s52, 0")
    a(f"s_mov_b32 s51, s64\ns_sub_u32 s53, s46, {GR + 1}\ns_mov_b32 s54, -1\n{bump(46, G0 + GR)}\ns_add_u32 s50, s50, 1024")
    a("L_ctl_up:")
    a(f"s_sub_u32 s31, s47, s53\ns_mul_i32 s31, s31, s52\ns_ashr_i32 s31, s31, {sh}\ns_add_u32 s31, s31, s51")
    a(f"v_mov_b32 v30, s31\nv_mov_b32 v31, s54\nds_write_b64 v8, v[30:31] offset:{RF}")
    if TL & 1:
        a("s_cmp_lt_u32 s47, s82\ns_cbranch_scc1 L_ctl_nt\ns_mov_b32 s82, -1\nv_lshlrev_b32 v20, 21, v1\ns_mov_b64 exec, 0xff\nglobal_load_dword v21, v20, s[72:73] nt\ns_mov_b64 exec, -1\ns_waitcnt vmcnt(0)\nL_ctl_nt:")
    if GF:
        a("s_cmp_lt_u32 s47, s10\ns_cbranch_scc1 L_ctl_sleep\ns_mov_b32 s10, -1")
        ffn()
        a.fence()
    a(f"L_ctl_sleep:\ns_sleep {CSL}\ns_branch L_ctl")
    a("L_ctl_end:")
    if TL & 2:
        a("s_mov_b64 exec, 1\nglobal_load_dword v64, v8, s[80:81] nt\nbuffer_load_dword v65, v8, s[68:71], 0 offen nt\ns_mov_b64 exec, -1")
    a(f"ds_read_b128 v[44:47], v8 offset:{MX}\ns_waitcnt lgkmcnt(0)\nv_max_f32 v20, v44, v45\nv_max3_f32 v16, v20, v46, v47\ns_mov_b32 s31, {LOG2E}")
    for w in range(4): a(f"v_sub_f32 v{44+w}, v{44+w}, v16\nv_mul_f32 v{44+w}, s31, v{44+w}\nv_exp_f32 v{44+w}, v{44+w}")
    a("s_add_u32 s40, s43, %d\ns_lshl_b32 s31, s2, 9\ns_add_u32 s41, s31, %d\ns_add_u32 s42, s31, %d" % (H1, H2A, H2F))
    a("v_lshlrev_b32 v39, 5, v3\nv_lshl_add_u32 v39, v2, 4, v39")
    a("v_cmp_eq_u32 vcc, 32, v1\nv_mov_b32 v20, 2048\nv_cndmask_b32 v48, v6, v20, vcc\nv_cndmask_b32 v49, 0, v16, vcc\nv_mov_b32 v20, 0xff\nv_cndmask_b32 v51, v20, -1, vcc")
    a("s_mov_b32 s63, 1")
    a("v_lshrrev_b32 v36, 3, v1\nv_lshlrev_b32 v36, 12, v36\nv_lshl_add_u32 v36, v37, 4, v36")
    a("s_lshl_b32 s31, s29, 9\ns_lshl_b32 s44, s28, 7\ns_add_u32 s44, s44, s31\ns_add_u32 s44, s44, %d" % H2A)
    for i in range(1, 8): a(f"s_add_u32 s{44+i}, s44, {32768*i}")
    assert H2F == H2A + 4 * 32768
    a("v_lshlrev_b32 v40, 16, v10\nv_and_b32 v41, 0xffff0000, v10\nv_lshlrev_b32 v42, 16, v11\nv_and_b32 v43, 0xffff0000, v11")
    if LOC and PD:
        a("s_cmp_lg_u32 s11, 1\ns_cbranch_scc1 L_npd\nv_not_b32 v60, v13\nv_not_b32 v61, v13\nv_not_b32 v62, v13\nv_not_b32 v63, v13")
        a("s_mov_b32 s64, -1\ns_mov_b32 s65, 0xff\ns_mov_b64 exec, s[64:65]\nbuffer_store_dwordx4 v[60:63], v6, s[56:59], s40 offen\ns_mov_b64 exec, -1\nL_npd:")
    if PT:
        pf = "sc1" if PT == 1 else ""
        a(f"s_mov_b64 exec, s[62:63]\nbuffer_load_dwordx4 v[64:67], v6, s[56:59], s40 offen {pf}\ns_mov_b64 exec, s[78:79]\nbuffer_load_dwordx4 v[68:71], v6, s[56:59], s41 offen {pf}")
        if FW != 2: a(f"buffer_load_dwordx4 v[72:75], v6, s[56:59], s42 offen {pf}")
        a("s_mov_b64 exec, -1")
    if warm:
        a("s_getpc_b64 s[64:65]\nL_pc:\ns_sub_u32 s64, s64, L_pc-L_tail0\ns_subb_u32 s65, s65, 0")
        for i in range(warm): a(f"global_load_dwordx4 v[64:67], v6, s[64:65]\ns_add_u32 s64, s64, 1024\ns_addc_u32 s65, s65, 0")
        a("s_waitcnt vmcnt(0)")
    def xred(b, skip=False):
        if not skip:
            for i in range(4): a(f"v_add_f32 v{b+i}, v{b+i}, v{b+4+i}\nv_add_f32 v{b+8+i}, v{b+8+i}, v{b+12+i}")
        for i in range(4): a(f"v_add_f32 v{b+i}, v{b+i}, v{b+8+i}")
        for i in range(4): a(f"v_add_f32_dpp v{b+i}, v{b+i}, v{b+i} row_ror:8 row_mask:0xf bank_mask:0xf")
        for op in ("v_permlane16_swap_b32", "v_permlane32_swap_b32"):
            for i in range(4): a(f"v_mov_b32 v{b+4+i}, v{b+i}")
            for i in range(4): a(f"{op} v{b+i}, v{b+4+i}")
            for i in range(4): a(f"v_add_f32 v{b+i}, v{b+i}, v{b+4+i}")
        for i in range(4): rbf(b + i)
    def ffn_gather():
        pollc("L_pf", [f"buffer_load_dwordx4 v[{144+4*i}:{147+4*i}], v36, s[56:59], s{48+i} offen sc1" for i in range(4)], list(range(144, 160)), sleep=sl2)
        xred(144)
    if FW == 2:
        a("s_cmp_ge_u32 s28, 4\ns_cbranch_scc1 L_nf")
        ffn_gather()
        a.fence()
        a("L_nf:")
    if LP:
        a(f"s_add_u32 s12, s41, {LOFF}\ns_add_u32 s13, s42, {LOFF}\nv_add_u32 v59, {LOFF}, v36")
        a("v_not_b32 v60, v13\nv_not_b32 v61, v13\nv_not_b32 v62, v13\nv_not_b32 v63, v13")
        a("s_mov_b64 exec, s[78:79]\nbuffer_store_dwordx4 v[52:55], v39, s[56:59], s13 offen\nbuffer_store_dwordx4 v[60:63], v6, s[56:59], s12 offen\ns_mov_b64 exec, -1")
        a("s_mov_b32 s14, 0")
        a("s_barrier")
        stamp(4)
        a("s_mov_b64 exec, s[62:63]")
        for w in range(4): a(f"ds_read_b128 v[{20+4*w}:{23+4*w}], v48 offset:{RED_O+512*w}")
        a("s_waitcnt lgkmcnt(0)")
        a("v_mul_f32 v16, v20, v44\nv_fma_f32 v17, v21, v44, v49\nv_mul_f32 v18, v22, v44\nv_mul_f32 v19, v23, v44")
        for w in range(1, 4):
            for i in range(4): a(f"v_fmac_f32 v{16+i}, v{20+4*w+i}, v{44+w}")
        a("v_bfi_b32 v16, s61, v13, v16\nv_bfi_b32 v17, s61, v13, v17\nv_bfi_b32 v18, v51, v13, v18\nv_bfi_b32 v19, v51, v13, v19")
        a("buffer_store_dwordx4 v[16:19], v6, s[56:59], s40 offen sc1")
        a("s_cmp_ge_u32 s28, 4\ns_cbranch_scc1 L_b5")
        a("s_mov_b64 exec, s[78:79]\nbuffer_store_dwordx4 v[52:55], v39, s[56:59], s42 offen sc1\ns_mov_b64 exec, -1")
        pollc("L_lf", [f"buffer_load_dwordx4 v[{144+4*i}:{147+4*i}], v59, s[56:59], s{48+i} offen sc1" for i in range(4)], list(range(144, 160)), sleep=0, tries=1, fail="L_b5")
        xred(144)
        a("s_mov_b32 s14, 1")
        a.fence()
        a("L_b5:\ns_mov_b64 exec, s[78:79]")
        a("s_barrier")
        stamp(5)
        for w in range(4): a(f"ds_read_b128 v[{20+4*w}:{23+4*w}], v6 offset:{RED_A+512*w}")
        a("s_waitcnt lgkmcnt(0)")
        for i in range(4): a(f"v_add_f32 v{20+i}, v{20+i}, v{24+i}\nv_add_f32 v{28+i}, v{28+i}, v{32+i}")
        for i in range(4): a(f"v_add_f32 v{60+i}, v{20+i}, v{28+i}")
        tag4(60)
        a("buffer_store_dwordx4 v[60:63], v6, s[56:59], s12 offen")
        a("s_cmp_lt_u32 s28, 4\ns_cbranch_scc1 L_cons")
        a("buffer_store_dwordx4 v[52:55], v39, s[56:59], s42 offen sc1")
        if diag: stamp(6); a("s_branch L_noep")
        else: a("s_branch L_noep" if spin else "s_endpgm")
        a("L_cons:\ns_mov_b64 exec, -1")
        a("s_cmp_eq_u32 s14, 0\ns_cbranch_scc1 L_fbf")
        pollc("L_la", [f"buffer_load_dwordx4 v[{128+4*i}:{131+4*i}], v59, s[56:59], s{44+i} offen sc1" for i in range(4)], list(range(128, 144)), sleep=lsl, tries=LN, fail="L_fba")
        a("s_branch L_fin")
        a("L_fbf:")
        ffn_gather()
        a.fence()
        a("L_fba:")
        pollc("L_p2", [f"buffer_load_dwordx4 v[{128+4*i}:{131+4*i}], v36, s[56:59], s{44+i} offen sc1" for i in range(4)], list(range(128, 144)), sleep=sl2)
        a("L_fin:")
    else:
        tf = tfl.replace("+", " ")
        a("s_barrier")
        stamp(4)
        a("s_mov_b64 exec, s[62:63]")
        for w in range(4): a(f"ds_read_b128 v[{20+4*w}:{23+4*w}], v48 offset:{RED_O+512*w}")
        a("s_waitcnt lgkmcnt(0)")
        a("v_mul_f32 v16, v20, v44\nv_fma_f32 v17, v21, v44, v49\nv_mul_f32 v18, v22, v44\nv_mul_f32 v19, v23, v44")
        for w in range(1, 4):
            for i in range(4): a(f"v_fmac_f32 v{16+i}, v{20+4*w+i}, v{44+w}")
        a("v_bfi_b32 v16, s61, v13, v16\nv_bfi_b32 v17, s61, v13, v17\nv_bfi_b32 v18, v51, v13, v18\nv_bfi_b32 v19, v51, v13, v19")
        if LOC:
            a("s_cmp_eq_u32 s11, 1\ns_cbranch_scc1 L_hs_l\nbuffer_store_dwordx4 v[16:19], v6, s[56:59], s40 offen sc1\ns_branch L_hs_e\nL_hs_l:\nbuffer_store_dwordx4 v[16:19], v6, s[56:59], s40 offen\nL_hs_e:")
        else:
            a("buffer_store_dwordx4 v[16:19], v6, s[56:59], s40 offen " + tf)
        a("s_mov_b64 exec, s[78:79]")
        if FW == 0: a(f"buffer_store_dwordx4 v[52:55], v39, s[56:59], s42 offen {tf}")
        a("s_barrier")
        stamp(5)
        for w in range(4): a(f"ds_read_b128 v[{20+4*w}:{23+4*w}], v6 offset:{RED_A+512*w}")
        if FW == 1: a(f"buffer_store_dwordx4 v[52:55], v39, s[56:59], s42 offen {tf}")
        a("s_waitcnt lgkmcnt(0)")
        for i in range(4): a(f"v_add_f32 v{20+i}, v{20+i}, v{24+i}\nv_add_f32 v{28+i}, v{28+i}, v{32+i}")
        for i in range(4): a(f"v_add_f32 v{60+i}, v{20+i}, v{28+i}")
        tag4(60)
        a(f"buffer_store_dwordx4 v[60:63], v6, s[56:59], s41 offen {tf}\ns_mov_b64 exec, -1")
        if diag:
            a("s_cmp_lt_u32 s28, 4\ns_cbranch_scc1 L_cons"); stamp(6); a("s_branch L_noep\nL_cons:")
        else:
            a("s_cmp_ge_u32 s28, 4\ns_cbranch_scc1 " + ("L_noep" if spin else "L_exit"))
        if not HP:
            if FW != 2: ffn_gather()
            pollc("L_p2", [f"buffer_load_dwordx4 v[{128+4*i}:{131+4*i}], v36, s[56:59], s{44+i} offen sc1" for i in range(4)], list(range(128, 144)), sleep=sl2)
    if HP:
        sets = [160, 176, 192][:HP]
        def ld(b):
            for i in range(4): a(f"buffer_load_dwordx4 v[{b+4*i}:{b+3+4*i}], v36, s[56:59], s{44+i} offen sc1")
        def chk(b):
            a(f"v_xor_b32 v250, s30, v{b}\nv_xor_b32 v251, s30, v{b+8}")
            for r in range(1, 8): a(f"v_bitop3_b32 v250, v{b+r}, s30, v250 bitop3:0xbe\nv_bitop3_b32 v251, v{b+8+r}, s30, v251 bitop3:0xbe")
            a("v_or_b32 v250, v250, v251\nv_and_b32 v250, 0xff, v250\nv_cmp_ne_u32 vcc, 0, v250\ns_cmp_eq_u64 vcc, 0")
        for i in range(4): a(f"buffer_load_dwordx4 v[{144+4*i}:{147+4*i}], v36, s[56:59], s{48+i} offen sc1")
        for b in sets[:-1]:
            ld(b); a(f"s_sleep {gap}")
        ld(sets[-1])
        a(f"s_waitcnt vmcnt({4*HP})")
        chk(144)
        a("s_cbranch_scc1 L_fok")
        pollc("L_pf", [f"buffer_load_dwordx4 v[{144+4*i}:{147+4*i}], v36, s[56:59], s{48+i} offen sc1" for i in range(4)], list(range(144, 160)), sleep=sl2)
        a("L_fok:")
        xred(144)
        a("s_mov_b32 s77, 0x100000")
        a.fence()
        a("L_hp:")
        for n, b in enumerate(sets):
            a(f"s_waitcnt vmcnt({4*(HP-1)})")
            chk(b)
            a(f"s_cbranch_scc1 L_hp_{n}")
            ld(b)
        a("s_sub_u32 s77, s77, 1\ns_cmp_lg_u32 s77, 0\ns_cbranch_scc1 L_hp")
        for n, b in enumerate(sets):
            a(f"L_hp_{n}:")
            for i in range(4): a(f"v_add_f32 v{128+i}, v{b+i}, v{b+4+i}\nv_add_f32 v{136+i}, v{b+8+i}, v{b+12+i}")
            if n < HP - 1: a("s_branch L_hp_e")
        a("L_hp_e:")
        stamp(6)
        xred(128, skip=True)
    else:
        stamp(6)
        xred(128)
    for i in range(4): a(f"v_add_f32 v{128+i}, v{128+i}, v{40+i}")
    for i in range(4): rbf(128 + i)
    for i in range(4): a(f"v_add_f32 v{128+i}, v{128+i}, v{144+i}")
    a("v_cvt_pk_bf16_f32 v20, v128, v129\nv_cvt_pk_bf16_f32 v21, v130, v131")
    a("s_mov_b64 exec, 0xff\nbuffer_store_dwordx2 v[20:21], v38, s[68:71], s75 offen\ns_mov_b64 exec, 1")
    a("s_cmp_lg_u32 s2, 0\ns_cbranch_scc1 L_noep\nbuffer_store_dword v13, v8, s[56:59], 0 offen sc1\nL_noep:")
    if spin:
        if spinwg >= 0: a(f"s_cmp_lg_u32 s2, {spinwg}\ns_cbranch_scc1 L_exit")
        a(f"L_spin:\ns_memrealtime s[64:65]\ns_waitcnt lgkmcnt(0)\ns_sub_u32 s64, s64, s66\ns_cmp_lt_u32 s64, {spin}\ns_cbranch_scc1 L_spin")
    if diag:
        a("s_waitcnt vmcnt(0)")
        stamp(7)
        a("s_mov_b32 s31, 64")
        a("L_stamps:")
        a("s_waitcnt lgkmcnt(0)\ns_mov_b64 exec, 1")
        if dbgout:
            a("v_mov_b32 v8, 0\ns_cmp_lg_u32 s31, 0\ns_cbranch_scc1 L_dbgc")
            for n, k in enumerate((0, 2, 3, 4, 5)):
                a(f"v_mov_b32 v12, s{84+2*k}\nv_not_b32 v13, v12\nglobal_atomic_umax v8, v12, s[24:25] offset:{8*n}\nglobal_atomic_umax v8, v13, s[24:25] offset:{8*n+4}")
            a("s_endpgm\nL_dbgc:")
            for n, k in enumerate((2, 6, 7)):
                a(f"v_mov_b32 v12, s{84+2*k}\nv_not_b32 v13, v12\nglobal_atomic_umax v8, v12, s[24:25] offset:{40+8*n}\nglobal_atomic_umax v8, v13, s[24:25] offset:{44+8*n}")
        else:
            a("s_add_u32 s26, s26, 0x8000000\ns_addc_u32 s27, s27, 0\ns_lshl_b32 s74, s2, 7\ns_add_u32 s74, s74, s31\nv_mov_b32 v8, s74")
            for q in range(4):
                for e in range(4): a(f"v_mov_b32 v{12+e}, s{84+4*q+e}")
                a(f"global_store_dwordx4 v8, v[12:15], s[26:27] offset:{16*q}")
                a("s_nop 2")
    a("L_exit:\ns_endpgm")

    out = HDR
    out += "; Override launch geometry by editing the next line (default: block=256,\n"
    out += f"; @launch grid=(256,1,1) block=(320,1,1) lds={LDS_BYTES}\n"
    out += f'.amdgcn_target "amdgcn-amd-amdhsa--gfx950"\n.text\n.globl {NAME}\n.p2align 8\n.type {NAME},@function\n{NAME}:\n'
    out += a.text()
    out += f""".section .rodata,"a"
.p2align 6
.amdhsa_kernel {NAME}
  .amdhsa_next_free_vgpr 256
  .amdhsa_next_free_sgpr 102
  .amdhsa_accum_offset 256
  .amdhsa_group_segment_fixed_size 0
  .amdhsa_kernarg_size 96
  .amdhsa_user_sgpr_count 2
  .amdhsa_user_sgpr_kernarg_segment_ptr 1
  .amdhsa_system_sgpr_workgroup_id_x 1
  .amdhsa_float_denorm_mode_32 3
.end_amdhsa_kernel
"""
    return out, LDS_BYTES

if __name__ == "__main__":
    kw = {}
    for x in sys.argv[2:]:
        k, v = x.split("=")
        try: v = int(v)
        except ValueError: pass
        kw[k] = v
    s, lds = gen(**kw)
    open(sys.argv[1], "w").write(s)
    print("lds", lds)
```

```python
import sys
from asmlib import Asm

NAME = "parallel_sum__mha_block_cached__glu_gated_geglu__decode_kernel"
HDR = open("parallel_sum__mha_block_cached__glu_gated_geglu__decode.s.ref").read().split("; Override launch")[0]

H0Q, H0GU, H1, H2A, H2F = 0x1000, 0x50000, 0x90000, 0xD0000, 0xF0000
LOFF = 0x40000
PHI, REF = 0x1D0000, 0x1F0000
WS_BYTES = 0x200000
SC = 0
RED_Q, RED_G, RED_U, RED_A, RED_O, RED_L = [32768 + 2048 * i for i in range(6)]
QL = 32768 + 12288
HL = QL + 256
MX = HL + 1024
LS = MX + 16
FL = LS + 16
FG = FL + 16
QF = FG + 16
RF = QF + 16
PH = RF + 16
LDS_BYTES = PH + 32

DOC = '; ---------------------------------------------------------------------------------------------------------------------\n; ---------------------------------------------------------------------------------------------------------------------\n'
LOG2E = 0x3fb8aa3b
SCALE = 0x3db504f3

def gen(diag=False, epl=1, B0L=0, GE=0, GA=0, TL=0, NREP=8, RP=0, NREF=64, GP2=0, skipw='', HP=0, gap=2, T4=0, L4=2, LOC=1, h1l='sc1+nt', PD=1, QTO=8, fakex=0, LP=0, LN=16, lsl=0, gul='sc1', ql='sc1', exs='sc1', exl='sc1', WDW=0, CP=0, NB2F=1, GF=6, touch=0, DS0=0, KE=0, JD=0, MS=0, PT=0, PP=0, FW=0, KB=0, NBG=0, DB=12, MAP='rrww01234Bjjj', XK=0, IL=0, WI=1, qdelay=0, perm=0, qfl='sc1', tfl='sc1', WDF=3, warm=0, gufl='sc1+nt', nogu=0, noq=0, gudelay=0, spin=0, spinwg=-1, G0=4, GP=8, GG=2, GR=4, slope=1, noex=0, NWT=8, CSL=8, GEX=60, fixed=0, DL='5', TH='', T0=200, TAU=220, DT=5, early=4, dbgout=0, ser=0, maskpoll=1, sl1=1, sl2=1, D=8, DS=8, D2=0, NB2=0, pol_w="nt", pol_gu="nt", pol_kv="nt"):
    a = Asm()
    def stamp(i, mode=1):
        if diag == mode or (diag and i in (0, 7)) or (diag and incomm[0]):
            a(f"s_memrealtime s[{84+2*i}:{85+2*i}]")
    incomm = [False]
    def series(k):
        if not ser: return
        if k == 0: a("s_memrealtime s[100:101]")
        if k == 5: a("s_waitcnt lgkmcnt(0)\ns_mov_b32 m0, s71\ns_nop 0\nv_writelane_b32 v255, s100, m0\ns_add_u32 s71, s71, 1")
    def srd(n, lo, hi, size):
        a(f"s_mov_b32 s{n}, {lo}\ns_mov_b32 s{n+1}, {hi}\ns_mov_b32 s{n+2}, {size}\ns_mov_b32 s{n+3}, 0x20000")
    def wave_reduce(v, t, op):
        for r in (8, 4, 2, 1):
            a(f"{op}_dpp v{v}, v{v}, v{v} row_ror:{r} row_mask:0xf bank_mask:0xf")
        a(f"v_mov_b32 v{t}, v{v}\nv_permlane16_swap_b32 v{v}, v{t}\n{op} v{v}, v{v}, v{t}")
        a(f"v_mov_b32 v{t}, v{v}\nv_permlane32_swap_b32 v{v}, v{t}\n{op} v{v}, v{v}, v{t}")
    def rbf(v):
        a(f"v_cvt_pk_bf16_f32 v{v}, v{v}, v{v}\nv_and_b32 v{v}, 0xffff0000, v{v}")
    def buildA(buf, P, c):
        base = 24 + 4 * buf
        for t in range(4):
            a(f"v_and_b32_dpp v{base+t}, v{P}, v{120+t} row_newbcast:{c} row_mask:0xf bank_mask:0xf")
    def mfma(acc, buf, breg, first):
        base = 24 + 4 * buf
        a(f"v_mfma_f32_16x16x32_bf16 v[{acc}:{acc+3}], v[{base}:{base+3}], v[{breg}:{breg+3}], " + ("0" if first else f"v[{acc}:{acc+3}]"))
    def writeD(acc, off):
        a(f"s_mov_b64 exec, s[78:79]\nds_write_b128 v225, v[{acc}:{acc+3}] offset:{off}\ns_mov_b64 exec, -1")
    def poll(label, loads, tagregs, acc=250, t1=251, t2=252, sleep=1):
        a.fence()
        a(f"s_mov_b32 s77, 0x100000")
        a(f"{label}:")
        for l in loads: a(l)
        a("s_waitcnt vmcnt(0)")
        a(f"v_xor_b32 v{acc}, s30, v{tagregs[0]}")
        rest = tagregs[1:]
        while len(rest) >= 2:
            a(f"v_xor_b32 v{t1}, s30, v{rest[0]}\nv_xor_b32 v{t2}, s30, v{rest[1]}\nv_or3_b32 v{acc}, v{acc}, v{t1}, v{t2}")
            rest = rest[2:]
        if rest:
            a(f"v_xor_b32 v{t1}, s30, v{rest[0]}\nv_or_b32 v{acc}, v{acc}, v{t1}")
        a(f"v_cmp_ne_u32 vcc, 0, v{acc}")
        a(f"s_cmp_eq_u64 vcc, 0\ns_cbranch_scc1 {label}_ok")
        if maskpoll: a("s_mov_b64 exec, vcc")
        a(f"s_sub_u32 s77, s77, 1\ns_cmp_eq_u32 s77, 0\ns_cbranch_scc1 {label}_ok\ns_sleep {sleep}\ns_branch {label}")
        a(f"{label}_ok:")
        a("s_mov_b64 exec, -1")
    def pollc(label, loads, regs, full=(), acc=250, sleep=1, tries=0x100000, fail=None):
        a.fence()
        a(f"s_mov_b32 s77, {tries}")
        a(f"{label}:")
        for l in loads: a(l)
        a("s_waitcnt vmcnt(0)")
        a(f"v_xor_b32 v{acc}, s30, v{regs[0]}")
        for r in regs[1:]: a(f"v_bitop3_b32 v{acc}, v{r}, s30, v{acc} bitop3:0xbe")
        a(f"v_and_b32 v{acc}, 0xff, v{acc}")
        for r in full: a(f"v_bitop3_b32 v{acc}, v{r}, s30, v{acc} bitop3:0xbe")
        a(f"v_cmp_ne_u32 vcc, 0, v{acc}")
        a(f"s_cmp_eq_u64 vcc, 0\ns_cbranch_scc1 {label}_ok")
        a(f"s_sub_u32 s77, s77, 1\ns_cmp_eq_u32 s77, 0\ns_cbranch_scc1 {fail or label + '_ok'}")
        if sleep: a(f"s_sleep {sleep}")
        a(f"s_branch {label}")
        a(f"{label}_ok:")
        a("s_mov_b64 exec, -1")
    def pollp(label, mk, setA, setB, nlow, acc=250, gap=2):
        def check(regs):
            a(f"v_xor_b32 v{acc}, s30, v{regs[0]}")
            for r in regs[1:nlow]: a(f"v_bitop3_b32 v{acc}, v{r}, s30, v{acc} bitop3:0xbe")
            a(f"v_and_b32 v{acc}, 0xff, v{acc}")
            for r in regs[nlow:]: a(f"v_bitop3_b32 v{acc}, v{r}, s30, v{acc} bitop3:0xbe")
            a(f"v_cmp_ne_u32 vcc, 0, v{acc}\ns_cmp_eq_u64 vcc, 0")
        n = len(mk(setA))
        a.fence()
        a("s_mov_b32 s77, 0x100000")
        for l in mk(setA): a(l)
        a(f"s_sleep {gap}")
        a(f"{label}:")
        for l in mk(setB): a(l)
        a(f"s_waitcnt vmcnt({n})")
        check(setA)
        a(f"s_cbranch_scc1 {label}_ok")
        for l in mk(setA): a(l)
        a(f"s_waitcnt vmcnt({n})")
        check(setB)
        a(f"s_cbranch_scc1 {label}_b")
        a(f"s_sub_u32 s77, s77, 1\ns_cmp_lg_u32 s77, 0\ns_cbranch_scc1 {label}")
        a(f"{label}_b:")
        return
    def masks():
        a("v_and_b32 v12, 1, v3\nv_lshrrev_b32 v13, 1, v3\nv_cmp_eq_u32 vcc, 1, v12\nv_mov_b32 v14, 0xffff\nv_mov_b32 v15, 0xffff0000\nv_cndmask_b32 v14, v14, v15, vcc")
        for t in range(4):
            a(f"v_cmp_eq_u32 vcc, {t}, v13\nv_cndmask_b32 v{120+t}, 0, v14, vcc")
    def poll_rows(label, loads, sbase, sleep=1, tagreg="s30", mask=None, hook=None):
        a.fence()
        n = len(loads)
        a(f"s_mov_b32 s77, 0x100000\ns_mov_b32 s76, {(1 << n) - 1}")
        a(f"{label}:")
        for i, (l, _, _) in enumerate(loads):
            a(f"s_bitcmp1_b32 s76, {i}\ns_cbranch_scc0 {label}_s{i}")
            a(l)
            a(f"{label}_s{i}:")
        a("s_waitcnt vmcnt(0)")
        for i, (_, ta, tb) in enumerate(loads):
            a(f"v_xor_b32 v250, {tagreg}, v{ta}\nv_bitop3_b32 v250, v{tb}, {tagreg}, v250 bitop3:0xbe")
            if mask: a(f"v_and_b32 v250, {mask}, v250")
            a(f"v_cmp_ne_u32 s[{sbase+2*i}:{sbase+2*i+1}], 0, v250")
        a("s_mov_b32 s76, 0")
        for i in range(n):
            a(f"s_cmp_lg_u64 s[{sbase+2*i}:{sbase+2*i+1}], 0\ns_cselect_b32 s74, {1 << i}, 0\ns_or_b32 s76, s76, s74")
        a(f"s_cmp_eq_u32 s76, 0\ns_cbranch_scc1 {label}_ok")
        if hook:
            a(f"s_cmp_lg_u32 s77, {0x100000 - QTO}\ns_cbranch_scc1 {label}_nh\n{hook}\n{label}_nh:")
        a(f"s_sub_u32 s77, s77, 1\ns_cmp_eq_u32 s77, 0\ns_cbranch_scc1 {label}_ok\ns_sleep {sleep}\ns_branch {label}")
        a(f"{label}_ok:")

    a("s_cmp_ge_u32 s2, 256\ns_cbranch_scc1 L_exit")
    stamp(0)
    if fixed or spin: a("s_memrealtime s[66:67]")
    a("s_load_dwordx16 s[4:19], s[0:1], 0\ns_load_dwordx8 s[20:27], s[0:1], 64")
    a("v_lshrrev_b32 v5, 6, v0\nv_and_b32 v1, 63, v0\nv_readfirstlane_b32 s3, v5")
    a("v_lshrrev_b32 v2, 4, v1\nv_and_b32 v3, 15, v1")
    if perm == 1: a("s_and_b32 s28, s2, 7\ns_lshl_b32 s28, s28, 5\ns_lshr_b32 s2, s2, 3\ns_add_u32 s2, s2, s28")
    a("s_lshr_b32 s28, s2, 3\ns_and_b32 s29, s2, 7")
    a("s_mov_b32 s78, -1\ns_mov_b32 s79, 0")
    a("v_lshlrev_b32 v6, 4, v1")
    a("v_lshlrev_b32 v7, 4, v3")
    a("s_lshl_b32 s74, s29, 2\ns_add_u32 s74, s74, s3\ns_lshl_b32 s74, s74, 5")
    a("s_waitcnt lgkmcnt(0)")
    stamp(1, 2)
    a("s_load_dword s30, s[26:27], 0")
    srd(52, "s4", "s5", 2048)
    srd(56, "s26", "s27", WS_BYTES)
    a("s_cmp_eq_u32 s3, 4\ns_cbranch_scc1 L_comm")

    a("buffer_load_dwordx4 v[96:99], v6, s[52:55], 0 offen\nbuffer_load_dwordx4 v[100:103], v6, s[52:55], 0 offen offset:1024")
    a("v_and_b32 v8, 7, v3\nv_lshl_add_u32 v8, v8, 2, v2\nv_lshlrev_b32 v8, 1, v8\ns_lshl_b32 s75, s74, 1")
    a("buffer_load_ushort v9, v8, s[52:55], s75 offen")
    srd(40, "s10", "s11", 0 if "q" in skipw else 1024 * 8192)
    a("v_lshl_add_u32 v10, v2, 13, v7")
    a("s_lshl_b32 s75, s74, 13\ns_lshl_b32 s76, s28, 8\ns_add_u32 s75, s75, s76")
    for i in range(8):
        a(f"buffer_load_dwordx4 v[{128+4*i}:{131+4*i}], v10, s[40:43], s75 offen {pol_w}")
        if i < 7: a("s_add_u32 s75, s75, 32768")
    srd(44, "s16", "s17", 0 if "g" in skipw else 1024 * 7168)
    srd(48, "s18", "s19", 0 if "g" in skipw else 1024 * 7168)
    a("v_mul_u32_u24 v11, 7168, v2\nv_add_u32 v11, v11, v7")
    a("v_cmp_gt_u32 vcc, 14, v3\nv_mov_b32 v12, 0x80000000\nv_cndmask_b32 v11, v12, v11, vcc")
    a("s_mul_i32 s76, s74, 7168\ns_mul_i32 s31, s28, 224\ns_add_u32 s76, s76, s31\ns_mov_b32 s75, s76")
    def gload(i):
        a(f"buffer_load_dwordx4 v[{160+4*i}:{163+4*i}], v11, s[44:47], s75 offen {pol_gu}\ns_add_u32 s75, s75, {4*7168}")
    def uload(i):
        a(f"buffer_load_dwordx4 v[{192+4*i}:{195+4*i}], v11, s[48:51], s76 offen {pol_gu}\ns_add_u32 s76, s76, {4*7168}")
    for i in range(GE): gload(i)
    if not B0L: a("s_barrier")
    pos = {"r": [], "w": [], "n": [0] * 5, "j": [], "b": []}
    bit = 8
    for ch in str(MAP).replace("B", "bbbb"):
        if ch.isdigit(): pos["n"][int(ch)] = bit
        else: pos[ch].append(bit)
        bit += 1
    assert bit == 24 and len(pos["w"]) == 2 and len(pos["r"]) == 2 and len(pos["j"]) == 3 and len(set(pos["n"])) == 5 and len(pos["b"]) == 4
    maskB = sum(1 << b for b in pos["b"])
    contig = pos["b"][3] - pos["b"][0] == 3
    def spread(sreg, bits, dst):
        a(f"s_mov_b32 {dst}, 0")
        for i, b in enumerate(bits):
            a(f"s_bfe_u32 s38, {sreg}, {(1 << 16) | i}\ns_lshl_b32 s38, s38, {b}\ns_or_b32 {dst}, {dst}, s38")
    spread("s29", pos["j"], "s39")
    a("s_lshl_b32 s31, s28, 24\ns_add_u32 s31, s31, s39\ns_sub_u32 s34, 0x1000000, s39")
    a("s_add_u32 s32, s6, s31\ns_addc_u32 s33, s7, 0\ns_mov_b32 s35, 0x20000")
    a("s_add_u32 s36, s8, s31\ns_addc_u32 s37, s9, 0")
    spread("s3", pos["w"], "s39")
    a(f"v_and_b32 v4, 1, v2\nv_lshlrev_b32 v4, {pos['r'][0]}, v4\nv_lshrrev_b32 v5, 1, v2\nv_lshl_add_u32 v4, v5, {pos['r'][1]}, v4\nv_add3_u32 v4, v4, s39, v7")
    if XK == 1: a("s_and_b32 s60, s2, 31")
    if XK == 2: a("s_mov_b32 s60, s28")
    if XK == 3: a("s_lshl_b32 s60, s29, 2")
    if XK == 4: a("s_lshl_b32 s60, s29, 2\ns_xor_b32 s60, s60, s28")
    if XK == 5: a("s_mul_i32 s60, s2, 0x9e3779b1\ns_lshr_b32 s60, s60, 27")
    if XK == 6: a("s_lshl_b32 s60, s28, 2\ns_and_b32 s60, s60, 28")
    if XK == 7: a("s_and_b32 s60, s28, 28")
    if XK == 8: a("s_and_b32 s60, s28, 3")
    if XK == 9: a("s_lshr_b32 s60, s28, 3")
    if XK == 10: a("s_mul_i32 s60, s28, 0x9e3779b1\ns_lshr_b32 s60, s60, 27")
    if XK == 11: a("s_mov_b32 s60, s3")
    if XK == 12: a("s_and_b32 s60, s29, 1\ns_lshl_b32 s60, s60, 1\ns_xor_b32 s60, s60, s3")
    if XK:
        spread("s60", pos["n"], "s61")
    fn = [sum(((n >> i) & 1) << b for i, b in enumerate(pos["n"])) for n in range(32)] + [1 << pos["b"][0]]
    a("s_mov_b32 s72, 0")
    if XK: a("s_mov_b32 s60, s61")
    if ser: a("s_mov_b32 s71, 0\nv_mov_b32 v255, 0")
    def kslot(n):
        n %= 32
        return 32 + 4 * n if n < 16 else 128 + 4 * (n - 16)
    slot_of = {kslot(n): n for n in range(32)}
    def issueS(reg):
        n = slot_of[reg]
        inc = (fn[n + 1] - fn[n]) & 0xffffffff
        if n == 31 and not contig:
            assert not XK
            a(f"buffer_load_dwordx4 v[{reg}:{reg+3}], v4, s[32:35], s72 offen {pol_kv}\ns_or_b32 s72, s72, {(~maskB) & 0xffffffff}\ns_add_u32 s72, s72, 1\ns_and_b32 s72, s72, {maskB}")
            return
        if XK:
            a(f"buffer_load_dwordx4 v[{reg}:{reg+3}], v4, s[32:35], s60 offen {pol_kv}\ns_add_u32 s72, s72, {inc}\ns_xor_b32 s60, s72, s61")
        else:
            a(f"buffer_load_dwordx4 v[{reg}:{reg+3}], v4, s[32:35], s72 offen {pol_kv}\ns_add_u32 s72, s72, {inc}")
    for n in range(KE): issueS(kslot(n))
    masks()
    a("v_cmp_eq_u32 s[82:83], 1, v12\nv_and_b32 v13, 1, v13\nv_cmp_eq_u32 s[80:81], 1, v13")
    a("s_lshl_b32 s31, s3, 9\nv_lshlrev_b32 v225, 5, v3\nv_lshl_add_u32 v225, v2, 4, v225\nv_add_u32 v225, s31, v225")
    a("s_lshl_b32 s31, s3, 13\nv_lshlrev_b32 v224, 2, v1\nv_add_u32 v224, s31, v224")
    if B0L == 1: a("s_barrier")
    a(f"s_waitcnt vmcnt({8 + GE + KE})")
    stamp(2, 2)
    assert GE <= early
    for i in range(GE, early): gload(i)
    for k in range(8):
        a(f"v_lshlrev_b32 v{104+2*k}, 16, v{96+k}\nv_and_b32 v{105+2*k}, 0xffff0000, v{96+k}")
    a("v_add_f32 v12, v104, v105\nv_add_f32 v13, v106, v107\nv_add_f32 v14, v108, v109\nv_add_f32 v15, v110, v111")
    a("v_add_f32 v16, v112, v113\nv_add_f32 v17, v114, v115\nv_add_f32 v18, v116, v117\nv_add_f32 v19, v118, v119")
    a("v_add_f32 v12, v12, v13\nv_add_f32 v14, v14, v15\nv_add_f32 v16, v16, v17\nv_add_f32 v18, v18, v19")
    a("v_add_f32 v12, v12, v14\nv_add_f32 v16, v16, v18\nv_add_f32 v12, v12, v16")
    wave_reduce(12, 13, "v_add_f32")
    a("v_mul_f32 v12, 0x3a800000, v12")
    for k in range(16):
        a(f"v_sub_f32 v{104+k}, v{104+k}, v12")
    a("v_mul_f32 v14, v104, v104\nv_mul_f32 v15, v105, v105\nv_mul_f32 v16, v106, v106\nv_mul_f32 v17, v107, v107")
    for k in range(4, 16):
        a(f"v_fmac_f32 v{14+k%4}, v{104+k}, v{104+k}")
    a("v_add_f32 v14, v14, v15\nv_add_f32 v16, v16, v17\nv_add_f32 v14, v14, v16")
    wave_reduce(14, 13, "v_add_f32")
    a("v_mul_f32 v14, 0x3a800000, v14")
    rbf(14); rbf(12)
    a("v_add_f32 v14, 0x3727c5ac, v14")
    rbf(14)
    a("v_sqrt_f32 v14, v14")
    rbf(14)
    a("v_rcp_f32 v14, v14\nv_lshlrev_b32 v9, 16, v9\nv_sub_f32 v9, v9, v12")
    rbf(9)
    a("v_mul_f32 v9, v9, v14\nv_cvt_pk_bf16_f32 v124, v9, v9")
    stamp(3, 2)
    if B0L == 2: a("s_barrier")
    def stage1(acc, wbase):
        buildA(0, 124, 0)
        for i in range(8):
            if i < 7: buildA((i + 1) & 1, 124, i + 1)
            mfma(acc, i & 1, wbase + 4 * i, i == 0)
    a(f"s_waitcnt vmcnt({early + KE})")
    stamp(4, 2)
    for i in range(early, 8): gload(i)
    stage1(12, 128)
    writeD(12, RED_Q)
    a(f"s_lshl_b32 s31, s3, 2\nv_mov_b32 v16, s31\nv_mov_b32 v17, 1\nds_write_b32 v16, v17 offset:{FL}")
    stamp(1); stamp(5, 2)
    WO0 = 192
    def wsetup():
        srd(40, "s12", "s13", 0 if "o" in skipw else 4096 * 2048)
        a("v_lshl_add_u32 v240, v2, 14, v7")
        a("s_lshl_b32 s31, s28, 2\ns_add_u32 s31, s31, s3\ns_lshl_b32 s75, s31, 16\ns_lshl_b32 s31, s29, 8\ns_add_u32 s75, s75, s31")
        a("v_and_b32 v232, 7, v3\nv_lshrrev_b32 v233, 3, v3\ns_lshl_b32 s31, s28, 13\ns_add_u32 s31, s31, %d" % H1)
        a("v_lshlrev_b32 v232, 10, v232\nv_add_u32 v232, s31, v232")
        a("v_lshlrev_b32 v233, 4, v233\nv_lshl_add_u32 v233, v2, 5, v233\ns_lshl_b32 s31, s3, 7\nv_add3_u32 v233, v233, s31, v232")
        a("s_add_u32 s30, s30, 1")
    wl_all = []
    for t in range(8):
        wl_all.append(f"buffer_load_dwordx4 v[{WO0+4*t}:{WO0+3+4*t}], v240, s[40:43], s75 offen {pol_w}\ns_add_u32 s75, s75, 2048")
    assert DS <= 8 and KE + DS - 1 <= 15
    stamp(1, 3)
    for i in range(8):
        a(f"s_waitcnt vmcnt({DS-1})")
        uload(i)
    stamp(2, 3)
    for n in range(KE, 32):
        a(f"s_waitcnt vmcnt({(DS0 if (DS0 and n >= 16) else DS)-1})")
        issueS(kslot(n))
        if n % 8 == 7: stamp(3 + n // 8, 3)
        if n == KE:
            stage1(16, 160)
        if n == KE + DS - 1:
            stage1(20, 192)
            writeD(16, RED_G)
            writeD(20, RED_U)
            if NB2F: a(f"s_lshl_b32 s31, s3, 2\nv_mov_b32 v16, s31\nv_mov_b32 v17, 1\nds_write_b32 v16, v17 offset:{FG}")
        if n == 15:
            a("s_waitcnt lgkmcnt(0)")
            wsetup()
            for x in wl_all[:8 - NWT]:
                a(f"s_waitcnt vmcnt({DS-1})"); a(x)
    a("v_mov_b32 v126, 0xff800000\nv_mov_b32 v127, 0\ns_mov_b32 s76, %d" % SCALE)
    stamp(6, 2)
    if NB2F:
        a("v_mov_b32 v247, 0")
        a.fence()
        a(f"L_qw:\nds_read_b32 v16, v247 offset:{QF}\nds_read_b128 v[8:11], v7 offset:{QL}\ns_waitcnt lgkmcnt(0)\nv_readfirstlane_b32 s31, v16")
        a("s_cmp_eq_u32 s31, 1\ns_cbranch_scc1 L_qw_ok\ns_sleep 1\ns_branch L_qw\nL_qw_ok:")
        stamp(2)
    else:
        a("s_waitcnt lgkmcnt(0)\ns_barrier")
        stamp(2)
        a(f"ds_read_b128 v[8:11], v7 offset:{QL}\ns_waitcnt lgkmcnt(0)")
    levels = [float(x.replace("h", ".5").replace("q", ".25").replace("t", ".75")) for x in str(DL).split("-")]
    def wv(d, k):
        f = d - int(d)
        up = (f == 0.5 and k % 2 == 1) or (f == 0.25 and k % 4 == 3) or (f == 0.75 and k % 4 != 0)
        return int(d) - 1 + (1 if up else 0)
    ths = [int(x) for x in str(TH).split("/")] if TH != "" else []
    assert len(ths) == len(levels) - 1
    a(f"s_mov_b32 s70, {len([t for t in ths if t < 0])}\ns_mov_b32 s69, 0\ns_mov_b32 s67, 0")
    if fixed: a(f"s_add_u32 s66, s66, {T0}")
    a("s_lshl_b32 s31, s3, 3\nv_mov_b32 v246, s31\nv_mov_b32 v247, 0")
    def control(k):
        if k == 7: a(f"s_memrealtime s[64:65]\nds_read_b64 v[242:243], v247 offset:{RF}")
        if k == 12:
            a("s_waitcnt lgkmcnt(0)\nv_readfirstlane_b32 s62, v242\nv_readfirstlane_b32 s63, v243")
            a("s_sub_u32 s68, s64, s69\ns_add_u32 s69, s69, %d\ns_add_u32 s67, s67, 1" % TAU)
            a(f"v_mov_b32 v244, s68\nv_mov_b32 v245, s67\nds_write_b64 v246, v[244:245] offset:{PH}")
            if fixed: a("s_sub_u32 s68, s68, s66")
            else: a("s_sub_u32 s68, s68, s62\ns_and_b32 s68, s68, s63")
            a("s_mov_b32 s70, 0")
            for i, t in enumerate(ths):
                a(f"s_cmp_gt_i32 s68, {t}\ns_addc_u32 s70, s70, 0")
            if T4: a(f"s_cmp_gt_i32 s68, {T4}\ns_cselect_b32 s70, {L4}, s70")
    uid = [0]
    def variants(fn):
        uid[0] += 1; u = uid[0]
        a.fence()
        for i in range(1, len(levels)):
            a(f"s_cmp_eq_u32 s70, {i}\ns_cbranch_scc1 L_v{u}_{i}")
        for i, d in enumerate(levels):
            if i: a(f"L_v{u}_{i}:")
            fn(d)
            a.fence()
            if i < len(levels) - 1: a(f"s_branch L_v{u}_end")
        a(f"L_v{u}_end:")

    def kgroup(half, d):
        for k in range(16):
            series(k); control(k)
            r = kslot(16 * half + k); acc = 12 + k % 4
            a(f"v_dot2_f32_bf16 v{acc}, v{r}, v8, 0\nv_dot2_f32_bf16 v{acc}, v{r+1}, v9, v{acc}\nv_dot2_f32_bf16 v{acc}, v{r+2}, v10, v{acc}\nv_dot2_f32_bf16 v{acc}, v{r+3}, v11, v{acc}")
            a(f"s_waitcnt vmcnt({wv(d, k)})")
            issueS(r)
            if k % 4 == 3:
                C = 20 + k // 4
                a("v_add_f32_dpp v16, v12, v12 row_ror:8 row_mask:0xf bank_mask:0x3")
                a("v_add_f32_dpp v17, v14, v14 row_ror:8 row_mask:0xf bank_mask:0x3")
                a("v_add_f32_dpp v16, v13, v13 row_ror:8 row_mask:0xf bank_mask:0xc")
                a("v_add_f32_dpp v17, v15, v15 row_ror:8 row_mask:0xf bank_mask:0xc")
                a(f"v_add_f32_dpp v{C}, v16, v16 row_shl:4 row_mask:0xf bank_mask:0x5")
                a(f"v_add_f32_dpp v{C}, v17, v17 row_shr:4 row_mask:0xf bank_mask:0xa")
        for C in range(20, 24):
            a(f"v_add_f32_dpp v{C}, v{C}, v{C} quad_perm:[2,3,0,1] row_mask:0xf bank_mask:0xf")
        a("v_cndmask_b32 v20, v20, v21, s[80:81]\nv_cndmask_b32 v22, v22, v23, s[80:81]")
        a("v_add_f32_dpp v20, v20, v20 quad_perm:[1,0,3,2] row_mask:0xf bank_mask:0xf")
        a("v_add_f32_dpp v22, v22, v22 quad_perm:[1,0,3,2] row_mask:0xf bank_mask:0xf")
        a("v_cndmask_b32 v18, v20, v22, s[82:83]")
        rbf(18)
        a("v_mul_f32 v18, s76, v18")
        rbf(18)
        a("v_max_f32 v126, v126, v18\nds_write_b32 v224, v18\nv_add_u32 v224, 256, v224")
    a("s_mov_b32 s73, 16")
    a("L_kloop:")
    a("s_cmp_lg_u32 s73, 1\ns_cbranch_scc1 L_knosw\ns_mov_b32 s32, s36\ns_mov_b32 s33, s37\ns_mov_b32 s72, 0\n" + ("s_mov_b32 s60, s61\n" if XK else "") + "L_knosw:")
    variants(lambda d: kgroup(0, d))
    if KB: a(f"s_cmp_eq_u32 s73, 1\ns_cselect_b32 s70, {len(levels)-1}, s70")
    variants(lambda d: kgroup(1, d))
    a("s_sub_u32 s73, s73, 1\ns_cmp_lg_u32 s73, 0\ns_cbranch_scc1 L_kloop")
    wave_reduce(126, 13, "v_max_f32")
    a(f"s_lshl_b32 s31, s3, 2\nv_mov_b32 v13, s31\nds_write_b32 v13, v126 offset:{MX}")
    a("v_subrev_u32 v224, 8192, v224")
    stamp(3)
    a("ds_read_b32 v125, v224\nv_mov_b32 v226, v126")
    a("s_mov_b32 s76, %d" % LOG2E)
    a("s_waitcnt lgkmcnt(0)")
    def mkP():
        a("v_sub_f32 v125, v125, v226\nv_mul_f32 v125, s76, v125\nv_exp_f32 v125, v125\nv_add_f32 v127, v127, v125\nv_cvt_pk_bf16_f32 v125, v125, v125")
    mkP()
    a("v_mov_b32 v124, v125\nv_mov_b32 v12, 0\nv_mov_b32 v13, 0\nv_mov_b32 v14, 0\nv_mov_b32 v15, 0")
    lam = [4 * (((c >> 1) & 1) + 2 * (c & 1)) + [0, 2, 1, 3][c >> 2] for c in range(16)]
    inv = [lam.index(i) for i in range(16)]
    buildA(0, 124, inv[0])
    def vgroup(half, pre, post, last=False, ctl=True):
        for k in range(16):
            series(k)
            if ctl: control(k)
            if k == 0 and not last:
                a("v_add_u32 v224, 256, v224\nds_read_b32 v125, v224")
            if k == 6 and not last:
                a("s_waitcnt lgkmcnt(0)"); mkP()
            if k < 15: buildA((k + 1) & 1, 124, inv[k + 1])
            elif not last:
                buildA(0, 125, inv[0]); a("v_mov_b32 v124, v125")
            pre(k)
            mfma(12, k & 1, kslot(16 * half + k), False)
            post(k)
            if last and k == 2:
                wave_reduce(127, 16, "v_add_f32")
                a(f"s_lshl_b32 s31, s3, 9\nv_mov_b32 v20, s31\nv_mov_b32 v16, v127\nv_mov_b32 v17, 0\nv_mov_b32 v18, 0\nv_mov_b32 v19, 0\nds_write_b128 v20, v[16:19] offset:{RED_L}")
    def vsteady(half, d):
        def post(k):
            a(f"s_waitcnt vmcnt({wv(d, k)})"); issueS(kslot(16 * half + k))
        vgroup(half, lambda k: None, post)
    a(f"s_mov_b32 s73, {15 - (NBG + 1) // 2}")
    a("L_vloop:")
    variants(lambda d: vsteady(0, d))
    variants(lambda d: vsteady(1, d))
    a("s_sub_u32 s73, s73, 1\ns_cmp_lg_u32 s73, 0\ns_cbranch_scc1 L_vloop")
    if NBG % 2: variants(lambda d: vsteady(0, d))
    for i in range(NBG): vsteady((NBG + i) % 2, DB)
    wl = wl_all[8 - NWT:]
    nw = [0]
    dmax = DB if NBG else int(max(levels) + 0.99)
    wsteps = [n for n in range(32) if (n < 32 - DT and n % 5 == 4) or n >= 32 - DT]
    def fin(half):
        def pre(k):
            n = 16 * half + k
            if n >= 32 - dmax: a(f"s_waitcnt vmcnt({31 - n + nw[0]})")
        def post(k):
            n = 16 * half + k
            if n in wsteps and nw[0] < len(wl):
                a(wl[nw[0]]); nw[0] += 1
        vgroup(half, pre, post, last=(half == 1), ctl=False)
    a("L_tail0:")
    fin(0); fin(1)
    writeD(12, RED_O)
    for x in wl[nw[0]:]: a(x)
    a("s_waitcnt lgkmcnt(0)\ns_barrier")
    stamp(4)
    pollc("L_p1", ["buffer_load_dwordx4 v[228:231], v233, s[56:59], 0 offen " + h1l.replace("+", " "),
                   "buffer_load_dwordx4 v[236:239], v232, s[56:59], 0 offen offset:512 " + h1l.replace("+", " ")], [228, 229, 230, 231, 236, 237], full=(238, 239), sleep=sl1)
    stamp(5)
    steps = ["quad_perm:[1,0,3,2]", "quad_perm:[2,3,0,1]", "row_half_mirror"]
    O4 = (228, 229, 230, 231)
    a("v_and_b32 v237, 0xffffff00, v237\nv_mov_b32 v240, v237")
    for s in steps: a(f"v_max_f32_dpp v240, v240, v240 {s} row_mask:0xf bank_mask:0xf")
    a("v_sub_f32 v237, v237, v240\nv_mul_f32 v237, s76, v237\nv_exp_f32 v237, v237")
    for v in (236,) + O4: a(f"v_mul_f32 v{v}, v{v}, v237")
    for s in steps:
        for v in (236,) + O4: a(f"v_add_f32_dpp v{v}, v{v}, v{v} {s} row_mask:0xf bank_mask:0xf")
    a("v_rcp_f32 v236, v236")
    for v in O4: a(f"v_mul_f32 v{v}, v{v}, v236")
    for v in O4: a(f"v_cvt_pk_bf16_f32 v{v}, v{v}, v{v}")
    seq = [(b, i) for b in range(2) for i in range(4)]
    buildA(0, 228, 0)
    for t, (b, i) in enumerate(seq):
        if t < 7:
            b2, i2 = seq[t + 1]; buildA((t + 1) & 1, 228 + i2, 8 * b2)
        mfma(16, t & 1, WO0 + 4 * t, t == 0)
    writeD(16, RED_A)
    a("s_waitcnt lgkmcnt(0)\ns_barrier")
    stamp(6)
    if LP:
        a("s_cmp_lg_u32 s3, 0\ns_cbranch_scc1 L_norem\ns_mov_b64 exec, s[78:79]")
        for w in range(4): a(f"ds_read_b128 v[{32+4*w}:{35+4*w}], v6 offset:{RED_A+512*w}")
        a("s_lshl_b32 s31, s2, 9\ns_add_u32 s31, s31, %d\ns_mov_b32 s62, 0xff\nv_mov_b32 v20, s30\ns_waitcnt lgkmcnt(0)" % H2A)
        for i in range(4): a(f"v_add_f32 v{32+i}, v{32+i}, v{36+i}\nv_add_f32 v{40+i}, v{40+i}, v{44+i}")
        for i in range(4): a(f"v_add_f32 v{32+i}, v{32+i}, v{40+i}")
        for i in range(4): a(f"v_bfi_b32 v{32+i}, s62, v20, v{32+i}")
        a("buffer_store_dwordx4 v[32:35], v6, s[56:59], s31 offen sc1\ns_mov_b64 exec, -1")
        a.fence()
        a("L_norem:")
    if ser:
        a("s_add_u32 s68, s26, 0x9000000\ns_addc_u32 s69, s27, 0\ns_lshl_b32 s31, s2, 2\ns_add_u32 s31, s31, s3\ns_lshl_b32 s31, s31, 8\nv_lshlrev_b32 v16, 2, v1\nv_add_u32 v16, s31, v16")
        a("global_store_dword v16, v255, s[68:69]")
    if diag:
        a("s_waitcnt lgkmcnt(0)\ns_getreg_b32 s98, hwreg(HW_REG_HW_ID)\ns_getreg_b32 s99, hwreg(HW_REG_XCC_ID)")
        a("s_cmp_lg_u32 s3, 0\ns_cbranch_scc1 L_exit\ns_mov_b32 s31, 0\ns_branch L_stamps")
    else:
        a("s_endpgm")

    a("L_comm:")
    incomm[0] = True
    a(f"v_mov_b32 v8, 0\nv_mov_b32 v20, 0\nv_mov_b32 v21, 0\nv_mov_b32 v22, 0\nv_mov_b32 v23, 0\nds_write_b128 v8, v[20:23] offset:{FL}\nds_write_b128 v8, v[20:23] offset:{FG}\nds_write_b128 v8, v[20:23] offset:{QF}\nds_write_b128 v8, v[20:23] offset:{RF}\nds_write_b128 v8, v[20:23] offset:{PH}\nds_write_b128 v8, v[20:23] offset:{PH+16}\ns_waitcnt lgkmcnt(0)\ns_barrier")
    a("s_lshl_b32 s31, s29, 8\ns_and_b32 s75, s28, 3\ns_lshl_b32 s75, s75, 6\ns_add_u32 s75, s75, s31")
    a("v_and_b32 v37, 7, v1\nv_lshlrev_b32 v38, 3, v37")
    a("buffer_load_dwordx2 v[10:11], v38, s[52:55], s75 offen")
    if TL:
        a("s_lshl_b32 s31, s28, 24\ns_add_u32 s72, s8, s31\ns_addc_u32 s73, s9, 0\ns_lshl_b32 s31, s28, 18\ns_add_u32 s80, s12, s31\ns_addc_u32 s81, s13, 0\ns_mov_b32 s82, 27")
    def wdload():
        srd(36, "s20", "s21", 0 if "d" in skipw else 3584 * 2048)
        a("v_lshl_add_u32 v58, v2, 11, v7\ns_mul_i32 s35, s28, %d\ns_lshl_b32 s31, s29, 8\ns_add_u32 s35, s35, s31" % (112 * 2048))
        for i in range(28):
            if i >= WDF: a(f"s_waitcnt vmcnt({WDF-1})")
            a(f"buffer_load_dwordx4 v[{128+4*i}:{131+4*i}], v58, s[36:39], s35 offen {pol_w}\ns_add_u32 s35, s35, 8192")
    if CP:
        a("s_and_b32 s34, s2, 31" if perm == 1 else "s_mov_b32 s34, s28")
        a(f"s_cmp_ge_u32 s34, {CP}\ns_cbranch_scc1 L_nocp")
        a(f"s_getpc_b64 s[32:33]\nL_pc0:\ns_sub_u32 s32, s32, L_pc0-{NAME}\ns_subb_u32 s33, s33, 0\ns_lshl_b32 s31, s34, 13\nv_add_u32 v20, s31, v6\ns_mov_b32 s31, L_exit-{NAME}-16")
        for i in range(8): a(f"v_min_u32 v{21+i}, s31, v20\nglobal_load_dwordx4 v[{64+4*i}:{67+4*i}], v{21+i}, s[32:33]\nv_add_u32 v20, 1024, v20")
        a("L_nocp:")
    if WDW == 1: wdload()
    if touch:
        a("s_mov_b64 exec, 1")
        a("s_lshl_b32 s31, s28, 24\ns_add_u32 s32, s6, s31\ns_addc_u32 s33, s7, 0\nglobal_load_dword v20, v8, s[32:33] nt")
        a("s_mul_i32 s31, s29, %d\ns_add_u32 s32, s16, s31\ns_addc_u32 s33, s17, 0\nglobal_load_dword v21, v8, s[32:33] nt" % (128 * 7168))
        a("s_add_u32 s32, s18, s31\ns_addc_u32 s33, s19, 0\nglobal_load_dword v22, v8, s[32:33] nt")
        a("global_load_dword v23, v8, s[26:27] nt")
        a("s_mov_b64 exec, -1")
    masks()
    srd(68, "s22", "s23", 2048)
    a("v_lshlrev_b32 v9, 3, v1")
    a("s_lshl_b32 s31, s2, 10\ns_add_u32 s40, s31, %d" % H0Q)
    a("s_lshl_b32 s31, s28, 13\ns_add_u32 s41, s31, %d\ns_add_u32 s42, s41, 4096" % H0Q)
    a("s_waitcnt lgkmcnt(0)\ns_add_u32 s30, s30, 1")
    def red4(dst, off, tmp):
        for w in range(4): a(f"ds_read_b64 v[{tmp+2*w}:{tmp+2*w+1}], v9 offset:{off+512*w}")
    def sum4(dst, tmp):
        a(f"v_add_f32 v{dst}, v{tmp}, v{tmp+2}\nv_add_f32 v{dst+2}, v{tmp+1}, v{tmp+3}\nv_add_f32 v{tmp+4}, v{tmp+4}, v{tmp+6}\nv_add_f32 v{tmp+5}, v{tmp+5}, v{tmp+7}")
        a(f"v_add_f32 v{dst}, v{dst}, v{tmp+4}\nv_add_f32 v{dst+2}, v{dst+2}, v{tmp+5}")
    a("v_mov_b32 v13, s30\nv_mov_b32 v15, s30\nv_mov_b32 v17, s30\nv_mov_b32 v19, s30")
    a.fence()
    a(f"L_fl:\nds_read_b128 v[20:23], v8 offset:{FL}\ns_waitcnt lgkmcnt(0)\nv_and_b32 v20, v20, v21\nv_and_b32 v22, v22, v23\nv_and_b32 v20, v20, v22\nv_readfirstlane_b32 s31, v20")
    a("s_cmp_eq_u32 s31, 1\ns_cbranch_scc1 L_fl_ok\ns_sleep 1\ns_branch L_fl\nL_fl_ok:")
    stamp(1)
    red4(12, RED_Q, 20); a("s_waitcnt lgkmcnt(0)"); sum4(12, 20)
    if LOC:
        a("s_getreg_b32 s65, hwreg(HW_REG_XCC_ID)\ns_and_b32 s65, s65, 15")
        if fakex: a("s_mov_b32 s65, s29")
        a("s_lshl_b32 s65, s65, 28\ns_and_b32 s31, s30, 0xfffffff\ns_or_b32 s65, s65, s31\nv_mov_b32 v13, s65\nv_mov_b32 v15, s65")
        a("buffer_store_dwordx4 v[12:15], v6, s[56:59], s40 offen")
        if WDW == 2: wdload()
        up = "buffer_store_dwordx4 v[12:15], v6, s[56:59], s40 offen sc1"
        poll_rows("L_p0", [(f"buffer_load_dwordx4 v[{64+4*jj}:{67+4*jj}], v6, s[56:59], s{41+jj//4} offen offset:{1024*(jj%4)} {ql.replace('+', ' ')}", 65 + 4 * jj, 67 + 4 * jj) for jj in range(8)], 4,
                  tagreg="s65", mask="0xfffffff", hook=up)
        a("v_xor_b32 v250, s65, v65")
        for jj in range(1, 8): a(f"v_bitop3_b32 v250, v{65+4*jj}, s65, v250 bitop3:0xbe")
        a("v_cmp_ne_u32 vcc, 0, v250\ns_cmp_eq_u64 vcc, 0\ns_cselect_b32 s11, 1, 0\ns_cbranch_scc1 L_qloc")
        a(up)
        a("L_qloc:\ns_nop 1\nv_mov_b32 v13, s30\nv_mov_b32 v15, s30")
    else:
        if noq != 1: a("buffer_store_dwordx4 v[12:15], v6, s[56:59], s40 offen " + qfl.replace("+", " "))
        if qdelay: a(f"s_sleep {qdelay}")
        if WDW == 2: wdload()
        if noq:
            pass
        elif maskpoll:
            poll_rows("L_p0", [(f"buffer_load_dwordx4 v[{64+4*jj}:{67+4*jj}], v6, s[56:59], s{41+jj//4} offen offset:{1024*(jj%4)} {ql.replace('+', ' ')}", 65 + 4 * jj, 67 + 4 * jj) for jj in range(8)], 4)
        else:
            poll("L_p0", [f"buffer_load_dwordx4 v[{128+4*jj}:{131+4*jj}], v6, s[56:59], s{41+jj//4} offen offset:{1024*(jj%4)} sc1" for jj in range(8)],
                 [129 + 2 * i for i in range(16)])
    stamp(2)
    def sum8(base, stride):
        for o in (0, 2):
            for (x, y) in ((0, 1), (2, 3), (4, 5), (6, 7), (0, 2), (4, 6), (0, 4)):
                a(f"v_add_f32 v{base+x*stride+o}, v{base+x*stride+o}, v{base+y*stride+o}")
    sum8(64, 4)
    a(f"v_cvt_pk_bf16_f32 v64, v64, v66\nv_lshlrev_b32 v20, 2, v1\nds_write_b32 v20, v64 offset:{QL}")
    if NB2F:
        a(f"v_mov_b32 v20, 1\nds_write_b32 v8, v20 offset:{QF}")
        if WDW == 3: wdload()
        a.fence()
        a(f"L_fg:\nds_read_b128 v[20:23], v8 offset:{FG}\ns_waitcnt lgkmcnt(0)\nv_and_b32 v20, v20, v21\nv_and_b32 v22, v22, v23\nv_and_b32 v20, v20, v22\nv_readfirstlane_b32 s31, v20")
        a("s_cmp_eq_u32 s31, 1\ns_cbranch_scc1 L_fg_ok\ns_sleep 2\ns_branch L_fg\nL_fg_ok:")
    else:
        a("s_waitcnt lgkmcnt(0)\ns_barrier")
    def tag4(v):
        for i in range(4): a(f"v_bfi_b32 v{v+i}, s61, v13, v{v+i}")
    a("s_mov_b32 s61, 0xff")
    red4(0, RED_G, 20); red4(0, RED_U, 28); a("s_waitcnt lgkmcnt(0)")
    for d, t in ((16, 20), (18, 28)):
        a(f"v_add_f32 v{d}, v{t}, v{t+2}\nv_add_f32 v{d+1}, v{t+1}, v{t+3}\nv_add_f32 v{t+4}, v{t+4}, v{t+6}\nv_add_f32 v{t+5}, v{t+5}, v{t+7}")
        a(f"v_add_f32 v{d}, v{d}, v{t+4}\nv_add_f32 v{d+1}, v{d+1}, v{t+5}")
    tag4(16)
    a("s_lshl_b32 s43, s2, 10\ns_add_u32 s40, s43, %d\ns_mov_b32 s62, -1\ns_mov_b32 s63, 0xffffff" % H0GU)
    a("s_mov_b64 exec, s[62:63]")
    if LOC:
        a("s_cmp_eq_u32 s11, 1\ns_cbranch_scc1 L_gs_l\nbuffer_store_dwordx4 v[16:19], v6, s[56:59], s40 offen sc1\ns_branch L_gs_e\nL_gs_l:\nbuffer_store_dwordx4 v[16:19], v6, s[56:59], s40 offen\nL_gs_e:")
    else:
        a("buffer_store_dwordx4 v[16:19], v6, s[56:59], s40 offen " + gufl.replace("+", " "))
    a("s_mov_b64 exec, -1")
    def ffn():
        if WDW == 0: wdload()
        a("s_lshl_b32 s31, s28, 13\ns_add_u32 s18, s31, %d\ns_add_u32 s19, s18, 4096" % H0GU)
        a("s_mov_b64 exec, s[62:63]")
        pollc("L_pg", [f"buffer_load_dwordx4 v[{64+4*n}:{67+4*n}], v6, s[56:59], s{18+n//4} offen offset:{1024*(n%4)} {gul.replace('+', ' ')}" for n in range(8)],
              list(range(64, 96)), sleep=50)
        stamp(3)
        for o in range(4):
            for (x, y) in ((0, 1), (2, 3), (4, 5), (6, 7), (0, 2), (4, 6), (0, 4)):
                a(f"v_add_f32 v{64+4*x+o}, v{64+4*x+o}, v{64+4*y+o}")
        for v in (64, 65, 66, 67): rbf(v)
        a("s_mov_b32 s16, 0x3d372713\ns_mov_b32 s17, 0xc0135761")
        for g, u in ((64, 66), (65, 67)):
            a(f"v_mul_f32 v20, v{g}, v{g}\nv_fma_f32 v20, v20, s16, 1.0\nv_mul_f32 v20, v20, v{g}\nv_mul_f32 v20, s17, v20\nv_exp_f32 v20, v20\nv_add_f32 v20, 1.0, v20\nv_rcp_f32 v20, v20\nv_mul_f32 v{g}, v{g}, v20")
            rbf(g)
            a(f"v_mul_f32 v{g}, v{g}, v{u}")
        a(f"v_cvt_pk_bf16_f32 v20, v64, v64\nv_cvt_pk_bf16_f32 v21, v65, v65\nds_write_b64 v9, v[20:21] offset:{HL}")
        a(f"v_lshl_add_u32 v20, v2, 2, v7\nds_read_b32 v56, v20 offset:{HL}\nds_read_b32 v57, v20 offset:{HL+256}\ns_waitcnt lgkmcnt(0)")
        buildA(0, 56, 0)
        for i in range(28):
            if i < 27: buildA((i + 1) & 1, 56 + (i + 1) // 16, (i + 1) % 16)
            mfma(52, i & 1, 128 + 4 * i, i == 0)
        tag4(52)
        if FW == 2:
            a("v_lshlrev_b32 v39, 5, v3\nv_lshl_add_u32 v39, v2, 4, v39\ns_lshl_b32 s31, s2, 9\ns_add_u32 s42, s31, %d" % H2F)
            a("s_mov_b64 exec, s[78:79]\nbuffer_store_dwordx4 v[52:55], v39, s[56:59], s42 offen sc1 nt\ns_mov_b64 exec, -1")
    if not GF: ffn()
    def bump(r, first):
        if not GA: return f"s_add_u32 s{r}, s{r}, {GP}"
        return f"s_cmp_eq_u32 s{r}, {first}\ns_cselect_b32 s9, {GA}, {GP}\ns_add_u32 s{r}, s{r}, s9"
    sh = GP.bit_length() - 1
    assert GP == 1 << sh
    a("v_lshlrev_b32 v50, 7, v1")
    a(f"s_mov_b32 s44, {G0}\ns_mov_b32 s45, {G0+GG}\ns_mov_b32 s46, {G0+GR}\ns_mov_b32 s47, 0\ns_mov_b32 s51, 0\ns_mov_b32 s52, 0\ns_mov_b32 s53, 0\ns_mov_b32 s54, 0")
    if NREF == 64: a("s_xor_b32 s55, s28, s29\ns_and_b32 s55, s55, 3")
    if NREF == 32: a("s_xor_b32 s55, s28, s29\ns_and_b32 s55, s55, 7")
    if NREF == 16: a("s_lshr_b32 s55, s2, 4\ns_xor_b32 s55, s55, s2\ns_and_b32 s55, s55, 15")
    if NREF == 8: a("s_lshr_b32 s55, s2, 5\ns_mul_i32 s55, s55, 5\ns_xor_b32 s55, s55, s2\ns_and_b32 s55, s55, 31")
    rsh = {64: 2, 32: 3, 16: 4, 8: 5}[NREF]
    if NREF < 64: a(f"v_and_b32 v50, {NREF-1}, v1\nv_lshlrev_b32 v50, 7, v50")
    a(f"s_lshr_b32 s48, s2, {rsh}")
    a("s_lshl_b32 s48, s48, 7\ns_add_u32 s48, s48, %d\ns_mov_b32 s49, %d" % (PHI, PHI))
    a("s_mov_b32 s50, 0" if NREP == 1 else "s_lshr_b32 s50, s28, 2" if perm == 1 else "s_mov_b32 s50, s29")
    a("s_lshl_b32 s50, s50, 7\ns_add_u32 s50, s50, %d\ns_mov_b32 s60, %d" % (REF, REF))
    a("s_cmp_eq_u32 s2, 0\ns_cselect_b32 s45, s45, -1")
    a("s_mov_b32 s4, 0\ns_mov_b32 s5, 0\ns_mov_b32 s6, 0\ns_mov_b32 s7, 0\ns_mov_b32 s10, %d" % GF)
    if noex: a("s_mov_b32 s44, -1\ns_mov_b32 s45, -1\ns_mov_b32 s46, -1")
    a.fence()
    a("L_ctl:")
    a(f"ds_read_b128 v[20:23], v8 offset:{PH}\nds_read_b128 v[24:27], v8 offset:{PH+16}\ns_waitcnt lgkmcnt(0)")
    a("v_min_u32 v21, v21, v23\nv_min3_u32 v21, v21, v25, v27\nv_readfirstlane_b32 s31, v21")
    if GF: a(f"s_cmp_eq_u32 s10, -1\ns_cbranch_scc0 L_ctl_c")
    a(f"s_cmp_ge_u32 s31, {GEX}\ns_cbranch_scc1 L_ctl_end\nL_ctl_c:\ns_cmp_eq_u32 s31, s47\ns_cbranch_scc1 L_ctl_sleep\ns_mov_b32 s47, s31")
    a("v_sub_u32 v22, v22, v20\nv_sub_u32 v24, v24, v20\nv_sub_u32 v26, v26, v20\nv_add3_u32 v22, v22, v24, v26\nv_ashrrev_i32 v22, 2, v22\nv_add_u32 v12, v20, v22")
    if JD:
        a(f"v_readfirstlane_b32 s8, v12\ns_sub_u32 s9, s8, s5\ns_and_b32 s9, s9, s54\ns_mov_b32 s5, s4\ns_mov_b32 s4, s8")
        a(f"s_cmp_gt_i32 s9, {JD}\ns_cbranch_scc0 L_ctl_nj\ns_add_u32 s51, s51, s9\ns_add_u32 s6, s6, s9\ns_mov_b32 s5, s8\nL_ctl_nj:")
    a(f"s_cmp_lt_u32 s47, s44\ns_cbranch_scc1 L_ctl_g\ns_mov_b32 s6, 0\n{bump(44, G0)}\ns_cmp_lg_u32 s55, 0\ns_cbranch_scc1 L_ctl_g")
    a("s_mov_b64 exec, 1\nbuffer_store_dwordx2 v[12:13], v8, s[56:59], s48 offen " + exs.replace("+", " ") + "\ns_mov_b64 exec, -1\ns_add_u32 s48, s48, 8192")
    a("L_ctl_g:")
    a("s_cmp_lt_u32 s47, s45\ns_cbranch_scc1 L_ctl_rd")
    a("buffer_load_dwordx2 v[20:21], v50, s[56:59], s49 offen " + exl.replace("+", " ") + "\ns_waitcnt vmcnt(0)")
    a("v_cmp_ne_u32 vcc, s30, v21\ns_cmp_lg_u64 vcc, 0\ns_cbranch_scc1 L_ctl_rd")
    a("v_sub_u32 v20, v20, v12")
    wave_reduce(20, 21, "v_add_u32")
    a("v_ashrrev_i32 v20, 6, v20\nv_add_u32 v14, v12, v20")
    a(("s_mov_b64 exec, 0xff" if NREP == 8 else "s_mov_b64 exec, 1") + "\nbuffer_store_dwordx2 v[14:15], v50, s[56:59], s60 offen " + exs.replace("+", " ") + "\ns_mov_b64 exec, -1")
    a(f"{bump(45, G0 + GG)}\ns_add_u32 s49, s49, 8192\ns_add_u32 s60, s60, 1024")
    a.fence()
    a("L_ctl_rd:")
    a("s_cmp_lt_u32 s47, s46\ns_cbranch_scc1 L_ctl_up")
    if RP == 1:
        a("s_mov_b64 exec, 1\ns_cmp_eq_u32 s47, s46\ns_cbranch_scc1 L_ctl_r1\nbuffer_load_dwordx2 v[28:29], v8, s[56:59], s50 offen sc1\ns_branch L_ctl_r2")
        a("L_ctl_r1:\nbuffer_load_dwordx2 v[28:29], v8, s[56:59], s50 offen\nL_ctl_r2:")
        a("s_waitcnt vmcnt(0)\nv_readfirstlane_b32 s31, v29\nv_readfirstlane_b32 s64, v28\ns_mov_b64 exec, -1")
    elif RP == 2:
        a("s_cmp_eq_u32 s47, s46\ns_cbranch_scc1 L_ctl_r1")
        a("s_mov_b64 exec, 1\nbuffer_load_dwordx2 v[28:29], v8, s[56:59], s50 offen sc1\ns_waitcnt vmcnt(0)\nv_readfirstlane_b32 s65, v29\nv_readfirstlane_b32 s64, v28\ns_mov_b64 exec, -1\ns_nop 3\ns_branch L_ctl_r2")
        a("L_ctl_r1:\ns_load_dwordx2 s[64:65], s[26:27], s50\ns_waitcnt lgkmcnt(0)\nL_ctl_r2:\ns_mov_b32 s31, s65")
    else:
        a("s_mov_b64 exec, 1\nbuffer_load_dwordx2 v[28:29], v8, s[56:59], s50 offen " + exl.replace("+", " ") + "\ns_waitcnt vmcnt(0)\nv_readfirstlane_b32 s31, v29\nv_readfirstlane_b32 s64, v28\ns_mov_b64 exec, -1")
    a("s_cmp_lg_u32 s31, s30\ns_cbranch_scc1 L_ctl_up")
    a("s_add_u32 s64, s64, s6\ns_sub_u32 s52, s64, s51\ns_and_b32 s52, s52, s54")
    if MS: a("s_mov_b32 s9, s52\ns_min_i32 s52, s52, s7\ns_mov_b32 s7, s9")
    if MS == 2: a("s_cmp_lt_i32 s52, 40\ns_cselect_b32 s52, 0, s52")
    if not slope: a("s_mov_b32 s52, 0")
    a(f"s_mov_b32 s51, s64\ns_sub_u32 s53, s46, {GR + 1}\ns_mov_b32 s54, -1\n{bump(46, G0 + GR)}\ns_add_u32 s50, s50, 1024")
    a("L_ctl_up:")
    a(f"s_sub_u32 s31, s47, s53\ns_mul_i32 s31, s31, s52\ns_ashr_i32 s31, s31, {sh}\ns_add_u32 s31, s31, s51")
    a(f"v_mov_b32 v30, s31\nv_mov_b32 v31, s54\nds_write_b64 v8, v[30:31] offset:{RF}")
    if TL & 1:
        a("s_cmp_lt_u32 s47, s82\ns_cbranch_scc1 L_ctl_nt\ns_mov_b32 s82, -1\nv_lshlrev_b32 v20, 21, v1\ns_mov_b64 exec, 0xff\nglobal_load_dword v21, v20, s[72:73] nt\ns_mov_b64 exec, -1\ns_waitcnt vmcnt(0)\nL_ctl_nt:")
    if GF:
        a("s_cmp_lt_u32 s47, s10\ns_cbranch_scc1 L_ctl_sleep\ns_mov_b32 s10, -1")
        ffn()
        a.fence()
    a(f"L_ctl_sleep:\ns_sleep {CSL}\ns_branch L_ctl")
    a("L_ctl_end:")
    if TL & 2:
        a("s_mov_b64 exec, 1\nglobal_load_dword v64, v8, s[80:81] nt\nbuffer_load_dword v65, v8, s[68:71], 0 offen nt\ns_mov_b64 exec, -1")
    a(f"ds_read_b128 v[44:47], v8 offset:{MX}\ns_waitcnt lgkmcnt(0)\nv_max_f32 v20, v44, v45\nv_max3_f32 v16, v20, v46, v47\ns_mov_b32 s31, {LOG2E}")
    for w in range(4): a(f"v_sub_f32 v{44+w}, v{44+w}, v16\nv_mul_f32 v{44+w}, s31, v{44+w}\nv_exp_f32 v{44+w}, v{44+w}")
    a("s_add_u32 s40, s43, %d\ns_lshl_b32 s31, s2, 9\ns_add_u32 s41, s31, %d\ns_add_u32 s42, s31, %d" % (H1, H2A, H2F))
    a("v_lshlrev_b32 v39, 5, v3\nv_lshl_add_u32 v39, v2, 4, v39")
    a("v_cmp_eq_u32 vcc, 32, v1\nv_mov_b32 v20, 2048\nv_cndmask_b32 v48, v6, v20, vcc\nv_cndmask_b32 v49, 0, v16, vcc\nv_mov_b32 v20, 0xff\nv_cndmask_b32 v51, v20, -1, vcc")
    a("s_mov_b32 s63, 1")
    a("v_lshrrev_b32 v36, 3, v1\nv_lshlrev_b32 v36, 12, v36\nv_lshl_add_u32 v36, v37, 4, v36")
    a("s_lshl_b32 s31, s29, 9\ns_lshl_b32 s44, s28, 7\ns_add_u32 s44, s44, s31\ns_add_u32 s44, s44, %d" % H2A)
    for i in range(1, 8): a(f"s_add_u32 s{44+i}, s44, {32768*i}")
    assert H2F == H2A + 4 * 32768
    a("v_lshlrev_b32 v40, 16, v10\nv_and_b32 v41, 0xffff0000, v10\nv_lshlrev_b32 v42, 16, v11\nv_and_b32 v43, 0xffff0000, v11")
    if LOC and PD:
        a("s_cmp_lg_u32 s11, 1\ns_cbranch_scc1 L_npd\nv_not_b32 v60, v13\nv_not_b32 v61, v13\nv_not_b32 v62, v13\nv_not_b32 v63, v13")
        a("s_mov_b32 s64, -1\ns_mov_b32 s65, 0xff\ns_mov_b64 exec, s[64:65]\nbuffer_store_dwordx4 v[60:63], v6, s[56:59], s40 offen\ns_mov_b64 exec, -1\nL_npd:")
    if PT:
        pf = "sc1" if PT == 1 else ""
        a(f"s_mov_b64 exec, s[62:63]\nbuffer_load_dwordx4 v[64:67], v6, s[56:59], s40 offen {pf}\ns_mov_b64 exec, s[78:79]\nbuffer_load_dwordx4 v[68:71], v6, s[56:59], s41 offen {pf}")
        if FW != 2: a(f"buffer_load_dwordx4 v[72:75], v6, s[56:59], s42 offen {pf}")
        a("s_mov_b64 exec, -1")
    if warm:
        a("s_getpc_b64 s[64:65]\nL_pc:\ns_sub_u32 s64, s64, L_pc-L_tail0\ns_subb_u32 s65, s65, 0")
        for i in range(warm): a(f"global_load_dwordx4 v[64:67], v6, s[64:65]\ns_add_u32 s64, s64, 1024\ns_addc_u32 s65, s65, 0")
        a("s_waitcnt vmcnt(0)")
    def xred(b, skip=False):
        if not skip:
            for i in range(4): a(f"v_add_f32 v{b+i}, v{b+i}, v{b+4+i}\nv_add_f32 v{b+8+i}, v{b+8+i}, v{b+12+i}")
        for i in range(4): a(f"v_add_f32 v{b+i}, v{b+i}, v{b+8+i}")
        for i in range(4): a(f"v_add_f32_dpp v{b+i}, v{b+i}, v{b+i} row_ror:8 row_mask:0xf bank_mask:0xf")
        for op in ("v_permlane16_swap_b32", "v_permlane32_swap_b32"):
            for i in range(4): a(f"v_mov_b32 v{b+4+i}, v{b+i}")
            for i in range(4): a(f"{op} v{b+i}, v{b+4+i}")
            for i in range(4): a(f"v_add_f32 v{b+i}, v{b+i}, v{b+4+i}")
        for i in range(4): rbf(b + i)
    def ffn_gather():
        pollc("L_pf", [f"buffer_load_dwordx4 v[{144+4*i}:{147+4*i}], v36, s[56:59], s{48+i} offen sc1" for i in range(4)], list(range(144, 160)), sleep=sl2)
        xred(144)
    if FW == 2:
        a("s_cmp_ge_u32 s28, 4\ns_cbranch_scc1 L_nf")
        ffn_gather()
        a.fence()
        a("L_nf:")
    if LP:
        a(f"s_add_u32 s12, s41, {LOFF}\ns_add_u32 s13, s42, {LOFF}\nv_add_u32 v59, {LOFF}, v36")
        a("v_not_b32 v60, v13\nv_not_b32 v61, v13\nv_not_b32 v62, v13\nv_not_b32 v63, v13")
        a("s_mov_b64 exec, s[78:79]\nbuffer_store_dwordx4 v[52:55], v39, s[56:59], s13 offen\nbuffer_store_dwordx4 v[60:63], v6, s[56:59], s12 offen\ns_mov_b64 exec, -1")
        a("s_mov_b32 s14, 0")
        a("s_barrier")
        stamp(4)
        a("s_mov_b64 exec, s[62:63]")
        for w in range(4): a(f"ds_read_b128 v[{20+4*w}:{23+4*w}], v48 offset:{RED_O+512*w}")
        a("s_waitcnt lgkmcnt(0)")
        a("v_mul_f32 v16, v20, v44\nv_fma_f32 v17, v21, v44, v49\nv_mul_f32 v18, v22, v44\nv_mul_f32 v19, v23, v44")
        for w in range(1, 4):
            for i in range(4): a(f"v_fmac_f32 v{16+i}, v{20+4*w+i}, v{44+w}")
        a("v_bfi_b32 v16, s61, v13, v16\nv_bfi_b32 v17, s61, v13, v17\nv_bfi_b32 v18, v51, v13, v18\nv_bfi_b32 v19, v51, v13, v19")
        a("buffer_store_dwordx4 v[16:19], v6, s[56:59], s40 offen sc1")
        a("s_cmp_ge_u32 s28, 4\ns_cbranch_scc1 L_b5")
        a("s_mov_b64 exec, s[78:79]\nbuffer_store_dwordx4 v[52:55], v39, s[56:59], s42 offen sc1\ns_mov_b64 exec, -1")
        pollc("L_lf", [f"buffer_load_dwordx4 v[{144+4*i}:{147+4*i}], v59, s[56:59], s{48+i} offen sc1" for i in range(4)], list(range(144, 160)), sleep=0, tries=1, fail="L_b5")
        xred(144)
        a("s_mov_b32 s14, 1")
        a.fence()
        a("L_b5:\ns_mov_b64 exec, s[78:79]")
        a("s_barrier")
        stamp(5)
        for w in range(4): a(f"ds_read_b128 v[{20+4*w}:{23+4*w}], v6 offset:{RED_A+512*w}")
        a("s_waitcnt lgkmcnt(0)")
        for i in range(4): a(f"v_add_f32 v{20+i}, v{20+i}, v{24+i}\nv_add_f32 v{28+i}, v{28+i}, v{32+i}")
        for i in range(4): a(f"v_add_f32 v{60+i}, v{20+i}, v{28+i}")
        tag4(60)
        a("buffer_store_dwordx4 v[60:63], v6, s[56:59], s12 offen")
        a("s_cmp_lt_u32 s28, 4\ns_cbranch_scc1 L_cons")
        a("buffer_store_dwordx4 v[52:55], v39, s[56:59], s42 offen sc1")
        if diag: stamp(6); a("s_branch L_noep")
        else: a("s_branch L_noep" if spin else "s_endpgm")
        a("L_cons:\ns_mov_b64 exec, -1")
        a("s_cmp_eq_u32 s14, 0\ns_cbranch_scc1 L_fbf")
        pollc("L_la", [f"buffer_load_dwordx4 v[{128+4*i}:{131+4*i}], v59, s[56:59], s{44+i} offen sc1" for i in range(4)], list(range(128, 144)), sleep=lsl, tries=LN, fail="L_fba")
        a("s_branch L_fin")
        a("L_fbf:")
        ffn_gather()
        a.fence()
        a("L_fba:")
        pollc("L_p2", [f"buffer_load_dwordx4 v[{128+4*i}:{131+4*i}], v36, s[56:59], s{44+i} offen sc1" for i in range(4)], list(range(128, 144)), sleep=sl2)
        a("L_fin:")
    else:
        tf = tfl.replace("+", " ")
        a("s_barrier")
        stamp(4)
        a("s_mov_b64 exec, s[62:63]")
        for w in range(4): a(f"ds_read_b128 v[{20+4*w}:{23+4*w}], v48 offset:{RED_O+512*w}")
        a("s_waitcnt lgkmcnt(0)")
        a("v_mul_f32 v16, v20, v44\nv_fma_f32 v17, v21, v44, v49\nv_mul_f32 v18, v22, v44\nv_mul_f32 v19, v23, v44")
        for w in range(1, 4):
            for i in range(4): a(f"v_fmac_f32 v{16+i}, v{20+4*w+i}, v{44+w}")
        a("v_bfi_b32 v16, s61, v13, v16\nv_bfi_b32 v17, s61, v13, v17\nv_bfi_b32 v18, v51, v13, v18\nv_bfi_b32 v19, v51, v13, v19")
        if LOC:
            a("s_cmp_eq_u32 s11, 1\ns_cbranch_scc1 L_hs_l\nbuffer_store_dwordx4 v[16:19], v6, s[56:59], s40 offen sc1\ns_branch L_hs_e\nL_hs_l:\nbuffer_store_dwordx4 v[16:19], v6, s[56:59], s40 offen\nL_hs_e:")
        else:
            a("buffer_store_dwordx4 v[16:19], v6, s[56:59], s40 offen " + tf)
        a("s_mov_b64 exec, s[78:79]")
        if FW == 0: a(f"buffer_store_dwordx4 v[52:55], v39, s[56:59], s42 offen {tf}")
        a("s_barrier")
        stamp(5)
        for w in range(4): a(f"ds_read_b128 v[{20+4*w}:{23+4*w}], v6 offset:{RED_A+512*w}")
        if FW == 1: a(f"buffer_store_dwordx4 v[52:55], v39, s[56:59], s42 offen {tf}")
        a("s_waitcnt lgkmcnt(0)")
        for i in range(4): a(f"v_add_f32 v{20+i}, v{20+i}, v{24+i}\nv_add_f32 v{28+i}, v{28+i}, v{32+i}")
        for i in range(4): a(f"v_add_f32 v{60+i}, v{20+i}, v{28+i}")
        tag4(60)
        a(f"buffer_store_dwordx4 v[60:63], v6, s[56:59], s41 offen {tf}\ns_mov_b64 exec, -1")
        if diag:
            a("s_cmp_lt_u32 s28, 4\ns_cbranch_scc1 L_cons"); stamp(6); a("s_branch L_noep\nL_cons:")
        else:
            a("s_cmp_ge_u32 s28, 4\ns_cbranch_scc1 " + ("L_noep" if spin else "L_exit"))
        if not HP:
            if FW != 2: ffn_gather()
            pollc("L_p2", [f"buffer_load_dwordx4 v[{128+4*i}:{131+4*i}], v36, s[56:59], s{44+i} offen sc1" for i in range(4)], list(range(128, 144)), sleep=sl2)
    if HP:
        sets = [160, 176, 192][:HP]
        def ld(b):
            for i in range(4): a(f"buffer_load_dwordx4 v[{b+4*i}:{b+3+4*i}], v36, s[56:59], s{44+i} offen sc1")
        def chk(b):
            a(f"v_xor_b32 v250, s30, v{b}\nv_xor_b32 v251, s30, v{b+8}")
            for r in range(1, 8): a(f"v_bitop3_b32 v250, v{b+r}, s30, v250 bitop3:0xbe\nv_bitop3_b32 v251, v{b+8+r}, s30, v251 bitop3:0xbe")
            a("v_or_b32 v250, v250, v251\nv_and_b32 v250, 0xff, v250\nv_cmp_ne_u32 vcc, 0, v250\ns_cmp_eq_u64 vcc, 0")
        for i in range(4): a(f"buffer_load_dwordx4 v[{144+4*i}:{147+4*i}], v36, s[56:59], s{48+i} offen sc1")
        for b in sets[:-1]:
            ld(b); a(f"s_sleep {gap}")
        ld(sets[-1])
        a(f"s_waitcnt vmcnt({4*HP})")
        chk(144)
        a("s_cbranch_scc1 L_fok")
        pollc("L_pf", [f"buffer_load_dwordx4 v[{144+4*i}:{147+4*i}], v36, s[56:59], s{48+i} offen sc1" for i in range(4)], list(range(144, 160)), sleep=sl2)
        a("L_fok:")
        xred(144)
        a("s_mov_b32 s77, 0x100000")
        a.fence()
        a("L_hp:")
        for n, b in enumerate(sets):
            a(f"s_waitcnt vmcnt({4*(HP-1)})")
            chk(b)
            a(f"s_cbranch_scc1 L_hp_{n}")
            ld(b)
        a("s_sub_u32 s77, s77, 1\ns_cmp_lg_u32 s77, 0\ns_cbranch_scc1 L_hp")
        for n, b in enumerate(sets):
            a(f"L_hp_{n}:")
            for i in range(4): a(f"v_add_f32 v{128+i}, v{b+i}, v{b+4+i}\nv_add_f32 v{136+i}, v{b+8+i}, v{b+12+i}")
            if n < HP - 1: a("s_branch L_hp_e")
        a("L_hp_e:")
        stamp(6)
        xred(128, skip=True)
    else:
        stamp(6)
        xred(128)
    for i in range(4): a(f"v_add_f32 v{128+i}, v{128+i}, v{40+i}")
    for i in range(4): rbf(128 + i)
    for i in range(4): a(f"v_add_f32 v{128+i}, v{128+i}, v{144+i}")
    a("v_cvt_pk_bf16_f32 v20, v128, v129\nv_cvt_pk_bf16_f32 v21, v130, v131")
    a("s_mov_b64 exec, 0xff\nbuffer_store_dwordx2 v[20:21], v38, s[68:71], s75 offen\ns_mov_b64 exec, 1")
    a("s_cmp_lg_u32 s2, 0\ns_cbranch_scc1 L_noep\nbuffer_store_dword v13, v8, s[56:59], 0 offen" + ("" if epl else " sc1") + "\nL_noep:")
    if spin:
        if spinwg >= 0: a(f"s_cmp_lg_u32 s2, {spinwg}\ns_cbranch_scc1 L_exit")
        a(f"L_spin:\ns_memrealtime s[64:65]\ns_waitcnt lgkmcnt(0)\ns_sub_u32 s64, s64, s66\ns_cmp_lt_u32 s64, {spin}\ns_cbranch_scc1 L_spin")
    if diag:
        a("s_waitcnt vmcnt(0)")
        stamp(7)
        a("s_mov_b32 s31, 64")
        a("L_stamps:")
        a("s_waitcnt lgkmcnt(0)\ns_mov_b64 exec, 1")
        if dbgout:
            a("v_mov_b32 v8, 0\ns_cmp_lg_u32 s31, 0\ns_cbranch_scc1 L_dbgc")
            for n, k in enumerate((0, 2, 3, 4, 5)):
                a(f"v_mov_b32 v12, s{84+2*k}\nv_not_b32 v13, v12\nglobal_atomic_umax v8, v12, s[24:25] offset:{8*n}\nglobal_atomic_umax v8, v13, s[24:25] offset:{8*n+4}")
            a("s_endpgm\nL_dbgc:")
            for n, k in enumerate((2, 6, 7)):
                a(f"v_mov_b32 v12, s{84+2*k}\nv_not_b32 v13, v12\nglobal_atomic_umax v8, v12, s[24:25] offset:{40+8*n}\nglobal_atomic_umax v8, v13, s[24:25] offset:{44+8*n}")
        else:
            a("s_add_u32 s26, s26, 0x8000000\ns_addc_u32 s27, s27, 0\ns_lshl_b32 s74, s2, 7\ns_add_u32 s74, s74, s31\nv_mov_b32 v8, s74")
            for q in range(4):
                for e in range(4): a(f"v_mov_b32 v{12+e}, s{84+4*q+e}")
                a(f"global_store_dwordx4 v8, v[12:15], s[26:27] offset:{16*q}")
                a("s_nop 2")
    a("L_exit:\ns_endpgm")

    out = HDR
    out += "; Override launch geometry by editing the next line (default: block=256,\n"
    out += f"; @launch grid=(256,1,1) block=(320,1,1) lds={LDS_BYTES}\n"
    out += DOC
    out += f'.amdgcn_target "amdgcn-amd-amdhsa--gfx950"\n.text\n.globl {NAME}\n.p2align 8\n.type {NAME},@function\n{NAME}:\n'
    out += a.text()
    out += f""".section .rodata,"a"
.p2align 6
.amdhsa_kernel {NAME}
  .amdhsa_next_free_vgpr 256
  .amdhsa_next_free_sgpr 102
  .amdhsa_accum_offset 256
  .amdhsa_group_segment_fixed_size 0
  .amdhsa_kernarg_size 96
  .amdhsa_user_sgpr_count 2
  .amdhsa_user_sgpr_kernarg_segment_ptr 1
  .amdhsa_system_sgpr_workgroup_id_x 1
  .amdhsa_float_denorm_mode_32 3
.end_amdhsa_kernel
"""
    return out, LDS_BYTES

if __name__ == "__main__":
    kw = {}
    for x in sys.argv[2:]:
        k, v = x.split("=")
        try: v = int(v)
        except ValueError: pass
        kw[k] = v
    s, lds = gen(**kw)
    open(sys.argv[1], "w").write(s)
    print("lds", lds)
```

```python
import sys
from asmlib import Asm

NAME = "parallel_sum__mha_block_cached__glu_gated_geglu__decode_kernel"
HDR = open("parallel_sum__mha_block_cached__glu_gated_geglu__decode.s.ref").read().split("; Override launch")[0]

H0Q, H0GU, H1, H2A, H2F = 0x1000, 0x50000, 0x90000, 0xD0000, 0xF0000
LOFF = 0x40000
PHI, REF = 0x1D0000, 0x1F0000
WS_BYTES = 0x200000
SC = 0
RED_Q, RED_G, RED_U, RED_A, RED_O, RED_L = [32768 + 2048 * i for i in range(6)]
QL = 32768 + 12288
HL = QL + 256
MX = HL + 1024
LS = MX + 16
FL = LS + 16
FG = FL + 16
QF = FG + 16
RF = QF + 16
PH = RF + 16
LDS_BYTES = PH + 32

DOC = '; ---------------------------------------------------------------------------------------------------------------------\n; ---------------------------------------------------------------------------------------------------------------------\n'
LOG2E = 0x3fb8aa3b
SCALE = 0x3db504f3

def gen(diag=False, E2=0, FB=0, EP=0, FAST=0, epl=1, B0L=0, GE=0, GA=0, TL=0, NREP=8, RP=0, NREF=64, GP2=0, skipw='', HP=0, gap=2, T4=0, L4=2, LOC=1, h1l='sc1+nt', PD=1, QTO=8, fakex=0, LP=0, LN=16, lsl=0, gul='sc1', ql='sc1', exs='sc1', exl='sc1', WDW=0, CP=0, NB2F=1, GF=6, touch=0, DS0=0, KE=0, JD=0, MS=0, PT=0, PP=0, FW=0, KB=0, NBG=0, DB=12, MAP='rrww01234Bjjj', XK=0, IL=0, WI=1, qdelay=0, perm=0, qfl='sc1', tfl='sc1', WDF=3, warm=0, gufl='sc1+nt', nogu=0, noq=0, gudelay=0, spin=0, spinwg=-1, G0=4, GP=8, GG=2, GR=4, slope=1, noex=0, NWT=8, CSL=8, GEX=60, fixed=0, DL='5', TH='', T0=200, TAU=220, DT=5, early=4, dbgout=0, ser=0, maskpoll=1, sl1=1, sl2=1, D=8, DS=8, D2=0, NB2=0, pol_w="nt", pol_gu="nt", pol_kv="nt"):
    a = Asm()
    def stamp(i, mode=1):
        if diag == mode or (diag and i in (0, 7)) or (diag and incomm[0]):
            a(f"s_memrealtime s[{84+2*i}:{85+2*i}]")
    incomm = [False]
    def series(k):
        if not ser: return
        if k == 0: a("s_memrealtime s[100:101]")
        if k == 5: a("s_waitcnt lgkmcnt(0)\ns_mov_b32 m0, s71\ns_nop 0\nv_writelane_b32 v255, s100, m0\ns_add_u32 s71, s71, 1")
    def srd(n, lo, hi, size):
        a(f"s_mov_b32 s{n}, {lo}\ns_mov_b32 s{n+1}, {hi}\ns_mov_b32 s{n+2}, {size}\ns_mov_b32 s{n+3}, 0x20000")
    def wave_reduce(v, t, op):
        for r in (8, 4, 2, 1):
            a(f"{op}_dpp v{v}, v{v}, v{v} row_ror:{r} row_mask:0xf bank_mask:0xf")
        a(f"v_mov_b32 v{t}, v{v}\nv_permlane16_swap_b32 v{v}, v{t}\n{op} v{v}, v{v}, v{t}")
        a(f"v_mov_b32 v{t}, v{v}\nv_permlane32_swap_b32 v{v}, v{t}\n{op} v{v}, v{v}, v{t}")
    def rbf(v):
        a(f"v_cvt_pk_bf16_f32 v{v}, v{v}, v{v}\nv_and_b32 v{v}, 0xffff0000, v{v}")
    def buildA(buf, P, c):
        base = 24 + 4 * buf
        for t in range(4):
            a(f"v_and_b32_dpp v{base+t}, v{P}, v{120+t} row_newbcast:{c} row_mask:0xf bank_mask:0xf")
    def mfma(acc, buf, breg, first):
        base = 24 + 4 * buf
        a(f"v_mfma_f32_16x16x32_bf16 v[{acc}:{acc+3}], v[{base}:{base+3}], v[{breg}:{breg+3}], " + ("0" if first else f"v[{acc}:{acc+3}]"))
    def writeD(acc, off):
        a(f"s_mov_b64 exec, s[78:79]\nds_write_b128 v225, v[{acc}:{acc+3}] offset:{off}\ns_mov_b64 exec, -1")
    def poll(label, loads, tagregs, acc=250, t1=251, t2=252, sleep=1):
        a.fence()
        a(f"s_mov_b32 s77, 0x100000")
        a(f"{label}:")
        for l in loads: a(l)
        a("s_waitcnt vmcnt(0)")
        a(f"v_xor_b32 v{acc}, s30, v{tagregs[0]}")
        rest = tagregs[1:]
        while len(rest) >= 2:
            a(f"v_xor_b32 v{t1}, s30, v{rest[0]}\nv_xor_b32 v{t2}, s30, v{rest[1]}\nv_or3_b32 v{acc}, v{acc}, v{t1}, v{t2}")
            rest = rest[2:]
        if rest:
            a(f"v_xor_b32 v{t1}, s30, v{rest[0]}\nv_or_b32 v{acc}, v{acc}, v{t1}")
        a(f"v_cmp_ne_u32 vcc, 0, v{acc}")
        a(f"s_cmp_eq_u64 vcc, 0\ns_cbranch_scc1 {label}_ok")
        if maskpoll: a("s_mov_b64 exec, vcc")
        a(f"s_sub_u32 s77, s77, 1\ns_cmp_eq_u32 s77, 0\ns_cbranch_scc1 {label}_ok\ns_sleep {sleep}\ns_branch {label}")
        a(f"{label}_ok:")
        a("s_mov_b64 exec, -1")
    def pollc(label, loads, regs, full=(), acc=250, sleep=1, tries=0x100000, fail=None):
        a.fence()
        a(f"s_mov_b32 s77, {tries}")
        a(f"{label}:")
        for l in loads: a(l)
        a("s_waitcnt vmcnt(0)")
        a(f"v_xor_b32 v{acc}, s30, v{regs[0]}")
        for r in regs[1:]: a(f"v_bitop3_b32 v{acc}, v{r}, s30, v{acc} bitop3:0xbe")
        a(f"v_and_b32 v{acc}, 0xff, v{acc}")
        for r in full: a(f"v_bitop3_b32 v{acc}, v{r}, s30, v{acc} bitop3:0xbe")
        a(f"v_cmp_ne_u32 vcc, 0, v{acc}")
        a(f"s_cmp_eq_u64 vcc, 0\ns_cbranch_scc1 {label}_ok")
        a(f"s_sub_u32 s77, s77, 1\ns_cmp_eq_u32 s77, 0\ns_cbranch_scc1 {fail or label + '_ok'}")
        if sleep: a(f"s_sleep {sleep}")
        a(f"s_branch {label}")
        a(f"{label}_ok:")
        a("s_mov_b64 exec, -1")
    def pollp(label, mk, setA, setB, nlow, acc=250, gap=2):
        def check(regs):
            a(f"v_xor_b32 v{acc}, s30, v{regs[0]}")
            for r in regs[1:nlow]: a(f"v_bitop3_b32 v{acc}, v{r}, s30, v{acc} bitop3:0xbe")
            a(f"v_and_b32 v{acc}, 0xff, v{acc}")
            for r in regs[nlow:]: a(f"v_bitop3_b32 v{acc}, v{r}, s30, v{acc} bitop3:0xbe")
            a(f"v_cmp_ne_u32 vcc, 0, v{acc}\ns_cmp_eq_u64 vcc, 0")
        n = len(mk(setA))
        a.fence()
        a("s_mov_b32 s77, 0x100000")
        for l in mk(setA): a(l)
        a(f"s_sleep {gap}")
        a(f"{label}:")
        for l in mk(setB): a(l)
        a(f"s_waitcnt vmcnt({n})")
        check(setA)
        a(f"s_cbranch_scc1 {label}_ok")
        for l in mk(setA): a(l)
        a(f"s_waitcnt vmcnt({n})")
        check(setB)
        a(f"s_cbranch_scc1 {label}_b")
        a(f"s_sub_u32 s77, s77, 1\ns_cmp_lg_u32 s77, 0\ns_cbranch_scc1 {label}")
        a(f"{label}_b:")
        return
    def masks():
        a("v_and_b32 v12, 1, v3\nv_lshrrev_b32 v13, 1, v3\nv_cmp_eq_u32 vcc, 1, v12\nv_mov_b32 v14, 0xffff\nv_mov_b32 v15, 0xffff0000\nv_cndmask_b32 v14, v14, v15, vcc")
        for t in range(4):
            a(f"v_cmp_eq_u32 vcc, {t}, v13\nv_cndmask_b32 v{120+t}, 0, v14, vcc")
    def poll_rows(label, loads, sbase, sleep=1, tagreg="s30", mask=None, hook=None):
        a.fence()
        n = len(loads)
        a(f"s_mov_b32 s77, 0x100000\ns_mov_b32 s76, {(1 << n) - 1}")
        a(f"{label}:")
        for i, (l, _, _) in enumerate(loads):
            a(f"s_bitcmp1_b32 s76, {i}\ns_cbranch_scc0 {label}_s{i}")
            a(l)
            a(f"{label}_s{i}:")
        a("s_waitcnt vmcnt(0)")
        for i, (_, ta, tb) in enumerate(loads):
            a(f"v_xor_b32 v250, {tagreg}, v{ta}\nv_bitop3_b32 v250, v{tb}, {tagreg}, v250 bitop3:0xbe")
            if mask: a(f"v_and_b32 v250, {mask}, v250")
            a(f"v_cmp_ne_u32 s[{sbase+2*i}:{sbase+2*i+1}], 0, v250")
        a("s_mov_b32 s76, 0")
        for i in range(n):
            a(f"s_cmp_lg_u64 s[{sbase+2*i}:{sbase+2*i+1}], 0\ns_cselect_b32 s74, {1 << i}, 0\ns_or_b32 s76, s76, s74")
        a(f"s_cmp_eq_u32 s76, 0\ns_cbranch_scc1 {label}_ok")
        if hook:
            a(f"s_cmp_lg_u32 s77, {0x100000 - QTO}\ns_cbranch_scc1 {label}_nh\n{hook}\n{label}_nh:")
        a(f"s_sub_u32 s77, s77, 1\ns_cmp_eq_u32 s77, 0\ns_cbranch_scc1 {label}_ok\ns_sleep {sleep}\ns_branch {label}")
        a(f"{label}_ok:")

    def common():
        if FAST: a("s_lshl3_add_u32 s2, s28, s29")
        a("s_load_dword s30, s[26:27], 0")
        a("s_mov_b32 s78, -1\ns_mov_b32 s79, 0")
        srd(52, "s4", "s5", 2048)
        srd(56, "s26", "s27", WS_BYTES)
    if FAST:
        assert perm == 1
        a("s_cmpk_ge_u32 s2, 0x100\ns_cbranch_scc1 L_exit")
        stamp(0)
        if fixed or spin: a("s_memrealtime s[66:67]")
        a("s_load_dwordx16 s[4:19], s[0:1], 0\ns_load_dwordx8 s[20:27], s[0:1], 64")
        if EP:
            if EP > 1: a(f"s_cmp_ge_u32 s2, {EP}\ns_cbranch_scc1 L_noep0")
            if E2: a(f"s_getpc_b64 s[32:33]\nv_lshlrev_b32 v5, 7, v0\nglobal_load_dword v253, v5, s[32:33]\nglobal_load_dword v254, v5, s[32:33] offset:64")
            else: a(f"s_getpc_b64 s[32:33]\nL_pc1:\nv_lshlrev_b32 v5, 7, v0\nv_min_u32 v5, L_exit-L_pc1, v5\nglobal_load_dword v253, v5, s[32:33]")
            if EP > 1: a("L_noep0:")
        a("v_lshrrev_b32 v5, 6, v0\nv_and_b32 v1, 63, v0\nv_readfirstlane_b32 s3, v5")
        a("v_lshrrev_b32 v2, 4, v1\nv_and_b32 v3, 15, v1")
        a("s_and_b32 s28, s2, 7\ns_lshr_b32 s29, s2, 6\ns_lshl2_add_u32 s28, s28, s29\ns_lshr_b32 s29, s2, 3\ns_and_b32 s29, s29, 7")
        a("v_lshlrev_b32 v6, 4, v1\nv_lshlrev_b32 v7, 4, v3")
        a("s_cmp_eq_u32 s3, 4\ns_cbranch_scc1 L_comm0")
        a("s_lshl2_add_u32 s74, s29, s3\ns_lshl_b32 s75, s74, 10\ns_add_u32 s75, s75, s28\ns_lshl_b32 s75, s75, 8")
        a("v_lshl_add_u32 v10, v2, 13, v7\nv_add_u32 v10, s75, v10\ns_movk_i32 s76, 0x8000")
        a("s_waitcnt lgkmcnt(0)")
        stamp(1, 2); stamp(1, 4)
        a("global_load_dwordx4 v[96:99], v6, s[4:5]\nglobal_load_dwordx4 v[100:103], v6, s[4:5] offset:1024")
        for i in range(8):
            a(f"global_load_dwordx4 v[{128+4*i}:{131+4*i}], v10, s[10:11] {pol_w}")
            if i < 7: a("v_subrev_u32 v10, s76, v10")
        stamp(2, 4)
        common()
        a("s_lshl_b32 s74, s74, 5")
        a("v_and_b32 v8, 7, v3\nv_lshl_add_u32 v8, v8, 2, v2\nv_lshlrev_b32 v8, 1, v8\ns_lshl_b32 s75, s74, 1")
        a("buffer_load_ushort v9, v8, s[52:55], s75 offen")
    else:
        a("s_cmp_ge_u32 s2, 256\ns_cbranch_scc1 L_exit")
        stamp(0)
        if fixed or spin: a("s_memrealtime s[66:67]")
        a("s_load_dwordx16 s[4:19], s[0:1], 0\ns_load_dwordx8 s[20:27], s[0:1], 64")
        a("v_lshrrev_b32 v5, 6, v0\nv_and_b32 v1, 63, v0\nv_readfirstlane_b32 s3, v5")
        a("v_lshrrev_b32 v2, 4, v1\nv_and_b32 v3, 15, v1")
        if perm == 1: a("s_and_b32 s28, s2, 7\ns_lshl_b32 s28, s28, 5\ns_lshr_b32 s2, s2, 3\ns_add_u32 s2, s2, s28")
        a("s_lshr_b32 s28, s2, 3\ns_and_b32 s29, s2, 7")
        a("s_mov_b32 s78, -1\ns_mov_b32 s79, 0")
        a("v_lshlrev_b32 v6, 4, v1")
        a("v_lshlrev_b32 v7, 4, v3")
        a("s_lshl_b32 s74, s29, 2\ns_add_u32 s74, s74, s3\ns_lshl_b32 s74, s74, 5")
        a("s_waitcnt lgkmcnt(0)")
        stamp(1, 2); stamp(1, 4)
        a("s_load_dword s30, s[26:27], 0")
        srd(52, "s4", "s5", 2048)
        srd(56, "s26", "s27", WS_BYTES)
        a("s_cmp_eq_u32 s3, 4\ns_cbranch_scc1 L_comm")

        a("buffer_load_dwordx4 v[96:99], v6, s[52:55], 0 offen\nbuffer_load_dwordx4 v[100:103], v6, s[52:55], 0 offen offset:1024")
        a("v_and_b32 v8, 7, v3\nv_lshl_add_u32 v8, v8, 2, v2\nv_lshlrev_b32 v8, 1, v8\ns_lshl_b32 s75, s74, 1")
        a("buffer_load_ushort v9, v8, s[52:55], s75 offen")
        stamp(2, 4)
        srd(40, "s10", "s11", 0 if "q" in skipw else 1024 * 8192)
        a("v_lshl_add_u32 v10, v2, 13, v7")
        a("s_lshl_b32 s75, s74, 13\ns_lshl_b32 s76, s28, 8\ns_add_u32 s75, s75, s76")
        for i in range(8):
            a(f"buffer_load_dwordx4 v[{128+4*i}:{131+4*i}], v10, s[40:43], s75 offen {pol_w}")
            if i < 7: a("s_add_u32 s75, s75, 32768")
    stamp(3, 4)
    srd(44, "s16", "s17", 0 if "g" in skipw else 1024 * 7168)
    srd(48, "s18", "s19", 0 if "g" in skipw else 1024 * 7168)
    a("v_mul_u32_u24 v11, 7168, v2\nv_add_u32 v11, v11, v7")
    a("v_cmp_gt_u32 vcc, 14, v3\nv_mov_b32 v12, 0x80000000\nv_cndmask_b32 v11, v12, v11, vcc")
    a("s_mul_i32 s76, s74, 7168\ns_mul_i32 s31, s28, 224\ns_add_u32 s76, s76, s31\ns_mov_b32 s75, s76")
    def gload(i):
        a(f"buffer_load_dwordx4 v[{160+4*i}:{163+4*i}], v11, s[44:47], s75 offen {pol_gu}\ns_add_u32 s75, s75, {4*7168}")
    def uload(i):
        a(f"buffer_load_dwordx4 v[{192+4*i}:{195+4*i}], v11, s[48:51], s76 offen {pol_gu}\ns_add_u32 s76, s76, {4*7168}")
    for i in range(GE): gload(i)
    if not B0L: a("s_barrier")
    stamp(4, 4)
    pos = {"r": [], "w": [], "n": [0] * 5, "j": [], "b": []}
    bit = 8
    for ch in str(MAP).replace("B", "bbbb"):
        if ch.isdigit(): pos["n"][int(ch)] = bit
        else: pos[ch].append(bit)
        bit += 1
    assert bit == 24 and len(pos["w"]) == 2 and len(pos["r"]) == 2 and len(pos["j"]) == 3 and len(set(pos["n"])) == 5 and len(pos["b"]) == 4
    maskB = sum(1 << b for b in pos["b"])
    contig = pos["b"][3] - pos["b"][0] == 3
    def spread(sreg, bits, dst):
        a(f"s_mov_b32 {dst}, 0")
        for i, b in enumerate(bits):
            a(f"s_bfe_u32 s38, {sreg}, {(1 << 16) | i}\ns_lshl_b32 s38, s38, {b}\ns_or_b32 {dst}, {dst}, s38")
    spread("s29", pos["j"], "s39")
    a("s_lshl_b32 s31, s28, 24\ns_add_u32 s31, s31, s39\ns_sub_u32 s34, 0x1000000, s39")
    a("s_add_u32 s32, s6, s31\ns_addc_u32 s33, s7, 0\ns_mov_b32 s35, 0x20000")
    a("s_add_u32 s36, s8, s31\ns_addc_u32 s37, s9, 0")
    spread("s3", pos["w"], "s39")
    a(f"v_and_b32 v4, 1, v2\nv_lshlrev_b32 v4, {pos['r'][0]}, v4\nv_lshrrev_b32 v5, 1, v2\nv_lshl_add_u32 v4, v5, {pos['r'][1]}, v4\nv_add3_u32 v4, v4, s39, v7")
    if XK == 1: a("s_and_b32 s60, s2, 31")
    if XK == 2: a("s_mov_b32 s60, s28")
    if XK == 3: a("s_lshl_b32 s60, s29, 2")
    if XK == 4: a("s_lshl_b32 s60, s29, 2\ns_xor_b32 s60, s60, s28")
    if XK == 5: a("s_mul_i32 s60, s2, 0x9e3779b1\ns_lshr_b32 s60, s60, 27")
    if XK == 6: a("s_lshl_b32 s60, s28, 2\ns_and_b32 s60, s60, 28")
    if XK == 7: a("s_and_b32 s60, s28, 28")
    if XK == 8: a("s_and_b32 s60, s28, 3")
    if XK == 9: a("s_lshr_b32 s60, s28, 3")
    if XK == 10: a("s_mul_i32 s60, s28, 0x9e3779b1\ns_lshr_b32 s60, s60, 27")
    if XK == 11: a("s_mov_b32 s60, s3")
    if XK == 12: a("s_and_b32 s60, s29, 1\ns_lshl_b32 s60, s60, 1\ns_xor_b32 s60, s60, s3")
    if XK:
        spread("s60", pos["n"], "s61")
    fn = [sum(((n >> i) & 1) << b for i, b in enumerate(pos["n"])) for n in range(32)] + [1 << pos["b"][0]]
    a("s_mov_b32 s72, 0")
    if XK: a("s_mov_b32 s60, s61")
    if ser: a("s_mov_b32 s71, 0\nv_mov_b32 v255, 0")
    def kslot(n):
        n %= 32
        return 32 + 4 * n if n < 16 else 128 + 4 * (n - 16)
    slot_of = {kslot(n): n for n in range(32)}
    def issueS(reg):
        n = slot_of[reg]
        inc = (fn[n + 1] - fn[n]) & 0xffffffff
        if n == 31 and not contig:
            assert not XK
            a(f"buffer_load_dwordx4 v[{reg}:{reg+3}], v4, s[32:35], s72 offen {pol_kv}\ns_or_b32 s72, s72, {(~maskB) & 0xffffffff}\ns_add_u32 s72, s72, 1\ns_and_b32 s72, s72, {maskB}")
            return
        if XK:
            a(f"buffer_load_dwordx4 v[{reg}:{reg+3}], v4, s[32:35], s60 offen {pol_kv}\ns_add_u32 s72, s72, {inc}\ns_xor_b32 s60, s72, s61")
        else:
            a(f"buffer_load_dwordx4 v[{reg}:{reg+3}], v4, s[32:35], s72 offen {pol_kv}\ns_add_u32 s72, s72, {inc}")
    for n in range(KE): issueS(kslot(n))
    masks()
    a("v_cmp_eq_u32 s[82:83], 1, v12\nv_and_b32 v13, 1, v13\nv_cmp_eq_u32 s[80:81], 1, v13")
    a("s_lshl_b32 s31, s3, 9\nv_lshlrev_b32 v225, 5, v3\nv_lshl_add_u32 v225, v2, 4, v225\nv_add_u32 v225, s31, v225")
    a("s_lshl_b32 s31, s3, 13\nv_lshlrev_b32 v224, 2, v1\nv_add_u32 v224, s31, v224")
    stamp(5, 4)
    if B0L == 1: a("s_barrier")
    a(f"s_waitcnt vmcnt({8 + GE + KE + (1 if FAST else 0)})")
    stamp(2, 2); stamp(6, 4)
    assert GE <= early
    for i in range(GE, early): gload(i)
    for k in range(8):
        a(f"v_lshlrev_b32 v{104+2*k}, 16, v{96+k}\nv_and_b32 v{105+2*k}, 0xffff0000, v{96+k}")
    a("v_add_f32 v12, v104, v105\nv_add_f32 v13, v106, v107\nv_add_f32 v14, v108, v109\nv_add_f32 v15, v110, v111")
    a("v_add_f32 v16, v112, v113\nv_add_f32 v17, v114, v115\nv_add_f32 v18, v116, v117\nv_add_f32 v19, v118, v119")
    a("v_add_f32 v12, v12, v13\nv_add_f32 v14, v14, v15\nv_add_f32 v16, v16, v17\nv_add_f32 v18, v18, v19")
    a("v_add_f32 v12, v12, v14\nv_add_f32 v16, v16, v18\nv_add_f32 v12, v12, v16")
    wave_reduce(12, 13, "v_add_f32")
    a("v_mul_f32 v12, 0x3a800000, v12")
    for k in range(16):
        a(f"v_sub_f32 v{104+k}, v{104+k}, v12")
    a("v_mul_f32 v14, v104, v104\nv_mul_f32 v15, v105, v105\nv_mul_f32 v16, v106, v106\nv_mul_f32 v17, v107, v107")
    for k in range(4, 16):
        a(f"v_fmac_f32 v{14+k%4}, v{104+k}, v{104+k}")
    a("v_add_f32 v14, v14, v15\nv_add_f32 v16, v16, v17\nv_add_f32 v14, v14, v16")
    wave_reduce(14, 13, "v_add_f32")
    a("v_mul_f32 v14, 0x3a800000, v14")
    rbf(14); rbf(12)
    a("v_add_f32 v14, 0x3727c5ac, v14")
    rbf(14)
    a("v_sqrt_f32 v14, v14")
    rbf(14)
    a("v_rcp_f32 v14, v14")
    def ownx():
        a("v_lshlrev_b32 v9, 16, v9\nv_sub_f32 v9, v9, v12")
        rbf(9)
        a("v_mul_f32 v9, v9, v14\nv_cvt_pk_bf16_f32 v124, v9, v9")
    if not FAST: ownx()
    stamp(3, 2)
    if B0L == 2: a("s_barrier")
    def stage1(acc, wbase):
        buildA(0, 124, 0)
        for i in range(8):
            if i < 7: buildA((i + 1) & 1, 124, i + 1)
            mfma(acc, i & 1, wbase + 4 * i, i == 0)
    a(f"s_waitcnt vmcnt({early + KE})")
    stamp(4, 2)
    for i in range(early, 8): gload(i)
    if FAST: ownx()
    stage1(12, 128)
    writeD(12, RED_Q)
    a(f"s_lshl_b32 s31, s3, 2\nv_mov_b32 v16, s31\nv_mov_b32 v17, 1\nds_write_b32 v16, v17 offset:{FL}")
    stamp(1); stamp(5, 2)
    WO0 = 192
    def wsetup():
        srd(40, "s12", "s13", 0 if "o" in skipw else 4096 * 2048)
        a("v_lshl_add_u32 v240, v2, 14, v7")
        a("s_lshl_b32 s31, s28, 2\ns_add_u32 s31, s31, s3\ns_lshl_b32 s75, s31, 16\ns_lshl_b32 s31, s29, 8\ns_add_u32 s75, s75, s31")
        a("v_and_b32 v232, 7, v3\nv_lshrrev_b32 v233, 3, v3\ns_lshl_b32 s31, s28, 13\ns_add_u32 s31, s31, %d" % H1)
        a("v_lshlrev_b32 v232, 10, v232\nv_add_u32 v232, s31, v232")
        a("v_lshlrev_b32 v233, 4, v233\nv_lshl_add_u32 v233, v2, 5, v233\ns_lshl_b32 s31, s3, 7\nv_add3_u32 v233, v233, s31, v232")
        a("s_add_u32 s30, s30, 1")
    wl_all = []
    for t in range(8):
        wl_all.append(f"buffer_load_dwordx4 v[{WO0+4*t}:{WO0+3+4*t}], v240, s[40:43], s75 offen {pol_w}\ns_add_u32 s75, s75, 2048")
    assert DS <= 8 and KE + DS - 1 <= 15
    stamp(1, 3)
    for i in range(8):
        a(f"s_waitcnt vmcnt({DS-1})")
        uload(i)
    stamp(2, 3)
    for n in range(KE, 32):
        a(f"s_waitcnt vmcnt({(DS0 if (DS0 and n >= 16) else DS)-1})")
        issueS(kslot(n))
        if n % 8 == 7: stamp(3 + n // 8, 3)
        if n == KE:
            stage1(16, 160)
        if n == KE + DS - 1:
            stage1(20, 192)
            writeD(16, RED_G)
            writeD(20, RED_U)
            if NB2F: a(f"s_lshl_b32 s31, s3, 2\nv_mov_b32 v16, s31\nv_mov_b32 v17, 1\nds_write_b32 v16, v17 offset:{FG}")
        if n == 15:
            a("s_waitcnt lgkmcnt(0)")
            wsetup()
            for x in wl_all[:8 - NWT]:
                a(f"s_waitcnt vmcnt({DS-1})"); a(x)
    a("v_mov_b32 v126, 0xff800000\nv_mov_b32 v127, 0\ns_mov_b32 s76, %d" % SCALE)
    stamp(6, 2)
    if NB2F:
        a("v_mov_b32 v247, 0")
        a.fence()
        a(f"L_qw:\nds_read_b32 v16, v247 offset:{QF}\nds_read_b128 v[8:11], v7 offset:{QL}\ns_waitcnt lgkmcnt(0)\nv_readfirstlane_b32 s31, v16")
        a("s_cmp_eq_u32 s31, 1\ns_cbranch_scc1 L_qw_ok\ns_sleep 1\ns_branch L_qw\nL_qw_ok:")
        stamp(2)
    else:
        a("s_waitcnt lgkmcnt(0)\ns_barrier")
        stamp(2)
        a(f"ds_read_b128 v[8:11], v7 offset:{QL}\ns_waitcnt lgkmcnt(0)")
    levels = [float(x.replace("h", ".5").replace("q", ".25").replace("t", ".75")) for x in str(DL).split("-")]
    def wv(d, k):
        f = d - int(d)
        up = (f == 0.5 and k % 2 == 1) or (f == 0.25 and k % 4 == 3) or (f == 0.75 and k % 4 != 0)
        return int(d) - 1 + (1 if up else 0)
    ths = [int(x) for x in str(TH).split("/")] if TH != "" else []
    assert len(ths) == len(levels) - 1
    a(f"s_mov_b32 s70, {len([t for t in ths if t < 0])}\ns_mov_b32 s69, 0\ns_mov_b32 s67, 0")
    if fixed: a(f"s_add_u32 s66, s66, {T0}")
    a("s_lshl_b32 s31, s3, 3\nv_mov_b32 v246, s31\nv_mov_b32 v247, 0")
    def control(k):
        if k == 7: a(f"s_memrealtime s[64:65]\nds_read_b64 v[242:243], v247 offset:{RF}")
        if k == 12:
            a("s_waitcnt lgkmcnt(0)\nv_readfirstlane_b32 s62, v242\nv_readfirstlane_b32 s63, v243")
            a("s_sub_u32 s68, s64, s69\ns_add_u32 s69, s69, %d\ns_add_u32 s67, s67, 1" % TAU)
            a(f"v_mov_b32 v244, s68\nv_mov_b32 v245, s67\nds_write_b64 v246, v[244:245] offset:{PH}")
            if fixed: a("s_sub_u32 s68, s68, s66")
            else: a("s_sub_u32 s68, s68, s62\ns_and_b32 s68, s68, s63")
            a("s_mov_b32 s70, 0")
            for i, t in enumerate(ths):
                a(f"s_cmp_gt_i32 s68, {t}\ns_addc_u32 s70, s70, 0")
            if T4: a(f"s_cmp_gt_i32 s68, {T4}\ns_cselect_b32 s70, {L4}, s70")
    uid = [0]
    def variants(fn):
        uid[0] += 1; u = uid[0]
        a.fence()
        for i in range(1, len(levels)):
            a(f"s_cmp_eq_u32 s70, {i}\ns_cbranch_scc1 L_v{u}_{i}")
        for i, d in enumerate(levels):
            if i: a(f"L_v{u}_{i}:")
            fn(d)
            a.fence()
            if i < len(levels) - 1: a(f"s_branch L_v{u}_end")
        a(f"L_v{u}_end:")

    def kgroup(half, d):
        for k in range(16):
            series(k); control(k)
            r = kslot(16 * half + k); acc = 12 + k % 4
            a(f"v_dot2_f32_bf16 v{acc}, v{r}, v8, 0\nv_dot2_f32_bf16 v{acc}, v{r+1}, v9, v{acc}\nv_dot2_f32_bf16 v{acc}, v{r+2}, v10, v{acc}\nv_dot2_f32_bf16 v{acc}, v{r+3}, v11, v{acc}")
            a(f"s_waitcnt vmcnt({wv(d, k)})")
            issueS(r)
            if k % 4 == 3:
                C = 20 + k // 4
                a("v_add_f32_dpp v16, v12, v12 row_ror:8 row_mask:0xf bank_mask:0x3")
                a("v_add_f32_dpp v17, v14, v14 row_ror:8 row_mask:0xf bank_mask:0x3")
                a("v_add_f32_dpp v16, v13, v13 row_ror:8 row_mask:0xf bank_mask:0xc")
                a("v_add_f32_dpp v17, v15, v15 row_ror:8 row_mask:0xf bank_mask:0xc")
                a(f"v_add_f32_dpp v{C}, v16, v16 row_shl:4 row_mask:0xf bank_mask:0x5")
                a(f"v_add_f32_dpp v{C}, v17, v17 row_shr:4 row_mask:0xf bank_mask:0xa")
        for C in range(20, 24):
            a(f"v_add_f32_dpp v{C}, v{C}, v{C} quad_perm:[2,3,0,1] row_mask:0xf bank_mask:0xf")
        a("v_cndmask_b32 v20, v20, v21, s[80:81]\nv_cndmask_b32 v22, v22, v23, s[80:81]")
        a("v_add_f32_dpp v20, v20, v20 quad_perm:[1,0,3,2] row_mask:0xf bank_mask:0xf")
        a("v_add_f32_dpp v22, v22, v22 quad_perm:[1,0,3,2] row_mask:0xf bank_mask:0xf")
        a("v_cndmask_b32 v18, v20, v22, s[82:83]")
        rbf(18)
        a("v_mul_f32 v18, s76, v18")
        rbf(18)
        a("v_max_f32 v126, v126, v18\nds_write_b32 v224, v18\nv_add_u32 v224, 256, v224")
    a("s_mov_b32 s73, 16")
    a("L_kloop:")
    a("s_cmp_lg_u32 s73, 1\ns_cbranch_scc1 L_knosw\ns_mov_b32 s32, s36\ns_mov_b32 s33, s37\ns_mov_b32 s72, 0\n" + ("s_mov_b32 s60, s61\n" if XK else "") + "L_knosw:")
    variants(lambda d: kgroup(0, d))
    if KB: a(f"s_cmp_eq_u32 s73, 1\ns_cselect_b32 s70, {len(levels)-1}, s70")
    variants(lambda d: kgroup(1, d))
    a("s_sub_u32 s73, s73, 1\ns_cmp_lg_u32 s73, 0\ns_cbranch_scc1 L_kloop")
    wave_reduce(126, 13, "v_max_f32")
    a(f"s_lshl_b32 s31, s3, 2\nv_mov_b32 v13, s31\nds_write_b32 v13, v126 offset:{MX}")
    a("v_subrev_u32 v224, 8192, v224")
    stamp(3)
    a("ds_read_b32 v125, v224\nv_mov_b32 v226, v126")
    a("s_mov_b32 s76, %d" % LOG2E)
    a("s_waitcnt lgkmcnt(0)")
    def mkP():
        a("v_sub_f32 v125, v125, v226\nv_mul_f32 v125, s76, v125\nv_exp_f32 v125, v125\nv_add_f32 v127, v127, v125\nv_cvt_pk_bf16_f32 v125, v125, v125")
    mkP()
    a("v_mov_b32 v124, v125\nv_mov_b32 v12, 0\nv_mov_b32 v13, 0\nv_mov_b32 v14, 0\nv_mov_b32 v15, 0")
    lam = [4 * (((c >> 1) & 1) + 2 * (c & 1)) + [0, 2, 1, 3][c >> 2] for c in range(16)]
    inv = [lam.index(i) for i in range(16)]
    buildA(0, 124, inv[0])
    def vgroup(half, pre, post, last=False, ctl=True):
        for k in range(16):
            series(k)
            if ctl: control(k)
            if k == 0 and not last:
                a("v_add_u32 v224, 256, v224\nds_read_b32 v125, v224")
            if k == 6 and not last:
                a("s_waitcnt lgkmcnt(0)"); mkP()
            if k < 15: buildA((k + 1) & 1, 124, inv[k + 1])
            elif not last:
                buildA(0, 125, inv[0]); a("v_mov_b32 v124, v125")
            pre(k)
            mfma(12, k & 1, kslot(16 * half + k), False)
            post(k)
            if last and k == 2:
                wave_reduce(127, 16, "v_add_f32")
                a(f"s_lshl_b32 s31, s3, 9\nv_mov_b32 v20, s31\nv_mov_b32 v16, v127\nv_mov_b32 v17, 0\nv_mov_b32 v18, 0\nv_mov_b32 v19, 0\nds_write_b128 v20, v[16:19] offset:{RED_L}")
    def vsteady(half, d):
        def post(k):
            a(f"s_waitcnt vmcnt({wv(d, k)})"); issueS(kslot(16 * half + k))
        vgroup(half, lambda k: None, post)
    a(f"s_mov_b32 s73, {15 - (NBG + 1) // 2}")
    a("L_vloop:")
    variants(lambda d: vsteady(0, d))
    variants(lambda d: vsteady(1, d))
    a("s_sub_u32 s73, s73, 1\ns_cmp_lg_u32 s73, 0\ns_cbranch_scc1 L_vloop")
    if NBG % 2: variants(lambda d: vsteady(0, d))
    for i in range(NBG): vsteady((NBG + i) % 2, DB)
    wl = wl_all[8 - NWT:]
    nw = [0]
    dmax = DB if NBG else int(max(levels) + 0.99)
    wsteps = [n for n in range(32) if (n < 32 - DT and n % 5 == 4) or n >= 32 - DT]
    def fin(half):
        def pre(k):
            n = 16 * half + k
            if n >= 32 - dmax: a(f"s_waitcnt vmcnt({31 - n + nw[0]})")
        def post(k):
            n = 16 * half + k
            if n in wsteps and nw[0] < len(wl):
                a(wl[nw[0]]); nw[0] += 1
        vgroup(half, pre, post, last=(half == 1), ctl=False)
    a("L_tail0:")
    fin(0); fin(1)
    writeD(12, RED_O)
    for x in wl[nw[0]:]: a(x)
    a("s_waitcnt lgkmcnt(0)\ns_barrier")
    stamp(4)
    pollc("L_p1", ["buffer_load_dwordx4 v[228:231], v233, s[56:59], 0 offen " + h1l.replace("+", " "),
                   "buffer_load_dwordx4 v[236:239], v232, s[56:59], 0 offen offset:512 " + h1l.replace("+", " ")], [228, 229, 230, 231, 236, 237], full=(238, 239), sleep=sl1)
    stamp(5)
    steps = ["quad_perm:[1,0,3,2]", "quad_perm:[2,3,0,1]", "row_half_mirror"]
    O4 = (228, 229, 230, 231)
    a("v_and_b32 v237, 0xffffff00, v237\nv_mov_b32 v240, v237")
    for s in steps: a(f"v_max_f32_dpp v240, v240, v240 {s} row_mask:0xf bank_mask:0xf")
    a("v_sub_f32 v237, v237, v240\nv_mul_f32 v237, s76, v237\nv_exp_f32 v237, v237")
    for v in (236,) + O4: a(f"v_mul_f32 v{v}, v{v}, v237")
    for s in steps:
        for v in (236,) + O4: a(f"v_add_f32_dpp v{v}, v{v}, v{v} {s} row_mask:0xf bank_mask:0xf")
    a("v_rcp_f32 v236, v236")
    for v in O4: a(f"v_mul_f32 v{v}, v{v}, v236")
    for v in O4: a(f"v_cvt_pk_bf16_f32 v{v}, v{v}, v{v}")
    seq = [(b, i) for b in range(2) for i in range(4)]
    buildA(0, 228, 0)
    for t, (b, i) in enumerate(seq):
        if t < 7:
            b2, i2 = seq[t + 1]; buildA((t + 1) & 1, 228 + i2, 8 * b2)
        mfma(16, t & 1, WO0 + 4 * t, t == 0)
    writeD(16, RED_A)
    a("s_waitcnt lgkmcnt(0)\ns_barrier")
    stamp(6)
    if LP:
        a("s_cmp_lg_u32 s3, 0\ns_cbranch_scc1 L_norem\ns_mov_b64 exec, s[78:79]")
        for w in range(4): a(f"ds_read_b128 v[{32+4*w}:{35+4*w}], v6 offset:{RED_A+512*w}")
        a("s_lshl_b32 s31, s2, 9\ns_add_u32 s31, s31, %d\ns_mov_b32 s62, 0xff\nv_mov_b32 v20, s30\ns_waitcnt lgkmcnt(0)" % H2A)
        for i in range(4): a(f"v_add_f32 v{32+i}, v{32+i}, v{36+i}\nv_add_f32 v{40+i}, v{40+i}, v{44+i}")
        for i in range(4): a(f"v_add_f32 v{32+i}, v{32+i}, v{40+i}")
        for i in range(4): a(f"v_bfi_b32 v{32+i}, s62, v20, v{32+i}")
        a("buffer_store_dwordx4 v[32:35], v6, s[56:59], s31 offen sc1\ns_mov_b64 exec, -1")
        a.fence()
        a("L_norem:")
    if ser:
        a("s_add_u32 s68, s26, 0x9000000\ns_addc_u32 s69, s27, 0\ns_lshl_b32 s31, s2, 2\ns_add_u32 s31, s31, s3\ns_lshl_b32 s31, s31, 8\nv_lshlrev_b32 v16, 2, v1\nv_add_u32 v16, s31, v16")
        a("global_store_dword v16, v255, s[68:69]")
    if diag:
        a("s_waitcnt lgkmcnt(0)\ns_getreg_b32 s98, hwreg(HW_REG_HW_ID)\ns_getreg_b32 s99, hwreg(HW_REG_XCC_ID)")
        a("s_cmp_lg_u32 s3, 0\ns_cbranch_scc1 L_exit\ns_mov_b32 s31, 0\ns_branch L_stamps")
    else:
        a("s_endpgm")

    if FAST:
        a("L_comm0:\ns_waitcnt lgkmcnt(0)")
        common()
    a("L_comm:")
    incomm[0] = True
    a(f"v_mov_b32 v8, 0\nv_mov_b32 v20, 0\nv_mov_b32 v21, 0\nv_mov_b32 v22, 0\nv_mov_b32 v23, 0\nds_write_b128 v8, v[20:23] offset:{FL}\nds_write_b128 v8, v[20:23] offset:{FG}\nds_write_b128 v8, v[20:23] offset:{QF}\nds_write_b128 v8, v[20:23] offset:{RF}\nds_write_b128 v8, v[20:23] offset:{PH}\nds_write_b128 v8, v[20:23] offset:{PH+16}\ns_waitcnt lgkmcnt(0)\ns_barrier")
    a("s_lshl_b32 s31, s29, 8\ns_and_b32 s75, s28, 3\ns_lshl_b32 s75, s75, 6\ns_add_u32 s75, s75, s31")
    a("v_and_b32 v37, 7, v1\nv_lshlrev_b32 v38, 3, v37")
    a("buffer_load_dwordx2 v[10:11], v38, s[52:55], s75 offen")
    if TL:
        a("s_lshl_b32 s31, s28, 24\ns_add_u32 s72, s8, s31\ns_addc_u32 s73, s9, 0\ns_lshl_b32 s31, s28, 18\ns_add_u32 s80, s12, s31\ns_addc_u32 s81, s13, 0\ns_mov_b32 s82, 27")
    def wdload():
        srd(36, "s20", "s21", 0 if "d" in skipw else 3584 * 2048)
        a("v_lshl_add_u32 v58, v2, 11, v7\ns_mul_i32 s35, s28, %d\ns_lshl_b32 s31, s29, 8\ns_add_u32 s35, s35, s31" % (112 * 2048))
        for i in range(28):
            if i >= WDF: a(f"s_waitcnt vmcnt({WDF-1})")
            a(f"buffer_load_dwordx4 v[{128+4*i}:{131+4*i}], v58, s[36:39], s35 offen {pol_w}\ns_add_u32 s35, s35, 8192")
    if CP:
        a("s_and_b32 s34, s2, 31" if perm == 1 else "s_mov_b32 s34, s28")
        a(f"s_cmp_ge_u32 s34, {CP}\ns_cbranch_scc1 L_nocp")
        a(f"s_getpc_b64 s[32:33]\nL_pc0:\ns_sub_u32 s32, s32, L_pc0-{NAME}\ns_subb_u32 s33, s33, 0\ns_lshl_b32 s31, s34, 13\nv_add_u32 v20, s31, v6\ns_mov_b32 s31, L_exit-{NAME}-16")
        for i in range(8): a(f"v_min_u32 v{21+i}, s31, v20\nglobal_load_dwordx4 v[{64+4*i}:{67+4*i}], v{21+i}, s[32:33]\nv_add_u32 v20, 1024, v20")
        a("L_nocp:")
    if WDW == 1: wdload()
    if touch:
        a("s_mov_b64 exec, 1")
        a("s_lshl_b32 s31, s28, 24\ns_add_u32 s32, s6, s31\ns_addc_u32 s33, s7, 0\nglobal_load_dword v20, v8, s[32:33] nt")
        a("s_mul_i32 s31, s29, %d\ns_add_u32 s32, s16, s31\ns_addc_u32 s33, s17, 0\nglobal_load_dword v21, v8, s[32:33] nt" % (128 * 7168))
        a("s_add_u32 s32, s18, s31\ns_addc_u32 s33, s19, 0\nglobal_load_dword v22, v8, s[32:33] nt")
        a("global_load_dword v23, v8, s[26:27] nt")
        a("s_mov_b64 exec, -1")
    masks()
    srd(68, "s22", "s23", 2048)
    a("v_lshlrev_b32 v9, 3, v1")
    a("s_lshl_b32 s31, s2, 10\ns_add_u32 s40, s31, %d" % H0Q)
    a("s_lshl_b32 s31, s28, 13\ns_add_u32 s41, s31, %d\ns_add_u32 s42, s41, 4096" % H0Q)
    a("s_waitcnt lgkmcnt(0)\ns_add_u32 s30, s30, 1")
    def red4(dst, off, tmp):
        for w in range(4): a(f"ds_read_b64 v[{tmp+2*w}:{tmp+2*w+1}], v9 offset:{off+512*w}")
    def sum4(dst, tmp):
        a(f"v_add_f32 v{dst}, v{tmp}, v{tmp+2}\nv_add_f32 v{dst+2}, v{tmp+1}, v{tmp+3}\nv_add_f32 v{tmp+4}, v{tmp+4}, v{tmp+6}\nv_add_f32 v{tmp+5}, v{tmp+5}, v{tmp+7}")
        a(f"v_add_f32 v{dst}, v{dst}, v{tmp+4}\nv_add_f32 v{dst+2}, v{dst+2}, v{tmp+5}")
    a("v_mov_b32 v13, s30\nv_mov_b32 v15, s30\nv_mov_b32 v17, s30\nv_mov_b32 v19, s30")
    a.fence()
    a(f"L_fl:\nds_read_b128 v[20:23], v8 offset:{FL}\ns_waitcnt lgkmcnt(0)\nv_and_b32 v20, v20, v21\nv_and_b32 v22, v22, v23\nv_and_b32 v20, v20, v22\nv_readfirstlane_b32 s31, v20")
    a("s_cmp_eq_u32 s31, 1\ns_cbranch_scc1 L_fl_ok\ns_sleep 1\ns_branch L_fl\nL_fl_ok:")
    stamp(1)
    red4(12, RED_Q, 20); a("s_waitcnt lgkmcnt(0)"); sum4(12, 20)
    if LOC:
        a("s_getreg_b32 s65, hwreg(HW_REG_XCC_ID)\ns_and_b32 s65, s65, 15")
        if fakex: a("s_mov_b32 s65, s29")
        a("s_lshl_b32 s65, s65, 28\ns_and_b32 s31, s30, 0xfffffff\ns_or_b32 s65, s65, s31\nv_mov_b32 v13, s65\nv_mov_b32 v15, s65")
        a("buffer_store_dwordx4 v[12:15], v6, s[56:59], s40 offen")
        if WDW == 2: wdload()
        up = "buffer_store_dwordx4 v[12:15], v6, s[56:59], s40 offen sc1"
        poll_rows("L_p0", [(f"buffer_load_dwordx4 v[{64+4*jj}:{67+4*jj}], v6, s[56:59], s{41+jj//4} offen offset:{1024*(jj%4)} {ql.replace('+', ' ')}", 65 + 4 * jj, 67 + 4 * jj) for jj in range(8)], 4,
                  tagreg="s65", mask="0xfffffff", hook=up)
        a("v_xor_b32 v250, s65, v65")
        for jj in range(1, 8): a(f"v_bitop3_b32 v250, v{65+4*jj}, s65, v250 bitop3:0xbe")
        a("v_cmp_ne_u32 vcc, 0, v250\ns_cmp_eq_u64 vcc, 0\ns_cselect_b32 s11, 1, 0\ns_cbranch_scc1 L_qloc")
        a(up)
        a("L_qloc:\ns_nop 1\nv_mov_b32 v13, s30\nv_mov_b32 v15, s30")
    else:
        if noq != 1: a("buffer_store_dwordx4 v[12:15], v6, s[56:59], s40 offen " + qfl.replace("+", " "))
        if qdelay: a(f"s_sleep {qdelay}")
        if WDW == 2: wdload()
        if noq:
            pass
        elif maskpoll:
            poll_rows("L_p0", [(f"buffer_load_dwordx4 v[{64+4*jj}:{67+4*jj}], v6, s[56:59], s{41+jj//4} offen offset:{1024*(jj%4)} {ql.replace('+', ' ')}", 65 + 4 * jj, 67 + 4 * jj) for jj in range(8)], 4)
        else:
            poll("L_p0", [f"buffer_load_dwordx4 v[{128+4*jj}:{131+4*jj}], v6, s[56:59], s{41+jj//4} offen offset:{1024*(jj%4)} sc1" for jj in range(8)],
                 [129 + 2 * i for i in range(16)])
    stamp(2)
    def sum8(base, stride):
        for o in (0, 2):
            for (x, y) in ((0, 1), (2, 3), (4, 5), (6, 7), (0, 2), (4, 6), (0, 4)):
                a(f"v_add_f32 v{base+x*stride+o}, v{base+x*stride+o}, v{base+y*stride+o}")
    sum8(64, 4)
    a(f"v_cvt_pk_bf16_f32 v64, v64, v66\nv_lshlrev_b32 v20, 2, v1\nds_write_b32 v20, v64 offset:{QL}")
    if NB2F:
        a(f"v_mov_b32 v20, 1\nds_write_b32 v8, v20 offset:{QF}")
        if WDW == 3: wdload()
        a.fence()
        a(f"L_fg:\nds_read_b128 v[20:23], v8 offset:{FG}\ns_waitcnt lgkmcnt(0)\nv_and_b32 v20, v20, v21\nv_and_b32 v22, v22, v23\nv_and_b32 v20, v20, v22\nv_readfirstlane_b32 s31, v20")
        a("s_cmp_eq_u32 s31, 1\ns_cbranch_scc1 L_fg_ok\ns_sleep 2\ns_branch L_fg\nL_fg_ok:")
    else:
        a("s_waitcnt lgkmcnt(0)\ns_barrier")
    def tag4(v):
        for i in range(4): a(f"v_bfi_b32 v{v+i}, s61, v13, v{v+i}")
    a("s_mov_b32 s61, 0xff")
    red4(0, RED_G, 20); red4(0, RED_U, 28); a("s_waitcnt lgkmcnt(0)")
    for d, t in ((16, 20), (18, 28)):
        a(f"v_add_f32 v{d}, v{t}, v{t+2}\nv_add_f32 v{d+1}, v{t+1}, v{t+3}\nv_add_f32 v{t+4}, v{t+4}, v{t+6}\nv_add_f32 v{t+5}, v{t+5}, v{t+7}")
        a(f"v_add_f32 v{d}, v{d}, v{t+4}\nv_add_f32 v{d+1}, v{d+1}, v{t+5}")
    tag4(16)
    a("s_lshl_b32 s43, s2, 10\ns_add_u32 s40, s43, %d\ns_mov_b32 s62, -1\ns_mov_b32 s63, 0xffffff" % H0GU)
    a("s_mov_b64 exec, s[62:63]")
    if LOC:
        a("s_cmp_eq_u32 s11, 1\ns_cbranch_scc1 L_gs_l\nbuffer_store_dwordx4 v[16:19], v6, s[56:59], s40 offen sc1\ns_branch L_gs_e\nL_gs_l:\nbuffer_store_dwordx4 v[16:19], v6, s[56:59], s40 offen\nL_gs_e:")
    else:
        a("buffer_store_dwordx4 v[16:19], v6, s[56:59], s40 offen " + gufl.replace("+", " "))
    a("s_mov_b64 exec, -1")
    def ffn():
        if WDW == 0: wdload()
        a("s_lshl_b32 s31, s28, 13\ns_add_u32 s18, s31, %d\ns_add_u32 s19, s18, 4096" % H0GU)
        a("s_mov_b64 exec, s[62:63]")
        pollc("L_pg", [f"buffer_load_dwordx4 v[{64+4*n}:{67+4*n}], v6, s[56:59], s{18+n//4} offen offset:{1024*(n%4)} {gul.replace('+', ' ')}" for n in range(8)],
              list(range(64, 96)), sleep=50)
        stamp(3)
        for o in range(4):
            for (x, y) in ((0, 1), (2, 3), (4, 5), (6, 7), (0, 2), (4, 6), (0, 4)):
                a(f"v_add_f32 v{64+4*x+o}, v{64+4*x+o}, v{64+4*y+o}")
        for v in (64, 65, 66, 67): rbf(v)
        a("s_mov_b32 s16, 0x3d372713\ns_mov_b32 s17, 0xc0135761")
        for g, u in ((64, 66), (65, 67)):
            a(f"v_mul_f32 v20, v{g}, v{g}\nv_fma_f32 v20, v20, s16, 1.0\nv_mul_f32 v20, v20, v{g}\nv_mul_f32 v20, s17, v20\nv_exp_f32 v20, v20\nv_add_f32 v20, 1.0, v20\nv_rcp_f32 v20, v20\nv_mul_f32 v{g}, v{g}, v20")
            rbf(g)
            a(f"v_mul_f32 v{g}, v{g}, v{u}")
        a(f"v_cvt_pk_bf16_f32 v20, v64, v64\nv_cvt_pk_bf16_f32 v21, v65, v65\nds_write_b64 v9, v[20:21] offset:{HL}")
        a(f"v_lshl_add_u32 v20, v2, 2, v7\nds_read_b32 v56, v20 offset:{HL}\nds_read_b32 v57, v20 offset:{HL+256}\ns_waitcnt lgkmcnt(0)")
        buildA(0, 56, 0)
        for i in range(28):
            if i < 27: buildA((i + 1) & 1, 56 + (i + 1) // 16, (i + 1) % 16)
            mfma(52, i & 1, 128 + 4 * i, i == 0)
        tag4(52)
        if FW == 2:
            a("v_lshlrev_b32 v39, 5, v3\nv_lshl_add_u32 v39, v2, 4, v39\ns_lshl_b32 s31, s2, 9\ns_add_u32 s42, s31, %d" % H2F)
            a("s_mov_b64 exec, s[78:79]\nbuffer_store_dwordx4 v[52:55], v39, s[56:59], s42 offen sc1 nt\ns_mov_b64 exec, -1")
    if not GF: ffn()
    def bump(r, first):
        if not GA: return f"s_add_u32 s{r}, s{r}, {GP}"
        return f"s_cmp_eq_u32 s{r}, {first}\ns_cselect_b32 s9, {GA}, {GP}\ns_add_u32 s{r}, s{r}, s9"
    sh = GP.bit_length() - 1
    assert GP == 1 << sh
    a("v_lshlrev_b32 v50, 7, v1")
    a(f"s_mov_b32 s44, {G0}\ns_mov_b32 s45, {G0+GG}\ns_mov_b32 s46, {G0+GR}\ns_mov_b32 s47, 0\ns_mov_b32 s51, 0\ns_mov_b32 s52, 0\ns_mov_b32 s53, 0\ns_mov_b32 s54, 0")
    if NREF == 64: a("s_xor_b32 s55, s28, s29\ns_and_b32 s55, s55, 3")
    if NREF == 32: a("s_xor_b32 s55, s28, s29\ns_and_b32 s55, s55, 7")
    if NREF == 16: a("s_lshr_b32 s55, s2, 4\ns_xor_b32 s55, s55, s2\ns_and_b32 s55, s55, 15")
    if NREF == 8: a("s_lshr_b32 s55, s2, 5\ns_mul_i32 s55, s55, 5\ns_xor_b32 s55, s55, s2\ns_and_b32 s55, s55, 31")
    rsh = {64: 2, 32: 3, 16: 4, 8: 5}[NREF]
    if NREF < 64: a(f"v_and_b32 v50, {NREF-1}, v1\nv_lshlrev_b32 v50, 7, v50")
    a(f"s_lshr_b32 s48, s2, {rsh}")
    a("s_lshl_b32 s48, s48, 7\ns_add_u32 s48, s48, %d\ns_mov_b32 s49, %d" % (PHI, PHI))
    a("s_mov_b32 s50, 0" if NREP == 1 else "s_lshr_b32 s50, s28, 2" if perm == 1 else "s_mov_b32 s50, s29")
    a("s_lshl_b32 s50, s50, 7\ns_add_u32 s50, s50, %d\ns_mov_b32 s60, %d" % (REF, REF))
    a("s_cmp_eq_u32 s2, 0\ns_cselect_b32 s45, s45, -1")
    a("s_mov_b32 s4, 0\ns_mov_b32 s5, 0\ns_mov_b32 s6, 0\ns_mov_b32 s7, 0\ns_mov_b32 s10, %d" % GF)
    if noex: a("s_mov_b32 s44, -1\ns_mov_b32 s45, -1\ns_mov_b32 s46, -1")
    a.fence()
    a("L_ctl:")
    a(f"ds_read_b128 v[20:23], v8 offset:{PH}\nds_read_b128 v[24:27], v8 offset:{PH+16}\ns_waitcnt lgkmcnt(0)")
    a("v_min_u32 v21, v21, v23\nv_min3_u32 v21, v21, v25, v27\nv_readfirstlane_b32 s31, v21")
    if GF: a(f"s_cmp_eq_u32 s10, -1\ns_cbranch_scc0 L_ctl_c")
    a(f"s_cmp_ge_u32 s31, {GEX}\ns_cbranch_scc1 L_ctl_end\nL_ctl_c:\ns_cmp_eq_u32 s31, s47\ns_cbranch_scc1 L_ctl_sleep\ns_mov_b32 s47, s31")
    a("v_sub_u32 v22, v22, v20\nv_sub_u32 v24, v24, v20\nv_sub_u32 v26, v26, v20\nv_add3_u32 v22, v22, v24, v26\nv_ashrrev_i32 v22, 2, v22\nv_add_u32 v12, v20, v22")
    if JD:
        a(f"v_readfirstlane_b32 s8, v12\ns_sub_u32 s9, s8, s5\ns_and_b32 s9, s9, s54\ns_mov_b32 s5, s4\ns_mov_b32 s4, s8")
        a(f"s_cmp_gt_i32 s9, {JD}\ns_cbranch_scc0 L_ctl_nj\ns_add_u32 s51, s51, s9\ns_add_u32 s6, s6, s9\ns_mov_b32 s5, s8\nL_ctl_nj:")
    a(f"s_cmp_lt_u32 s47, s44\ns_cbranch_scc1 L_ctl_g\ns_mov_b32 s6, 0\n{bump(44, G0)}\ns_cmp_lg_u32 s55, 0\ns_cbranch_scc1 L_ctl_g")
    a("s_mov_b64 exec, 1\nbuffer_store_dwordx2 v[12:13], v8, s[56:59], s48 offen " + exs.replace("+", " ") + "\ns_mov_b64 exec, -1\ns_add_u32 s48, s48, 8192")
    a("L_ctl_g:")
    a("s_cmp_lt_u32 s47, s45\ns_cbranch_scc1 L_ctl_rd")
    a("buffer_load_dwordx2 v[20:21], v50, s[56:59], s49 offen " + exl.replace("+", " ") + "\ns_waitcnt vmcnt(0)")
    a("v_cmp_ne_u32 vcc, s30, v21\ns_cmp_lg_u64 vcc, 0\ns_cbranch_scc1 L_ctl_rd")
    a("v_sub_u32 v20, v20, v12")
    wave_reduce(20, 21, "v_add_u32")
    a("v_ashrrev_i32 v20, 6, v20\nv_add_u32 v14, v12, v20")
    a(("s_mov_b64 exec, 0xff" if NREP == 8 else "s_mov_b64 exec, 1") + "\nbuffer_store_dwordx2 v[14:15], v50, s[56:59], s60 offen " + exs.replace("+", " ") + "\ns_mov_b64 exec, -1")
    a(f"{bump(45, G0 + GG)}\ns_add_u32 s49, s49, 8192\ns_add_u32 s60, s60, 1024")
    a.fence()
    a("L_ctl_rd:")
    a("s_cmp_lt_u32 s47, s46\ns_cbranch_scc1 L_ctl_up")
    if RP == 1:
        a("s_mov_b64 exec, 1\ns_cmp_eq_u32 s47, s46\ns_cbranch_scc1 L_ctl_r1\nbuffer_load_dwordx2 v[28:29], v8, s[56:59], s50 offen sc1\ns_branch L_ctl_r2")
        a("L_ctl_r1:\nbuffer_load_dwordx2 v[28:29], v8, s[56:59], s50 offen\nL_ctl_r2:")
        a("s_waitcnt vmcnt(0)\nv_readfirstlane_b32 s31, v29\nv_readfirstlane_b32 s64, v28\ns_mov_b64 exec, -1")
    elif RP == 2:
        a("s_cmp_eq_u32 s47, s46\ns_cbranch_scc1 L_ctl_r1")
        a("s_mov_b64 exec, 1\nbuffer_load_dwordx2 v[28:29], v8, s[56:59], s50 offen sc1\ns_waitcnt vmcnt(0)\nv_readfirstlane_b32 s65, v29\nv_readfirstlane_b32 s64, v28\ns_mov_b64 exec, -1\ns_nop 3\ns_branch L_ctl_r2")
        a("L_ctl_r1:\ns_load_dwordx2 s[64:65], s[26:27], s50\ns_waitcnt lgkmcnt(0)\nL_ctl_r2:\ns_mov_b32 s31, s65")
    else:
        a("s_mov_b64 exec, 1\nbuffer_load_dwordx2 v[28:29], v8, s[56:59], s50 offen " + exl.replace("+", " ") + "\ns_waitcnt vmcnt(0)\nv_readfirstlane_b32 s31, v29\nv_readfirstlane_b32 s64, v28\ns_mov_b64 exec, -1")
    a("s_cmp_lg_u32 s31, s30\ns_cbranch_scc1 L_ctl_up")
    if FB: a(f"s_andn2_b32 s9, {FB}, s54\ns_sub_u32 s64, s64, s9")
    a("s_add_u32 s64, s64, s6\ns_sub_u32 s52, s64, s51\ns_and_b32 s52, s52, s54")
    if MS: a("s_mov_b32 s9, s52\ns_min_i32 s52, s52, s7\ns_mov_b32 s7, s9")
    if MS == 2: a("s_cmp_lt_i32 s52, 40\ns_cselect_b32 s52, 0, s52")
    if not slope: a("s_mov_b32 s52, 0")
    a(f"s_mov_b32 s51, s64\ns_sub_u32 s53, s46, {GR + 1}\ns_mov_b32 s54, -1\n{bump(46, G0 + GR)}\ns_add_u32 s50, s50, 1024")
    a("L_ctl_up:")
    a(f"s_sub_u32 s31, s47, s53\ns_mul_i32 s31, s31, s52\ns_ashr_i32 s31, s31, {sh}\ns_add_u32 s31, s31, s51")
    a(f"v_mov_b32 v30, s31\nv_mov_b32 v31, s54\nds_write_b64 v8, v[30:31] offset:{RF}")
    if TL & 1:
        a("s_cmp_lt_u32 s47, s82\ns_cbranch_scc1 L_ctl_nt\ns_mov_b32 s82, -1\nv_lshlrev_b32 v20, 21, v1\ns_mov_b64 exec, 0xff\nglobal_load_dword v21, v20, s[72:73] nt\ns_mov_b64 exec, -1\ns_waitcnt vmcnt(0)\nL_ctl_nt:")
    if GF:
        a("s_cmp_lt_u32 s47, s10\ns_cbranch_scc1 L_ctl_sleep\ns_mov_b32 s10, -1")
        ffn()
        a.fence()
    a(f"L_ctl_sleep:\ns_sleep {CSL}\ns_branch L_ctl")
    a("L_ctl_end:")
    if TL & 2:
        a("s_mov_b64 exec, 1\nglobal_load_dword v64, v8, s[80:81] nt\nbuffer_load_dword v65, v8, s[68:71], 0 offen nt\ns_mov_b64 exec, -1")
    a(f"ds_read_b128 v[44:47], v8 offset:{MX}\ns_waitcnt lgkmcnt(0)\nv_max_f32 v20, v44, v45\nv_max3_f32 v16, v20, v46, v47\ns_mov_b32 s31, {LOG2E}")
    for w in range(4): a(f"v_sub_f32 v{44+w}, v{44+w}, v16\nv_mul_f32 v{44+w}, s31, v{44+w}\nv_exp_f32 v{44+w}, v{44+w}")
    a("s_add_u32 s40, s43, %d\ns_lshl_b32 s31, s2, 9\ns_add_u32 s41, s31, %d\ns_add_u32 s42, s31, %d" % (H1, H2A, H2F))
    a("v_lshlrev_b32 v39, 5, v3\nv_lshl_add_u32 v39, v2, 4, v39")
    a("v_cmp_eq_u32 vcc, 32, v1\nv_mov_b32 v20, 2048\nv_cndmask_b32 v48, v6, v20, vcc\nv_cndmask_b32 v49, 0, v16, vcc\nv_mov_b32 v20, 0xff\nv_cndmask_b32 v51, v20, -1, vcc")
    a("s_mov_b32 s63, 1")
    a("v_lshrrev_b32 v36, 3, v1\nv_lshlrev_b32 v36, 12, v36\nv_lshl_add_u32 v36, v37, 4, v36")
    a("s_lshl_b32 s31, s29, 9\ns_lshl_b32 s44, s28, 7\ns_add_u32 s44, s44, s31\ns_add_u32 s44, s44, %d" % H2A)
    for i in range(1, 8): a(f"s_add_u32 s{44+i}, s44, {32768*i}")
    assert H2F == H2A + 4 * 32768
    a("v_lshlrev_b32 v40, 16, v10\nv_and_b32 v41, 0xffff0000, v10\nv_lshlrev_b32 v42, 16, v11\nv_and_b32 v43, 0xffff0000, v11")
    if LOC and PD:
        a("s_cmp_lg_u32 s11, 1\ns_cbranch_scc1 L_npd\nv_not_b32 v60, v13\nv_not_b32 v61, v13\nv_not_b32 v62, v13\nv_not_b32 v63, v13")
        a("s_mov_b32 s64, -1\ns_mov_b32 s65, 0xff\ns_mov_b64 exec, s[64:65]\nbuffer_store_dwordx4 v[60:63], v6, s[56:59], s40 offen\ns_mov_b64 exec, -1\nL_npd:")
    if PT:
        pf = "sc1" if PT == 1 else ""
        a(f"s_mov_b64 exec, s[62:63]\nbuffer_load_dwordx4 v[64:67], v6, s[56:59], s40 offen {pf}\ns_mov_b64 exec, s[78:79]\nbuffer_load_dwordx4 v[68:71], v6, s[56:59], s41 offen {pf}")
        if FW != 2: a(f"buffer_load_dwordx4 v[72:75], v6, s[56:59], s42 offen {pf}")
        a("s_mov_b64 exec, -1")
    if warm:
        a("s_getpc_b64 s[64:65]\nL_pc:\ns_sub_u32 s64, s64, L_pc-L_tail0\ns_subb_u32 s65, s65, 0")
        for i in range(warm): a(f"global_load_dwordx4 v[64:67], v6, s[64:65]\ns_add_u32 s64, s64, 1024\ns_addc_u32 s65, s65, 0")
        a("s_waitcnt vmcnt(0)")
    def xred(b, skip=False):
        if not skip:
            for i in range(4): a(f"v_add_f32 v{b+i}, v{b+i}, v{b+4+i}\nv_add_f32 v{b+8+i}, v{b+8+i}, v{b+12+i}")
        for i in range(4): a(f"v_add_f32 v{b+i}, v{b+i}, v{b+8+i}")
        for i in range(4): a(f"v_add_f32_dpp v{b+i}, v{b+i}, v{b+i} row_ror:8 row_mask:0xf bank_mask:0xf")
        for op in ("v_permlane16_swap_b32", "v_permlane32_swap_b32"):
            for i in range(4): a(f"v_mov_b32 v{b+4+i}, v{b+i}")
            for i in range(4): a(f"{op} v{b+i}, v{b+4+i}")
            for i in range(4): a(f"v_add_f32 v{b+i}, v{b+i}, v{b+4+i}")
        for i in range(4): rbf(b + i)
    def ffn_gather():
        pollc("L_pf", [f"buffer_load_dwordx4 v[{144+4*i}:{147+4*i}], v36, s[56:59], s{48+i} offen sc1" for i in range(4)], list(range(144, 160)), sleep=sl2)
        xred(144)
    if FW == 2:
        a("s_cmp_ge_u32 s28, 4\ns_cbranch_scc1 L_nf")
        ffn_gather()
        a.fence()
        a("L_nf:")
    if LP:
        a(f"s_add_u32 s12, s41, {LOFF}\ns_add_u32 s13, s42, {LOFF}\nv_add_u32 v59, {LOFF}, v36")
        a("v_not_b32 v60, v13\nv_not_b32 v61, v13\nv_not_b32 v62, v13\nv_not_b32 v63, v13")
        a("s_mov_b64 exec, s[78:79]\nbuffer_store_dwordx4 v[52:55], v39, s[56:59], s13 offen\nbuffer_store_dwordx4 v[60:63], v6, s[56:59], s12 offen\ns_mov_b64 exec, -1")
        a("s_mov_b32 s14, 0")
        a("s_barrier")
        stamp(4)
        a("s_mov_b64 exec, s[62:63]")
        for w in range(4): a(f"ds_read_b128 v[{20+4*w}:{23+4*w}], v48 offset:{RED_O+512*w}")
        a("s_waitcnt lgkmcnt(0)")
        a("v_mul_f32 v16, v20, v44\nv_fma_f32 v17, v21, v44, v49\nv_mul_f32 v18, v22, v44\nv_mul_f32 v19, v23, v44")
        for w in range(1, 4):
            for i in range(4): a(f"v_fmac_f32 v{16+i}, v{20+4*w+i}, v{44+w}")
        a("v_bfi_b32 v16, s61, v13, v16\nv_bfi_b32 v17, s61, v13, v17\nv_bfi_b32 v18, v51, v13, v18\nv_bfi_b32 v19, v51, v13, v19")
        a("buffer_store_dwordx4 v[16:19], v6, s[56:59], s40 offen sc1")
        a("s_cmp_ge_u32 s28, 4\ns_cbranch_scc1 L_b5")
        a("s_mov_b64 exec, s[78:79]\nbuffer_store_dwordx4 v[52:55], v39, s[56:59], s42 offen sc1\ns_mov_b64 exec, -1")
        pollc("L_lf", [f"buffer_load_dwordx4 v[{144+4*i}:{147+4*i}], v59, s[56:59], s{48+i} offen sc1" for i in range(4)], list(range(144, 160)), sleep=0, tries=1, fail="L_b5")
        xred(144)
        a("s_mov_b32 s14, 1")
        a.fence()
        a("L_b5:\ns_mov_b64 exec, s[78:79]")
        a("s_barrier")
        stamp(5)
        for w in range(4): a(f"ds_read_b128 v[{20+4*w}:{23+4*w}], v6 offset:{RED_A+512*w}")
        a("s_waitcnt lgkmcnt(0)")
        for i in range(4): a(f"v_add_f32 v{20+i}, v{20+i}, v{24+i}\nv_add_f32 v{28+i}, v{28+i}, v{32+i}")
        for i in range(4): a(f"v_add_f32 v{60+i}, v{20+i}, v{28+i}")
        tag4(60)
        a("buffer_store_dwordx4 v[60:63], v6, s[56:59], s12 offen")
        a("s_cmp_lt_u32 s28, 4\ns_cbranch_scc1 L_cons")
        a("buffer_store_dwordx4 v[52:55], v39, s[56:59], s42 offen sc1")
        if diag: stamp(6); a("s_branch L_noep")
        else: a("s_branch L_noep" if spin else "s_endpgm")
        a("L_cons:\ns_mov_b64 exec, -1")
        a("s_cmp_eq_u32 s14, 0\ns_cbranch_scc1 L_fbf")
        pollc("L_la", [f"buffer_load_dwordx4 v[{128+4*i}:{131+4*i}], v59, s[56:59], s{44+i} offen sc1" for i in range(4)], list(range(128, 144)), sleep=lsl, tries=LN, fail="L_fba")
        a("s_branch L_fin")
        a("L_fbf:")
        ffn_gather()
        a.fence()
        a("L_fba:")
        pollc("L_p2", [f"buffer_load_dwordx4 v[{128+4*i}:{131+4*i}], v36, s[56:59], s{44+i} offen sc1" for i in range(4)], list(range(128, 144)), sleep=sl2)
        a("L_fin:")
    else:
        tf = tfl.replace("+", " ")
        a("s_barrier")
        stamp(4)
        a("s_mov_b64 exec, s[62:63]")
        for w in range(4): a(f"ds_read_b128 v[{20+4*w}:{23+4*w}], v48 offset:{RED_O+512*w}")
        a("s_waitcnt lgkmcnt(0)")
        a("v_mul_f32 v16, v20, v44\nv_fma_f32 v17, v21, v44, v49\nv_mul_f32 v18, v22, v44\nv_mul_f32 v19, v23, v44")
        for w in range(1, 4):
            for i in range(4): a(f"v_fmac_f32 v{16+i}, v{20+4*w+i}, v{44+w}")
        a("v_bfi_b32 v16, s61, v13, v16\nv_bfi_b32 v17, s61, v13, v17\nv_bfi_b32 v18, v51, v13, v18\nv_bfi_b32 v19, v51, v13, v19")
        if LOC:
            a("s_cmp_eq_u32 s11, 1\ns_cbranch_scc1 L_hs_l\nbuffer_store_dwordx4 v[16:19], v6, s[56:59], s40 offen sc1\ns_branch L_hs_e\nL_hs_l:\nbuffer_store_dwordx4 v[16:19], v6, s[56:59], s40 offen\nL_hs_e:")
        else:
            a("buffer_store_dwordx4 v[16:19], v6, s[56:59], s40 offen " + tf)
        a("s_mov_b64 exec, s[78:79]")
        if FW == 0: a(f"buffer_store_dwordx4 v[52:55], v39, s[56:59], s42 offen {tf}")
        a("s_barrier")
        stamp(5)
        for w in range(4): a(f"ds_read_b128 v[{20+4*w}:{23+4*w}], v6 offset:{RED_A+512*w}")
        if FW == 1: a(f"buffer_store_dwordx4 v[52:55], v39, s[56:59], s42 offen {tf}")
        a("s_waitcnt lgkmcnt(0)")
        for i in range(4): a(f"v_add_f32 v{20+i}, v{20+i}, v{24+i}\nv_add_f32 v{28+i}, v{28+i}, v{32+i}")
        for i in range(4): a(f"v_add_f32 v{60+i}, v{20+i}, v{28+i}")
        tag4(60)
        a(f"buffer_store_dwordx4 v[60:63], v6, s[56:59], s41 offen {tf}\ns_mov_b64 exec, -1")
        if diag:
            a("s_cmp_lt_u32 s28, 4\ns_cbranch_scc1 L_cons"); stamp(6); a("s_branch L_noep\nL_cons:")
        else:
            a("s_cmp_ge_u32 s28, 4\ns_cbranch_scc1 " + ("L_noep" if spin else "L_exit"))
        if not HP:
            if FW != 2: ffn_gather()
            pollc("L_p2", [f"buffer_load_dwordx4 v[{128+4*i}:{131+4*i}], v36, s[56:59], s{44+i} offen sc1" for i in range(4)], list(range(128, 144)), sleep=sl2)
    if HP:
        sets = [160, 176, 192][:HP]
        def ld(b):
            for i in range(4): a(f"buffer_load_dwordx4 v[{b+4*i}:{b+3+4*i}], v36, s[56:59], s{44+i} offen sc1")
        def chk(b):
            a(f"v_xor_b32 v250, s30, v{b}\nv_xor_b32 v251, s30, v{b+8}")
            for r in range(1, 8): a(f"v_bitop3_b32 v250, v{b+r}, s30, v250 bitop3:0xbe\nv_bitop3_b32 v251, v{b+8+r}, s30, v251 bitop3:0xbe")
            a("v_or_b32 v250, v250, v251\nv_and_b32 v250, 0xff, v250\nv_cmp_ne_u32 vcc, 0, v250\ns_cmp_eq_u64 vcc, 0")
        for i in range(4): a(f"buffer_load_dwordx4 v[{144+4*i}:{147+4*i}], v36, s[56:59], s{48+i} offen sc1")
        for b in sets[:-1]:
            ld(b); a(f"s_sleep {gap}")
        ld(sets[-1])
        a(f"s_waitcnt vmcnt({4*HP})")
        chk(144)
        a("s_cbranch_scc1 L_fok")
        pollc("L_pf", [f"buffer_load_dwordx4 v[{144+4*i}:{147+4*i}], v36, s[56:59], s{48+i} offen sc1" for i in range(4)], list(range(144, 160)), sleep=sl2)
        a("L_fok:")
        xred(144)
        a("s_mov_b32 s77, 0x100000")
        a.fence()
        a("L_hp:")
        for n, b in enumerate(sets):
            a(f"s_waitcnt vmcnt({4*(HP-1)})")
            chk(b)
            a(f"s_cbranch_scc1 L_hp_{n}")
            ld(b)
        a("s_sub_u32 s77, s77, 1\ns_cmp_lg_u32 s77, 0\ns_cbranch_scc1 L_hp")
        for n, b in enumerate(sets):
            a(f"L_hp_{n}:")
            for i in range(4): a(f"v_add_f32 v{128+i}, v{b+i}, v{b+4+i}\nv_add_f32 v{136+i}, v{b+8+i}, v{b+12+i}")
            if n < HP - 1: a("s_branch L_hp_e")
        a("L_hp_e:")
        stamp(6)
        xred(128, skip=True)
    else:
        stamp(6)
        xred(128)
    for i in range(4): a(f"v_add_f32 v{128+i}, v{128+i}, v{40+i}")
    for i in range(4): rbf(128 + i)
    for i in range(4): a(f"v_add_f32 v{128+i}, v{128+i}, v{144+i}")
    a("v_cvt_pk_bf16_f32 v20, v128, v129\nv_cvt_pk_bf16_f32 v21, v130, v131")
    a("s_mov_b64 exec, 0xff\nbuffer_store_dwordx2 v[20:21], v38, s[68:71], s75 offen\ns_mov_b64 exec, 1")
    a("s_cmp_lg_u32 s2, 0\ns_cbranch_scc1 L_noep\nbuffer_store_dword v13, v8, s[56:59], 0 offen" + ("" if epl else " sc1") + "\nL_noep:")
    if spin:
        if spinwg >= 0: a(f"s_cmp_lg_u32 s2, {spinwg}\ns_cbranch_scc1 L_exit")
        a(f"L_spin:\ns_memrealtime s[64:65]\ns_waitcnt lgkmcnt(0)\ns_sub_u32 s64, s64, s66\ns_cmp_lt_u32 s64, {spin}\ns_cbranch_scc1 L_spin")
    if diag:
        a("s_waitcnt vmcnt(0)")
        stamp(7)
        a("s_mov_b32 s31, 64")
        a("L_stamps:")
        a("s_waitcnt lgkmcnt(0)\ns_mov_b64 exec, 1")
        if dbgout:
            a("v_mov_b32 v8, 0\ns_cmp_lg_u32 s31, 0\ns_cbranch_scc1 L_dbgc")
            for n, k in enumerate((0, 2, 3, 4, 5)):
                a(f"v_mov_b32 v12, s{84+2*k}\nv_not_b32 v13, v12\nglobal_atomic_umax v8, v12, s[24:25] offset:{8*n}\nglobal_atomic_umax v8, v13, s[24:25] offset:{8*n+4}")
            a("s_endpgm\nL_dbgc:")
            for n, k in enumerate((2, 6, 7)):
                a(f"v_mov_b32 v12, s{84+2*k}\nv_not_b32 v13, v12\nglobal_atomic_umax v8, v12, s[24:25] offset:{40+8*n}\nglobal_atomic_umax v8, v13, s[24:25] offset:{44+8*n}")
        else:
            a("s_add_u32 s26, s26, 0x8000000\ns_addc_u32 s27, s27, 0\ns_lshl_b32 s74, s2, 7\ns_add_u32 s74, s74, s31\nv_mov_b32 v8, s74")
            for q in range(4):
                for e in range(4): a(f"v_mov_b32 v{12+e}, s{84+4*q+e}")
                a(f"global_store_dwordx4 v8, v[12:15], s[26:27] offset:{16*q}")
                a("s_nop 2")
    a("L_exit:\ns_endpgm")

    out = HDR
    out += "; Override launch geometry by editing the next line (default: block=256,\n"
    out += f"; @launch grid=(256,1,1) block=(320,1,1) lds={LDS_BYTES}\n"
    out += DOC
    out += f'.amdgcn_target "amdgcn-amd-amdhsa--gfx950"\n.text\n.globl {NAME}\n.p2align 8\n.type {NAME},@function\n{NAME}:\n'
    out += a.text()
    if E2: out += f"; padding: the code prefetch at entry reads up to 41 KiB past the entry point\n.fill (41984 - (. - {NAME})) / 4, 4, 0xbf800000\n"
    out += f""".section .rodata,"a"
.p2align 6
.amdhsa_kernel {NAME}
  .amdhsa_next_free_vgpr 256
  .amdhsa_next_free_sgpr 102
  .amdhsa_accum_offset 256
  .amdhsa_group_segment_fixed_size 0
  .amdhsa_kernarg_size 96
  .amdhsa_user_sgpr_count 2
  .amdhsa_user_sgpr_kernarg_segment_ptr 1
  .amdhsa_system_sgpr_workgroup_id_x 1
  .amdhsa_float_denorm_mode_32 3
.end_amdhsa_kernel
"""
    return out, LDS_BYTES

if __name__ == "__main__":
    kw = {}
    for x in sys.argv[2:]:
        k, v = x.split("=")
        try: v = int(v)
        except ValueError: pass
        kw[k] = v
    s, lds = gen(**kw)
    open(sys.argv[1], "w").write(s)
    print("lds", lds)
```

```python
import sys
from asmlib import Asm

NAME = "parallel_sum__mha_block_cached__glu_gated_geglu__decode_kernel"
HDR = open("parallel_sum__mha_block_cached__glu_gated_geglu__decode.s.ref").read().split("; Override launch")[0]

H0Q, H0GU, H1, H2A, H2F = 0x1000, 0x50000, 0x90000, 0xD0000, 0xF0000
LOFF = 0x40000
PHI, REF = 0x1D0000, 0x1F0000
WS_BYTES = 0x200000
SC = 0
RED_Q, RED_G, RED_U, RED_A, RED_O, RED_L = [32768 + 2048 * i for i in range(6)]
QL = 32768 + 12288
HL = QL + 256
MX = HL + 1024
LS = MX + 16
FL = LS + 16
FG = FL + 16
QF = FG + 16
RF = QF + 16
PH = RF + 16
LDS_BYTES = PH + 32

DOC = '; ---------------------------------------------------------------------------------------------------------------------\n; ---------------------------------------------------------------------------------------------------------------------\n'
LOG2E = 0x3fb8aa3b
SCALE = 0x3db504f3

def gen(diag=False, RB=0, RD=0, E2=0, FB=0, EP=0, FAST=0, epl=1, B0L=0, GE=0, GA=0, TL=0, NREP=8, RP=0, NREF=64, GP2=0, skipw='', HP=0, gap=2, T4=0, L4=2, LOC=1, h1l='sc1+nt', PD=1, QTO=8, fakex=0, LP=0, LN=16, lsl=0, gul='sc1', ql='sc1', exs='sc1', exl='sc1', WDW=0, CP=0, NB2F=1, GF=6, touch=0, DS0=0, KE=0, JD=0, MS=0, PT=0, PP=0, FW=0, KB=0, NBG=0, DB=12, MAP='rrww01234Bjjj', XK=0, IL=0, WI=1, qdelay=0, perm=0, qfl='sc1', tfl='sc1', WDF=3, warm=0, gufl='sc1+nt', nogu=0, noq=0, gudelay=0, spin=0, spinwg=-1, G0=4, GP=8, GG=2, GR=4, slope=1, noex=0, NWT=8, CSL=8, GEX=60, fixed=0, DL='5', TH='', T0=200, TAU=220, DT=5, early=4, dbgout=0, ser=0, maskpoll=1, sl1=1, sl2=1, D=8, DS=8, D2=0, NB2=0, pol_w="nt", pol_gu="nt", pol_kv="nt"):
    a = Asm()
    def stamp(i, mode=1):
        if diag == mode or (diag and i in (0, 7)) or (diag and incomm[0]):
            a(f"s_memrealtime s[{84+2*i}:{85+2*i}]")
    incomm = [False]
    def series(k):
        if not ser: return
        if k == 0: a("s_memrealtime s[100:101]")
        if k == 5: a("s_waitcnt lgkmcnt(0)\ns_mov_b32 m0, s71\ns_nop 0\nv_writelane_b32 v255, s100, m0\ns_add_u32 s71, s71, 1")
    def srd(n, lo, hi, size):
        a(f"s_mov_b32 s{n}, {lo}\ns_mov_b32 s{n+1}, {hi}\ns_mov_b32 s{n+2}, {size}\ns_mov_b32 s{n+3}, 0x20000")
    def wave_reduce(v, t, op):
        for r in (8, 4, 2, 1):
            a(f"{op}_dpp v{v}, v{v}, v{v} row_ror:{r} row_mask:0xf bank_mask:0xf")
        a(f"v_mov_b32 v{t}, v{v}\nv_permlane16_swap_b32 v{v}, v{t}\n{op} v{v}, v{v}, v{t}")
        a(f"v_mov_b32 v{t}, v{v}\nv_permlane32_swap_b32 v{v}, v{t}\n{op} v{v}, v{v}, v{t}")
    def rbf(v):
        a(f"v_cvt_pk_bf16_f32 v{v}, v{v}, v{v}\nv_and_b32 v{v}, 0xffff0000, v{v}")
    def buildA(buf, P, c):
        base = 24 + 4 * buf
        for t in range(4):
            a(f"v_and_b32_dpp v{base+t}, v{P}, v{120+t} row_newbcast:{c} row_mask:0xf bank_mask:0xf")
    def mfma(acc, buf, breg, first):
        base = 24 + 4 * buf
        a(f"v_mfma_f32_16x16x32_bf16 v[{acc}:{acc+3}], v[{base}:{base+3}], v[{breg}:{breg+3}], " + ("0" if first else f"v[{acc}:{acc+3}]"))
    def writeD(acc, off):
        a(f"s_mov_b64 exec, s[78:79]\nds_write_b128 v225, v[{acc}:{acc+3}] offset:{off}\ns_mov_b64 exec, -1")
    def poll(label, loads, tagregs, acc=250, t1=251, t2=252, sleep=1):
        a.fence()
        a(f"s_mov_b32 s77, 0x100000")
        a(f"{label}:")
        for l in loads: a(l)
        a("s_waitcnt vmcnt(0)")
        a(f"v_xor_b32 v{acc}, s30, v{tagregs[0]}")
        rest = tagregs[1:]
        while len(rest) >= 2:
            a(f"v_xor_b32 v{t1}, s30, v{rest[0]}\nv_xor_b32 v{t2}, s30, v{rest[1]}\nv_or3_b32 v{acc}, v{acc}, v{t1}, v{t2}")
            rest = rest[2:]
        if rest:
            a(f"v_xor_b32 v{t1}, s30, v{rest[0]}\nv_or_b32 v{acc}, v{acc}, v{t1}")
        a(f"v_cmp_ne_u32 vcc, 0, v{acc}")
        a(f"s_cmp_eq_u64 vcc, 0\ns_cbranch_scc1 {label}_ok")
        if maskpoll: a("s_mov_b64 exec, vcc")
        a(f"s_sub_u32 s77, s77, 1\ns_cmp_eq_u32 s77, 0\ns_cbranch_scc1 {label}_ok\ns_sleep {sleep}\ns_branch {label}")
        a(f"{label}_ok:")
        a("s_mov_b64 exec, -1")
    def pollc(label, loads, regs, full=(), acc=250, sleep=1, tries=0x100000, fail=None):
        a.fence()
        a(f"s_mov_b32 s77, {tries}")
        a(f"{label}:")
        for l in loads: a(l)
        a("s_waitcnt vmcnt(0)")
        a(f"v_xor_b32 v{acc}, s30, v{regs[0]}")
        for r in regs[1:]: a(f"v_bitop3_b32 v{acc}, v{r}, s30, v{acc} bitop3:0xbe")
        a(f"v_and_b32 v{acc}, 0xff, v{acc}")
        for r in full: a(f"v_bitop3_b32 v{acc}, v{r}, s30, v{acc} bitop3:0xbe")
        a(f"v_cmp_ne_u32 vcc, 0, v{acc}")
        a(f"s_cmp_eq_u64 vcc, 0\ns_cbranch_scc1 {label}_ok")
        a(f"s_sub_u32 s77, s77, 1\ns_cmp_eq_u32 s77, 0\ns_cbranch_scc1 {fail or label + '_ok'}")
        if sleep: a(f"s_sleep {sleep}")
        a(f"s_branch {label}")
        a(f"{label}_ok:")
        a("s_mov_b64 exec, -1")
    def pollp(label, mk, setA, setB, nlow, acc=250, gap=2):
        def check(regs):
            a(f"v_xor_b32 v{acc}, s30, v{regs[0]}")
            for r in regs[1:nlow]: a(f"v_bitop3_b32 v{acc}, v{r}, s30, v{acc} bitop3:0xbe")
            a(f"v_and_b32 v{acc}, 0xff, v{acc}")
            for r in regs[nlow:]: a(f"v_bitop3_b32 v{acc}, v{r}, s30, v{acc} bitop3:0xbe")
            a(f"v_cmp_ne_u32 vcc, 0, v{acc}\ns_cmp_eq_u64 vcc, 0")
        n = len(mk(setA))
        a.fence()
        a("s_mov_b32 s77, 0x100000")
        for l in mk(setA): a(l)
        a(f"s_sleep {gap}")
        a(f"{label}:")
        for l in mk(setB): a(l)
        a(f"s_waitcnt vmcnt({n})")
        check(setA)
        a(f"s_cbranch_scc1 {label}_ok")
        for l in mk(setA): a(l)
        a(f"s_waitcnt vmcnt({n})")
        check(setB)
        a(f"s_cbranch_scc1 {label}_b")
        a(f"s_sub_u32 s77, s77, 1\ns_cmp_lg_u32 s77, 0\ns_cbranch_scc1 {label}")
        a(f"{label}_b:")
        return
    def masks():
        a("v_and_b32 v12, 1, v3\nv_lshrrev_b32 v13, 1, v3\nv_cmp_eq_u32 vcc, 1, v12\nv_mov_b32 v14, 0xffff\nv_mov_b32 v15, 0xffff0000\nv_cndmask_b32 v14, v14, v15, vcc")
        for t in range(4):
            a(f"v_cmp_eq_u32 vcc, {t}, v13\nv_cndmask_b32 v{120+t}, 0, v14, vcc")
    def poll_rows(label, loads, sbase, sleep=1, tagreg="s30", mask=None, hook=None):
        a.fence()
        n = len(loads)
        a(f"s_mov_b32 s77, 0x100000\ns_mov_b32 s76, {(1 << n) - 1}")
        a(f"{label}:")
        for i, (l, _, _) in enumerate(loads):
            a(f"s_bitcmp1_b32 s76, {i}\ns_cbranch_scc0 {label}_s{i}")
            a(l)
            a(f"{label}_s{i}:")
        a("s_waitcnt vmcnt(0)")
        for i, (_, ta, tb) in enumerate(loads):
            a(f"v_xor_b32 v250, {tagreg}, v{ta}\nv_bitop3_b32 v250, v{tb}, {tagreg}, v250 bitop3:0xbe")
            if mask: a(f"v_and_b32 v250, {mask}, v250")
            a(f"v_cmp_ne_u32 s[{sbase+2*i}:{sbase+2*i+1}], 0, v250")
        a("s_mov_b32 s76, 0")
        for i in range(n):
            a(f"s_cmp_lg_u64 s[{sbase+2*i}:{sbase+2*i+1}], 0\ns_cselect_b32 s74, {1 << i}, 0\ns_or_b32 s76, s76, s74")
        a(f"s_cmp_eq_u32 s76, 0\ns_cbranch_scc1 {label}_ok")
        if hook:
            a(f"s_cmp_lg_u32 s77, {0x100000 - QTO}\ns_cbranch_scc1 {label}_nh\n{hook}\n{label}_nh:")
        a(f"s_sub_u32 s77, s77, 1\ns_cmp_eq_u32 s77, 0\ns_cbranch_scc1 {label}_ok\ns_sleep {sleep}\ns_branch {label}")
        a(f"{label}_ok:")

    def common():
        if FAST: a("s_lshl3_add_u32 s2, s28, s29")
        a("s_load_dword s30, s[26:27], 0")
        a("s_mov_b32 s78, -1\ns_mov_b32 s79, 0")
        srd(52, "s4", "s5", 2048)
        srd(56, "s26", "s27", WS_BYTES)
    if FAST:
        assert perm == 1
        a("s_cmpk_ge_u32 s2, 0x100\ns_cbranch_scc1 L_exit")
        stamp(0)
        if fixed or spin: a("s_memrealtime s[66:67]")
        a("s_load_dwordx16 s[4:19], s[0:1], 0\ns_load_dwordx8 s[20:27], s[0:1], 64")
        if EP:
            if EP > 1: a(f"s_cmp_ge_u32 s2, {EP}\ns_cbranch_scc1 L_noep0")
            if E2: a(f"s_getpc_b64 s[32:33]\nv_lshlrev_b32 v5, 7, v0\nglobal_load_dword v253, v5, s[32:33]\nglobal_load_dword v254, v5, s[32:33] offset:64")
            else: a(f"s_getpc_b64 s[32:33]\nL_pc1:\nv_lshlrev_b32 v5, 7, v0\nv_min_u32 v5, L_exit-L_pc1, v5\nglobal_load_dword v253, v5, s[32:33]")
            if EP > 1: a("L_noep0:")
        a("v_lshrrev_b32 v5, 6, v0\nv_and_b32 v1, 63, v0\nv_readfirstlane_b32 s3, v5")
        a("v_lshrrev_b32 v2, 4, v1\nv_and_b32 v3, 15, v1")
        a("s_and_b32 s28, s2, 7\ns_lshr_b32 s29, s2, 6\ns_lshl2_add_u32 s28, s28, s29\ns_lshr_b32 s29, s2, 3\ns_and_b32 s29, s29, 7")
        a("v_lshlrev_b32 v6, 4, v1\nv_lshlrev_b32 v7, 4, v3")
        a("s_cmp_eq_u32 s3, 4\ns_cbranch_scc1 L_comm0")
        a("s_lshl2_add_u32 s74, s29, s3\ns_lshl_b32 s75, s74, 10\ns_add_u32 s75, s75, s28\ns_lshl_b32 s75, s75, 8")
        a("v_lshl_add_u32 v10, v2, 13, v7\nv_add_u32 v10, s75, v10\ns_movk_i32 s76, 0x8000")
        a("s_waitcnt lgkmcnt(0)")
        stamp(1, 2); stamp(1, 4)
        a("global_load_dwordx4 v[96:99], v6, s[4:5]\nglobal_load_dwordx4 v[100:103], v6, s[4:5] offset:1024")
        for i in range(8):
            a(f"global_load_dwordx4 v[{128+4*i}:{131+4*i}], v10, s[10:11] {pol_w}")
            if i < 7: a("v_subrev_u32 v10, s76, v10")
        stamp(2, 4)
        common()
        a("s_lshl_b32 s74, s74, 5")
        a("v_and_b32 v8, 7, v3\nv_lshl_add_u32 v8, v8, 2, v2\nv_lshlrev_b32 v8, 1, v8\ns_lshl_b32 s75, s74, 1")
        a("buffer_load_ushort v9, v8, s[52:55], s75 offen")
    else:
        a("s_cmp_ge_u32 s2, 256\ns_cbranch_scc1 L_exit")
        stamp(0)
        if fixed or spin: a("s_memrealtime s[66:67]")
        a("s_load_dwordx16 s[4:19], s[0:1], 0\ns_load_dwordx8 s[20:27], s[0:1], 64")
        a("v_lshrrev_b32 v5, 6, v0\nv_and_b32 v1, 63, v0\nv_readfirstlane_b32 s3, v5")
        a("v_lshrrev_b32 v2, 4, v1\nv_and_b32 v3, 15, v1")
        if perm == 1: a("s_and_b32 s28, s2, 7\ns_lshl_b32 s28, s28, 5\ns_lshr_b32 s2, s2, 3\ns_add_u32 s2, s2, s28")
        a("s_lshr_b32 s28, s2, 3\ns_and_b32 s29, s2, 7")
        a("s_mov_b32 s78, -1\ns_mov_b32 s79, 0")
        a("v_lshlrev_b32 v6, 4, v1")
        a("v_lshlrev_b32 v7, 4, v3")
        a("s_lshl_b32 s74, s29, 2\ns_add_u32 s74, s74, s3\ns_lshl_b32 s74, s74, 5")
        a("s_waitcnt lgkmcnt(0)")
        stamp(1, 2); stamp(1, 4)
        a("s_load_dword s30, s[26:27], 0")
        srd(52, "s4", "s5", 2048)
        srd(56, "s26", "s27", WS_BYTES)
        a("s_cmp_eq_u32 s3, 4\ns_cbranch_scc1 L_comm")

        a("buffer_load_dwordx4 v[96:99], v6, s[52:55], 0 offen\nbuffer_load_dwordx4 v[100:103], v6, s[52:55], 0 offen offset:1024")
        a("v_and_b32 v8, 7, v3\nv_lshl_add_u32 v8, v8, 2, v2\nv_lshlrev_b32 v8, 1, v8\ns_lshl_b32 s75, s74, 1")
        a("buffer_load_ushort v9, v8, s[52:55], s75 offen")
        stamp(2, 4)
        srd(40, "s10", "s11", 0 if "q" in skipw else 1024 * 8192)
        a("v_lshl_add_u32 v10, v2, 13, v7")
        a("s_lshl_b32 s75, s74, 13\ns_lshl_b32 s76, s28, 8\ns_add_u32 s75, s75, s76")
        for i in range(8):
            a(f"buffer_load_dwordx4 v[{128+4*i}:{131+4*i}], v10, s[40:43], s75 offen {pol_w}")
            if i < 7: a("s_add_u32 s75, s75, 32768")
    stamp(3, 4)
    srd(44, "s16", "s17", 0 if "g" in skipw else 1024 * 7168)
    srd(48, "s18", "s19", 0 if "g" in skipw else 1024 * 7168)
    a("v_mul_u32_u24 v11, 7168, v2\nv_add_u32 v11, v11, v7")
    a("v_cmp_gt_u32 vcc, 14, v3\nv_mov_b32 v12, 0x80000000\nv_cndmask_b32 v11, v12, v11, vcc")
    a("s_mul_i32 s76, s74, 7168\ns_mul_i32 s31, s28, 224\ns_add_u32 s76, s76, s31\ns_mov_b32 s75, s76")
    def gload(i):
        a(f"buffer_load_dwordx4 v[{160+4*i}:{163+4*i}], v11, s[44:47], s75 offen {pol_gu}\ns_add_u32 s75, s75, {4*7168}")
    def uload(i):
        a(f"buffer_load_dwordx4 v[{192+4*i}:{195+4*i}], v11, s[48:51], s76 offen {pol_gu}\ns_add_u32 s76, s76, {4*7168}")
    for i in range(GE): gload(i)
    if not B0L: a("s_barrier")
    stamp(4, 4)
    pos = {"r": [], "w": [], "n": [0] * 5, "j": [], "b": []}
    bit = 8
    for ch in str(MAP).replace("B", "bbbb"):
        if ch.isdigit(): pos["n"][int(ch)] = bit
        else: pos[ch].append(bit)
        bit += 1
    assert bit == 24 and len(pos["w"]) == 2 and len(pos["r"]) == 2 and len(pos["j"]) == 3 and len(set(pos["n"])) == 5 and len(pos["b"]) == 4
    maskB = sum(1 << b for b in pos["b"])
    contig = pos["b"][3] - pos["b"][0] == 3
    def spread(sreg, bits, dst):
        a(f"s_mov_b32 {dst}, 0")
        for i, b in enumerate(bits):
            a(f"s_bfe_u32 s38, {sreg}, {(1 << 16) | i}\ns_lshl_b32 s38, s38, {b}\ns_or_b32 {dst}, {dst}, s38")
    spread("s29", pos["j"], "s39")
    a("s_lshl_b32 s31, s28, 24\ns_add_u32 s31, s31, s39\ns_sub_u32 s34, 0x1000000, s39")
    a("s_add_u32 s32, s6, s31\ns_addc_u32 s33, s7, 0\ns_mov_b32 s35, 0x20000")
    a("s_add_u32 s36, s8, s31\ns_addc_u32 s37, s9, 0")
    spread("s3", pos["w"], "s39")
    a(f"v_and_b32 v4, 1, v2\nv_lshlrev_b32 v4, {pos['r'][0]}, v4\nv_lshrrev_b32 v5, 1, v2\nv_lshl_add_u32 v4, v5, {pos['r'][1]}, v4\nv_add3_u32 v4, v4, s39, v7")
    if XK == 1: a("s_and_b32 s60, s2, 31")
    if XK == 2: a("s_mov_b32 s60, s28")
    if XK == 3: a("s_lshl_b32 s60, s29, 2")
    if XK == 4: a("s_lshl_b32 s60, s29, 2\ns_xor_b32 s60, s60, s28")
    if XK == 5: a("s_mul_i32 s60, s2, 0x9e3779b1\ns_lshr_b32 s60, s60, 27")
    if XK == 6: a("s_lshl_b32 s60, s28, 2\ns_and_b32 s60, s60, 28")
    if XK == 7: a("s_and_b32 s60, s28, 28")
    if XK == 8: a("s_and_b32 s60, s28, 3")
    if XK == 9: a("s_lshr_b32 s60, s28, 3")
    if XK == 10: a("s_mul_i32 s60, s28, 0x9e3779b1\ns_lshr_b32 s60, s60, 27")
    if XK == 11: a("s_mov_b32 s60, s3")
    if XK == 12: a("s_and_b32 s60, s29, 1\ns_lshl_b32 s60, s60, 1\ns_xor_b32 s60, s60, s3")
    if XK:
        spread("s60", pos["n"], "s61")
    fn = [sum(((n >> i) & 1) << b for i, b in enumerate(pos["n"])) for n in range(32)] + [1 << pos["b"][0]]
    a("s_mov_b32 s72, 0")
    if XK: a("s_mov_b32 s60, s61")
    if ser: a("s_mov_b32 s71, 0\nv_mov_b32 v255, 0")
    def kslot(n):
        n %= 32
        return 32 + 4 * n if n < 16 else 128 + 4 * (n - 16)
    slot_of = {kslot(n): n for n in range(32)}
    def issueS(reg):
        n = slot_of[reg]
        inc = (fn[n + 1] - fn[n]) & 0xffffffff
        if n == 31 and not contig:
            assert not XK
            a(f"buffer_load_dwordx4 v[{reg}:{reg+3}], v4, s[32:35], s72 offen {pol_kv}\ns_or_b32 s72, s72, {(~maskB) & 0xffffffff}\ns_add_u32 s72, s72, 1\ns_and_b32 s72, s72, {maskB}")
            return
        if XK:
            a(f"buffer_load_dwordx4 v[{reg}:{reg+3}], v4, s[32:35], s60 offen {pol_kv}\ns_add_u32 s72, s72, {inc}\ns_xor_b32 s60, s72, s61")
        else:
            a(f"buffer_load_dwordx4 v[{reg}:{reg+3}], v4, s[32:35], s72 offen {pol_kv}\ns_add_u32 s72, s72, {inc}")
    for n in range(KE): issueS(kslot(n))
    masks()
    a("v_cmp_eq_u32 s[82:83], 1, v12\nv_and_b32 v13, 1, v13\nv_cmp_eq_u32 s[80:81], 1, v13")
    a("s_lshl_b32 s31, s3, 9\nv_lshlrev_b32 v225, 5, v3\nv_lshl_add_u32 v225, v2, 4, v225\nv_add_u32 v225, s31, v225")
    a("s_lshl_b32 s31, s3, 13\nv_lshlrev_b32 v224, 2, v1\nv_add_u32 v224, s31, v224")
    stamp(5, 4)
    if B0L == 1: a("s_barrier")
    a(f"s_waitcnt vmcnt({8 + GE + KE + (1 if FAST else 0)})")
    stamp(2, 2); stamp(6, 4)
    assert GE <= early
    for i in range(GE, early): gload(i)
    for k in range(8):
        a(f"v_lshlrev_b32 v{104+2*k}, 16, v{96+k}\nv_and_b32 v{105+2*k}, 0xffff0000, v{96+k}")
    a("v_add_f32 v12, v104, v105\nv_add_f32 v13, v106, v107\nv_add_f32 v14, v108, v109\nv_add_f32 v15, v110, v111")
    a("v_add_f32 v16, v112, v113\nv_add_f32 v17, v114, v115\nv_add_f32 v18, v116, v117\nv_add_f32 v19, v118, v119")
    a("v_add_f32 v12, v12, v13\nv_add_f32 v14, v14, v15\nv_add_f32 v16, v16, v17\nv_add_f32 v18, v18, v19")
    a("v_add_f32 v12, v12, v14\nv_add_f32 v16, v16, v18\nv_add_f32 v12, v12, v16")
    wave_reduce(12, 13, "v_add_f32")
    a("v_mul_f32 v12, 0x3a800000, v12")
    for k in range(16):
        a(f"v_sub_f32 v{104+k}, v{104+k}, v12")
    a("v_mul_f32 v14, v104, v104\nv_mul_f32 v15, v105, v105\nv_mul_f32 v16, v106, v106\nv_mul_f32 v17, v107, v107")
    for k in range(4, 16):
        a(f"v_fmac_f32 v{14+k%4}, v{104+k}, v{104+k}")
    a("v_add_f32 v14, v14, v15\nv_add_f32 v16, v16, v17\nv_add_f32 v14, v14, v16")
    wave_reduce(14, 13, "v_add_f32")
    a("v_mul_f32 v14, 0x3a800000, v14")
    rbf(14); rbf(12)
    a("v_add_f32 v14, 0x3727c5ac, v14")
    rbf(14)
    a("v_sqrt_f32 v14, v14")
    rbf(14)
    a("v_rcp_f32 v14, v14")
    def ownx():
        a("v_lshlrev_b32 v9, 16, v9\nv_sub_f32 v9, v9, v12")
        rbf(9)
        a("v_mul_f32 v9, v9, v14\nv_cvt_pk_bf16_f32 v124, v9, v9")
    if not FAST: ownx()
    stamp(3, 2)
    if B0L == 2: a("s_barrier")
    def stage1(acc, wbase):
        buildA(0, 124, 0)
        for i in range(8):
            if i < 7: buildA((i + 1) & 1, 124, i + 1)
            mfma(acc, i & 1, wbase + 4 * i, i == 0)
    a(f"s_waitcnt vmcnt({early + KE})")
    stamp(4, 2)
    for i in range(early, 8): gload(i)
    if FAST: ownx()
    stage1(12, 128)
    writeD(12, RED_Q)
    a(f"s_lshl_b32 s31, s3, 2\nv_mov_b32 v16, s31\nv_mov_b32 v17, 1\nds_write_b32 v16, v17 offset:{FL}")
    stamp(1); stamp(5, 2)
    WO0 = 192
    def wsetup():
        srd(40, "s12", "s13", 0 if "o" in skipw else 4096 * 2048)
        a("v_lshl_add_u32 v240, v2, 14, v7")
        a("s_lshl_b32 s31, s28, 2\ns_add_u32 s31, s31, s3\ns_lshl_b32 s75, s31, 16\ns_lshl_b32 s31, s29, 8\ns_add_u32 s75, s75, s31")
        a("v_and_b32 v232, 7, v3\nv_lshrrev_b32 v233, 3, v3\ns_lshl_b32 s31, s28, 13\ns_add_u32 s31, s31, %d" % H1)
        a("v_lshlrev_b32 v232, 10, v232\nv_add_u32 v232, s31, v232")
        a("v_lshlrev_b32 v233, 4, v233\nv_lshl_add_u32 v233, v2, 5, v233\ns_lshl_b32 s31, s3, 7\nv_add3_u32 v233, v233, s31, v232")
        a("s_add_u32 s30, s30, 1")
    wl_all = []
    for t in range(8):
        wl_all.append(f"buffer_load_dwordx4 v[{WO0+4*t}:{WO0+3+4*t}], v240, s[40:43], s75 offen {pol_w}\ns_add_u32 s75, s75, 2048")
    assert DS <= 8 and KE + DS - 1 <= 15
    stamp(1, 3)
    for i in range(8):
        a(f"s_waitcnt vmcnt({DS-1})")
        uload(i)
    stamp(2, 3)
    for n in range(KE, 32):
        a(f"s_waitcnt vmcnt({(DS0 if (DS0 and n >= 16) else DS)-1})")
        issueS(kslot(n))
        if n % 8 == 7: stamp(3 + n // 8, 3)
        if n == KE:
            stage1(16, 160)
        if n == KE + DS - 1:
            stage1(20, 192)
            writeD(16, RED_G)
            writeD(20, RED_U)
            if NB2F: a(f"s_lshl_b32 s31, s3, 2\nv_mov_b32 v16, s31\nv_mov_b32 v17, 1\nds_write_b32 v16, v17 offset:{FG}")
        if n == 15:
            a("s_waitcnt lgkmcnt(0)")
            wsetup()
            for x in wl_all[:8 - NWT]:
                a(f"s_waitcnt vmcnt({DS-1})"); a(x)
    a("v_mov_b32 v126, 0xff800000\nv_mov_b32 v127, 0\ns_mov_b32 s76, %d" % SCALE)
    stamp(6, 2)
    if NB2F:
        a("v_mov_b32 v247, 0")
        a.fence()
        a(f"L_qw:\nds_read_b32 v16, v247 offset:{QF}\nds_read_b128 v[8:11], v7 offset:{QL}\ns_waitcnt lgkmcnt(0)\nv_readfirstlane_b32 s31, v16")
        a("s_cmp_eq_u32 s31, 1\ns_cbranch_scc1 L_qw_ok\ns_sleep 1\ns_branch L_qw\nL_qw_ok:")
        stamp(2)
    else:
        a("s_waitcnt lgkmcnt(0)\ns_barrier")
        stamp(2)
        a(f"ds_read_b128 v[8:11], v7 offset:{QL}\ns_waitcnt lgkmcnt(0)")
    levels = [float(x.replace("h", ".5").replace("q", ".25").replace("t", ".75")) for x in str(DL).split("-")]
    def wv(d, k):
        f = d - int(d)
        up = (f == 0.5 and k % 2 == 1) or (f == 0.25 and k % 4 == 3) or (f == 0.75 and k % 4 != 0)
        return int(d) - 1 + (1 if up else 0)
    ths = [int(x) for x in str(TH).split("/")] if TH != "" else []
    assert len(ths) == len(levels) - 1
    a(f"s_mov_b32 s70, {len([t for t in ths if t < 0])}\ns_mov_b32 s69, 0\ns_mov_b32 s67, 0")
    if fixed: a(f"s_add_u32 s66, s66, {T0}")
    a("s_lshl_b32 s31, s3, 3\nv_mov_b32 v246, s31\nv_mov_b32 v247, 0")
    def control(k):
        if k == 7: a(f"s_memrealtime s[64:65]\nds_read_b64 v[242:243], v247 offset:{RF}")
        if k == 12:
            a("s_waitcnt lgkmcnt(0)\nv_readfirstlane_b32 s62, v242\nv_readfirstlane_b32 s63, v243")
            a("s_sub_u32 s68, s64, s69\ns_add_u32 s69, s69, %d\ns_add_u32 s67, s67, 1" % TAU)
            a(f"v_mov_b32 v244, s68\nv_mov_b32 v245, s67\nds_write_b64 v246, v[244:245] offset:{PH}")
            if fixed: a("s_sub_u32 s68, s68, s66")
            else: a("s_sub_u32 s68, s68, s62\ns_and_b32 s68, s68, s63")
            a("s_mov_b32 s70, 0")
            for i, t in enumerate(ths):
                a(f"s_cmp_gt_i32 s68, {t}\ns_addc_u32 s70, s70, 0")
            if T4: a(f"s_cmp_gt_i32 s68, {T4}\ns_cselect_b32 s70, {L4}, s70")
    uid = [0]
    def variants(fn):
        uid[0] += 1; u = uid[0]
        a.fence()
        for i in range(1, len(levels)):
            a(f"s_cmp_eq_u32 s70, {i}\ns_cbranch_scc1 L_v{u}_{i}")
        for i, d in enumerate(levels):
            if i: a(f"L_v{u}_{i}:")
            fn(d)
            a.fence()
            if i < len(levels) - 1: a(f"s_branch L_v{u}_end")
        a(f"L_v{u}_end:")

    def kgroup(half, d):
        for k in range(16):
            series(k); control(k)
            r = kslot(16 * half + k); acc = 12 + k % 4
            a(f"v_dot2_f32_bf16 v{acc}, v{r}, v8, 0\nv_dot2_f32_bf16 v{acc}, v{r+1}, v9, v{acc}\nv_dot2_f32_bf16 v{acc}, v{r+2}, v10, v{acc}\nv_dot2_f32_bf16 v{acc}, v{r+3}, v11, v{acc}")
            a(f"s_waitcnt vmcnt({wv(d, k)})")
            issueS(r)
            if k % 4 == 3:
                C = 20 + k // 4
                a("v_add_f32_dpp v16, v12, v12 row_ror:8 row_mask:0xf bank_mask:0x3")
                a("v_add_f32_dpp v17, v14, v14 row_ror:8 row_mask:0xf bank_mask:0x3")
                a("v_add_f32_dpp v16, v13, v13 row_ror:8 row_mask:0xf bank_mask:0xc")
                a("v_add_f32_dpp v17, v15, v15 row_ror:8 row_mask:0xf bank_mask:0xc")
                a(f"v_add_f32_dpp v{C}, v16, v16 row_shl:4 row_mask:0xf bank_mask:0x5")
                a(f"v_add_f32_dpp v{C}, v17, v17 row_shr:4 row_mask:0xf bank_mask:0xa")
        for C in range(20, 24):
            a(f"v_add_f32_dpp v{C}, v{C}, v{C} quad_perm:[2,3,0,1] row_mask:0xf bank_mask:0xf")
        a("v_cndmask_b32 v20, v20, v21, s[80:81]\nv_cndmask_b32 v22, v22, v23, s[80:81]")
        a("v_add_f32_dpp v20, v20, v20 quad_perm:[1,0,3,2] row_mask:0xf bank_mask:0xf")
        a("v_add_f32_dpp v22, v22, v22 quad_perm:[1,0,3,2] row_mask:0xf bank_mask:0xf")
        a("v_cndmask_b32 v18, v20, v22, s[82:83]")
        rbf(18)
        a("v_mul_f32 v18, s76, v18")
        rbf(18)
        a("v_max_f32 v126, v126, v18\nds_write_b32 v224, v18\nv_add_u32 v224, 256, v224")
    a("s_mov_b32 s73, 16")
    a("L_kloop:")
    a("s_cmp_lg_u32 s73, 1\ns_cbranch_scc1 L_knosw\ns_mov_b32 s32, s36\ns_mov_b32 s33, s37\ns_mov_b32 s72, 0\n" + ("s_mov_b32 s60, s61\n" if XK else "") + "L_knosw:")
    variants(lambda d: kgroup(0, d))
    if KB: a(f"s_cmp_eq_u32 s73, 1\ns_cselect_b32 s70, {len(levels)-1}, s70")
    variants(lambda d: kgroup(1, d))
    a("s_sub_u32 s73, s73, 1\ns_cmp_lg_u32 s73, 0\ns_cbranch_scc1 L_kloop")
    wave_reduce(126, 13, "v_max_f32")
    a(f"s_lshl_b32 s31, s3, 2\nv_mov_b32 v13, s31\nds_write_b32 v13, v126 offset:{MX}")
    a("v_subrev_u32 v224, 8192, v224")
    stamp(3)
    a("ds_read_b32 v125, v224\nv_mov_b32 v226, v126")
    a("s_mov_b32 s76, %d" % LOG2E)
    a("s_waitcnt lgkmcnt(0)")
    def mkP():
        a("v_sub_f32 v125, v125, v226\nv_mul_f32 v125, s76, v125\nv_exp_f32 v125, v125\nv_add_f32 v127, v127, v125\nv_cvt_pk_bf16_f32 v125, v125, v125")
    mkP()
    a("v_mov_b32 v124, v125\nv_mov_b32 v12, 0\nv_mov_b32 v13, 0\nv_mov_b32 v14, 0\nv_mov_b32 v15, 0")
    lam = [4 * (((c >> 1) & 1) + 2 * (c & 1)) + [0, 2, 1, 3][c >> 2] for c in range(16)]
    inv = [lam.index(i) for i in range(16)]
    buildA(0, 124, inv[0])
    def vgroup(half, pre, post, last=False, ctl=True):
        for k in range(16):
            series(k)
            if ctl: control(k)
            if k == 0 and not last:
                a("v_add_u32 v224, 256, v224\nds_read_b32 v125, v224")
            if k == 6 and not last:
                a("s_waitcnt lgkmcnt(0)"); mkP()
            if k < 15: buildA((k + 1) & 1, 124, inv[k + 1])
            elif not last:
                buildA(0, 125, inv[0]); a("v_mov_b32 v124, v125")
            pre(k)
            mfma(12, k & 1, kslot(16 * half + k), False)
            post(k)
            if last and k == 2:
                wave_reduce(127, 16, "v_add_f32")
                a(f"s_lshl_b32 s31, s3, 9\nv_mov_b32 v20, s31\nv_mov_b32 v16, v127\nv_mov_b32 v17, 0\nv_mov_b32 v18, 0\nv_mov_b32 v19, 0\nds_write_b128 v20, v[16:19] offset:{RED_L}")
    def vsteady(half, d):
        def post(k):
            a(f"s_waitcnt vmcnt({wv(d, k)})"); issueS(kslot(16 * half + k))
        vgroup(half, lambda k: None, post)
    a(f"s_mov_b32 s73, {15 - (NBG + 1) // 2}")
    a("L_vloop:")
    variants(lambda d: vsteady(0, d))
    variants(lambda d: vsteady(1, d))
    a("s_sub_u32 s73, s73, 1\ns_cmp_lg_u32 s73, 0\ns_cbranch_scc1 L_vloop")
    if NBG % 2: variants(lambda d: vsteady(0, d))
    for i in range(NBG): vsteady((NBG + i) % 2, DB)
    wl = wl_all[8 - NWT:]
    nw = [0]
    dmax = DB if NBG else int(max(levels) + 0.99)
    wsteps = [n for n in range(32) if (n < 32 - DT and n % 5 == 4) or n >= 32 - DT]
    def fin(half):
        def pre(k):
            n = 16 * half + k
            if n >= 32 - dmax: a(f"s_waitcnt vmcnt({31 - n + nw[0]})")
        def post(k):
            n = 16 * half + k
            if n in wsteps and nw[0] < len(wl):
                a(wl[nw[0]]); nw[0] += 1
        vgroup(half, pre, post, last=(half == 1), ctl=False)
    a("L_tail0:")
    fin(0); fin(1)
    writeD(12, RED_O)
    for x in wl[nw[0]:]: a(x)
    a("s_waitcnt lgkmcnt(0)\ns_barrier")
    stamp(4)
    pollc("L_p1", ["buffer_load_dwordx4 v[228:231], v233, s[56:59], 0 offen " + h1l.replace("+", " "),
                   "buffer_load_dwordx4 v[236:239], v232, s[56:59], 0 offen offset:512 " + h1l.replace("+", " ")], [228, 229, 230, 231, 236, 237], full=(238, 239), sleep=sl1)
    stamp(5)
    steps = ["quad_perm:[1,0,3,2]", "quad_perm:[2,3,0,1]", "row_half_mirror"]
    O4 = (228, 229, 230, 231)
    a("v_and_b32 v237, 0xffffff00, v237\nv_mov_b32 v240, v237")
    for s in steps: a(f"v_max_f32_dpp v240, v240, v240 {s} row_mask:0xf bank_mask:0xf")
    a("v_sub_f32 v237, v237, v240\nv_mul_f32 v237, s76, v237\nv_exp_f32 v237, v237")
    for v in (236,) + O4: a(f"v_mul_f32 v{v}, v{v}, v237")
    for s in steps:
        for v in (236,) + O4: a(f"v_add_f32_dpp v{v}, v{v}, v{v} {s} row_mask:0xf bank_mask:0xf")
    a("v_rcp_f32 v236, v236")
    for v in O4: a(f"v_mul_f32 v{v}, v{v}, v236")
    for v in O4: a(f"v_cvt_pk_bf16_f32 v{v}, v{v}, v{v}")
    seq = [(b, i) for b in range(2) for i in range(4)]
    buildA(0, 228, 0)
    for t, (b, i) in enumerate(seq):
        if t < 7:
            b2, i2 = seq[t + 1]; buildA((t + 1) & 1, 228 + i2, 8 * b2)
        mfma(16, t & 1, WO0 + 4 * t, t == 0)
    writeD(16, RED_A)
    a("s_waitcnt lgkmcnt(0)\ns_barrier")
    stamp(6)
    if LP:
        a("s_cmp_lg_u32 s3, 0\ns_cbranch_scc1 L_norem\ns_mov_b64 exec, s[78:79]")
        for w in range(4): a(f"ds_read_b128 v[{32+4*w}:{35+4*w}], v6 offset:{RED_A+512*w}")
        a("s_lshl_b32 s31, s2, 9\ns_add_u32 s31, s31, %d\ns_mov_b32 s62, 0xff\nv_mov_b32 v20, s30\ns_waitcnt lgkmcnt(0)" % H2A)
        for i in range(4): a(f"v_add_f32 v{32+i}, v{32+i}, v{36+i}\nv_add_f32 v{40+i}, v{40+i}, v{44+i}")
        for i in range(4): a(f"v_add_f32 v{32+i}, v{32+i}, v{40+i}")
        for i in range(4): a(f"v_bfi_b32 v{32+i}, s62, v20, v{32+i}")
        a("buffer_store_dwordx4 v[32:35], v6, s[56:59], s31 offen sc1\ns_mov_b64 exec, -1")
        a.fence()
        a("L_norem:")
    if ser:
        a("s_add_u32 s68, s26, 0x9000000\ns_addc_u32 s69, s27, 0\ns_lshl_b32 s31, s2, 2\ns_add_u32 s31, s31, s3\ns_lshl_b32 s31, s31, 8\nv_lshlrev_b32 v16, 2, v1\nv_add_u32 v16, s31, v16")
        a("global_store_dword v16, v255, s[68:69]")
    if diag:
        a("s_waitcnt lgkmcnt(0)\ns_getreg_b32 s98, hwreg(HW_REG_HW_ID)\ns_getreg_b32 s99, hwreg(HW_REG_XCC_ID)")
        a("s_cmp_lg_u32 s3, 0\ns_cbranch_scc1 L_exit\ns_mov_b32 s31, 0\ns_branch L_stamps")
    else:
        a("s_endpgm")

    if FAST:
        a("L_comm0:\ns_waitcnt lgkmcnt(0)")
        common()
    a("L_comm:")
    incomm[0] = True
    a(f"v_mov_b32 v8, 0\nv_mov_b32 v20, 0\nv_mov_b32 v21, 0\nv_mov_b32 v22, 0\nv_mov_b32 v23, 0\nds_write_b128 v8, v[20:23] offset:{FL}\nds_write_b128 v8, v[20:23] offset:{FG}\nds_write_b128 v8, v[20:23] offset:{QF}\nds_write_b128 v8, v[20:23] offset:{RF}\nds_write_b128 v8, v[20:23] offset:{PH}\nds_write_b128 v8, v[20:23] offset:{PH+16}\ns_waitcnt lgkmcnt(0)\ns_barrier")
    a("s_lshl_b32 s31, s29, 8\ns_and_b32 s75, s28, 3\ns_lshl_b32 s75, s75, 6\ns_add_u32 s75, s75, s31")
    a("v_and_b32 v37, 7, v1\nv_lshlrev_b32 v38, 3, v37")
    a("buffer_load_dwordx2 v[10:11], v38, s[52:55], s75 offen")
    if TL:
        a("s_lshl_b32 s31, s28, 24\ns_add_u32 s72, s8, s31\ns_addc_u32 s73, s9, 0\ns_lshl_b32 s31, s28, 18\ns_add_u32 s80, s12, s31\ns_addc_u32 s81, s13, 0\ns_mov_b32 s82, 27")
    def wdload():
        srd(36, "s20", "s21", 0 if "d" in skipw else 3584 * 2048)
        a("v_lshl_add_u32 v58, v2, 11, v7\ns_mul_i32 s35, s28, %d\ns_lshl_b32 s31, s29, 8\ns_add_u32 s35, s35, s31" % (112 * 2048))
        for i in range(28):
            if i >= WDF: a(f"s_waitcnt vmcnt({WDF-1})")
            a(f"buffer_load_dwordx4 v[{128+4*i}:{131+4*i}], v58, s[36:39], s35 offen {pol_w}\ns_add_u32 s35, s35, 8192")
    if CP:
        a("s_and_b32 s34, s2, 31" if perm == 1 else "s_mov_b32 s34, s28")
        a(f"s_cmp_ge_u32 s34, {CP}\ns_cbranch_scc1 L_nocp")
        a(f"s_getpc_b64 s[32:33]\nL_pc0:\ns_sub_u32 s32, s32, L_pc0-{NAME}\ns_subb_u32 s33, s33, 0\ns_lshl_b32 s31, s34, 13\nv_add_u32 v20, s31, v6\ns_mov_b32 s31, L_exit-{NAME}-16")
        for i in range(8): a(f"v_min_u32 v{21+i}, s31, v20\nglobal_load_dwordx4 v[{64+4*i}:{67+4*i}], v{21+i}, s[32:33]\nv_add_u32 v20, 1024, v20")
        a("L_nocp:")
    if WDW == 1: wdload()
    if touch:
        a("s_mov_b64 exec, 1")
        a("s_lshl_b32 s31, s28, 24\ns_add_u32 s32, s6, s31\ns_addc_u32 s33, s7, 0\nglobal_load_dword v20, v8, s[32:33] nt")
        a("s_mul_i32 s31, s29, %d\ns_add_u32 s32, s16, s31\ns_addc_u32 s33, s17, 0\nglobal_load_dword v21, v8, s[32:33] nt" % (128 * 7168))
        a("s_add_u32 s32, s18, s31\ns_addc_u32 s33, s19, 0\nglobal_load_dword v22, v8, s[32:33] nt")
        a("global_load_dword v23, v8, s[26:27] nt")
        a("s_mov_b64 exec, -1")
    masks()
    srd(68, "s22", "s23", 2048)
    a("v_lshlrev_b32 v9, 3, v1")
    a("s_lshl_b32 s31, s2, 10\ns_add_u32 s40, s31, %d" % H0Q)
    a("s_lshl_b32 s31, s28, 13\ns_add_u32 s41, s31, %d\ns_add_u32 s42, s41, 4096" % H0Q)
    a("s_waitcnt lgkmcnt(0)\ns_add_u32 s30, s30, 1")
    def red4(dst, off, tmp):
        for w in range(4): a(f"ds_read_b64 v[{tmp+2*w}:{tmp+2*w+1}], v9 offset:{off+512*w}")
    def sum4(dst, tmp):
        a(f"v_add_f32 v{dst}, v{tmp}, v{tmp+2}\nv_add_f32 v{dst+2}, v{tmp+1}, v{tmp+3}\nv_add_f32 v{tmp+4}, v{tmp+4}, v{tmp+6}\nv_add_f32 v{tmp+5}, v{tmp+5}, v{tmp+7}")
        a(f"v_add_f32 v{dst}, v{dst}, v{tmp+4}\nv_add_f32 v{dst+2}, v{dst+2}, v{tmp+5}")
    a("v_mov_b32 v13, s30\nv_mov_b32 v15, s30\nv_mov_b32 v17, s30\nv_mov_b32 v19, s30")
    a.fence()
    a(f"L_fl:\nds_read_b128 v[20:23], v8 offset:{FL}\ns_waitcnt lgkmcnt(0)\nv_and_b32 v20, v20, v21\nv_and_b32 v22, v22, v23\nv_and_b32 v20, v20, v22\nv_readfirstlane_b32 s31, v20")
    a("s_cmp_eq_u32 s31, 1\ns_cbranch_scc1 L_fl_ok\ns_sleep 1\ns_branch L_fl\nL_fl_ok:")
    stamp(1)
    red4(12, RED_Q, 20); a("s_waitcnt lgkmcnt(0)"); sum4(12, 20)
    if LOC:
        a("s_getreg_b32 s65, hwreg(HW_REG_XCC_ID)\ns_and_b32 s65, s65, 15")
        if fakex: a("s_mov_b32 s65, s29")
        a("s_lshl_b32 s65, s65, 28\ns_and_b32 s31, s30, 0xfffffff\ns_or_b32 s65, s65, s31\nv_mov_b32 v13, s65\nv_mov_b32 v15, s65")
        a("buffer_store_dwordx4 v[12:15], v6, s[56:59], s40 offen")
        if WDW == 2: wdload()
        up = "buffer_store_dwordx4 v[12:15], v6, s[56:59], s40 offen sc1"
        poll_rows("L_p0", [(f"buffer_load_dwordx4 v[{64+4*jj}:{67+4*jj}], v6, s[56:59], s{41+jj//4} offen offset:{1024*(jj%4)} {ql.replace('+', ' ')}", 65 + 4 * jj, 67 + 4 * jj) for jj in range(8)], 4,
                  tagreg="s65", mask="0xfffffff", hook=up)
        a("v_xor_b32 v250, s65, v65")
        for jj in range(1, 8): a(f"v_bitop3_b32 v250, v{65+4*jj}, s65, v250 bitop3:0xbe")
        a("v_cmp_ne_u32 vcc, 0, v250\ns_cmp_eq_u64 vcc, 0\ns_cselect_b32 s11, 1, 0\ns_cbranch_scc1 L_qloc")
        a(up)
        a("L_qloc:\ns_nop 1\nv_mov_b32 v13, s30\nv_mov_b32 v15, s30")
    else:
        if noq != 1: a("buffer_store_dwordx4 v[12:15], v6, s[56:59], s40 offen " + qfl.replace("+", " "))
        if qdelay: a(f"s_sleep {qdelay}")
        if WDW == 2: wdload()
        if noq:
            pass
        elif maskpoll:
            poll_rows("L_p0", [(f"buffer_load_dwordx4 v[{64+4*jj}:{67+4*jj}], v6, s[56:59], s{41+jj//4} offen offset:{1024*(jj%4)} {ql.replace('+', ' ')}", 65 + 4 * jj, 67 + 4 * jj) for jj in range(8)], 4)
        else:
            poll("L_p0", [f"buffer_load_dwordx4 v[{128+4*jj}:{131+4*jj}], v6, s[56:59], s{41+jj//4} offen offset:{1024*(jj%4)} sc1" for jj in range(8)],
                 [129 + 2 * i for i in range(16)])
    stamp(2)
    def sum8(base, stride):
        for o in (0, 2):
            for (x, y) in ((0, 1), (2, 3), (4, 5), (6, 7), (0, 2), (4, 6), (0, 4)):
                a(f"v_add_f32 v{base+x*stride+o}, v{base+x*stride+o}, v{base+y*stride+o}")
    sum8(64, 4)
    a(f"v_cvt_pk_bf16_f32 v64, v64, v66\nv_lshlrev_b32 v20, 2, v1\nds_write_b32 v20, v64 offset:{QL}")
    if NB2F:
        a(f"v_mov_b32 v20, 1\nds_write_b32 v8, v20 offset:{QF}")
        if WDW == 3: wdload()
        a.fence()
        a(f"L_fg:\nds_read_b128 v[20:23], v8 offset:{FG}\ns_waitcnt lgkmcnt(0)\nv_and_b32 v20, v20, v21\nv_and_b32 v22, v22, v23\nv_and_b32 v20, v20, v22\nv_readfirstlane_b32 s31, v20")
        a("s_cmp_eq_u32 s31, 1\ns_cbranch_scc1 L_fg_ok\ns_sleep 2\ns_branch L_fg\nL_fg_ok:")
    else:
        a("s_waitcnt lgkmcnt(0)\ns_barrier")
    def tag4(v):
        for i in range(4): a(f"v_bfi_b32 v{v+i}, s61, v13, v{v+i}")
    a("s_mov_b32 s61, 0xff")
    red4(0, RED_G, 20); red4(0, RED_U, 28); a("s_waitcnt lgkmcnt(0)")
    for d, t in ((16, 20), (18, 28)):
        a(f"v_add_f32 v{d}, v{t}, v{t+2}\nv_add_f32 v{d+1}, v{t+1}, v{t+3}\nv_add_f32 v{t+4}, v{t+4}, v{t+6}\nv_add_f32 v{t+5}, v{t+5}, v{t+7}")
        a(f"v_add_f32 v{d}, v{d}, v{t+4}\nv_add_f32 v{d+1}, v{d+1}, v{t+5}")
    tag4(16)
    a("s_lshl_b32 s43, s2, 10\ns_add_u32 s40, s43, %d\ns_mov_b32 s62, -1\ns_mov_b32 s63, 0xffffff" % H0GU)
    a("s_mov_b64 exec, s[62:63]")
    if LOC:
        a("s_cmp_eq_u32 s11, 1\ns_cbranch_scc1 L_gs_l\nbuffer_store_dwordx4 v[16:19], v6, s[56:59], s40 offen sc1\ns_branch L_gs_e\nL_gs_l:\nbuffer_store_dwordx4 v[16:19], v6, s[56:59], s40 offen\nL_gs_e:")
    else:
        a("buffer_store_dwordx4 v[16:19], v6, s[56:59], s40 offen " + gufl.replace("+", " "))
    a("s_mov_b64 exec, -1")
    def ffn():
        if WDW == 0: wdload()
        a("s_lshl_b32 s31, s28, 13\ns_add_u32 s18, s31, %d\ns_add_u32 s19, s18, 4096" % H0GU)
        a("s_mov_b64 exec, s[62:63]")
        pollc("L_pg", [f"buffer_load_dwordx4 v[{64+4*n}:{67+4*n}], v6, s[56:59], s{18+n//4} offen offset:{1024*(n%4)} {gul.replace('+', ' ')}" for n in range(8)],
              list(range(64, 96)), sleep=50)
        stamp(3)
        for o in range(4):
            for (x, y) in ((0, 1), (2, 3), (4, 5), (6, 7), (0, 2), (4, 6), (0, 4)):
                a(f"v_add_f32 v{64+4*x+o}, v{64+4*x+o}, v{64+4*y+o}")
        for v in (64, 65, 66, 67): rbf(v)
        a("s_mov_b32 s16, 0x3d372713\ns_mov_b32 s17, 0xc0135761")
        for g, u in ((64, 66), (65, 67)):
            a(f"v_mul_f32 v20, v{g}, v{g}\nv_fma_f32 v20, v20, s16, 1.0\nv_mul_f32 v20, v20, v{g}\nv_mul_f32 v20, s17, v20\nv_exp_f32 v20, v20\nv_add_f32 v20, 1.0, v20\nv_rcp_f32 v20, v20\nv_mul_f32 v{g}, v{g}, v20")
            rbf(g)
            a(f"v_mul_f32 v{g}, v{g}, v{u}")
        a(f"v_cvt_pk_bf16_f32 v20, v64, v64\nv_cvt_pk_bf16_f32 v21, v65, v65\nds_write_b64 v9, v[20:21] offset:{HL}")
        a(f"v_lshl_add_u32 v20, v2, 2, v7\nds_read_b32 v56, v20 offset:{HL}\nds_read_b32 v57, v20 offset:{HL+256}\ns_waitcnt lgkmcnt(0)")
        buildA(0, 56, 0)
        for i in range(28):
            if i < 27: buildA((i + 1) & 1, 56 + (i + 1) // 16, (i + 1) % 16)
            mfma(52, i & 1, 128 + 4 * i, i == 0)
        tag4(52)
        if FW == 2:
            a("v_lshlrev_b32 v39, 5, v3\nv_lshl_add_u32 v39, v2, 4, v39\ns_lshl_b32 s31, s2, 9\ns_add_u32 s42, s31, %d" % H2F)
            a("s_mov_b64 exec, s[78:79]\nbuffer_store_dwordx4 v[52:55], v39, s[56:59], s42 offen sc1 nt\ns_mov_b64 exec, -1")
    if not GF: ffn()
    def bump(r, first):
        if not GA: return f"s_add_u32 s{r}, s{r}, {GP}"
        return f"s_cmp_eq_u32 s{r}, {first}\ns_cselect_b32 s9, {GA}, {GP}\ns_add_u32 s{r}, s{r}, s9"
    sh = GP.bit_length() - 1
    assert GP == 1 << sh
    a("v_lshlrev_b32 v50, 7, v1")
    a(f"s_mov_b32 s44, {G0}\ns_mov_b32 s45, {G0+GG}\ns_mov_b32 s46, {G0+GR}\ns_mov_b32 s47, 0\ns_mov_b32 s51, 0\ns_mov_b32 s52, 0\ns_mov_b32 s53, 0\ns_mov_b32 s54, 0")
    if NREF == 64: a("s_xor_b32 s55, s28, s29\ns_and_b32 s55, s55, 3")
    if NREF == 32: a("s_xor_b32 s55, s28, s29\ns_and_b32 s55, s55, 7")
    if NREF == 16: a("s_lshr_b32 s55, s2, 4\ns_xor_b32 s55, s55, s2\ns_and_b32 s55, s55, 15")
    if NREF == 8: a("s_lshr_b32 s55, s2, 5\ns_mul_i32 s55, s55, 5\ns_xor_b32 s55, s55, s2\ns_and_b32 s55, s55, 31")
    rsh = {64: 2, 32: 3, 16: 4, 8: 5}[NREF]
    if NREF < 64: a(f"v_and_b32 v50, {NREF-1}, v1\nv_lshlrev_b32 v50, 7, v50")
    a(f"s_lshr_b32 s48, s2, {rsh}")
    a("s_lshl_b32 s48, s48, 7\ns_add_u32 s48, s48, %d\ns_mov_b32 s49, %d" % (PHI, PHI))
    a("s_mov_b32 s50, 0" if NREP == 1 else "s_lshr_b32 s50, s28, 2" if perm == 1 else "s_mov_b32 s50, s29")
    a("s_lshl_b32 s50, s50, 7\ns_add_u32 s50, s50, %d\ns_mov_b32 s60, %d" % (REF, REF))
    a("s_cmp_eq_u32 s2, 0\ns_cselect_b32 s45, s45, -1")
    a("s_mov_b32 s4, 0\ns_mov_b32 s5, 0\ns_mov_b32 s6, 0\ns_mov_b32 s7, 0\ns_mov_b32 s10, %d" % GF)
    if noex: a("s_mov_b32 s44, -1\ns_mov_b32 s45, -1\ns_mov_b32 s46, -1")
    a.fence()
    a("L_ctl:")
    a(f"ds_read_b128 v[20:23], v8 offset:{PH}\nds_read_b128 v[24:27], v8 offset:{PH+16}\ns_waitcnt lgkmcnt(0)")
    a("v_min_u32 v21, v21, v23\nv_min3_u32 v21, v21, v25, v27\nv_readfirstlane_b32 s31, v21")
    if GF: a(f"s_cmp_eq_u32 s10, -1\ns_cbranch_scc0 L_ctl_c")
    a(f"s_cmp_ge_u32 s31, {GEX}\ns_cbranch_scc1 L_ctl_end\nL_ctl_c:\ns_cmp_eq_u32 s31, s47\ns_cbranch_scc1 L_ctl_sleep\ns_mov_b32 s47, s31")
    a("v_sub_u32 v22, v22, v20\nv_sub_u32 v24, v24, v20\nv_sub_u32 v26, v26, v20\nv_add3_u32 v22, v22, v24, v26\nv_ashrrev_i32 v22, 2, v22\nv_add_u32 v12, v20, v22")
    if JD:
        a(f"v_readfirstlane_b32 s8, v12\ns_sub_u32 s9, s8, s5\ns_and_b32 s9, s9, s54\ns_mov_b32 s5, s4\ns_mov_b32 s4, s8")
        a(f"s_cmp_gt_i32 s9, {JD}\ns_cbranch_scc0 L_ctl_nj\ns_add_u32 s51, s51, s9\ns_add_u32 s6, s6, s9\ns_mov_b32 s5, s8\nL_ctl_nj:")
    a(f"s_cmp_lt_u32 s47, s44\ns_cbranch_scc1 L_ctl_g\ns_mov_b32 s6, 0\n{bump(44, G0)}\ns_cmp_lg_u32 s55, 0\ns_cbranch_scc1 L_ctl_g")
    a("s_mov_b64 exec, 1\nbuffer_store_dwordx2 v[12:13], v8, s[56:59], s48 offen " + exs.replace("+", " ") + "\ns_mov_b64 exec, -1\ns_add_u32 s48, s48, 8192")
    a("L_ctl_g:")
    a("s_cmp_lt_u32 s47, s45\ns_cbranch_scc1 L_ctl_rd")
    a("buffer_load_dwordx2 v[20:21], v50, s[56:59], s49 offen " + exl.replace("+", " ") + "\ns_waitcnt vmcnt(0)")
    a("v_cmp_ne_u32 vcc, s30, v21\ns_cmp_lg_u64 vcc, 0\ns_cbranch_scc1 L_ctl_rd")
    a("v_sub_u32 v20, v20, v12")
    if RB:
        a("v_mov_b32 v22, v20")
        wave_reduce(22, 21, "v_max_i32")
    wave_reduce(20, 21, "v_add_u32")
    a("v_ashrrev_i32 v20, 6, v20")
    if RB: a(f"s_cmp_gt_u32 s45, {G0 + GG + GA}\ns_cselect_b32 s9, {RD}, 0x100000\nv_sub_u32 v22, v22, v20\nv_subrev_u32 v22, s9, v22\nv_max_i32 v22, 0, v22\nv_ashrrev_i32 v22, {RB}, v22\nv_add_u32 v20, v20, v22")
    a("v_add_u32 v14, v12, v20")
    a(("s_mov_b64 exec, 0xff" if NREP == 8 else "s_mov_b64 exec, 1") + "\nbuffer_store_dwordx2 v[14:15], v50, s[56:59], s60 offen " + exs.replace("+", " ") + "\ns_mov_b64 exec, -1")
    a(f"{bump(45, G0 + GG)}\ns_add_u32 s49, s49, 8192\ns_add_u32 s60, s60, 1024")
    a.fence()
    a("L_ctl_rd:")
    a("s_cmp_lt_u32 s47, s46\ns_cbranch_scc1 L_ctl_up")
    if RP == 1:
        a("s_mov_b64 exec, 1\ns_cmp_eq_u32 s47, s46\ns_cbranch_scc1 L_ctl_r1\nbuffer_load_dwordx2 v[28:29], v8, s[56:59], s50 offen sc1\ns_branch L_ctl_r2")
        a("L_ctl_r1:\nbuffer_load_dwordx2 v[28:29], v8, s[56:59], s50 offen\nL_ctl_r2:")
        a("s_waitcnt vmcnt(0)\nv_readfirstlane_b32 s31, v29\nv_readfirstlane_b32 s64, v28\ns_mov_b64 exec, -1")
    elif RP == 2:
        a("s_cmp_eq_u32 s47, s46\ns_cbranch_scc1 L_ctl_r1")
        a("s_mov_b64 exec, 1\nbuffer_load_dwordx2 v[28:29], v8, s[56:59], s50 offen sc1\ns_waitcnt vmcnt(0)\nv_readfirstlane_b32 s65, v29\nv_readfirstlane_b32 s64, v28\ns_mov_b64 exec, -1\ns_nop 3\ns_branch L_ctl_r2")
        a("L_ctl_r1:\ns_load_dwordx2 s[64:65], s[26:27], s50\ns_waitcnt lgkmcnt(0)\nL_ctl_r2:\ns_mov_b32 s31, s65")
    else:
        a("s_mov_b64 exec, 1\nbuffer_load_dwordx2 v[28:29], v8, s[56:59], s50 offen " + exl.replace("+", " ") + "\ns_waitcnt vmcnt(0)\nv_readfirstlane_b32 s31, v29\nv_readfirstlane_b32 s64, v28\ns_mov_b64 exec, -1")
    a("s_cmp_lg_u32 s31, s30\ns_cbranch_scc1 L_ctl_up")
    if FB: a(f"s_andn2_b32 s9, {FB}, s54\ns_sub_u32 s64, s64, s9")
    a("s_add_u32 s64, s64, s6\ns_sub_u32 s52, s64, s51\ns_and_b32 s52, s52, s54")
    if MS: a("s_mov_b32 s9, s52\ns_min_i32 s52, s52, s7\ns_mov_b32 s7, s9")
    if MS == 2: a("s_cmp_lt_i32 s52, 40\ns_cselect_b32 s52, 0, s52")
    if not slope: a("s_mov_b32 s52, 0")
    a(f"s_mov_b32 s51, s64\ns_sub_u32 s53, s46, {GR + 1}\ns_mov_b32 s54, -1\n{bump(46, G0 + GR)}\ns_add_u32 s50, s50, 1024")
    a("L_ctl_up:")
    a(f"s_sub_u32 s31, s47, s53\ns_mul_i32 s31, s31, s52\ns_ashr_i32 s31, s31, {sh}\ns_add_u32 s31, s31, s51")
    a(f"v_mov_b32 v30, s31\nv_mov_b32 v31, s54\nds_write_b64 v8, v[30:31] offset:{RF}")
    if TL & 1:
        a("s_cmp_lt_u32 s47, s82\ns_cbranch_scc1 L_ctl_nt\ns_mov_b32 s82, -1\nv_lshlrev_b32 v20, 21, v1\ns_mov_b64 exec, 0xff\nglobal_load_dword v21, v20, s[72:73] nt\ns_mov_b64 exec, -1\ns_waitcnt vmcnt(0)\nL_ctl_nt:")
    if GF:
        a("s_cmp_lt_u32 s47, s10\ns_cbranch_scc1 L_ctl_sleep\ns_mov_b32 s10, -1")
        ffn()
        a.fence()
    a(f"L_ctl_sleep:\ns_sleep {CSL}\ns_branch L_ctl")
    a("L_ctl_end:")
    if TL & 2:
        a("s_mov_b64 exec, 1\nglobal_load_dword v64, v8, s[80:81] nt\nbuffer_load_dword v65, v8, s[68:71], 0 offen nt\ns_mov_b64 exec, -1")
    a(f"ds_read_b128 v[44:47], v8 offset:{MX}\ns_waitcnt lgkmcnt(0)\nv_max_f32 v20, v44, v45\nv_max3_f32 v16, v20, v46, v47\ns_mov_b32 s31, {LOG2E}")
    for w in range(4): a(f"v_sub_f32 v{44+w}, v{44+w}, v16\nv_mul_f32 v{44+w}, s31, v{44+w}\nv_exp_f32 v{44+w}, v{44+w}")
    a("s_add_u32 s40, s43, %d\ns_lshl_b32 s31, s2, 9\ns_add_u32 s41, s31, %d\ns_add_u32 s42, s31, %d" % (H1, H2A, H2F))
    a("v_lshlrev_b32 v39, 5, v3\nv_lshl_add_u32 v39, v2, 4, v39")
    a("v_cmp_eq_u32 vcc, 32, v1\nv_mov_b32 v20, 2048\nv_cndmask_b32 v48, v6, v20, vcc\nv_cndmask_b32 v49, 0, v16, vcc\nv_mov_b32 v20, 0xff\nv_cndmask_b32 v51, v20, -1, vcc")
    a("s_mov_b32 s63, 1")
    a("v_lshrrev_b32 v36, 3, v1\nv_lshlrev_b32 v36, 12, v36\nv_lshl_add_u32 v36, v37, 4, v36")
    a("s_lshl_b32 s31, s29, 9\ns_lshl_b32 s44, s28, 7\ns_add_u32 s44, s44, s31\ns_add_u32 s44, s44, %d" % H2A)
    for i in range(1, 8): a(f"s_add_u32 s{44+i}, s44, {32768*i}")
    assert H2F == H2A + 4 * 32768
    a("v_lshlrev_b32 v40, 16, v10\nv_and_b32 v41, 0xffff0000, v10\nv_lshlrev_b32 v42, 16, v11\nv_and_b32 v43, 0xffff0000, v11")
    if LOC and PD:
        a("s_cmp_lg_u32 s11, 1\ns_cbranch_scc1 L_npd\nv_not_b32 v60, v13\nv_not_b32 v61, v13\nv_not_b32 v62, v13\nv_not_b32 v63, v13")
        a("s_mov_b32 s64, -1\ns_mov_b32 s65, 0xff\ns_mov_b64 exec, s[64:65]\nbuffer_store_dwordx4 v[60:63], v6, s[56:59], s40 offen\ns_mov_b64 exec, -1\nL_npd:")
    if PT:
        pf = "sc1" if PT == 1 else ""
        a(f"s_mov_b64 exec, s[62:63]\nbuffer_load_dwordx4 v[64:67], v6, s[56:59], s40 offen {pf}\ns_mov_b64 exec, s[78:79]\nbuffer_load_dwordx4 v[68:71], v6, s[56:59], s41 offen {pf}")
        if FW != 2: a(f"buffer_load_dwordx4 v[72:75], v6, s[56:59], s42 offen {pf}")
        a("s_mov_b64 exec, -1")
    if warm:
        a("s_getpc_b64 s[64:65]\nL_pc:\ns_sub_u32 s64, s64, L_pc-L_tail0\ns_subb_u32 s65, s65, 0")
        for i in range(warm): a(f"global_load_dwordx4 v[64:67], v6, s[64:65]\ns_add_u32 s64, s64, 1024\ns_addc_u32 s65, s65, 0")
        a("s_waitcnt vmcnt(0)")
    def xred(b, skip=False):
        if not skip:
            for i in range(4): a(f"v_add_f32 v{b+i}, v{b+i}, v{b+4+i}\nv_add_f32 v{b+8+i}, v{b+8+i}, v{b+12+i}")
        for i in range(4): a(f"v_add_f32 v{b+i}, v{b+i}, v{b+8+i}")
        for i in range(4): a(f"v_add_f32_dpp v{b+i}, v{b+i}, v{b+i} row_ror:8 row_mask:0xf bank_mask:0xf")
        for op in ("v_permlane16_swap_b32", "v_permlane32_swap_b32"):
            for i in range(4): a(f"v_mov_b32 v{b+4+i}, v{b+i}")
            for i in range(4): a(f"{op} v{b+i}, v{b+4+i}")
            for i in range(4): a(f"v_add_f32 v{b+i}, v{b+i}, v{b+4+i}")
        for i in range(4): rbf(b + i)
    def ffn_gather():
        pollc("L_pf", [f"buffer_load_dwordx4 v[{144+4*i}:{147+4*i}], v36, s[56:59], s{48+i} offen sc1" for i in range(4)], list(range(144, 160)), sleep=sl2)
        xred(144)
    if FW == 2:
        a("s_cmp_ge_u32 s28, 4\ns_cbranch_scc1 L_nf")
        ffn_gather()
        a.fence()
        a("L_nf:")
    if LP:
        a(f"s_add_u32 s12, s41, {LOFF}\ns_add_u32 s13, s42, {LOFF}\nv_add_u32 v59, {LOFF}, v36")
        a("v_not_b32 v60, v13\nv_not_b32 v61, v13\nv_not_b32 v62, v13\nv_not_b32 v63, v13")
        a("s_mov_b64 exec, s[78:79]\nbuffer_store_dwordx4 v[52:55], v39, s[56:59], s13 offen\nbuffer_store_dwordx4 v[60:63], v6, s[56:59], s12 offen\ns_mov_b64 exec, -1")
        a("s_mov_b32 s14, 0")
        a("s_barrier")
        stamp(4)
        a("s_mov_b64 exec, s[62:63]")
        for w in range(4): a(f"ds_read_b128 v[{20+4*w}:{23+4*w}], v48 offset:{RED_O+512*w}")
        a("s_waitcnt lgkmcnt(0)")
        a("v_mul_f32 v16, v20, v44\nv_fma_f32 v17, v21, v44, v49\nv_mul_f32 v18, v22, v44\nv_mul_f32 v19, v23, v44")
        for w in range(1, 4):
            for i in range(4): a(f"v_fmac_f32 v{16+i}, v{20+4*w+i}, v{44+w}")
        a("v_bfi_b32 v16, s61, v13, v16\nv_bfi_b32 v17, s61, v13, v17\nv_bfi_b32 v18, v51, v13, v18\nv_bfi_b32 v19, v51, v13, v19")
        a("buffer_store_dwordx4 v[16:19], v6, s[56:59], s40 offen sc1")
        a("s_cmp_ge_u32 s28, 4\ns_cbranch_scc1 L_b5")
        a("s_mov_b64 exec, s[78:79]\nbuffer_store_dwordx4 v[52:55], v39, s[56:59], s42 offen sc1\ns_mov_b64 exec, -1")
        pollc("L_lf", [f"buffer_load_dwordx4 v[{144+4*i}:{147+4*i}], v59, s[56:59], s{48+i} offen sc1" for i in range(4)], list(range(144, 160)), sleep=0, tries=1, fail="L_b5")
        xred(144)
        a("s_mov_b32 s14, 1")
        a.fence()
        a("L_b5:\ns_mov_b64 exec, s[78:79]")
        a("s_barrier")
        stamp(5)
        for w in range(4): a(f"ds_read_b128 v[{20+4*w}:{23+4*w}], v6 offset:{RED_A+512*w}")
        a("s_waitcnt lgkmcnt(0)")
        for i in range(4): a(f"v_add_f32 v{20+i}, v{20+i}, v{24+i}\nv_add_f32 v{28+i}, v{28+i}, v{32+i}")
        for i in range(4): a(f"v_add_f32 v{60+i}, v{20+i}, v{28+i}")
        tag4(60)
        a("buffer_store_dwordx4 v[60:63], v6, s[56:59], s12 offen")
        a("s_cmp_lt_u32 s28, 4\ns_cbranch_scc1 L_cons")
        a("buffer_store_dwordx4 v[52:55], v39, s[56:59], s42 offen sc1")
        if diag: stamp(6); a("s_branch L_noep")
        else: a("s_branch L_noep" if spin else "s_endpgm")
        a("L_cons:\ns_mov_b64 exec, -1")
        a("s_cmp_eq_u32 s14, 0\ns_cbranch_scc1 L_fbf")
        pollc("L_la", [f"buffer_load_dwordx4 v[{128+4*i}:{131+4*i}], v59, s[56:59], s{44+i} offen sc1" for i in range(4)], list(range(128, 144)), sleep=lsl, tries=LN, fail="L_fba")
        a("s_branch L_fin")
        a("L_fbf:")
        ffn_gather()
        a.fence()
        a("L_fba:")
        pollc("L_p2", [f"buffer_load_dwordx4 v[{128+4*i}:{131+4*i}], v36, s[56:59], s{44+i} offen sc1" for i in range(4)], list(range(128, 144)), sleep=sl2)
        a("L_fin:")
    else:
        tf = tfl.replace("+", " ")
        a("s_barrier")
        stamp(4)
        a("s_mov_b64 exec, s[62:63]")
        for w in range(4): a(f"ds_read_b128 v[{20+4*w}:{23+4*w}], v48 offset:{RED_O+512*w}")
        a("s_waitcnt lgkmcnt(0)")
        a("v_mul_f32 v16, v20, v44\nv_fma_f32 v17, v21, v44, v49\nv_mul_f32 v18, v22, v44\nv_mul_f32 v19, v23, v44")
        for w in range(1, 4):
            for i in range(4): a(f"v_fmac_f32 v{16+i}, v{20+4*w+i}, v{44+w}")
        a("v_bfi_b32 v16, s61, v13, v16\nv_bfi_b32 v17, s61, v13, v17\nv_bfi_b32 v18, v51, v13, v18\nv_bfi_b32 v19, v51, v13, v19")
        if LOC:
            a("s_cmp_eq_u32 s11, 1\ns_cbranch_scc1 L_hs_l\nbuffer_store_dwordx4 v[16:19], v6, s[56:59], s40 offen sc1\ns_branch L_hs_e\nL_hs_l:\nbuffer_store_dwordx4 v[16:19], v6, s[56:59], s40 offen\nL_hs_e:")
        else:
            a("buffer_store_dwordx4 v[16:19], v6, s[56:59], s40 offen " + tf)
        a("s_mov_b64 exec, s[78:79]")
        if FW == 0: a(f"buffer_store_dwordx4 v[52:55], v39, s[56:59], s42 offen {tf}")
        a("s_barrier")
        stamp(5)
        for w in range(4): a(f"ds_read_b128 v[{20+4*w}:{23+4*w}], v6 offset:{RED_A+512*w}")
        if FW == 1: a(f"buffer_store_dwordx4 v[52:55], v39, s[56:59], s42 offen {tf}")
        a("s_waitcnt lgkmcnt(0)")
        for i in range(4): a(f"v_add_f32 v{20+i}, v{20+i}, v{24+i}\nv_add_f32 v{28+i}, v{28+i}, v{32+i}")
        for i in range(4): a(f"v_add_f32 v{60+i}, v{20+i}, v{28+i}")
        tag4(60)
        a(f"buffer_store_dwordx4 v[60:63], v6, s[56:59], s41 offen {tf}\ns_mov_b64 exec, -1")
        if diag:
            a("s_cmp_lt_u32 s28, 4\ns_cbranch_scc1 L_cons"); stamp(6); a("s_branch L_noep\nL_cons:")
        else:
            a("s_cmp_ge_u32 s28, 4\ns_cbranch_scc1 " + ("L_noep" if spin else "L_exit"))
        if not HP:
            if FW != 2: ffn_gather()
            pollc("L_p2", [f"buffer_load_dwordx4 v[{128+4*i}:{131+4*i}], v36, s[56:59], s{44+i} offen sc1" for i in range(4)], list(range(128, 144)), sleep=sl2)
    if HP:
        sets = [160, 176, 192][:HP]
        def ld(b):
            for i in range(4): a(f"buffer_load_dwordx4 v[{b+4*i}:{b+3+4*i}], v36, s[56:59], s{44+i} offen sc1")
        def chk(b):
            a(f"v_xor_b32 v250, s30, v{b}\nv_xor_b32 v251, s30, v{b+8}")
            for r in range(1, 8): a(f"v_bitop3_b32 v250, v{b+r}, s30, v250 bitop3:0xbe\nv_bitop3_b32 v251, v{b+8+r}, s30, v251 bitop3:0xbe")
            a("v_or_b32 v250, v250, v251\nv_and_b32 v250, 0xff, v250\nv_cmp_ne_u32 vcc, 0, v250\ns_cmp_eq_u64 vcc, 0")
        for i in range(4): a(f"buffer_load_dwordx4 v[{144+4*i}:{147+4*i}], v36, s[56:59], s{48+i} offen sc1")
        for b in sets[:-1]:
            ld(b); a(f"s_sleep {gap}")
        ld(sets[-1])
        a(f"s_waitcnt vmcnt({4*HP})")
        chk(144)
        a("s_cbranch_scc1 L_fok")
        pollc("L_pf", [f"buffer_load_dwordx4 v[{144+4*i}:{147+4*i}], v36, s[56:59], s{48+i} offen sc1" for i in range(4)], list(range(144, 160)), sleep=sl2)
        a("L_fok:")
        xred(144)
        a("s_mov_b32 s77, 0x100000")
        a.fence()
        a("L_hp:")
        for n, b in enumerate(sets):
            a(f"s_waitcnt vmcnt({4*(HP-1)})")
            chk(b)
            a(f"s_cbranch_scc1 L_hp_{n}")
            ld(b)
        a("s_sub_u32 s77, s77, 1\ns_cmp_lg_u32 s77, 0\ns_cbranch_scc1 L_hp")
        for n, b in enumerate(sets):
            a(f"L_hp_{n}:")
            for i in range(4): a(f"v_add_f32 v{128+i}, v{b+i}, v{b+4+i}\nv_add_f32 v{136+i}, v{b+8+i}, v{b+12+i}")
            if n < HP - 1: a("s_branch L_hp_e")
        a("L_hp_e:")
        stamp(6)
        xred(128, skip=True)
    else:
        stamp(6)
        xred(128)
    for i in range(4): a(f"v_add_f32 v{128+i}, v{128+i}, v{40+i}")
    for i in range(4): rbf(128 + i)
    for i in range(4): a(f"v_add_f32 v{128+i}, v{128+i}, v{144+i}")
    a("v_cvt_pk_bf16_f32 v20, v128, v129\nv_cvt_pk_bf16_f32 v21, v130, v131")
    a("s_mov_b64 exec, 0xff\nbuffer_store_dwordx2 v[20:21], v38, s[68:71], s75 offen\ns_mov_b64 exec, 1")
    a("s_cmp_lg_u32 s2, 0\ns_cbranch_scc1 L_noep\nbuffer_store_dword v13, v8, s[56:59], 0 offen" + ("" if epl else " sc1") + "\nL_noep:")
    if spin:
        if spinwg >= 0: a(f"s_cmp_lg_u32 s2, {spinwg}\ns_cbranch_scc1 L_exit")
        a(f"L_spin:\ns_memrealtime s[64:65]\ns_waitcnt lgkmcnt(0)\ns_sub_u32 s64, s64, s66\ns_cmp_lt_u32 s64, {spin}\ns_cbranch_scc1 L_spin")
    if diag:
        a("s_waitcnt vmcnt(0)")
        stamp(7)
        a("s_mov_b32 s31, 64")
        a("L_stamps:")
        a("s_waitcnt lgkmcnt(0)\ns_mov_b64 exec, 1")
        if dbgout:
            a("v_mov_b32 v8, 0\ns_cmp_lg_u32 s31, 0\ns_cbranch_scc1 L_dbgc")
            for n, k in enumerate((0, 2, 3, 4, 5)):
                a(f"v_mov_b32 v12, s{84+2*k}\nv_not_b32 v13, v12\nglobal_atomic_umax v8, v12, s[24:25] offset:{8*n}\nglobal_atomic_umax v8, v13, s[24:25] offset:{8*n+4}")
            a("s_endpgm\nL_dbgc:")
            for n, k in enumerate((2, 6, 7)):
                a(f"v_mov_b32 v12, s{84+2*k}\nv_not_b32 v13, v12\nglobal_atomic_umax v8, v12, s[24:25] offset:{40+8*n}\nglobal_atomic_umax v8, v13, s[24:25] offset:{44+8*n}")
        else:
            a("s_add_u32 s26, s26, 0x8000000\ns_addc_u32 s27, s27, 0\ns_lshl_b32 s74, s2, 7\ns_add_u32 s74, s74, s31\nv_mov_b32 v8, s74")
            for q in range(4):
                for e in range(4): a(f"v_mov_b32 v{12+e}, s{84+4*q+e}")
                a(f"global_store_dwordx4 v8, v[12:15], s[26:27] offset:{16*q}")
                a("s_nop 2")
    a("L_exit:\ns_endpgm")

    out = HDR
    out += "; Override launch geometry by editing the next line (default: block=256,\n"
    out += f"; @launch grid=(256,1,1) block=(320,1,1) lds={LDS_BYTES}\n"
    out += DOC
    out += f'.amdgcn_target "amdgcn-amd-amdhsa--gfx950"\n.text\n.globl {NAME}\n.p2align 8\n.type {NAME},@function\n{NAME}:\n'
    out += a.text()
    if E2: out += f"; padding: the code prefetch at entry reads up to 41 KiB past the entry point\n.fill (41984 - (. - {NAME})) / 4, 4, 0xbf800000\n"
    out += f""".section .rodata,"a"
.p2align 6
.amdhsa_kernel {NAME}
  .amdhsa_next_free_vgpr 256
  .amdhsa_next_free_sgpr 102
  .amdhsa_accum_offset 256
  .amdhsa_group_segment_fixed_size 0
  .amdhsa_kernarg_size 96
  .amdhsa_user_sgpr_count 2
  .amdhsa_user_sgpr_kernarg_segment_ptr 1
  .amdhsa_system_sgpr_workgroup_id_x 1
  .amdhsa_float_denorm_mode_32 3
.end_amdhsa_kernel
"""
    return out, LDS_BYTES

if __name__ == "__main__":
    kw = {}
    for x in sys.argv[2:]:
        k, v = x.split("=")
        try: v = int(v)
        except ValueError: pass
        kw[k] = v
    s, lds = gen(**kw)
    open(sys.argv[1], "w").write(s)
    print("lds", lds)
```

```python
import sys
from asmlib import Asm

NAME = "parallel_sum__mha_block_cached__glu_gated_geglu__decode_kernel"
HDR = open("parallel_sum__mha_block_cached__glu_gated_geglu__decode.s.ref").read().split("; Override launch")[0]

H0Q, H0GU, H1, H2A, H2F = 0x1000, 0x50000, 0x90000, 0xD0000, 0xF0000
LOFF = 0x40000
PHI, REF = 0x1D0000, 0x1F0000
WS_BYTES = 0x200000
SC = 0
RED_Q, RED_G, RED_U, RED_A, RED_O, RED_L = [32768 + 2048 * i for i in range(6)]
QL = 32768 + 12288
HL = QL + 256
MX = HL + 1024
LS = MX + 16
FL = LS + 16
FG = FL + 16
QF = FG + 16
RF = QF + 16
PH = RF + 16
LDS_BYTES = PH + 32

DOC = '; ---------------------------------------------------------------------------------------------------------------------\n; ---------------------------------------------------------------------------------------------------------------------\n'
LOG2E = 0x3fb8aa3b
SCALE = 0x3db504f3

def gen(diag=False, RB=0, RD=0, E2=0, FB=0, EP=0, FAST=0, epl=1, B0L=0, GE=0, GA=0, TL=0, NREP=8, RP=0, NREF=64, GP2=0, skipw='', HP=0, gap=2, T4=0, L4=2, LOC=1, h1l='sc1+nt', PD=1, QTO=8, fakex=0, LP=0, LN=16, lsl=0, gul='sc1', ql='sc1', exs='sc1', exl='sc1', WDW=0, CP=0, NB2F=1, GF=6, touch=0, DS0=0, KE=0, JD=0, MS=0, PT=0, PP=0, FW=0, KB=0, NBG=0, DB=12, MAP='rrww01234Bjjj', XK=0, IL=0, WI=1, qdelay=0, perm=0, qfl='sc1', tfl='sc1', WDF=3, warm=0, gufl='sc1+nt', nogu=0, noq=0, gudelay=0, spin=0, spinwg=-1, G0=4, GP=8, GG=2, GR=4, slope=1, noex=0, NWT=8, CSL=8, GEX=60, fixed=0, DL='5', TH='', T0=200, TAU=220, DT=5, early=4, dbgout=0, ser=0, maskpoll=1, sl1=1, sl2=1, D=8, DS=8, D2=0, NB2=0, pol_w="nt", pol_gu="nt", pol_kv="nt"):
    a = Asm()
    def stamp(i, mode=1):
        if diag == mode or (diag and i in (0, 7)) or (diag and incomm[0]):
            a(f"s_memrealtime s[{84+2*i}:{85+2*i}]")
    incomm = [False]
    def series(k):
        if not ser: return
        if k == 0: a("s_memrealtime s[100:101]")
        if k == 5: a("s_waitcnt lgkmcnt(0)\ns_mov_b32 m0, s71\ns_nop 0\nv_writelane_b32 v255, s100, m0\ns_add_u32 s71, s71, 1")
    def srd(n, lo, hi, size):
        a(f"s_mov_b32 s{n}, {lo}\ns_mov_b32 s{n+1}, {hi}\ns_mov_b32 s{n+2}, {size}\ns_mov_b32 s{n+3}, 0x20000")
    def wave_reduce(v, t, op):
        for r in (8, 4, 2, 1):
            a(f"{op}_dpp v{v}, v{v}, v{v} row_ror:{r} row_mask:0xf bank_mask:0xf")
        a(f"v_mov_b32 v{t}, v{v}\nv_permlane16_swap_b32 v{v}, v{t}\n{op} v{v}, v{v}, v{t}")
        a(f"v_mov_b32 v{t}, v{v}\nv_permlane32_swap_b32 v{v}, v{t}\n{op} v{v}, v{v}, v{t}")
    def rbf(v):
        a(f"v_cvt_pk_bf16_f32 v{v}, v{v}, v{v}\nv_and_b32 v{v}, 0xffff0000, v{v}")
    def buildA(buf, P, c):
        base = 24 + 4 * buf
        for t in range(4):
            a(f"v_and_b32_dpp v{base+t}, v{P}, v{120+t} row_newbcast:{c} row_mask:0xf bank_mask:0xf")
    def mfma(acc, buf, breg, first):
        base = 24 + 4 * buf
        a(f"v_mfma_f32_16x16x32_bf16 v[{acc}:{acc+3}], v[{base}:{base+3}], v[{breg}:{breg+3}], " + ("0" if first else f"v[{acc}:{acc+3}]"))
    def writeD(acc, off):
        a(f"s_mov_b64 exec, s[78:79]\nds_write_b128 v225, v[{acc}:{acc+3}] offset:{off}\ns_mov_b64 exec, -1")
    def poll(label, loads, tagregs, acc=250, t1=251, t2=252, sleep=1):
        a.fence()
        a(f"s_mov_b32 s77, 0x100000")
        a(f"{label}:")
        for l in loads: a(l)
        a("s_waitcnt vmcnt(0)")
        a(f"v_xor_b32 v{acc}, s30, v{tagregs[0]}")
        rest = tagregs[1:]
        while len(rest) >= 2:
            a(f"v_xor_b32 v{t1}, s30, v{rest[0]}\nv_xor_b32 v{t2}, s30, v{rest[1]}\nv_or3_b32 v{acc}, v{acc}, v{t1}, v{t2}")
            rest = rest[2:]
        if rest:
            a(f"v_xor_b32 v{t1}, s30, v{rest[0]}\nv_or_b32 v{acc}, v{acc}, v{t1}")
        a(f"v_cmp_ne_u32 vcc, 0, v{acc}")
        a(f"s_cmp_eq_u64 vcc, 0\ns_cbranch_scc1 {label}_ok")
        if maskpoll: a("s_mov_b64 exec, vcc")
        a(f"s_sub_u32 s77, s77, 1\ns_cmp_eq_u32 s77, 0\ns_cbranch_scc1 {label}_ok\ns_sleep {sleep}\ns_branch {label}")
        a(f"{label}_ok:")
        a("s_mov_b64 exec, -1")
    def pollc(label, loads, regs, full=(), acc=250, sleep=1, tries=0x100000, fail=None):
        a.fence()
        a(f"s_mov_b32 s77, {tries}\ns_and_b32 s74, s30, 0xff")
        a(f"{label}:")
        for l in loads: a(l)
        a("s_waitcnt vmcnt(0)")
        for r in regs: a(f"v_xor_b32 v{r}, s74, v{r}")
        a(f"v_or_b32 v{acc}, v{regs[0]}, v{regs[1]}")
        assert len(regs) % 2 == 0
        for i in range(2, len(regs), 2): a(f"v_or3_b32 v{acc}, v{acc}, v{regs[i]}, v{regs[i+1]}")
        a(f"v_and_b32 v{acc}, 0xff, v{acc}")
        for r in full: a(f"v_bitop3_b32 v{acc}, v{r}, s30, v{acc} bitop3:0xbe")
        a(f"v_cmp_ne_u32 vcc, 0, v{acc}")
        a(f"s_cmp_eq_u64 vcc, 0\ns_cbranch_scc1 {label}_ok")
        a(f"s_sub_u32 s77, s77, 1\ns_cmp_eq_u32 s77, 0\ns_cbranch_scc1 {fail or label + '_ok'}")
        if sleep: a(f"s_sleep {sleep}")
        a(f"s_branch {label}")
        a(f"{label}_ok:")
        a("s_mov_b64 exec, -1")
    def pollp(label, mk, setA, setB, nlow, acc=250, gap=2):
        def check(regs):
            a(f"v_xor_b32 v{acc}, s30, v{regs[0]}")
            for r in regs[1:nlow]: a(f"v_bitop3_b32 v{acc}, v{r}, s30, v{acc} bitop3:0xbe")
            a(f"v_and_b32 v{acc}, 0xff, v{acc}")
            for r in regs[nlow:]: a(f"v_bitop3_b32 v{acc}, v{r}, s30, v{acc} bitop3:0xbe")
            a(f"v_cmp_ne_u32 vcc, 0, v{acc}\ns_cmp_eq_u64 vcc, 0")
        n = len(mk(setA))
        a.fence()
        a("s_mov_b32 s77, 0x100000")
        for l in mk(setA): a(l)
        a(f"s_sleep {gap}")
        a(f"{label}:")
        for l in mk(setB): a(l)
        a(f"s_waitcnt vmcnt({n})")
        check(setA)
        a(f"s_cbranch_scc1 {label}_ok")
        for l in mk(setA): a(l)
        a(f"s_waitcnt vmcnt({n})")
        check(setB)
        a(f"s_cbranch_scc1 {label}_b")
        a(f"s_sub_u32 s77, s77, 1\ns_cmp_lg_u32 s77, 0\ns_cbranch_scc1 {label}")
        a(f"{label}_b:")
        return
    def masks():
        a("v_and_b32 v12, 1, v3\nv_lshrrev_b32 v13, 1, v3\nv_cmp_eq_u32 vcc, 1, v12\nv_mov_b32 v14, 0xffff\nv_mov_b32 v15, 0xffff0000\nv_cndmask_b32 v14, v14, v15, vcc")
        for t in range(4):
            a(f"v_cmp_eq_u32 vcc, {t}, v13\nv_cndmask_b32 v{120+t}, 0, v14, vcc")
    def poll_rows(label, loads, sbase, sleep=1, tagreg="s30", mask=None, hook=None):
        a.fence()
        n = len(loads)
        a(f"s_mov_b32 s77, 0x100000\ns_mov_b32 s76, {(1 << n) - 1}")
        a(f"{label}:")
        for i, (l, _, _) in enumerate(loads):
            a(f"s_bitcmp1_b32 s76, {i}\ns_cbranch_scc0 {label}_s{i}")
            a(l)
            a(f"{label}_s{i}:")
        a("s_waitcnt vmcnt(0)")
        for i, (_, ta, tb) in enumerate(loads):
            a(f"v_xor_b32 v250, {tagreg}, v{ta}\nv_bitop3_b32 v250, v{tb}, {tagreg}, v250 bitop3:0xbe")
            if mask: a(f"v_and_b32 v250, {mask}, v250")
            a(f"v_cmp_ne_u32 s[{sbase+2*i}:{sbase+2*i+1}], 0, v250")
        a("s_mov_b32 s76, 0")
        for i in range(n):
            a(f"s_cmp_lg_u64 s[{sbase+2*i}:{sbase+2*i+1}], 0\ns_cselect_b32 s74, {1 << i}, 0\ns_or_b32 s76, s76, s74")
        a(f"s_cmp_eq_u32 s76, 0\ns_cbranch_scc1 {label}_ok")
        if hook:
            a(f"s_cmp_lg_u32 s77, {0x100000 - QTO}\ns_cbranch_scc1 {label}_nh\n{hook}\n{label}_nh:")
        a(f"s_sub_u32 s77, s77, 1\ns_cmp_eq_u32 s77, 0\ns_cbranch_scc1 {label}_ok\ns_sleep {sleep}\ns_branch {label}")
        a(f"{label}_ok:")

    def common():
        if FAST: a("s_lshl3_add_u32 s2, s28, s29")
        a("s_load_dword s30, s[26:27], 0")
        a("s_mov_b32 s78, -1\ns_mov_b32 s79, 0")
        srd(52, "s4", "s5", 2048)
        srd(56, "s26", "s27", WS_BYTES)
    if FAST:
        assert perm == 1
        a("s_cmpk_ge_u32 s2, 0x100\ns_cbranch_scc1 L_exit")
        stamp(0)
        if fixed or spin: a("s_memrealtime s[66:67]")
        a("s_load_dwordx16 s[4:19], s[0:1], 0\ns_load_dwordx8 s[20:27], s[0:1], 64")
        if EP:
            if EP > 1: a(f"s_cmp_ge_u32 s2, {EP}\ns_cbranch_scc1 L_noep0")
            if E2: a(f"s_getpc_b64 s[32:33]\nv_lshlrev_b32 v5, 7, v0\nglobal_load_dword v253, v5, s[32:33]\nglobal_load_dword v254, v5, s[32:33] offset:64")
            else: a(f"s_getpc_b64 s[32:33]\nL_pc1:\nv_lshlrev_b32 v5, 7, v0\nv_min_u32 v5, L_exit-L_pc1, v5\nglobal_load_dword v253, v5, s[32:33]")
            if EP > 1: a("L_noep0:")
        a("v_lshrrev_b32 v5, 6, v0\nv_and_b32 v1, 63, v0\nv_readfirstlane_b32 s3, v5")
        a("v_lshrrev_b32 v2, 4, v1\nv_and_b32 v3, 15, v1")
        a("s_and_b32 s28, s2, 7\ns_lshr_b32 s29, s2, 6\ns_lshl2_add_u32 s28, s28, s29\ns_lshr_b32 s29, s2, 3\ns_and_b32 s29, s29, 7")
        a("v_lshlrev_b32 v6, 4, v1\nv_lshlrev_b32 v7, 4, v3")
        a("s_cmp_eq_u32 s3, 4\ns_cbranch_scc1 L_comm0")
        a("s_lshl2_add_u32 s74, s29, s3\ns_lshl_b32 s75, s74, 10\ns_add_u32 s75, s75, s28\ns_lshl_b32 s75, s75, 8")
        a("v_lshl_add_u32 v10, v2, 13, v7\nv_add_u32 v10, s75, v10\ns_movk_i32 s76, 0x8000")
        a("s_waitcnt lgkmcnt(0)")
        stamp(1, 2); stamp(1, 4)
        a("global_load_dwordx4 v[96:99], v6, s[4:5]\nglobal_load_dwordx4 v[100:103], v6, s[4:5] offset:1024")
        for i in range(8):
            a(f"global_load_dwordx4 v[{128+4*i}:{131+4*i}], v10, s[10:11] {pol_w}")
            if i < 7: a("v_subrev_u32 v10, s76, v10")
        stamp(2, 4)
        common()
        a("s_lshl_b32 s74, s74, 5")
        a("v_and_b32 v8, 7, v3\nv_lshl_add_u32 v8, v8, 2, v2\nv_lshlrev_b32 v8, 1, v8\ns_lshl_b32 s75, s74, 1")
        a("buffer_load_ushort v9, v8, s[52:55], s75 offen")
    else:
        a("s_cmp_ge_u32 s2, 256\ns_cbranch_scc1 L_exit")
        stamp(0)
        if fixed or spin: a("s_memrealtime s[66:67]")
        a("s_load_dwordx16 s[4:19], s[0:1], 0\ns_load_dwordx8 s[20:27], s[0:1], 64")
        a("v_lshrrev_b32 v5, 6, v0\nv_and_b32 v1, 63, v0\nv_readfirstlane_b32 s3, v5")
        a("v_lshrrev_b32 v2, 4, v1\nv_and_b32 v3, 15, v1")
        if perm == 1: a("s_and_b32 s28, s2, 7\ns_lshl_b32 s28, s28, 5\ns_lshr_b32 s2, s2, 3\ns_add_u32 s2, s2, s28")
        a("s_lshr_b32 s28, s2, 3\ns_and_b32 s29, s2, 7")
        a("s_mov_b32 s78, -1\ns_mov_b32 s79, 0")
        a("v_lshlrev_b32 v6, 4, v1")
        a("v_lshlrev_b32 v7, 4, v3")
        a("s_lshl_b32 s74, s29, 2\ns_add_u32 s74, s74, s3\ns_lshl_b32 s74, s74, 5")
        a("s_waitcnt lgkmcnt(0)")
        stamp(1, 2); stamp(1, 4)
        a("s_load_dword s30, s[26:27], 0")
        srd(52, "s4", "s5", 2048)
        srd(56, "s26", "s27", WS_BYTES)
        a("s_cmp_eq_u32 s3, 4\ns_cbranch_scc1 L_comm")

        a("buffer_load_dwordx4 v[96:99], v6, s[52:55], 0 offen\nbuffer_load_dwordx4 v[100:103], v6, s[52:55], 0 offen offset:1024")
        a("v_and_b32 v8, 7, v3\nv_lshl_add_u32 v8, v8, 2, v2\nv_lshlrev_b32 v8, 1, v8\ns_lshl_b32 s75, s74, 1")
        a("buffer_load_ushort v9, v8, s[52:55], s75 offen")
        stamp(2, 4)
        srd(40, "s10", "s11", 0 if "q" in skipw else 1024 * 8192)
        a("v_lshl_add_u32 v10, v2, 13, v7")
        a("s_lshl_b32 s75, s74, 13\ns_lshl_b32 s76, s28, 8\ns_add_u32 s75, s75, s76")
        for i in range(8):
            a(f"buffer_load_dwordx4 v[{128+4*i}:{131+4*i}], v10, s[40:43], s75 offen {pol_w}")
            if i < 7: a("s_add_u32 s75, s75, 32768")
    stamp(3, 4)
    srd(44, "s16", "s17", 0 if "g" in skipw else 1024 * 7168)
    srd(48, "s18", "s19", 0 if "g" in skipw else 1024 * 7168)
    a("v_mul_u32_u24 v11, 7168, v2\nv_add_u32 v11, v11, v7")
    a("v_cmp_gt_u32 vcc, 14, v3\nv_mov_b32 v12, 0x80000000\nv_cndmask_b32 v11, v12, v11, vcc")
    a("s_mul_i32 s76, s74, 7168\ns_mul_i32 s31, s28, 224\ns_add_u32 s76, s76, s31\ns_mov_b32 s75, s76")
    def gload(i):
        a(f"buffer_load_dwordx4 v[{160+4*i}:{163+4*i}], v11, s[44:47], s75 offen {pol_gu}\ns_add_u32 s75, s75, {4*7168}")
    def uload(i):
        a(f"buffer_load_dwordx4 v[{192+4*i}:{195+4*i}], v11, s[48:51], s76 offen {pol_gu}\ns_add_u32 s76, s76, {4*7168}")
    for i in range(GE): gload(i)
    if not B0L: a("s_barrier")
    stamp(4, 4)
    pos = {"r": [], "w": [], "n": [0] * 5, "j": [], "b": []}
    bit = 8
    for ch in str(MAP).replace("B", "bbbb"):
        if ch.isdigit(): pos["n"][int(ch)] = bit
        else: pos[ch].append(bit)
        bit += 1
    assert bit == 24 and len(pos["w"]) == 2 and len(pos["r"]) == 2 and len(pos["j"]) == 3 and len(set(pos["n"])) == 5 and len(pos["b"]) == 4
    maskB = sum(1 << b for b in pos["b"])
    contig = pos["b"][3] - pos["b"][0] == 3
    def spread(sreg, bits, dst):
        a(f"s_mov_b32 {dst}, 0")
        for i, b in enumerate(bits):
            a(f"s_bfe_u32 s38, {sreg}, {(1 << 16) | i}\ns_lshl_b32 s38, s38, {b}\ns_or_b32 {dst}, {dst}, s38")
    spread("s29", pos["j"], "s39")
    a("s_lshl_b32 s31, s28, 24\ns_add_u32 s31, s31, s39\ns_sub_u32 s34, 0x1000000, s39")
    a("s_add_u32 s32, s6, s31\ns_addc_u32 s33, s7, 0\ns_mov_b32 s35, 0x20000")
    a("s_add_u32 s36, s8, s31\ns_addc_u32 s37, s9, 0")
    spread("s3", pos["w"], "s39")
    a(f"v_and_b32 v4, 1, v2\nv_lshlrev_b32 v4, {pos['r'][0]}, v4\nv_lshrrev_b32 v5, 1, v2\nv_lshl_add_u32 v4, v5, {pos['r'][1]}, v4\nv_add3_u32 v4, v4, s39, v7")
    if XK == 1: a("s_and_b32 s60, s2, 31")
    if XK == 2: a("s_mov_b32 s60, s28")
    if XK == 3: a("s_lshl_b32 s60, s29, 2")
    if XK == 4: a("s_lshl_b32 s60, s29, 2\ns_xor_b32 s60, s60, s28")
    if XK == 5: a("s_mul_i32 s60, s2, 0x9e3779b1\ns_lshr_b32 s60, s60, 27")
    if XK == 6: a("s_lshl_b32 s60, s28, 2\ns_and_b32 s60, s60, 28")
    if XK == 7: a("s_and_b32 s60, s28, 28")
    if XK == 8: a("s_and_b32 s60, s28, 3")
    if XK == 9: a("s_lshr_b32 s60, s28, 3")
    if XK == 10: a("s_mul_i32 s60, s28, 0x9e3779b1\ns_lshr_b32 s60, s60, 27")
    if XK == 11: a("s_mov_b32 s60, s3")
    if XK == 12: a("s_and_b32 s60, s29, 1\ns_lshl_b32 s60, s60, 1\ns_xor_b32 s60, s60, s3")
    if XK:
        spread("s60", pos["n"], "s61")
    fn = [sum(((n >> i) & 1) << b for i, b in enumerate(pos["n"])) for n in range(32)] + [1 << pos["b"][0]]
    a("s_mov_b32 s72, 0")
    if XK: a("s_mov_b32 s60, s61")
    if ser: a("s_mov_b32 s71, 0\nv_mov_b32 v255, 0")
    def kslot(n):
        n %= 32
        return 32 + 4 * n if n < 16 else 128 + 4 * (n - 16)
    slot_of = {kslot(n): n for n in range(32)}
    def issueS(reg):
        n = slot_of[reg]
        inc = (fn[n + 1] - fn[n]) & 0xffffffff
        if n == 31 and not contig:
            assert not XK
            a(f"buffer_load_dwordx4 v[{reg}:{reg+3}], v4, s[32:35], s72 offen {pol_kv}\ns_or_b32 s72, s72, {(~maskB) & 0xffffffff}\ns_add_u32 s72, s72, 1\ns_and_b32 s72, s72, {maskB}")
            return
        if XK:
            a(f"buffer_load_dwordx4 v[{reg}:{reg+3}], v4, s[32:35], s60 offen {pol_kv}\ns_add_u32 s72, s72, {inc}\ns_xor_b32 s60, s72, s61")
        else:
            a(f"buffer_load_dwordx4 v[{reg}:{reg+3}], v4, s[32:35], s72 offen {pol_kv}\ns_add_u32 s72, s72, {inc}")
    for n in range(KE): issueS(kslot(n))
    masks()
    a("v_cmp_eq_u32 s[82:83], 1, v12\nv_and_b32 v13, 1, v13\nv_cmp_eq_u32 s[80:81], 1, v13")
    a("s_lshl_b32 s31, s3, 9\nv_lshlrev_b32 v225, 5, v3\nv_lshl_add_u32 v225, v2, 4, v225\nv_add_u32 v225, s31, v225")
    a("s_lshl_b32 s31, s3, 13\nv_lshlrev_b32 v224, 2, v1\nv_add_u32 v224, s31, v224")
    stamp(5, 4)
    if B0L == 1: a("s_barrier")
    a(f"s_waitcnt vmcnt({8 + GE + KE + (1 if FAST else 0)})")
    stamp(2, 2); stamp(6, 4)
    assert GE <= early
    for i in range(GE, early): gload(i)
    for k in range(8):
        a(f"v_lshlrev_b32 v{104+2*k}, 16, v{96+k}\nv_and_b32 v{105+2*k}, 0xffff0000, v{96+k}")
    a("v_add_f32 v12, v104, v105\nv_add_f32 v13, v106, v107\nv_add_f32 v14, v108, v109\nv_add_f32 v15, v110, v111")
    a("v_add_f32 v16, v112, v113\nv_add_f32 v17, v114, v115\nv_add_f32 v18, v116, v117\nv_add_f32 v19, v118, v119")
    a("v_add_f32 v12, v12, v13\nv_add_f32 v14, v14, v15\nv_add_f32 v16, v16, v17\nv_add_f32 v18, v18, v19")
    a("v_add_f32 v12, v12, v14\nv_add_f32 v16, v16, v18\nv_add_f32 v12, v12, v16")
    wave_reduce(12, 13, "v_add_f32")
    a("v_mul_f32 v12, 0x3a800000, v12")
    for k in range(16):
        a(f"v_sub_f32 v{104+k}, v{104+k}, v12")
    a("v_mul_f32 v14, v104, v104\nv_mul_f32 v15, v105, v105\nv_mul_f32 v16, v106, v106\nv_mul_f32 v17, v107, v107")
    for k in range(4, 16):
        a(f"v_fmac_f32 v{14+k%4}, v{104+k}, v{104+k}")
    a("v_add_f32 v14, v14, v15\nv_add_f32 v16, v16, v17\nv_add_f32 v14, v14, v16")
    wave_reduce(14, 13, "v_add_f32")
    a("v_mul_f32 v14, 0x3a800000, v14")
    rbf(14); rbf(12)
    a("v_add_f32 v14, 0x3727c5ac, v14")
    rbf(14)
    a("v_sqrt_f32 v14, v14")
    rbf(14)
    a("v_rcp_f32 v14, v14")
    def ownx():
        a("v_lshlrev_b32 v9, 16, v9\nv_sub_f32 v9, v9, v12")
        rbf(9)
        a("v_mul_f32 v9, v9, v14\nv_cvt_pk_bf16_f32 v124, v9, v9")
    if not FAST: ownx()
    stamp(3, 2)
    if B0L == 2: a("s_barrier")
    def stage1(acc, wbase):
        buildA(0, 124, 0)
        for i in range(8):
            if i < 7: buildA((i + 1) & 1, 124, i + 1)
            mfma(acc, i & 1, wbase + 4 * i, i == 0)
    a(f"s_waitcnt vmcnt({early + KE})")
    stamp(4, 2)
    for i in range(early, 8): gload(i)
    if FAST: ownx()
    stage1(12, 128)
    writeD(12, RED_Q)
    a(f"s_lshl_b32 s31, s3, 2\nv_mov_b32 v16, s31\nv_mov_b32 v17, 1\nds_write_b32 v16, v17 offset:{FL}")
    stamp(1); stamp(5, 2)
    WO0 = 192
    def wsetup():
        srd(40, "s12", "s13", 0 if "o" in skipw else 4096 * 2048)
        a("v_lshl_add_u32 v240, v2, 14, v7")
        a("s_lshl_b32 s31, s28, 2\ns_add_u32 s31, s31, s3\ns_lshl_b32 s75, s31, 16\ns_lshl_b32 s31, s29, 8\ns_add_u32 s75, s75, s31")
        a("v_and_b32 v232, 7, v3\nv_lshrrev_b32 v233, 3, v3\ns_lshl_b32 s31, s28, 13\ns_add_u32 s31, s31, %d" % H1)
        a("v_lshlrev_b32 v232, 10, v232\nv_add_u32 v232, s31, v232")
        a("v_lshlrev_b32 v233, 4, v233\nv_lshl_add_u32 v233, v2, 5, v233\ns_lshl_b32 s31, s3, 7\nv_add3_u32 v233, v233, s31, v232")
        a("s_add_u32 s30, s30, 1")
    wl_all = []
    for t in range(8):
        wl_all.append(f"buffer_load_dwordx4 v[{WO0+4*t}:{WO0+3+4*t}], v240, s[40:43], s75 offen {pol_w}\ns_add_u32 s75, s75, 2048")
    assert DS <= 8 and KE + DS - 1 <= 15
    stamp(1, 3)
    for i in range(8):
        a(f"s_waitcnt vmcnt({DS-1})")
        uload(i)
    stamp(2, 3)
    for n in range(KE, 32):
        a(f"s_waitcnt vmcnt({(DS0 if (DS0 and n >= 16) else DS)-1})")
        issueS(kslot(n))
        if n % 8 == 7: stamp(3 + n // 8, 3)
        if n == KE:
            stage1(16, 160)
        if n == KE + DS - 1:
            stage1(20, 192)
            writeD(16, RED_G)
            writeD(20, RED_U)
            if NB2F: a(f"s_lshl_b32 s31, s3, 2\nv_mov_b32 v16, s31\nv_mov_b32 v17, 1\nds_write_b32 v16, v17 offset:{FG}")
        if n == 15:
            a("s_waitcnt lgkmcnt(0)")
            wsetup()
            for x in wl_all[:8 - NWT]:
                a(f"s_waitcnt vmcnt({DS-1})"); a(x)
    a("v_mov_b32 v126, 0xff800000\nv_mov_b32 v127, 0\ns_mov_b32 s76, %d" % SCALE)
    stamp(6, 2)
    if NB2F:
        a("v_mov_b32 v247, 0")
        a.fence()
        a(f"L_qw:\nds_read_b32 v16, v247 offset:{QF}\nds_read_b128 v[8:11], v7 offset:{QL}\ns_waitcnt lgkmcnt(0)\nv_readfirstlane_b32 s31, v16")
        a("s_cmp_eq_u32 s31, 1\ns_cbranch_scc1 L_qw_ok\ns_sleep 1\ns_branch L_qw\nL_qw_ok:")
        stamp(2)
    else:
        a("s_waitcnt lgkmcnt(0)\ns_barrier")
        stamp(2)
        a(f"ds_read_b128 v[8:11], v7 offset:{QL}\ns_waitcnt lgkmcnt(0)")
    levels = [float(x.replace("h", ".5").replace("q", ".25").replace("t", ".75")) for x in str(DL).split("-")]
    def wv(d, k):
        f = d - int(d)
        up = (f == 0.5 and k % 2 == 1) or (f == 0.25 and k % 4 == 3) or (f == 0.75 and k % 4 != 0)
        return int(d) - 1 + (1 if up else 0)
    ths = [int(x) for x in str(TH).split("/")] if TH != "" else []
    assert len(ths) == len(levels) - 1
    a(f"s_mov_b32 s70, {len([t for t in ths if t < 0])}\ns_mov_b32 s69, 0\ns_mov_b32 s67, 0")
    if fixed: a(f"s_add_u32 s66, s66, {T0}")
    a("s_lshl_b32 s31, s3, 3\nv_mov_b32 v246, s31\nv_mov_b32 v247, 0")
    def control(k):
        if k == 7: a(f"s_memrealtime s[64:65]\nds_read_b64 v[242:243], v247 offset:{RF}")
        if k == 12:
            a("s_waitcnt lgkmcnt(0)\nv_readfirstlane_b32 s62, v242\nv_readfirstlane_b32 s63, v243")
            a("s_sub_u32 s68, s64, s69\ns_add_u32 s69, s69, %d\ns_add_u32 s67, s67, 1" % TAU)
            a(f"v_mov_b32 v244, s68\nv_mov_b32 v245, s67\nds_write_b64 v246, v[244:245] offset:{PH}")
            if fixed: a("s_sub_u32 s68, s68, s66")
            else: a("s_sub_u32 s68, s68, s62\ns_and_b32 s68, s68, s63")
            a("s_mov_b32 s70, 0")
            for i, t in enumerate(ths):
                a(f"s_cmp_gt_i32 s68, {t}\ns_addc_u32 s70, s70, 0")
            if T4: a(f"s_cmp_gt_i32 s68, {T4}\ns_cselect_b32 s70, {L4}, s70")
    uid = [0]
    def variants(fn):
        uid[0] += 1; u = uid[0]
        a.fence()
        for i in range(1, len(levels)):
            a(f"s_cmp_eq_u32 s70, {i}\ns_cbranch_scc1 L_v{u}_{i}")
        for i, d in enumerate(levels):
            if i: a(f"L_v{u}_{i}:")
            fn(d)
            a.fence()
            if i < len(levels) - 1: a(f"s_branch L_v{u}_end")
        a(f"L_v{u}_end:")

    def kgroup(half, d):
        for k in range(16):
            series(k); control(k)
            r = kslot(16 * half + k); acc = 12 + k % 4
            a(f"v_dot2_f32_bf16 v{acc}, v{r}, v8, 0\nv_dot2_f32_bf16 v{acc}, v{r+1}, v9, v{acc}\nv_dot2_f32_bf16 v{acc}, v{r+2}, v10, v{acc}\nv_dot2_f32_bf16 v{acc}, v{r+3}, v11, v{acc}")
            a(f"s_waitcnt vmcnt({wv(d, k)})")
            issueS(r)
            if k % 4 == 3:
                C = 20 + k // 4
                a("v_add_f32_dpp v16, v12, v12 row_ror:8 row_mask:0xf bank_mask:0x3")
                a("v_add_f32_dpp v17, v14, v14 row_ror:8 row_mask:0xf bank_mask:0x3")
                a("v_add_f32_dpp v16, v13, v13 row_ror:8 row_mask:0xf bank_mask:0xc")
                a("v_add_f32_dpp v17, v15, v15 row_ror:8 row_mask:0xf bank_mask:0xc")
                a(f"v_add_f32_dpp v{C}, v16, v16 row_shl:4 row_mask:0xf bank_mask:0x5")
                a(f"v_add_f32_dpp v{C}, v17, v17 row_shr:4 row_mask:0xf bank_mask:0xa")
        for C in range(20, 24):
            a(f"v_add_f32_dpp v{C}, v{C}, v{C} quad_perm:[2,3,0,1] row_mask:0xf bank_mask:0xf")
        a("v_cndmask_b32 v20, v20, v21, s[80:81]\nv_cndmask_b32 v22, v22, v23, s[80:81]")
        a("v_add_f32_dpp v20, v20, v20 quad_perm:[1,0,3,2] row_mask:0xf bank_mask:0xf")
        a("v_add_f32_dpp v22, v22, v22 quad_perm:[1,0,3,2] row_mask:0xf bank_mask:0xf")
        a("v_cndmask_b32 v18, v20, v22, s[82:83]")
        rbf(18)
        a("v_mul_f32 v18, s76, v18")
        rbf(18)
        a("v_max_f32 v126, v126, v18\nds_write_b32 v224, v18\nv_add_u32 v224, 256, v224")
    a("s_mov_b32 s73, 16")
    a("L_kloop:")
    a("s_cmp_lg_u32 s73, 1\ns_cbranch_scc1 L_knosw\ns_mov_b32 s32, s36\ns_mov_b32 s33, s37\ns_mov_b32 s72, 0\n" + ("s_mov_b32 s60, s61\n" if XK else "") + "L_knosw:")
    variants(lambda d: kgroup(0, d))
    if KB: a(f"s_cmp_eq_u32 s73, 1\ns_cselect_b32 s70, {len(levels)-1}, s70")
    variants(lambda d: kgroup(1, d))
    a("s_sub_u32 s73, s73, 1\ns_cmp_lg_u32 s73, 0\ns_cbranch_scc1 L_kloop")
    wave_reduce(126, 13, "v_max_f32")
    a(f"s_lshl_b32 s31, s3, 2\nv_mov_b32 v13, s31\nds_write_b32 v13, v126 offset:{MX}")
    a("v_subrev_u32 v224, 8192, v224")
    stamp(3)
    a("ds_read_b32 v125, v224\nv_mov_b32 v226, v126")
    a("s_mov_b32 s76, %d" % LOG2E)
    a("s_waitcnt lgkmcnt(0)")
    def mkP():
        a("v_sub_f32 v125, v125, v226\nv_mul_f32 v125, s76, v125\nv_exp_f32 v125, v125\nv_add_f32 v127, v127, v125\nv_cvt_pk_bf16_f32 v125, v125, v125")
    mkP()
    a("v_mov_b32 v124, v125\nv_mov_b32 v12, 0\nv_mov_b32 v13, 0\nv_mov_b32 v14, 0\nv_mov_b32 v15, 0")
    lam = [4 * (((c >> 1) & 1) + 2 * (c & 1)) + [0, 2, 1, 3][c >> 2] for c in range(16)]
    inv = [lam.index(i) for i in range(16)]
    buildA(0, 124, inv[0])
    def vgroup(half, pre, post, last=False, ctl=True):
        for k in range(16):
            series(k)
            if ctl: control(k)
            if k == 0 and not last:
                a("v_add_u32 v224, 256, v224\nds_read_b32 v125, v224")
            if k == 6 and not last:
                a("s_waitcnt lgkmcnt(0)"); mkP()
            if k < 15: buildA((k + 1) & 1, 124, inv[k + 1])
            elif not last:
                buildA(0, 125, inv[0]); a("v_mov_b32 v124, v125")
            pre(k)
            mfma(12, k & 1, kslot(16 * half + k), False)
            post(k)
            if last and k == 2:
                wave_reduce(127, 16, "v_add_f32")
                a(f"s_lshl_b32 s31, s3, 9\nv_mov_b32 v20, s31\nv_mov_b32 v16, v127\nv_mov_b32 v17, 0\nv_mov_b32 v18, 0\nv_mov_b32 v19, 0\nds_write_b128 v20, v[16:19] offset:{RED_L}")
    def vsteady(half, d):
        def post(k):
            a(f"s_waitcnt vmcnt({wv(d, k)})"); issueS(kslot(16 * half + k))
        vgroup(half, lambda k: None, post)
    a(f"s_mov_b32 s73, {15 - (NBG + 1) // 2}")
    a("L_vloop:")
    variants(lambda d: vsteady(0, d))
    variants(lambda d: vsteady(1, d))
    a("s_sub_u32 s73, s73, 1\ns_cmp_lg_u32 s73, 0\ns_cbranch_scc1 L_vloop")
    if NBG % 2: variants(lambda d: vsteady(0, d))
    for i in range(NBG): vsteady((NBG + i) % 2, DB)
    wl = wl_all[8 - NWT:]
    nw = [0]
    dmax = DB if NBG else int(max(levels) + 0.99)
    wsteps = [n for n in range(32) if (n < 32 - DT and n % 5 == 4) or n >= 32 - DT]
    def fin(half):
        def pre(k):
            n = 16 * half + k
            if n >= 32 - dmax: a(f"s_waitcnt vmcnt({31 - n + nw[0]})")
        def post(k):
            n = 16 * half + k
            if n in wsteps and nw[0] < len(wl):
                a(wl[nw[0]]); nw[0] += 1
        vgroup(half, pre, post, last=(half == 1), ctl=False)
    a("L_tail0:")
    fin(0); fin(1)
    writeD(12, RED_O)
    for x in wl[nw[0]:]: a(x)
    a("s_waitcnt lgkmcnt(0)\ns_barrier")
    stamp(4)
    pollc("L_p1", ["buffer_load_dwordx4 v[228:231], v233, s[56:59], 0 offen " + h1l.replace("+", " "),
                   "buffer_load_dwordx4 v[236:239], v232, s[56:59], 0 offen offset:512 " + h1l.replace("+", " ")], [228, 229, 230, 231, 236, 237], full=(238, 239), sleep=sl1)
    stamp(5)
    steps = ["quad_perm:[1,0,3,2]", "quad_perm:[2,3,0,1]", "row_half_mirror"]
    O4 = (228, 229, 230, 231)
    a("v_mov_b32 v240, v237")
    for s in steps: a(f"v_max_f32_dpp v240, v240, v240 {s} row_mask:0xf bank_mask:0xf")
    a("v_sub_f32 v237, v237, v240\nv_mul_f32 v237, s76, v237\nv_exp_f32 v237, v237")
    for v in (236,) + O4: a(f"v_mul_f32 v{v}, v{v}, v237")
    for s in steps:
        for v in (236,) + O4: a(f"v_add_f32_dpp v{v}, v{v}, v{v} {s} row_mask:0xf bank_mask:0xf")
    a("v_rcp_f32 v236, v236")
    for v in O4: a(f"v_mul_f32 v{v}, v{v}, v236")
    for v in O4: a(f"v_cvt_pk_bf16_f32 v{v}, v{v}, v{v}")
    seq = [(b, i) for b in range(2) for i in range(4)]
    buildA(0, 228, 0)
    for t, (b, i) in enumerate(seq):
        if t < 7:
            b2, i2 = seq[t + 1]; buildA((t + 1) & 1, 228 + i2, 8 * b2)
        mfma(16, t & 1, WO0 + 4 * t, t == 0)
    writeD(16, RED_A)
    a("s_waitcnt lgkmcnt(0)\ns_barrier")
    stamp(6)
    if LP:
        a("s_cmp_lg_u32 s3, 0\ns_cbranch_scc1 L_norem\ns_mov_b64 exec, s[78:79]")
        for w in range(4): a(f"ds_read_b128 v[{32+4*w}:{35+4*w}], v6 offset:{RED_A+512*w}")
        a("s_lshl_b32 s31, s2, 9\ns_add_u32 s31, s31, %d\ns_mov_b32 s62, 0xff\nv_mov_b32 v20, s30\ns_waitcnt lgkmcnt(0)" % H2A)
        for i in range(4): a(f"v_add_f32 v{32+i}, v{32+i}, v{36+i}\nv_add_f32 v{40+i}, v{40+i}, v{44+i}")
        for i in range(4): a(f"v_add_f32 v{32+i}, v{32+i}, v{40+i}")
        for i in range(4): a(f"v_bfi_b32 v{32+i}, s62, v20, v{32+i}")
        a("buffer_store_dwordx4 v[32:35], v6, s[56:59], s31 offen sc1\ns_mov_b64 exec, -1")
        a.fence()
        a("L_norem:")
    if ser:
        a("s_add_u32 s68, s26, 0x9000000\ns_addc_u32 s69, s27, 0\ns_lshl_b32 s31, s2, 2\ns_add_u32 s31, s31, s3\ns_lshl_b32 s31, s31, 8\nv_lshlrev_b32 v16, 2, v1\nv_add_u32 v16, s31, v16")
        a("global_store_dword v16, v255, s[68:69]")
    if diag:
        a("s_waitcnt lgkmcnt(0)\ns_getreg_b32 s98, hwreg(HW_REG_HW_ID)\ns_getreg_b32 s99, hwreg(HW_REG_XCC_ID)")
        a("s_cmp_lg_u32 s3, 0\ns_cbranch_scc1 L_exit\ns_mov_b32 s31, 0\ns_branch L_stamps")
    else:
        a("s_endpgm")

    if FAST:
        a("L_comm0:\ns_waitcnt lgkmcnt(0)")
        common()
    a("L_comm:")
    incomm[0] = True
    a(f"v_mov_b32 v8, 0\nv_mov_b32 v20, 0\nv_mov_b32 v21, 0\nv_mov_b32 v22, 0\nv_mov_b32 v23, 0\nds_write_b128 v8, v[20:23] offset:{FL}\nds_write_b128 v8, v[20:23] offset:{FG}\nds_write_b128 v8, v[20:23] offset:{QF}\nds_write_b128 v8, v[20:23] offset:{RF}\nds_write_b128 v8, v[20:23] offset:{PH}\nds_write_b128 v8, v[20:23] offset:{PH+16}\ns_waitcnt lgkmcnt(0)\ns_barrier")
    a("s_lshl_b32 s31, s29, 8\ns_and_b32 s75, s28, 3\ns_lshl_b32 s75, s75, 6\ns_add_u32 s75, s75, s31")
    a("v_and_b32 v37, 7, v1\nv_lshlrev_b32 v38, 3, v37")
    a("buffer_load_dwordx2 v[10:11], v38, s[52:55], s75 offen")
    if TL:
        a("s_lshl_b32 s31, s28, 24\ns_add_u32 s72, s8, s31\ns_addc_u32 s73, s9, 0\ns_lshl_b32 s31, s28, 18\ns_add_u32 s80, s12, s31\ns_addc_u32 s81, s13, 0\ns_mov_b32 s82, 27")
    def wdload():
        srd(36, "s20", "s21", 0 if "d" in skipw else 3584 * 2048)
        a("v_lshl_add_u32 v58, v2, 11, v7\ns_mul_i32 s35, s28, %d\ns_lshl_b32 s31, s29, 8\ns_add_u32 s35, s35, s31" % (112 * 2048))
        for i in range(28):
            if i >= WDF: a(f"s_waitcnt vmcnt({WDF-1})")
            a(f"buffer_load_dwordx4 v[{128+4*i}:{131+4*i}], v58, s[36:39], s35 offen {pol_w}\ns_add_u32 s35, s35, 8192")
    if CP:
        a("s_and_b32 s34, s2, 31" if perm == 1 else "s_mov_b32 s34, s28")
        a(f"s_cmp_ge_u32 s34, {CP}\ns_cbranch_scc1 L_nocp")
        a(f"s_getpc_b64 s[32:33]\nL_pc0:\ns_sub_u32 s32, s32, L_pc0-{NAME}\ns_subb_u32 s33, s33, 0\ns_lshl_b32 s31, s34, 13\nv_add_u32 v20, s31, v6\ns_mov_b32 s31, L_exit-{NAME}-16")
        for i in range(8): a(f"v_min_u32 v{21+i}, s31, v20\nglobal_load_dwordx4 v[{64+4*i}:{67+4*i}], v{21+i}, s[32:33]\nv_add_u32 v20, 1024, v20")
        a("L_nocp:")
    if WDW == 1: wdload()
    if touch:
        a("s_mov_b64 exec, 1")
        a("s_lshl_b32 s31, s28, 24\ns_add_u32 s32, s6, s31\ns_addc_u32 s33, s7, 0\nglobal_load_dword v20, v8, s[32:33] nt")
        a("s_mul_i32 s31, s29, %d\ns_add_u32 s32, s16, s31\ns_addc_u32 s33, s17, 0\nglobal_load_dword v21, v8, s[32:33] nt" % (128 * 7168))
        a("s_add_u32 s32, s18, s31\ns_addc_u32 s33, s19, 0\nglobal_load_dword v22, v8, s[32:33] nt")
        a("global_load_dword v23, v8, s[26:27] nt")
        a("s_mov_b64 exec, -1")
    masks()
    srd(68, "s22", "s23", 2048)
    a("v_lshlrev_b32 v9, 3, v1")
    a("s_lshl_b32 s31, s2, 10\ns_add_u32 s40, s31, %d" % H0Q)
    a("s_lshl_b32 s31, s28, 13\ns_add_u32 s41, s31, %d\ns_add_u32 s42, s41, 4096" % H0Q)
    a("s_waitcnt lgkmcnt(0)\ns_add_u32 s30, s30, 1")
    def red4(dst, off, tmp):
        for w in range(4): a(f"ds_read_b64 v[{tmp+2*w}:{tmp+2*w+1}], v9 offset:{off+512*w}")
    def sum4(dst, tmp):
        a(f"v_add_f32 v{dst}, v{tmp}, v{tmp+2}\nv_add_f32 v{dst+2}, v{tmp+1}, v{tmp+3}\nv_add_f32 v{tmp+4}, v{tmp+4}, v{tmp+6}\nv_add_f32 v{tmp+5}, v{tmp+5}, v{tmp+7}")
        a(f"v_add_f32 v{dst}, v{dst}, v{tmp+4}\nv_add_f32 v{dst+2}, v{dst+2}, v{tmp+5}")
    a("v_mov_b32 v13, s30\nv_mov_b32 v15, s30\nv_mov_b32 v17, s30\nv_mov_b32 v19, s30")
    a.fence()
    a(f"L_fl:\nds_read_b128 v[20:23], v8 offset:{FL}\ns_waitcnt lgkmcnt(0)\nv_and_b32 v20, v20, v21\nv_and_b32 v22, v22, v23\nv_and_b32 v20, v20, v22\nv_readfirstlane_b32 s31, v20")
    a("s_cmp_eq_u32 s31, 1\ns_cbranch_scc1 L_fl_ok\ns_sleep 1\ns_branch L_fl\nL_fl_ok:")
    stamp(1)
    red4(12, RED_Q, 20); a("s_waitcnt lgkmcnt(0)"); sum4(12, 20)
    if LOC:
        a("s_getreg_b32 s65, hwreg(HW_REG_XCC_ID)\ns_and_b32 s65, s65, 15")
        if fakex: a("s_mov_b32 s65, s29")
        a("s_lshl_b32 s65, s65, 28\ns_and_b32 s31, s30, 0xfffffff\ns_or_b32 s65, s65, s31\nv_mov_b32 v13, s65\nv_mov_b32 v15, s65")
        a("buffer_store_dwordx4 v[12:15], v6, s[56:59], s40 offen")
        if WDW == 2: wdload()
        up = "buffer_store_dwordx4 v[12:15], v6, s[56:59], s40 offen sc1"
        poll_rows("L_p0", [(f"buffer_load_dwordx4 v[{64+4*jj}:{67+4*jj}], v6, s[56:59], s{41+jj//4} offen offset:{1024*(jj%4)} {ql.replace('+', ' ')}", 65 + 4 * jj, 67 + 4 * jj) for jj in range(8)], 4,
                  tagreg="s65", mask="0xfffffff", hook=up)
        a("v_xor_b32 v250, s65, v65")
        for jj in range(1, 8): a(f"v_bitop3_b32 v250, v{65+4*jj}, s65, v250 bitop3:0xbe")
        a("v_cmp_ne_u32 vcc, 0, v250\ns_cmp_eq_u64 vcc, 0\ns_cselect_b32 s11, 1, 0\ns_cbranch_scc1 L_qloc")
        a(up)
        a("L_qloc:\ns_nop 1\nv_mov_b32 v13, s30\nv_mov_b32 v15, s30")
    else:
        if noq != 1: a("buffer_store_dwordx4 v[12:15], v6, s[56:59], s40 offen " + qfl.replace("+", " "))
        if qdelay: a(f"s_sleep {qdelay}")
        if WDW == 2: wdload()
        if noq:
            pass
        elif maskpoll:
            poll_rows("L_p0", [(f"buffer_load_dwordx4 v[{64+4*jj}:{67+4*jj}], v6, s[56:59], s{41+jj//4} offen offset:{1024*(jj%4)} {ql.replace('+', ' ')}", 65 + 4 * jj, 67 + 4 * jj) for jj in range(8)], 4)
        else:
            poll("L_p0", [f"buffer_load_dwordx4 v[{128+4*jj}:{131+4*jj}], v6, s[56:59], s{41+jj//4} offen offset:{1024*(jj%4)} sc1" for jj in range(8)],
                 [129 + 2 * i for i in range(16)])
    stamp(2)
    def sum8(base, stride):
        for o in (0, 2):
            for (x, y) in ((0, 1), (2, 3), (4, 5), (6, 7), (0, 2), (4, 6), (0, 4)):
                a(f"v_add_f32 v{base+x*stride+o}, v{base+x*stride+o}, v{base+y*stride+o}")
    sum8(64, 4)
    a(f"v_cvt_pk_bf16_f32 v64, v64, v66\nv_lshlrev_b32 v20, 2, v1\nds_write_b32 v20, v64 offset:{QL}")
    if NB2F:
        a(f"v_mov_b32 v20, 1\nds_write_b32 v8, v20 offset:{QF}")
        if WDW == 3: wdload()
        a.fence()
        a(f"L_fg:\nds_read_b128 v[20:23], v8 offset:{FG}\ns_waitcnt lgkmcnt(0)\nv_and_b32 v20, v20, v21\nv_and_b32 v22, v22, v23\nv_and_b32 v20, v20, v22\nv_readfirstlane_b32 s31, v20")
        a("s_cmp_eq_u32 s31, 1\ns_cbranch_scc1 L_fg_ok\ns_sleep 2\ns_branch L_fg\nL_fg_ok:")
    else:
        a("s_waitcnt lgkmcnt(0)\ns_barrier")
    def tag4(v):
        for i in range(4): a(f"v_bfi_b32 v{v+i}, s61, v13, v{v+i}")
    a("s_mov_b32 s61, 0xff")
    red4(0, RED_G, 20); red4(0, RED_U, 28); a("s_waitcnt lgkmcnt(0)")
    for d, t in ((16, 20), (18, 28)):
        a(f"v_add_f32 v{d}, v{t}, v{t+2}\nv_add_f32 v{d+1}, v{t+1}, v{t+3}\nv_add_f32 v{t+4}, v{t+4}, v{t+6}\nv_add_f32 v{t+5}, v{t+5}, v{t+7}")
        a(f"v_add_f32 v{d}, v{d}, v{t+4}\nv_add_f32 v{d+1}, v{d+1}, v{t+5}")
    tag4(16)
    a("s_lshl_b32 s43, s2, 10\ns_add_u32 s40, s43, %d\ns_mov_b32 s62, -1\ns_mov_b32 s63, 0xffffff" % H0GU)
    a("s_mov_b64 exec, s[62:63]")
    if LOC:
        a("s_cmp_eq_u32 s11, 1\ns_cbranch_scc1 L_gs_l\nbuffer_store_dwordx4 v[16:19], v6, s[56:59], s40 offen sc1\ns_branch L_gs_e\nL_gs_l:\nbuffer_store_dwordx4 v[16:19], v6, s[56:59], s40 offen\nL_gs_e:")
    else:
        a("buffer_store_dwordx4 v[16:19], v6, s[56:59], s40 offen " + gufl.replace("+", " "))
    a("s_mov_b64 exec, -1")
    def ffn():
        if WDW == 0: wdload()
        a("s_lshl_b32 s31, s28, 13\ns_add_u32 s18, s31, %d\ns_add_u32 s19, s18, 4096" % H0GU)
        a("s_mov_b64 exec, s[62:63]")
        pollc("L_pg", [f"buffer_load_dwordx4 v[{64+4*n}:{67+4*n}], v6, s[56:59], s{18+n//4} offen offset:{1024*(n%4)} {gul.replace('+', ' ')}" for n in range(8)],
              list(range(64, 96)), sleep=50)
        stamp(3)
        for o in range(4):
            for (x, y) in ((0, 1), (2, 3), (4, 5), (6, 7), (0, 2), (4, 6), (0, 4)):
                a(f"v_add_f32 v{64+4*x+o}, v{64+4*x+o}, v{64+4*y+o}")
        for v in (64, 65, 66, 67): rbf(v)
        a("s_mov_b32 s16, 0x3d372713\ns_mov_b32 s17, 0xc0135761")
        for g, u in ((64, 66), (65, 67)):
            a(f"v_mul_f32 v20, v{g}, v{g}\nv_fma_f32 v20, v20, s16, 1.0\nv_mul_f32 v20, v20, v{g}\nv_mul_f32 v20, s17, v20\nv_exp_f32 v20, v20\nv_add_f32 v20, 1.0, v20\nv_rcp_f32 v20, v20\nv_mul_f32 v{g}, v{g}, v20")
            rbf(g)
            a(f"v_mul_f32 v{g}, v{g}, v{u}")
        a(f"v_cvt_pk_bf16_f32 v20, v64, v64\nv_cvt_pk_bf16_f32 v21, v65, v65\nds_write_b64 v9, v[20:21] offset:{HL}")
        a(f"v_lshl_add_u32 v20, v2, 2, v7\nds_read_b32 v56, v20 offset:{HL}\nds_read_b32 v57, v20 offset:{HL+256}\ns_waitcnt lgkmcnt(0)")
        buildA(0, 56, 0)
        for i in range(28):
            if i < 27: buildA((i + 1) & 1, 56 + (i + 1) // 16, (i + 1) % 16)
            mfma(52, i & 1, 128 + 4 * i, i == 0)
        tag4(52)
        if FW == 2:
            a("v_lshlrev_b32 v39, 5, v3\nv_lshl_add_u32 v39, v2, 4, v39\ns_lshl_b32 s31, s2, 9\ns_add_u32 s42, s31, %d" % H2F)
            a("s_mov_b64 exec, s[78:79]\nbuffer_store_dwordx4 v[52:55], v39, s[56:59], s42 offen sc1 nt\ns_mov_b64 exec, -1")
    if not GF: ffn()
    def bump(r, first):
        if not GA: return f"s_add_u32 s{r}, s{r}, {GP}"
        return f"s_cmp_eq_u32 s{r}, {first}\ns_cselect_b32 s9, {GA}, {GP}\ns_add_u32 s{r}, s{r}, s9"
    sh = GP.bit_length() - 1
    assert GP == 1 << sh
    a("v_lshlrev_b32 v50, 7, v1")
    a(f"s_mov_b32 s44, {G0}\ns_mov_b32 s45, {G0+GG}\ns_mov_b32 s46, {G0+GR}\ns_mov_b32 s47, 0\ns_mov_b32 s51, 0\ns_mov_b32 s52, 0\ns_mov_b32 s53, 0\ns_mov_b32 s54, 0")
    if NREF == 64: a("s_xor_b32 s55, s28, s29\ns_and_b32 s55, s55, 3")
    if NREF == 32: a("s_xor_b32 s55, s28, s29\ns_and_b32 s55, s55, 7")
    if NREF == 16: a("s_lshr_b32 s55, s2, 4\ns_xor_b32 s55, s55, s2\ns_and_b32 s55, s55, 15")
    if NREF == 8: a("s_lshr_b32 s55, s2, 5\ns_mul_i32 s55, s55, 5\ns_xor_b32 s55, s55, s2\ns_and_b32 s55, s55, 31")
    rsh = {64: 2, 32: 3, 16: 4, 8: 5}[NREF]
    if NREF < 64: a(f"v_and_b32 v50, {NREF-1}, v1\nv_lshlrev_b32 v50, 7, v50")
    a(f"s_lshr_b32 s48, s2, {rsh}")
    a("s_lshl_b32 s48, s48, 7\ns_add_u32 s48, s48, %d\ns_mov_b32 s49, %d" % (PHI, PHI))
    a("s_mov_b32 s50, 0" if NREP == 1 else "s_lshr_b32 s50, s28, 2" if perm == 1 else "s_mov_b32 s50, s29")
    a("s_lshl_b32 s50, s50, 7\ns_add_u32 s50, s50, %d\ns_mov_b32 s60, %d" % (REF, REF))
    a("s_cmp_eq_u32 s2, 0\ns_cselect_b32 s45, s45, -1")
    a("s_mov_b32 s4, 0\ns_mov_b32 s5, 0\ns_mov_b32 s6, 0\ns_mov_b32 s7, 0\ns_mov_b32 s10, %d" % GF)
    if noex: a("s_mov_b32 s44, -1\ns_mov_b32 s45, -1\ns_mov_b32 s46, -1")
    a.fence()
    a("L_ctl:")
    a(f"ds_read_b128 v[20:23], v8 offset:{PH}\nds_read_b128 v[24:27], v8 offset:{PH+16}\ns_waitcnt lgkmcnt(0)")
    a("v_min_u32 v21, v21, v23\nv_min3_u32 v21, v21, v25, v27\nv_readfirstlane_b32 s31, v21")
    if GF: a(f"s_cmp_eq_u32 s10, -1\ns_cbranch_scc0 L_ctl_c")
    a(f"s_cmp_ge_u32 s31, {GEX}\ns_cbranch_scc1 L_ctl_end\nL_ctl_c:\ns_cmp_eq_u32 s31, s47\ns_cbranch_scc1 L_ctl_sleep\ns_mov_b32 s47, s31")
    a("v_sub_u32 v22, v22, v20\nv_sub_u32 v24, v24, v20\nv_sub_u32 v26, v26, v20\nv_add3_u32 v22, v22, v24, v26\nv_ashrrev_i32 v22, 2, v22\nv_add_u32 v12, v20, v22")
    if JD:
        a(f"v_readfirstlane_b32 s8, v12\ns_sub_u32 s9, s8, s5\ns_and_b32 s9, s9, s54\ns_mov_b32 s5, s4\ns_mov_b32 s4, s8")
        a(f"s_cmp_gt_i32 s9, {JD}\ns_cbranch_scc0 L_ctl_nj\ns_add_u32 s51, s51, s9\ns_add_u32 s6, s6, s9\ns_mov_b32 s5, s8\nL_ctl_nj:")
    a(f"s_cmp_lt_u32 s47, s44\ns_cbranch_scc1 L_ctl_g\ns_mov_b32 s6, 0\n{bump(44, G0)}\ns_cmp_lg_u32 s55, 0\ns_cbranch_scc1 L_ctl_g")
    a("s_mov_b64 exec, 1\nbuffer_store_dwordx2 v[12:13], v8, s[56:59], s48 offen " + exs.replace("+", " ") + "\ns_mov_b64 exec, -1\ns_add_u32 s48, s48, 8192")
    a("L_ctl_g:")
    a("s_cmp_lt_u32 s47, s45\ns_cbranch_scc1 L_ctl_rd")
    a("buffer_load_dwordx2 v[20:21], v50, s[56:59], s49 offen " + exl.replace("+", " ") + "\ns_waitcnt vmcnt(0)")
    a("v_cmp_ne_u32 vcc, s30, v21\ns_cmp_lg_u64 vcc, 0\ns_cbranch_scc1 L_ctl_rd")
    a("v_sub_u32 v20, v20, v12")
    if RB:
        a("v_mov_b32 v22, v20")
        wave_reduce(22, 21, "v_max_i32")
    wave_reduce(20, 21, "v_add_u32")
    a("v_ashrrev_i32 v20, 6, v20")
    if RB: a(f"s_cmp_gt_u32 s45, {G0 + GG + GA}\ns_cselect_b32 s9, {RD}, 0x100000\nv_sub_u32 v22, v22, v20\nv_subrev_u32 v22, s9, v22\nv_max_i32 v22, 0, v22\nv_ashrrev_i32 v22, {RB}, v22\nv_add_u32 v20, v20, v22")
    a("v_add_u32 v14, v12, v20")
    a(("s_mov_b64 exec, 0xff" if NREP == 8 else "s_mov_b64 exec, 1") + "\nbuffer_store_dwordx2 v[14:15], v50, s[56:59], s60 offen " + exs.replace("+", " ") + "\ns_mov_b64 exec, -1")
    a(f"{bump(45, G0 + GG)}\ns_add_u32 s49, s49, 8192\ns_add_u32 s60, s60, 1024")
    a.fence()
    a("L_ctl_rd:")
    a("s_cmp_lt_u32 s47, s46\ns_cbranch_scc1 L_ctl_up")
    if RP == 1:
        a("s_mov_b64 exec, 1\ns_cmp_eq_u32 s47, s46\ns_cbranch_scc1 L_ctl_r1\nbuffer_load_dwordx2 v[28:29], v8, s[56:59], s50 offen sc1\ns_branch L_ctl_r2")
        a("L_ctl_r1:\nbuffer_load_dwordx2 v[28:29], v8, s[56:59], s50 offen\nL_ctl_r2:")
        a("s_waitcnt vmcnt(0)\nv_readfirstlane_b32 s31, v29\nv_readfirstlane_b32 s64, v28\ns_mov_b64 exec, -1")
    elif RP == 2:
        a("s_cmp_eq_u32 s47, s46\ns_cbranch_scc1 L_ctl_r1")
        a("s_mov_b64 exec, 1\nbuffer_load_dwordx2 v[28:29], v8, s[56:59], s50 offen sc1\ns_waitcnt vmcnt(0)\nv_readfirstlane_b32 s65, v29\nv_readfirstlane_b32 s64, v28\ns_mov_b64 exec, -1\ns_nop 3\ns_branch L_ctl_r2")
        a("L_ctl_r1:\ns_load_dwordx2 s[64:65], s[26:27], s50\ns_waitcnt lgkmcnt(0)\nL_ctl_r2:\ns_mov_b32 s31, s65")
    else:
        a("s_mov_b64 exec, 1\nbuffer_load_dwordx2 v[28:29], v8, s[56:59], s50 offen " + exl.replace("+", " ") + "\ns_waitcnt vmcnt(0)\nv_readfirstlane_b32 s31, v29\nv_readfirstlane_b32 s64, v28\ns_mov_b64 exec, -1")
    a("s_cmp_lg_u32 s31, s30\ns_cbranch_scc1 L_ctl_up")
    if FB: a(f"s_andn2_b32 s9, {FB}, s54\ns_sub_u32 s64, s64, s9")
    a("s_add_u32 s64, s64, s6\ns_sub_u32 s52, s64, s51\ns_and_b32 s52, s52, s54")
    if MS: a("s_mov_b32 s9, s52\ns_min_i32 s52, s52, s7\ns_mov_b32 s7, s9")
    if MS == 2: a("s_cmp_lt_i32 s52, 40\ns_cselect_b32 s52, 0, s52")
    if not slope: a("s_mov_b32 s52, 0")
    a(f"s_mov_b32 s51, s64\ns_sub_u32 s53, s46, {GR + 1}\ns_mov_b32 s54, -1\n{bump(46, G0 + GR)}\ns_add_u32 s50, s50, 1024")
    a("L_ctl_up:")
    a(f"s_sub_u32 s31, s47, s53\ns_mul_i32 s31, s31, s52\ns_ashr_i32 s31, s31, {sh}\ns_add_u32 s31, s31, s51")
    a(f"v_mov_b32 v30, s31\nv_mov_b32 v31, s54\nds_write_b64 v8, v[30:31] offset:{RF}")
    if TL & 1:
        a("s_cmp_lt_u32 s47, s82\ns_cbranch_scc1 L_ctl_nt\ns_mov_b32 s82, -1\nv_lshlrev_b32 v20, 21, v1\ns_mov_b64 exec, 0xff\nglobal_load_dword v21, v20, s[72:73] nt\ns_mov_b64 exec, -1\ns_waitcnt vmcnt(0)\nL_ctl_nt:")
    if GF:
        a("s_cmp_lt_u32 s47, s10\ns_cbranch_scc1 L_ctl_sleep\ns_mov_b32 s10, -1")
        ffn()
        a.fence()
    a(f"L_ctl_sleep:\ns_sleep {CSL}\ns_branch L_ctl")
    a("L_ctl_end:")
    if TL & 2:
        a("s_mov_b64 exec, 1\nglobal_load_dword v64, v8, s[80:81] nt\nbuffer_load_dword v65, v8, s[68:71], 0 offen nt\ns_mov_b64 exec, -1")
    a(f"ds_read_b128 v[44:47], v8 offset:{MX}\ns_waitcnt lgkmcnt(0)\nv_max_f32 v20, v44, v45\nv_max3_f32 v16, v20, v46, v47\ns_mov_b32 s31, {LOG2E}")
    for w in range(4): a(f"v_sub_f32 v{44+w}, v{44+w}, v16\nv_mul_f32 v{44+w}, s31, v{44+w}\nv_exp_f32 v{44+w}, v{44+w}")
    a("s_add_u32 s40, s43, %d\ns_lshl_b32 s31, s2, 9\ns_add_u32 s41, s31, %d\ns_add_u32 s42, s31, %d" % (H1, H2A, H2F))
    a("v_lshlrev_b32 v39, 5, v3\nv_lshl_add_u32 v39, v2, 4, v39")
    a("v_cmp_eq_u32 vcc, 32, v1\nv_mov_b32 v20, 2048\nv_cndmask_b32 v48, v6, v20, vcc\nv_cndmask_b32 v49, 0, v16, vcc\nv_mov_b32 v20, 0xff\nv_cndmask_b32 v51, v20, -1, vcc")
    a("s_mov_b32 s63, 1")
    a("v_lshrrev_b32 v36, 3, v1\nv_lshlrev_b32 v36, 12, v36\nv_lshl_add_u32 v36, v37, 4, v36")
    a("s_lshl_b32 s31, s29, 9\ns_lshl_b32 s44, s28, 7\ns_add_u32 s44, s44, s31\ns_add_u32 s44, s44, %d" % H2A)
    for i in range(1, 8): a(f"s_add_u32 s{44+i}, s44, {32768*i}")
    assert H2F == H2A + 4 * 32768
    a("v_lshlrev_b32 v40, 16, v10\nv_and_b32 v41, 0xffff0000, v10\nv_lshlrev_b32 v42, 16, v11\nv_and_b32 v43, 0xffff0000, v11")
    if LOC and PD:
        a("s_cmp_lg_u32 s11, 1\ns_cbranch_scc1 L_npd\nv_not_b32 v60, v13\nv_not_b32 v61, v13\nv_not_b32 v62, v13\nv_not_b32 v63, v13")
        a("s_mov_b32 s64, -1\ns_mov_b32 s65, 0xff\ns_mov_b64 exec, s[64:65]\nbuffer_store_dwordx4 v[60:63], v6, s[56:59], s40 offen\ns_mov_b64 exec, -1\nL_npd:")
    if PT:
        pf = "sc1" if PT == 1 else ""
        a(f"s_mov_b64 exec, s[62:63]\nbuffer_load_dwordx4 v[64:67], v6, s[56:59], s40 offen {pf}\ns_mov_b64 exec, s[78:79]\nbuffer_load_dwordx4 v[68:71], v6, s[56:59], s41 offen {pf}")
        if FW != 2: a(f"buffer_load_dwordx4 v[72:75], v6, s[56:59], s42 offen {pf}")
        a("s_mov_b64 exec, -1")
    if warm:
        a("s_getpc_b64 s[64:65]\nL_pc:\ns_sub_u32 s64, s64, L_pc-L_tail0\ns_subb_u32 s65, s65, 0")
        for i in range(warm): a(f"global_load_dwordx4 v[64:67], v6, s[64:65]\ns_add_u32 s64, s64, 1024\ns_addc_u32 s65, s65, 0")
        a("s_waitcnt vmcnt(0)")
    def xred(b, skip=False):
        if not skip:
            for i in range(4): a(f"v_add_f32 v{b+i}, v{b+i}, v{b+4+i}\nv_add_f32 v{b+8+i}, v{b+8+i}, v{b+12+i}")
        for i in range(4): a(f"v_add_f32 v{b+i}, v{b+i}, v{b+8+i}")
        for i in range(4): a(f"v_add_f32_dpp v{b+i}, v{b+i}, v{b+i} row_ror:8 row_mask:0xf bank_mask:0xf")
        for op in ("v_permlane16_swap_b32", "v_permlane32_swap_b32"):
            for i in range(4): a(f"v_mov_b32 v{b+4+i}, v{b+i}")
            for i in range(4): a(f"{op} v{b+i}, v{b+4+i}")
            for i in range(4): a(f"v_add_f32 v{b+i}, v{b+i}, v{b+4+i}")
        for i in range(4): rbf(b + i)
    def ffn_gather():
        pollc("L_pf", [f"buffer_load_dwordx4 v[{144+4*i}:{147+4*i}], v36, s[56:59], s{48+i} offen sc1" for i in range(4)], list(range(144, 160)), sleep=sl2)
        xred(144)
    if FW == 2:
        a("s_cmp_ge_u32 s28, 4\ns_cbranch_scc1 L_nf")
        ffn_gather()
        a.fence()
        a("L_nf:")
    if LP:
        a(f"s_add_u32 s12, s41, {LOFF}\ns_add_u32 s13, s42, {LOFF}\nv_add_u32 v59, {LOFF}, v36")
        a("v_not_b32 v60, v13\nv_not_b32 v61, v13\nv_not_b32 v62, v13\nv_not_b32 v63, v13")
        a("s_mov_b64 exec, s[78:79]\nbuffer_store_dwordx4 v[52:55], v39, s[56:59], s13 offen\nbuffer_store_dwordx4 v[60:63], v6, s[56:59], s12 offen\ns_mov_b64 exec, -1")
        a("s_mov_b32 s14, 0")
        a("s_barrier")
        stamp(4)
        a("s_mov_b64 exec, s[62:63]")
        for w in range(4): a(f"ds_read_b128 v[{20+4*w}:{23+4*w}], v48 offset:{RED_O+512*w}")
        a("s_waitcnt lgkmcnt(0)")
        a("v_mul_f32 v16, v20, v44\nv_fma_f32 v17, v21, v44, v49\nv_mul_f32 v18, v22, v44\nv_mul_f32 v19, v23, v44")
        for w in range(1, 4):
            for i in range(4): a(f"v_fmac_f32 v{16+i}, v{20+4*w+i}, v{44+w}")
        a("v_bfi_b32 v16, s61, v13, v16\nv_bfi_b32 v17, s61, v13, v17\nv_bfi_b32 v18, v51, v13, v18\nv_bfi_b32 v19, v51, v13, v19")
        a("buffer_store_dwordx4 v[16:19], v6, s[56:59], s40 offen sc1")
        a("s_cmp_ge_u32 s28, 4\ns_cbranch_scc1 L_b5")
        a("s_mov_b64 exec, s[78:79]\nbuffer_store_dwordx4 v[52:55], v39, s[56:59], s42 offen sc1\ns_mov_b64 exec, -1")
        pollc("L_lf", [f"buffer_load_dwordx4 v[{144+4*i}:{147+4*i}], v59, s[56:59], s{48+i} offen sc1" for i in range(4)], list(range(144, 160)), sleep=0, tries=1, fail="L_b5")
        xred(144)
        a("s_mov_b32 s14, 1")
        a.fence()
        a("L_b5:\ns_mov_b64 exec, s[78:79]")
        a("s_barrier")
        stamp(5)
        for w in range(4): a(f"ds_read_b128 v[{20+4*w}:{23+4*w}], v6 offset:{RED_A+512*w}")
        a("s_waitcnt lgkmcnt(0)")
        for i in range(4): a(f"v_add_f32 v{20+i}, v{20+i}, v{24+i}\nv_add_f32 v{28+i}, v{28+i}, v{32+i}")
        for i in range(4): a(f"v_add_f32 v{60+i}, v{20+i}, v{28+i}")
        tag4(60)
        a("buffer_store_dwordx4 v[60:63], v6, s[56:59], s12 offen")
        a("s_cmp_lt_u32 s28, 4\ns_cbranch_scc1 L_cons")
        a("buffer_store_dwordx4 v[52:55], v39, s[56:59], s42 offen sc1")
        if diag: stamp(6); a("s_branch L_noep")
        else: a("s_branch L_noep" if spin else "s_endpgm")
        a("L_cons:\ns_mov_b64 exec, -1")
        a("s_cmp_eq_u32 s14, 0\ns_cbranch_scc1 L_fbf")
        pollc("L_la", [f"buffer_load_dwordx4 v[{128+4*i}:{131+4*i}], v59, s[56:59], s{44+i} offen sc1" for i in range(4)], list(range(128, 144)), sleep=lsl, tries=LN, fail="L_fba")
        a("s_branch L_fin")
        a("L_fbf:")
        ffn_gather()
        a.fence()
        a("L_fba:")
        pollc("L_p2", [f"buffer_load_dwordx4 v[{128+4*i}:{131+4*i}], v36, s[56:59], s{44+i} offen sc1" for i in range(4)], list(range(128, 144)), sleep=sl2)
        a("L_fin:")
    else:
        tf = tfl.replace("+", " ")
        a("s_barrier")
        stamp(4)
        a("s_mov_b64 exec, s[62:63]")
        for w in range(4): a(f"ds_read_b128 v[{20+4*w}:{23+4*w}], v48 offset:{RED_O+512*w}")
        a("s_waitcnt lgkmcnt(0)")
        a("v_mul_f32 v16, v20, v44\nv_fma_f32 v17, v21, v44, v49\nv_mul_f32 v18, v22, v44\nv_mul_f32 v19, v23, v44")
        for w in range(1, 4):
            for i in range(4): a(f"v_fmac_f32 v{16+i}, v{20+4*w+i}, v{44+w}")
        a("v_bfi_b32 v16, s61, v13, v16\nv_bfi_b32 v17, s61, v13, v17\nv_bfi_b32 v18, v51, v13, v18\nv_bfi_b32 v19, v51, v13, v19")
        if LOC:
            a("s_cmp_eq_u32 s11, 1\ns_cbranch_scc1 L_hs_l\nbuffer_store_dwordx4 v[16:19], v6, s[56:59], s40 offen sc1\ns_branch L_hs_e\nL_hs_l:\nbuffer_store_dwordx4 v[16:19], v6, s[56:59], s40 offen\nL_hs_e:")
        else:
            a("buffer_store_dwordx4 v[16:19], v6, s[56:59], s40 offen " + tf)
        a("s_mov_b64 exec, s[78:79]")
        if FW == 0: a(f"buffer_store_dwordx4 v[52:55], v39, s[56:59], s42 offen {tf}")
        a("s_barrier")
        stamp(5)
        for w in range(4): a(f"ds_read_b128 v[{20+4*w}:{23+4*w}], v6 offset:{RED_A+512*w}")
        if FW == 1: a(f"buffer_store_dwordx4 v[52:55], v39, s[56:59], s42 offen {tf}")
        a("s_waitcnt lgkmcnt(0)")
        for i in range(4): a(f"v_add_f32 v{20+i}, v{20+i}, v{24+i}\nv_add_f32 v{28+i}, v{28+i}, v{32+i}")
        for i in range(4): a(f"v_add_f32 v{60+i}, v{20+i}, v{28+i}")
        tag4(60)
        a(f"buffer_store_dwordx4 v[60:63], v6, s[56:59], s41 offen {tf}\ns_mov_b64 exec, -1")
        if diag:
            a("s_cmp_lt_u32 s28, 4\ns_cbranch_scc1 L_cons"); stamp(6); a("s_branch L_noep\nL_cons:")
        else:
            a("s_cmp_ge_u32 s28, 4\ns_cbranch_scc1 " + ("L_noep" if spin else "L_exit"))
        if not HP:
            if FW != 2: ffn_gather()
            pollc("L_p2", [f"buffer_load_dwordx4 v[{128+4*i}:{131+4*i}], v36, s[56:59], s{44+i} offen sc1" for i in range(4)], list(range(128, 144)), sleep=sl2)
    if HP:
        sets = [160, 176, 192][:HP]
        def ld(b):
            for i in range(4): a(f"buffer_load_dwordx4 v[{b+4*i}:{b+3+4*i}], v36, s[56:59], s{44+i} offen sc1")
        def chk(b):
            a(f"v_xor_b32 v250, s30, v{b}\nv_xor_b32 v251, s30, v{b+8}")
            for r in range(1, 8): a(f"v_bitop3_b32 v250, v{b+r}, s30, v250 bitop3:0xbe\nv_bitop3_b32 v251, v{b+8+r}, s30, v251 bitop3:0xbe")
            a("v_or_b32 v250, v250, v251\nv_and_b32 v250, 0xff, v250\nv_cmp_ne_u32 vcc, 0, v250\ns_cmp_eq_u64 vcc, 0")
        for i in range(4): a(f"buffer_load_dwordx4 v[{144+4*i}:{147+4*i}], v36, s[56:59], s{48+i} offen sc1")
        for b in sets[:-1]:
            ld(b); a(f"s_sleep {gap}")
        ld(sets[-1])
        a(f"s_waitcnt vmcnt({4*HP})")
        chk(144)
        a("s_cbranch_scc1 L_fok")
        pollc("L_pf", [f"buffer_load_dwordx4 v[{144+4*i}:{147+4*i}], v36, s[56:59], s{48+i} offen sc1" for i in range(4)], list(range(144, 160)), sleep=sl2)
        a("L_fok:")
        xred(144)
        a("s_mov_b32 s77, 0x100000")
        a.fence()
        a("L_hp:")
        for n, b in enumerate(sets):
            a(f"s_waitcnt vmcnt({4*(HP-1)})")
            chk(b)
            a(f"s_cbranch_scc1 L_hp_{n}")
            ld(b)
        a("s_sub_u32 s77, s77, 1\ns_cmp_lg_u32 s77, 0\ns_cbranch_scc1 L_hp")
        for n, b in enumerate(sets):
            a(f"L_hp_{n}:")
            for i in range(4): a(f"v_add_f32 v{128+i}, v{b+i}, v{b+4+i}\nv_add_f32 v{136+i}, v{b+8+i}, v{b+12+i}")
            if n < HP - 1: a("s_branch L_hp_e")
        a("L_hp_e:")
        stamp(6)
        xred(128, skip=True)
    else:
        stamp(6)
        xred(128)
    for i in range(4): a(f"v_add_f32 v{128+i}, v{128+i}, v{40+i}")
    for i in range(4): rbf(128 + i)
    for i in range(4): a(f"v_add_f32 v{128+i}, v{128+i}, v{144+i}")
    a("v_cvt_pk_bf16_f32 v20, v128, v129\nv_cvt_pk_bf16_f32 v21, v130, v131")
    a("s_mov_b64 exec, 0xff\nbuffer_store_dwordx2 v[20:21], v38, s[68:71], s75 offen\ns_mov_b64 exec, 1")
    a("s_cmp_lg_u32 s2, 0\ns_cbranch_scc1 L_noep\nbuffer_store_dword v13, v8, s[56:59], 0 offen" + ("" if epl else " sc1") + "\nL_noep:")
    if spin:
        if spinwg >= 0: a(f"s_cmp_lg_u32 s2, {spinwg}\ns_cbranch_scc1 L_exit")
        a(f"L_spin:\ns_memrealtime s[64:65]\ns_waitcnt lgkmcnt(0)\ns_sub_u32 s64, s64, s66\ns_cmp_lt_u32 s64, {spin}\ns_cbranch_scc1 L_spin")
    if diag:
        a("s_waitcnt vmcnt(0)")
        stamp(7)
        a("s_mov_b32 s31, 64")
        a("L_stamps:")
        a("s_waitcnt lgkmcnt(0)\ns_mov_b64 exec, 1")
        if dbgout:
            a("v_mov_b32 v8, 0\ns_cmp_lg_u32 s31, 0\ns_cbranch_scc1 L_dbgc")
            for n, k in enumerate((0, 2, 3, 4, 5)):
                a(f"v_mov_b32 v12, s{84+2*k}\nv_not_b32 v13, v12\nglobal_atomic_umax v8, v12, s[24:25] offset:{8*n}\nglobal_atomic_umax v8, v13, s[24:25] offset:{8*n+4}")
            a("s_endpgm\nL_dbgc:")
            for n, k in enumerate((2, 6, 7)):
                a(f"v_mov_b32 v12, s{84+2*k}\nv_not_b32 v13, v12\nglobal_atomic_umax v8, v12, s[24:25] offset:{40+8*n}\nglobal_atomic_umax v8, v13, s[24:25] offset:{44+8*n}")
        else:
            a("s_add_u32 s26, s26, 0x8000000\ns_addc_u32 s27, s27, 0\ns_lshl_b32 s74, s2, 7\ns_add_u32 s74, s74, s31\nv_mov_b32 v8, s74")
            for q in range(4):
                for e in range(4): a(f"v_mov_b32 v{12+e}, s{84+4*q+e}")
                a(f"global_store_dwordx4 v8, v[12:15], s[26:27] offset:{16*q}")
                a("s_nop 2")
    a("L_exit:\ns_endpgm")

    out = HDR
    out += "; Override launch geometry by editing the next line (default: block=256,\n"
    out += f"; @launch grid=(256,1,1) block=(320,1,1) lds={LDS_BYTES}\n"
    out += DOC
    out += f'.amdgcn_target "amdgcn-amd-amdhsa--gfx950"\n.text\n.globl {NAME}\n.p2align 8\n.type {NAME},@function\n{NAME}:\n'
    out += a.text()
    if E2: out += f"; padding: the code prefetch at entry reads up to 41 KiB past the entry point\n.fill (41984 - (. - {NAME})) / 4, 4, 0xbf800000\n"
    out += f""".section .rodata,"a"
.p2align 6
.amdhsa_kernel {NAME}
  .amdhsa_next_free_vgpr 256
  .amdhsa_next_free_sgpr 102
  .amdhsa_accum_offset 256
  .amdhsa_group_segment_fixed_size 0
  .amdhsa_kernarg_size 96
  .amdhsa_user_sgpr_count 2
  .amdhsa_user_sgpr_kernarg_segment_ptr 1
  .amdhsa_system_sgpr_workgroup_id_x 1
  .amdhsa_float_denorm_mode_32 3
.end_amdhsa_kernel
"""
    return out, LDS_BYTES

if __name__ == "__main__":
    kw = {}
    for x in sys.argv[2:]:
        k, v = x.split("=")
        try: v = int(v)
        except ValueError: pass
        kw[k] = v
    s, lds = gen(**kw)
    open(sys.argv[1], "w").write(s)
    print("lds", lds)
```

```python
import sys
from asmlib import Asm

NAME = "parallel_sum__mha_block_cached__glu_gated_geglu__decode_kernel"
HDR = open("parallel_sum__mha_block_cached__glu_gated_geglu__decode.s.ref").read().split("; Override launch")[0]

H0Q, H0GU, H1, H2A, H2F = 0x1000, 0x50000, 0x90000, 0xD0000, 0xF0000
LOFF = 0x40000
PHI, REF = 0x1D0000, 0x1F0000
WS_BYTES = 0x200000
SC = 0
RED_Q, RED_G, RED_U, RED_A, RED_O, RED_L = [32768 + 2048 * i for i in range(6)]
QL = 32768 + 12288
HL = QL + 256
MX = HL + 1024
LS = MX + 16
FL = LS + 16
FG = FL + 16
QF = FG + 16
RF = QF + 16
PH = RF + 16
LDS_BYTES = PH + 32

DOC = '; ---------------------------------------------------------------------------------------------------------------------\n; ---------------------------------------------------------------------------------------------------------------------\n'
LOG2E = 0x3fb8aa3b
SCALE = 0x3db504f3

def gen(diag=False, PRIO=0, RB=0, RD=0, E2=0, FB=0, EP=0, FAST=0, epl=1, B0L=0, GE=0, GA=0, TL=0, NREP=8, RP=0, NREF=64, GP2=0, skipw='', HP=0, gap=2, T4=0, L4=2, LOC=1, h1l='sc1+nt', PD=1, QTO=8, fakex=0, LP=0, LN=16, lsl=0, gul='sc1', ql='sc1', exs='sc1', exl='sc1', WDW=0, CP=0, NB2F=1, GF=6, touch=0, DS0=0, KE=0, JD=0, MS=0, PT=0, PP=0, FW=0, KB=0, NBG=0, DB=12, MAP='rrww01234Bjjj', XK=0, IL=0, WI=1, qdelay=0, perm=0, qfl='sc1', tfl='sc1', WDF=3, warm=0, gufl='sc1+nt', nogu=0, noq=0, gudelay=0, spin=0, spinwg=-1, G0=4, GP=8, GG=2, GR=4, slope=1, noex=0, NWT=8, CSL=8, GEX=60, fixed=0, DL='5', TH='', T0=200, TAU=220, DT=5, early=4, dbgout=0, ser=0, maskpoll=1, sl1=1, sl2=1, D=8, DS=8, D2=0, NB2=0, pol_w="nt", pol_gu="nt", pol_kv="nt"):
    a = Asm()
    def stamp(i, mode=1):
        if diag == mode or (diag and i in (0, 7)) or (diag and incomm[0]):
            a(f"s_memrealtime s[{84+2*i}:{85+2*i}]")
    incomm = [False]
    def series(k):
        if not ser: return
        if k == 0: a("s_memrealtime s[100:101]")
        if k == 5: a("s_waitcnt lgkmcnt(0)\ns_mov_b32 m0, s71\ns_nop 0\nv_writelane_b32 v255, s100, m0\ns_add_u32 s71, s71, 1")
    def srd(n, lo, hi, size):
        a(f"s_mov_b32 s{n}, {lo}\ns_mov_b32 s{n+1}, {hi}\ns_mov_b32 s{n+2}, {size}\ns_mov_b32 s{n+3}, 0x20000")
    def wave_reduce(v, t, op):
        for r in (8, 4, 2, 1):
            a(f"{op}_dpp v{v}, v{v}, v{v} row_ror:{r} row_mask:0xf bank_mask:0xf")
        a(f"v_mov_b32 v{t}, v{v}\nv_permlane16_swap_b32 v{v}, v{t}\n{op} v{v}, v{v}, v{t}")
        a(f"v_mov_b32 v{t}, v{v}\nv_permlane32_swap_b32 v{v}, v{t}\n{op} v{v}, v{v}, v{t}")
    def rbf(v):
        a(f"v_cvt_pk_bf16_f32 v{v}, v{v}, v{v}\nv_and_b32 v{v}, 0xffff0000, v{v}")
    def buildA(buf, P, c):
        base = 24 + 4 * buf
        for t in range(4):
            a(f"v_and_b32_dpp v{base+t}, v{P}, v{120+t} row_newbcast:{c} row_mask:0xf bank_mask:0xf")
    def mfma(acc, buf, breg, first):
        base = 24 + 4 * buf
        a(f"v_mfma_f32_16x16x32_bf16 v[{acc}:{acc+3}], v[{base}:{base+3}], v[{breg}:{breg+3}], " + ("0" if first else f"v[{acc}:{acc+3}]"))
    def writeD(acc, off):
        a(f"s_mov_b64 exec, s[78:79]\nds_write_b128 v225, v[{acc}:{acc+3}] offset:{off}\ns_mov_b64 exec, -1")
    def poll(label, loads, tagregs, acc=250, t1=251, t2=252, sleep=1):
        a.fence()
        a(f"s_mov_b32 s77, 0x100000")
        a(f"{label}:")
        for l in loads: a(l)
        a("s_waitcnt vmcnt(0)")
        a(f"v_xor_b32 v{acc}, s30, v{tagregs[0]}")
        rest = tagregs[1:]
        while len(rest) >= 2:
            a(f"v_xor_b32 v{t1}, s30, v{rest[0]}\nv_xor_b32 v{t2}, s30, v{rest[1]}\nv_or3_b32 v{acc}, v{acc}, v{t1}, v{t2}")
            rest = rest[2:]
        if rest:
            a(f"v_xor_b32 v{t1}, s30, v{rest[0]}\nv_or_b32 v{acc}, v{acc}, v{t1}")
        a(f"v_cmp_ne_u32 vcc, 0, v{acc}")
        a(f"s_cmp_eq_u64 vcc, 0\ns_cbranch_scc1 {label}_ok")
        if maskpoll: a("s_mov_b64 exec, vcc")
        a(f"s_sub_u32 s77, s77, 1\ns_cmp_eq_u32 s77, 0\ns_cbranch_scc1 {label}_ok\ns_sleep {sleep}\ns_branch {label}")
        a(f"{label}_ok:")
        a("s_mov_b64 exec, -1")
    def pollc(label, loads, regs, full=(), acc=250, sleep=1, tries=0x100000, fail=None):
        a.fence()
        a(f"s_mov_b32 s77, {tries}\ns_and_b32 s74, s30, 0xff")
        a(f"{label}:")
        for l in loads: a(l)
        a("s_waitcnt vmcnt(0)")
        for r in regs: a(f"v_xor_b32 v{r}, s74, v{r}")
        a(f"v_or_b32 v{acc}, v{regs[0]}, v{regs[1]}")
        assert len(regs) % 2 == 0
        for i in range(2, len(regs), 2): a(f"v_or3_b32 v{acc}, v{acc}, v{regs[i]}, v{regs[i+1]}")
        a(f"v_and_b32 v{acc}, 0xff, v{acc}")
        for r in full: a(f"v_bitop3_b32 v{acc}, v{r}, s30, v{acc} bitop3:0xbe")
        a(f"v_cmp_ne_u32 vcc, 0, v{acc}")
        a(f"s_cmp_eq_u64 vcc, 0\ns_cbranch_scc1 {label}_ok")
        a(f"s_sub_u32 s77, s77, 1\ns_cmp_eq_u32 s77, 0\ns_cbranch_scc1 {fail or label + '_ok'}")
        if sleep: a(f"s_sleep {sleep}")
        a(f"s_branch {label}")
        a(f"{label}_ok:")
        a("s_mov_b64 exec, -1")
    def pollp(label, mk, setA, setB, nlow, acc=250, gap=2):
        def check(regs):
            a(f"v_xor_b32 v{acc}, s30, v{regs[0]}")
            for r in regs[1:nlow]: a(f"v_bitop3_b32 v{acc}, v{r}, s30, v{acc} bitop3:0xbe")
            a(f"v_and_b32 v{acc}, 0xff, v{acc}")
            for r in regs[nlow:]: a(f"v_bitop3_b32 v{acc}, v{r}, s30, v{acc} bitop3:0xbe")
            a(f"v_cmp_ne_u32 vcc, 0, v{acc}\ns_cmp_eq_u64 vcc, 0")
        n = len(mk(setA))
        a.fence()
        a("s_mov_b32 s77, 0x100000")
        for l in mk(setA): a(l)
        a(f"s_sleep {gap}")
        a(f"{label}:")
        for l in mk(setB): a(l)
        a(f"s_waitcnt vmcnt({n})")
        check(setA)
        a(f"s_cbranch_scc1 {label}_ok")
        for l in mk(setA): a(l)
        a(f"s_waitcnt vmcnt({n})")
        check(setB)
        a(f"s_cbranch_scc1 {label}_b")
        a(f"s_sub_u32 s77, s77, 1\ns_cmp_lg_u32 s77, 0\ns_cbranch_scc1 {label}")
        a(f"{label}_b:")
        return
    def masks():
        a("v_and_b32 v12, 1, v3\nv_lshrrev_b32 v13, 1, v3\nv_cmp_eq_u32 vcc, 1, v12\nv_mov_b32 v14, 0xffff\nv_mov_b32 v15, 0xffff0000\nv_cndmask_b32 v14, v14, v15, vcc")
        for t in range(4):
            a(f"v_cmp_eq_u32 vcc, {t}, v13\nv_cndmask_b32 v{120+t}, 0, v14, vcc")
    def poll_rows(label, loads, sbase, sleep=1, tagreg="s30", mask=None, hook=None):
        a.fence()
        n = len(loads)
        a(f"s_mov_b32 s77, 0x100000\ns_mov_b32 s76, {(1 << n) - 1}")
        a(f"{label}:")
        for i, (l, _, _) in enumerate(loads):
            a(f"s_bitcmp1_b32 s76, {i}\ns_cbranch_scc0 {label}_s{i}")
            a(l)
            a(f"{label}_s{i}:")
        a("s_waitcnt vmcnt(0)")
        for i, (_, ta, tb) in enumerate(loads):
            a(f"v_xor_b32 v250, {tagreg}, v{ta}\nv_bitop3_b32 v250, v{tb}, {tagreg}, v250 bitop3:0xbe")
            if mask: a(f"v_and_b32 v250, {mask}, v250")
            a(f"v_cmp_ne_u32 s[{sbase+2*i}:{sbase+2*i+1}], 0, v250")
        a("s_mov_b32 s76, 0")
        for i in range(n):
            a(f"s_cmp_lg_u64 s[{sbase+2*i}:{sbase+2*i+1}], 0\ns_cselect_b32 s74, {1 << i}, 0\ns_or_b32 s76, s76, s74")
        a(f"s_cmp_eq_u32 s76, 0\ns_cbranch_scc1 {label}_ok")
        if hook:
            a(f"s_cmp_lg_u32 s77, {0x100000 - QTO}\ns_cbranch_scc1 {label}_nh\n{hook}\n{label}_nh:")
        a(f"s_sub_u32 s77, s77, 1\ns_cmp_eq_u32 s77, 0\ns_cbranch_scc1 {label}_ok\ns_sleep {sleep}\ns_branch {label}")
        a(f"{label}_ok:")

    def common():
        if FAST: a("s_lshl3_add_u32 s2, s28, s29")
        a("s_load_dword s30, s[26:27], 0")
        a("s_mov_b32 s78, -1\ns_mov_b32 s79, 0")
        srd(52, "s4", "s5", 2048)
        srd(56, "s26", "s27", WS_BYTES)
    if FAST:
        assert perm == 1
        a("s_cmpk_ge_u32 s2, 0x100\ns_cbranch_scc1 L_exit")
        stamp(0)
        if fixed or spin: a("s_memrealtime s[66:67]")
        a("s_load_dwordx16 s[4:19], s[0:1], 0\ns_load_dwordx8 s[20:27], s[0:1], 64")
        if EP:
            a("; first workgroup of each XCD touches every 128-byte line of the code so later instruction fetches hit the L2")
            if EP > 1: a(f"s_cmp_ge_u32 s2, {EP}\ns_cbranch_scc1 L_noep0")
            if E2 == 2: a("s_getpc_b64 s[32:33]\nv_lshlrev_b32 v5, 7, v0\nv_mad_u64_u32 v[8:9], vcc, v5, 1, s[32:33]\nglobal_load_dword v253, v[8:9], off")
            elif E2: a(f"s_getpc_b64 s[32:33]\nv_lshlrev_b32 v5, 7, v0\nglobal_load_dword v253, v5, s[32:33]\nglobal_load_dword v254, v5, s[32:33] offset:64")
            else: a(f"s_getpc_b64 s[32:33]\nL_pc1:\nv_lshlrev_b32 v5, 7, v0\nv_min_u32 v5, L_exit-L_pc1, v5\nglobal_load_dword v253, v5, s[32:33]")
            if EP > 1: a("L_noep0:")
        a("v_lshrrev_b32 v5, 6, v0\nv_and_b32 v1, 63, v0\nv_readfirstlane_b32 s3, v5")
        a("v_lshrrev_b32 v2, 4, v1\nv_and_b32 v3, 15, v1")
        a("s_and_b32 s28, s2, 7\ns_lshr_b32 s29, s2, 6\ns_lshl2_add_u32 s28, s28, s29\ns_lshr_b32 s29, s2, 3\ns_and_b32 s29, s29, 7")
        a("v_lshlrev_b32 v6, 4, v1\nv_lshlrev_b32 v7, 4, v3")
        a("s_cmp_eq_u32 s3, 4\ns_cbranch_scc1 L_comm0")
        a("s_lshl2_add_u32 s74, s29, s3\ns_lshl_b32 s75, s74, 10\ns_add_u32 s75, s75, s28\ns_lshl_b32 s75, s75, 8")
        a("v_lshl_add_u32 v10, v2, 13, v7\nv_add_u32 v10, s75, v10\ns_movk_i32 s76, 0x8000")
        a("s_waitcnt lgkmcnt(0)")
        stamp(1, 2); stamp(1, 4)
        a("global_load_dwordx4 v[96:99], v6, s[4:5]\nglobal_load_dwordx4 v[100:103], v6, s[4:5] offset:1024")
        for i in range(8):
            a(f"global_load_dwordx4 v[{128+4*i}:{131+4*i}], v10, s[10:11] {pol_w}")
            if i < 7: a("v_subrev_u32 v10, s76, v10")
        stamp(2, 4)
        common()
        a("s_lshl_b32 s74, s74, 5")
        a("v_and_b32 v8, 7, v3\nv_lshl_add_u32 v8, v8, 2, v2\nv_lshlrev_b32 v8, 1, v8\ns_lshl_b32 s75, s74, 1")
        a("buffer_load_ushort v9, v8, s[52:55], s75 offen")
    else:
        a("s_cmp_ge_u32 s2, 256\ns_cbranch_scc1 L_exit")
        stamp(0)
        if fixed or spin: a("s_memrealtime s[66:67]")
        a("s_load_dwordx16 s[4:19], s[0:1], 0\ns_load_dwordx8 s[20:27], s[0:1], 64")
        a("v_lshrrev_b32 v5, 6, v0\nv_and_b32 v1, 63, v0\nv_readfirstlane_b32 s3, v5")
        a("v_lshrrev_b32 v2, 4, v1\nv_and_b32 v3, 15, v1")
        if perm == 1: a("s_and_b32 s28, s2, 7\ns_lshl_b32 s28, s28, 5\ns_lshr_b32 s2, s2, 3\ns_add_u32 s2, s2, s28")
        a("s_lshr_b32 s28, s2, 3\ns_and_b32 s29, s2, 7")
        a("s_mov_b32 s78, -1\ns_mov_b32 s79, 0")
        a("v_lshlrev_b32 v6, 4, v1")
        a("v_lshlrev_b32 v7, 4, v3")
        a("s_lshl_b32 s74, s29, 2\ns_add_u32 s74, s74, s3\ns_lshl_b32 s74, s74, 5")
        a("s_waitcnt lgkmcnt(0)")
        stamp(1, 2); stamp(1, 4)
        a("s_load_dword s30, s[26:27], 0")
        srd(52, "s4", "s5", 2048)
        srd(56, "s26", "s27", WS_BYTES)
        a("s_cmp_eq_u32 s3, 4\ns_cbranch_scc1 L_comm")

        a("buffer_load_dwordx4 v[96:99], v6, s[52:55], 0 offen\nbuffer_load_dwordx4 v[100:103], v6, s[52:55], 0 offen offset:1024")
        a("v_and_b32 v8, 7, v3\nv_lshl_add_u32 v8, v8, 2, v2\nv_lshlrev_b32 v8, 1, v8\ns_lshl_b32 s75, s74, 1")
        a("buffer_load_ushort v9, v8, s[52:55], s75 offen")
        stamp(2, 4)
        srd(40, "s10", "s11", 0 if "q" in skipw else 1024 * 8192)
        a("v_lshl_add_u32 v10, v2, 13, v7")
        a("s_lshl_b32 s75, s74, 13\ns_lshl_b32 s76, s28, 8\ns_add_u32 s75, s75, s76")
        for i in range(8):
            a(f"buffer_load_dwordx4 v[{128+4*i}:{131+4*i}], v10, s[40:43], s75 offen {pol_w}")
            if i < 7: a("s_add_u32 s75, s75, 32768")
    stamp(3, 4)
    srd(44, "s16", "s17", 0 if "g" in skipw else 1024 * 7168)
    srd(48, "s18", "s19", 0 if "g" in skipw else 1024 * 7168)
    a("v_mul_u32_u24 v11, 7168, v2\nv_add_u32 v11, v11, v7")
    a("v_cmp_gt_u32 vcc, 14, v3\nv_mov_b32 v12, 0x80000000\nv_cndmask_b32 v11, v12, v11, vcc")
    a("s_mul_i32 s76, s74, 7168\ns_mul_i32 s31, s28, 224\ns_add_u32 s76, s76, s31\ns_mov_b32 s75, s76")
    def gload(i):
        a(f"buffer_load_dwordx4 v[{160+4*i}:{163+4*i}], v11, s[44:47], s75 offen {pol_gu}\ns_add_u32 s75, s75, {4*7168}")
    def uload(i):
        a(f"buffer_load_dwordx4 v[{192+4*i}:{195+4*i}], v11, s[48:51], s76 offen {pol_gu}\ns_add_u32 s76, s76, {4*7168}")
    for i in range(GE): gload(i)
    if not B0L: a("s_barrier")
    stamp(4, 4)
    pos = {"r": [], "w": [], "n": [0] * 5, "j": [], "b": []}
    bit = 8
    for ch in str(MAP).replace("B", "bbbb"):
        if ch.isdigit(): pos["n"][int(ch)] = bit
        else: pos[ch].append(bit)
        bit += 1
    assert bit == 24 and len(pos["w"]) == 2 and len(pos["r"]) == 2 and len(pos["j"]) == 3 and len(set(pos["n"])) == 5 and len(pos["b"]) == 4
    maskB = sum(1 << b for b in pos["b"])
    contig = pos["b"][3] - pos["b"][0] == 3
    def spread(sreg, bits, dst):
        a(f"s_mov_b32 {dst}, 0")
        for i, b in enumerate(bits):
            a(f"s_bfe_u32 s38, {sreg}, {(1 << 16) | i}\ns_lshl_b32 s38, s38, {b}\ns_or_b32 {dst}, {dst}, s38")
    spread("s29", pos["j"], "s39")
    a("s_lshl_b32 s31, s28, 24\ns_add_u32 s31, s31, s39\ns_sub_u32 s34, 0x1000000, s39")
    a("s_add_u32 s32, s6, s31\ns_addc_u32 s33, s7, 0\ns_mov_b32 s35, 0x20000")
    a("s_add_u32 s36, s8, s31\ns_addc_u32 s37, s9, 0")
    spread("s3", pos["w"], "s39")
    a(f"v_and_b32 v4, 1, v2\nv_lshlrev_b32 v4, {pos['r'][0]}, v4\nv_lshrrev_b32 v5, 1, v2\nv_lshl_add_u32 v4, v5, {pos['r'][1]}, v4\nv_add3_u32 v4, v4, s39, v7")
    if XK == 1: a("s_and_b32 s60, s2, 31")
    if XK == 2: a("s_mov_b32 s60, s28")
    if XK == 3: a("s_lshl_b32 s60, s29, 2")
    if XK == 4: a("s_lshl_b32 s60, s29, 2\ns_xor_b32 s60, s60, s28")
    if XK == 5: a("s_mul_i32 s60, s2, 0x9e3779b1\ns_lshr_b32 s60, s60, 27")
    if XK == 6: a("s_lshl_b32 s60, s28, 2\ns_and_b32 s60, s60, 28")
    if XK == 7: a("s_and_b32 s60, s28, 28")
    if XK == 8: a("s_and_b32 s60, s28, 3")
    if XK == 9: a("s_lshr_b32 s60, s28, 3")
    if XK == 10: a("s_mul_i32 s60, s28, 0x9e3779b1\ns_lshr_b32 s60, s60, 27")
    if XK == 11: a("s_mov_b32 s60, s3")
    if XK == 12: a("s_and_b32 s60, s29, 1\ns_lshl_b32 s60, s60, 1\ns_xor_b32 s60, s60, s3")
    if XK:
        spread("s60", pos["n"], "s61")
    fn = [sum(((n >> i) & 1) << b for i, b in enumerate(pos["n"])) for n in range(32)] + [1 << pos["b"][0]]
    a("s_mov_b32 s72, 0")
    if XK: a("s_mov_b32 s60, s61")
    if ser: a("s_mov_b32 s71, 0\nv_mov_b32 v255, 0")
    def kslot(n):
        n %= 32
        return 32 + 4 * n if n < 16 else 128 + 4 * (n - 16)
    slot_of = {kslot(n): n for n in range(32)}
    def issueS(reg):
        n = slot_of[reg]
        inc = (fn[n + 1] - fn[n]) & 0xffffffff
        if n == 31 and not contig:
            assert not XK
            a(f"buffer_load_dwordx4 v[{reg}:{reg+3}], v4, s[32:35], s72 offen {pol_kv}\ns_or_b32 s72, s72, {(~maskB) & 0xffffffff}\ns_add_u32 s72, s72, 1\ns_and_b32 s72, s72, {maskB}")
            return
        if XK:
            a(f"buffer_load_dwordx4 v[{reg}:{reg+3}], v4, s[32:35], s60 offen {pol_kv}\ns_add_u32 s72, s72, {inc}\ns_xor_b32 s60, s72, s61")
        else:
            a(f"buffer_load_dwordx4 v[{reg}:{reg+3}], v4, s[32:35], s72 offen {pol_kv}\ns_add_u32 s72, s72, {inc}")
    for n in range(KE): issueS(kslot(n))
    masks()
    a("v_cmp_eq_u32 s[82:83], 1, v12\nv_and_b32 v13, 1, v13\nv_cmp_eq_u32 s[80:81], 1, v13")
    a("s_lshl_b32 s31, s3, 9\nv_lshlrev_b32 v225, 5, v3\nv_lshl_add_u32 v225, v2, 4, v225\nv_add_u32 v225, s31, v225")
    a("s_lshl_b32 s31, s3, 13\nv_lshlrev_b32 v224, 2, v1\nv_add_u32 v224, s31, v224")
    stamp(5, 4)
    if B0L == 1: a("s_barrier")
    a(f"s_waitcnt vmcnt({8 + GE + KE + (1 if FAST else 0)})")
    stamp(2, 2); stamp(6, 4)
    assert GE <= early
    for i in range(GE, early): gload(i)
    for k in range(8):
        a(f"v_lshlrev_b32 v{104+2*k}, 16, v{96+k}\nv_and_b32 v{105+2*k}, 0xffff0000, v{96+k}")
    a("v_add_f32 v12, v104, v105\nv_add_f32 v13, v106, v107\nv_add_f32 v14, v108, v109\nv_add_f32 v15, v110, v111")
    a("v_add_f32 v16, v112, v113\nv_add_f32 v17, v114, v115\nv_add_f32 v18, v116, v117\nv_add_f32 v19, v118, v119")
    a("v_add_f32 v12, v12, v13\nv_add_f32 v14, v14, v15\nv_add_f32 v16, v16, v17\nv_add_f32 v18, v18, v19")
    a("v_add_f32 v12, v12, v14\nv_add_f32 v16, v16, v18\nv_add_f32 v12, v12, v16")
    wave_reduce(12, 13, "v_add_f32")
    a("v_mul_f32 v12, 0x3a800000, v12")
    for k in range(16):
        a(f"v_sub_f32 v{104+k}, v{104+k}, v12")
    a("v_mul_f32 v14, v104, v104\nv_mul_f32 v15, v105, v105\nv_mul_f32 v16, v106, v106\nv_mul_f32 v17, v107, v107")
    for k in range(4, 16):
        a(f"v_fmac_f32 v{14+k%4}, v{104+k}, v{104+k}")
    a("v_add_f32 v14, v14, v15\nv_add_f32 v16, v16, v17\nv_add_f32 v14, v14, v16")
    wave_reduce(14, 13, "v_add_f32")
    a("v_mul_f32 v14, 0x3a800000, v14")
    rbf(14); rbf(12)
    a("v_add_f32 v14, 0x3727c5ac, v14")
    rbf(14)
    a("v_sqrt_f32 v14, v14")
    rbf(14)
    a("v_rcp_f32 v14, v14")
    def ownx():
        a("v_lshlrev_b32 v9, 16, v9\nv_sub_f32 v9, v9, v12")
        rbf(9)
        a("v_mul_f32 v9, v9, v14\nv_cvt_pk_bf16_f32 v124, v9, v9")
    if not FAST: ownx()
    stamp(3, 2)
    if B0L == 2: a("s_barrier")
    def stage1(acc, wbase):
        buildA(0, 124, 0)
        for i in range(8):
            if i < 7: buildA((i + 1) & 1, 124, i + 1)
            mfma(acc, i & 1, wbase + 4 * i, i == 0)
    a(f"s_waitcnt vmcnt({early + KE})")
    stamp(4, 2)
    for i in range(early, 8): gload(i)
    if FAST: ownx()
    stage1(12, 128)
    writeD(12, RED_Q)
    a(f"s_lshl_b32 s31, s3, 2\nv_mov_b32 v16, s31\nv_mov_b32 v17, 1\nds_write_b32 v16, v17 offset:{FL}")
    stamp(1); stamp(5, 2)
    WO0 = 192
    def wsetup():
        srd(40, "s12", "s13", 0 if "o" in skipw else 4096 * 2048)
        a("v_lshl_add_u32 v240, v2, 14, v7")
        a("s_lshl_b32 s31, s28, 2\ns_add_u32 s31, s31, s3\ns_lshl_b32 s75, s31, 16\ns_lshl_b32 s31, s29, 8\ns_add_u32 s75, s75, s31")
        a("v_and_b32 v232, 7, v3\nv_lshrrev_b32 v233, 3, v3\ns_lshl_b32 s31, s28, 13\ns_add_u32 s31, s31, %d" % H1)
        a("v_lshlrev_b32 v232, 10, v232\nv_add_u32 v232, s31, v232")
        a("v_lshlrev_b32 v233, 4, v233\nv_lshl_add_u32 v233, v2, 5, v233\ns_lshl_b32 s31, s3, 7\nv_add3_u32 v233, v233, s31, v232")
        a("s_add_u32 s30, s30, 1")
    wl_all = []
    for t in range(8):
        wl_all.append(f"buffer_load_dwordx4 v[{WO0+4*t}:{WO0+3+4*t}], v240, s[40:43], s75 offen {pol_w}\ns_add_u32 s75, s75, 2048")
    assert DS <= 8 and KE + DS - 1 <= 15
    stamp(1, 3)
    for i in range(8):
        a(f"s_waitcnt vmcnt({DS-1})")
        uload(i)
    stamp(2, 3)
    for n in range(KE, 32):
        a(f"s_waitcnt vmcnt({(DS0 if (DS0 and n >= 16) else DS)-1})")
        issueS(kslot(n))
        if n % 8 == 7: stamp(3 + n // 8, 3)
        if n == KE:
            stage1(16, 160)
        if n == KE + DS - 1:
            stage1(20, 192)
            writeD(16, RED_G)
            writeD(20, RED_U)
            if NB2F: a(f"s_lshl_b32 s31, s3, 2\nv_mov_b32 v16, s31\nv_mov_b32 v17, 1\nds_write_b32 v16, v17 offset:{FG}")
        if n == 15:
            a("s_waitcnt lgkmcnt(0)")
            wsetup()
            for x in wl_all[:8 - NWT]:
                a(f"s_waitcnt vmcnt({DS-1})"); a(x)
    a("v_mov_b32 v126, 0xff800000\nv_mov_b32 v127, 0\ns_mov_b32 s76, %d" % SCALE)
    stamp(6, 2)
    if NB2F:
        a("v_mov_b32 v247, 0")
        a.fence()
        a(f"L_qw:\nds_read_b32 v16, v247 offset:{QF}\nds_read_b128 v[8:11], v7 offset:{QL}\ns_waitcnt lgkmcnt(0)\nv_readfirstlane_b32 s31, v16")
        a("s_cmp_eq_u32 s31, 1\ns_cbranch_scc1 L_qw_ok\ns_sleep 1\ns_branch L_qw\nL_qw_ok:")
        stamp(2)
    else:
        a("s_waitcnt lgkmcnt(0)\ns_barrier")
        stamp(2)
        a(f"ds_read_b128 v[8:11], v7 offset:{QL}\ns_waitcnt lgkmcnt(0)")
    levels = [float(x.replace("h", ".5").replace("q", ".25").replace("t", ".75")) for x in str(DL).split("-")]
    def wv(d, k):
        f = d - int(d)
        up = (f == 0.5 and k % 2 == 1) or (f == 0.25 and k % 4 == 3) or (f == 0.75 and k % 4 != 0)
        return int(d) - 1 + (1 if up else 0)
    ths = [int(x) for x in str(TH).split("/")] if TH != "" else []
    assert len(ths) == len(levels) - 1
    a(f"s_mov_b32 s70, {len([t for t in ths if t < 0])}\ns_mov_b32 s69, 0\ns_mov_b32 s67, 0")
    if fixed: a(f"s_add_u32 s66, s66, {T0}")
    a("s_lshl_b32 s31, s3, 3\nv_mov_b32 v246, s31\nv_mov_b32 v247, 0")
    def control(k):
        if k == 7: a(f"s_memrealtime s[64:65]\nds_read_b64 v[242:243], v247 offset:{RF}")
        if k == 12:
            a("s_waitcnt lgkmcnt(0)\nv_readfirstlane_b32 s62, v242\nv_readfirstlane_b32 s63, v243")
            a("s_sub_u32 s68, s64, s69\ns_add_u32 s69, s69, %d\ns_add_u32 s67, s67, 1" % TAU)
            a(f"v_mov_b32 v244, s68\nv_mov_b32 v245, s67\nds_write_b64 v246, v[244:245] offset:{PH}")
            if fixed: a("s_sub_u32 s68, s68, s66")
            else: a("s_sub_u32 s68, s68, s62\ns_and_b32 s68, s68, s63")
            a("s_mov_b32 s70, 0")
            for i, t in enumerate(ths):
                a(f"s_cmp_gt_i32 s68, {t}\ns_addc_u32 s70, s70, 0")
            if T4: a(f"s_cmp_gt_i32 s68, {T4}\ns_cselect_b32 s70, {L4}, s70")
    uid = [0]
    def variants(fn):
        uid[0] += 1; u = uid[0]
        a.fence()
        for i in range(1, len(levels)):
            a(f"s_cmp_eq_u32 s70, {i}\ns_cbranch_scc1 L_v{u}_{i}")
        for i, d in enumerate(levels):
            if i: a(f"L_v{u}_{i}:")
            fn(d)
            a.fence()
            if i < len(levels) - 1: a(f"s_branch L_v{u}_end")
        a(f"L_v{u}_end:")

    def kgroup(half, d):
        for k in range(16):
            series(k); control(k)
            r = kslot(16 * half + k); acc = 12 + k % 4
            a(f"v_dot2_f32_bf16 v{acc}, v{r}, v8, 0\nv_dot2_f32_bf16 v{acc}, v{r+1}, v9, v{acc}\nv_dot2_f32_bf16 v{acc}, v{r+2}, v10, v{acc}\nv_dot2_f32_bf16 v{acc}, v{r+3}, v11, v{acc}")
            a(f"s_waitcnt vmcnt({wv(d, k)})")
            issueS(r)
            if k % 4 == 3:
                C = 20 + k // 4
                a("v_add_f32_dpp v16, v12, v12 row_ror:8 row_mask:0xf bank_mask:0x3")
                a("v_add_f32_dpp v17, v14, v14 row_ror:8 row_mask:0xf bank_mask:0x3")
                a("v_add_f32_dpp v16, v13, v13 row_ror:8 row_mask:0xf bank_mask:0xc")
                a("v_add_f32_dpp v17, v15, v15 row_ror:8 row_mask:0xf bank_mask:0xc")
                a(f"v_add_f32_dpp v{C}, v16, v16 row_shl:4 row_mask:0xf bank_mask:0x5")
                a(f"v_add_f32_dpp v{C}, v17, v17 row_shr:4 row_mask:0xf bank_mask:0xa")
        for C in range(20, 24):
            a(f"v_add_f32_dpp v{C}, v{C}, v{C} quad_perm:[2,3,0,1] row_mask:0xf bank_mask:0xf")
        a("v_cndmask_b32 v20, v20, v21, s[80:81]\nv_cndmask_b32 v22, v22, v23, s[80:81]")
        a("v_add_f32_dpp v20, v20, v20 quad_perm:[1,0,3,2] row_mask:0xf bank_mask:0xf")
        a("v_add_f32_dpp v22, v22, v22 quad_perm:[1,0,3,2] row_mask:0xf bank_mask:0xf")
        a("v_cndmask_b32 v18, v20, v22, s[82:83]")
        rbf(18)
        a("v_mul_f32 v18, s76, v18")
        rbf(18)
        a("v_max_f32 v126, v126, v18\nds_write_b32 v224, v18\nv_add_u32 v224, 256, v224")
    a("s_mov_b32 s73, 16")
    a("L_kloop:")
    a("s_cmp_lg_u32 s73, 1\ns_cbranch_scc1 L_knosw\ns_mov_b32 s32, s36\ns_mov_b32 s33, s37\ns_mov_b32 s72, 0\n" + ("s_mov_b32 s60, s61\n" if XK else "") + "L_knosw:")
    variants(lambda d: kgroup(0, d))
    if KB: a(f"s_cmp_eq_u32 s73, 1\ns_cselect_b32 s70, {len(levels)-1}, s70")
    variants(lambda d: kgroup(1, d))
    a("s_sub_u32 s73, s73, 1\ns_cmp_lg_u32 s73, 0\ns_cbranch_scc1 L_kloop")
    wave_reduce(126, 13, "v_max_f32")
    a(f"s_lshl_b32 s31, s3, 2\nv_mov_b32 v13, s31\nds_write_b32 v13, v126 offset:{MX}")
    a("v_subrev_u32 v224, 8192, v224")
    stamp(3)
    a("ds_read_b32 v125, v224\nv_mov_b32 v226, v126")
    a("s_mov_b32 s76, %d" % LOG2E)
    a("s_waitcnt lgkmcnt(0)")
    def mkP():
        a("v_sub_f32 v125, v125, v226\nv_mul_f32 v125, s76, v125\nv_exp_f32 v125, v125\nv_add_f32 v127, v127, v125\nv_cvt_pk_bf16_f32 v125, v125, v125")
    mkP()
    a("v_mov_b32 v124, v125\nv_mov_b32 v12, 0\nv_mov_b32 v13, 0\nv_mov_b32 v14, 0\nv_mov_b32 v15, 0")
    lam = [4 * (((c >> 1) & 1) + 2 * (c & 1)) + [0, 2, 1, 3][c >> 2] for c in range(16)]
    inv = [lam.index(i) for i in range(16)]
    buildA(0, 124, inv[0])
    def vgroup(half, pre, post, last=False, ctl=True):
        for k in range(16):
            series(k)
            if ctl: control(k)
            if k == 0 and not last:
                a("v_add_u32 v224, 256, v224\nds_read_b32 v125, v224")
            if k == 6 and not last:
                a("s_waitcnt lgkmcnt(0)"); mkP()
            if k < 15: buildA((k + 1) & 1, 124, inv[k + 1])
            elif not last:
                buildA(0, 125, inv[0]); a("v_mov_b32 v124, v125")
            pre(k)
            mfma(12, k & 1, kslot(16 * half + k), False)
            post(k)
            if last and k == 2:
                wave_reduce(127, 16, "v_add_f32")
                a(f"s_lshl_b32 s31, s3, 9\nv_mov_b32 v20, s31\nv_mov_b32 v16, v127\nv_mov_b32 v17, 0\nv_mov_b32 v18, 0\nv_mov_b32 v19, 0\nds_write_b128 v20, v[16:19] offset:{RED_L}")
    def vsteady(half, d):
        def post(k):
            a(f"s_waitcnt vmcnt({wv(d, k)})"); issueS(kslot(16 * half + k))
        vgroup(half, lambda k: None, post)
    a(f"s_mov_b32 s73, {15 - (NBG + 1) // 2}")
    a("L_vloop:")
    variants(lambda d: vsteady(0, d))
    variants(lambda d: vsteady(1, d))
    a("s_sub_u32 s73, s73, 1\ns_cmp_lg_u32 s73, 0\ns_cbranch_scc1 L_vloop")
    if NBG % 2: variants(lambda d: vsteady(0, d))
    for i in range(NBG): vsteady((NBG + i) % 2, DB)
    wl = wl_all[8 - NWT:]
    nw = [0]
    dmax = DB if NBG else int(max(levels) + 0.99)
    wsteps = [n for n in range(32) if (n < 32 - DT and n % 5 == 4) or n >= 32 - DT]
    def fin(half):
        def pre(k):
            n = 16 * half + k
            if n >= 32 - dmax: a(f"s_waitcnt vmcnt({31 - n + nw[0]})")
        def post(k):
            n = 16 * half + k
            if n in wsteps and nw[0] < len(wl):
                a(wl[nw[0]]); nw[0] += 1
        vgroup(half, pre, post, last=(half == 1), ctl=False)
    a("L_tail0:")
    fin(0); fin(1)
    writeD(12, RED_O)
    for x in wl[nw[0]:]: a(x)
    a("s_waitcnt lgkmcnt(0)\ns_barrier")
    stamp(4)
    pollc("L_p1", ["buffer_load_dwordx4 v[228:231], v233, s[56:59], 0 offen " + h1l.replace("+", " "),
                   "buffer_load_dwordx4 v[236:239], v232, s[56:59], 0 offen offset:512 " + h1l.replace("+", " ")], [228, 229, 230, 231, 236, 237], full=(238, 239), sleep=sl1)
    stamp(5)
    steps = ["quad_perm:[1,0,3,2]", "quad_perm:[2,3,0,1]", "row_half_mirror"]
    O4 = (228, 229, 230, 231)
    a("v_mov_b32 v240, v237")
    for s in steps: a(f"v_max_f32_dpp v240, v240, v240 {s} row_mask:0xf bank_mask:0xf")
    a("v_sub_f32 v237, v237, v240\nv_mul_f32 v237, s76, v237\nv_exp_f32 v237, v237")
    for v in (236,) + O4: a(f"v_mul_f32 v{v}, v{v}, v237")
    for s in steps:
        for v in (236,) + O4: a(f"v_add_f32_dpp v{v}, v{v}, v{v} {s} row_mask:0xf bank_mask:0xf")
    a("v_rcp_f32 v236, v236")
    for v in O4: a(f"v_mul_f32 v{v}, v{v}, v236")
    for v in O4: a(f"v_cvt_pk_bf16_f32 v{v}, v{v}, v{v}")
    seq = [(b, i) for b in range(2) for i in range(4)]
    buildA(0, 228, 0)
    for t, (b, i) in enumerate(seq):
        if t < 7:
            b2, i2 = seq[t + 1]; buildA((t + 1) & 1, 228 + i2, 8 * b2)
        mfma(16, t & 1, WO0 + 4 * t, t == 0)
    writeD(16, RED_A)
    a("s_waitcnt lgkmcnt(0)\ns_barrier")
    stamp(6)
    if LP:
        a("s_cmp_lg_u32 s3, 0\ns_cbranch_scc1 L_norem\ns_mov_b64 exec, s[78:79]")
        for w in range(4): a(f"ds_read_b128 v[{32+4*w}:{35+4*w}], v6 offset:{RED_A+512*w}")
        a("s_lshl_b32 s31, s2, 9\ns_add_u32 s31, s31, %d\ns_mov_b32 s62, 0xff\nv_mov_b32 v20, s30\ns_waitcnt lgkmcnt(0)" % H2A)
        for i in range(4): a(f"v_add_f32 v{32+i}, v{32+i}, v{36+i}\nv_add_f32 v{40+i}, v{40+i}, v{44+i}")
        for i in range(4): a(f"v_add_f32 v{32+i}, v{32+i}, v{40+i}")
        for i in range(4): a(f"v_bfi_b32 v{32+i}, s62, v20, v{32+i}")
        a("buffer_store_dwordx4 v[32:35], v6, s[56:59], s31 offen sc1\ns_mov_b64 exec, -1")
        a.fence()
        a("L_norem:")
    if ser:
        a("s_add_u32 s68, s26, 0x9000000\ns_addc_u32 s69, s27, 0\ns_lshl_b32 s31, s2, 2\ns_add_u32 s31, s31, s3\ns_lshl_b32 s31, s31, 8\nv_lshlrev_b32 v16, 2, v1\nv_add_u32 v16, s31, v16")
        a("global_store_dword v16, v255, s[68:69]")
    if diag:
        a("s_waitcnt lgkmcnt(0)\ns_getreg_b32 s98, hwreg(HW_REG_HW_ID)\ns_getreg_b32 s99, hwreg(HW_REG_XCC_ID)")
        a("s_cmp_lg_u32 s3, 0\ns_cbranch_scc1 L_exit\ns_mov_b32 s31, 0\ns_branch L_stamps")
    else:
        a("s_endpgm")

    if FAST:
        a("L_comm0:\ns_waitcnt lgkmcnt(0)")
        common()
    a("L_comm:")
    incomm[0] = True
    a(f"v_mov_b32 v8, 0\nv_mov_b32 v20, 0\nv_mov_b32 v21, 0\nv_mov_b32 v22, 0\nv_mov_b32 v23, 0\nds_write_b128 v8, v[20:23] offset:{FL}\nds_write_b128 v8, v[20:23] offset:{FG}\nds_write_b128 v8, v[20:23] offset:{QF}\nds_write_b128 v8, v[20:23] offset:{RF}\nds_write_b128 v8, v[20:23] offset:{PH}\nds_write_b128 v8, v[20:23] offset:{PH+16}\ns_waitcnt lgkmcnt(0)\ns_barrier")
    a("s_lshl_b32 s31, s29, 8\ns_and_b32 s75, s28, 3\ns_lshl_b32 s75, s75, 6\ns_add_u32 s75, s75, s31")
    a("v_and_b32 v37, 7, v1\nv_lshlrev_b32 v38, 3, v37")
    a("buffer_load_dwordx2 v[10:11], v38, s[52:55], s75 offen")
    if TL:
        a("s_lshl_b32 s31, s28, 24\ns_add_u32 s72, s8, s31\ns_addc_u32 s73, s9, 0\ns_lshl_b32 s31, s28, 18\ns_add_u32 s80, s12, s31\ns_addc_u32 s81, s13, 0\ns_mov_b32 s82, 27")
    def wdload():
        srd(36, "s20", "s21", 0 if "d" in skipw else 3584 * 2048)
        a("v_lshl_add_u32 v58, v2, 11, v7\ns_mul_i32 s35, s28, %d\ns_lshl_b32 s31, s29, 8\ns_add_u32 s35, s35, s31" % (112 * 2048))
        for i in range(28):
            if i >= WDF: a(f"s_waitcnt vmcnt({WDF-1})")
            a(f"buffer_load_dwordx4 v[{128+4*i}:{131+4*i}], v58, s[36:39], s35 offen {pol_w}\ns_add_u32 s35, s35, 8192")
    if CP:
        a("s_and_b32 s34, s2, 31" if perm == 1 else "s_mov_b32 s34, s28")
        a(f"s_cmp_ge_u32 s34, {CP}\ns_cbranch_scc1 L_nocp")
        a(f"s_getpc_b64 s[32:33]\nL_pc0:\ns_sub_u32 s32, s32, L_pc0-{NAME}\ns_subb_u32 s33, s33, 0\ns_lshl_b32 s31, s34, 13\nv_add_u32 v20, s31, v6\ns_mov_b32 s31, L_exit-{NAME}-16")
        for i in range(8): a(f"v_min_u32 v{21+i}, s31, v20\nglobal_load_dwordx4 v[{64+4*i}:{67+4*i}], v{21+i}, s[32:33]\nv_add_u32 v20, 1024, v20")
        a("L_nocp:")
    if WDW == 1: wdload()
    if touch:
        a("s_mov_b64 exec, 1")
        a("s_lshl_b32 s31, s28, 24\ns_add_u32 s32, s6, s31\ns_addc_u32 s33, s7, 0\nglobal_load_dword v20, v8, s[32:33] nt")
        a("s_mul_i32 s31, s29, %d\ns_add_u32 s32, s16, s31\ns_addc_u32 s33, s17, 0\nglobal_load_dword v21, v8, s[32:33] nt" % (128 * 7168))
        a("s_add_u32 s32, s18, s31\ns_addc_u32 s33, s19, 0\nglobal_load_dword v22, v8, s[32:33] nt")
        a("global_load_dword v23, v8, s[26:27] nt")
        a("s_mov_b64 exec, -1")
    masks()
    srd(68, "s22", "s23", 2048)
    a("v_lshlrev_b32 v9, 3, v1")
    a("s_lshl_b32 s31, s2, 10\ns_add_u32 s40, s31, %d" % H0Q)
    a("s_lshl_b32 s31, s28, 13\ns_add_u32 s41, s31, %d\ns_add_u32 s42, s41, 4096" % H0Q)
    a("s_waitcnt lgkmcnt(0)\ns_add_u32 s30, s30, 1")
    def red4(dst, off, tmp):
        for w in range(4): a(f"ds_read_b64 v[{tmp+2*w}:{tmp+2*w+1}], v9 offset:{off+512*w}")
    def sum4(dst, tmp):
        a(f"v_add_f32 v{dst}, v{tmp}, v{tmp+2}\nv_add_f32 v{dst+2}, v{tmp+1}, v{tmp+3}\nv_add_f32 v{tmp+4}, v{tmp+4}, v{tmp+6}\nv_add_f32 v{tmp+5}, v{tmp+5}, v{tmp+7}")
        a(f"v_add_f32 v{dst}, v{dst}, v{tmp+4}\nv_add_f32 v{dst+2}, v{dst+2}, v{tmp+5}")
    a("v_mov_b32 v13, s30\nv_mov_b32 v15, s30\nv_mov_b32 v17, s30\nv_mov_b32 v19, s30")
    a.fence()
    a(f"L_fl:\nds_read_b128 v[20:23], v8 offset:{FL}\ns_waitcnt lgkmcnt(0)\nv_and_b32 v20, v20, v21\nv_and_b32 v22, v22, v23\nv_and_b32 v20, v20, v22\nv_readfirstlane_b32 s31, v20")
    a("s_cmp_eq_u32 s31, 1\ns_cbranch_scc1 L_fl_ok\ns_sleep 1\ns_branch L_fl\nL_fl_ok:")
    stamp(1)
    red4(12, RED_Q, 20); a("s_waitcnt lgkmcnt(0)"); sum4(12, 20)
    if LOC:
        a("s_getreg_b32 s65, hwreg(HW_REG_XCC_ID)\ns_and_b32 s65, s65, 15")
        if fakex: a("s_mov_b32 s65, s29")
        a("s_lshl_b32 s65, s65, 28\ns_and_b32 s31, s30, 0xfffffff\ns_or_b32 s65, s65, s31\nv_mov_b32 v13, s65\nv_mov_b32 v15, s65")
        a("buffer_store_dwordx4 v[12:15], v6, s[56:59], s40 offen")
        if WDW == 2: wdload()
        up = "buffer_store_dwordx4 v[12:15], v6, s[56:59], s40 offen sc1"
        poll_rows("L_p0", [(f"buffer_load_dwordx4 v[{64+4*jj}:{67+4*jj}], v6, s[56:59], s{41+jj//4} offen offset:{1024*(jj%4)} {ql.replace('+', ' ')}", 65 + 4 * jj, 67 + 4 * jj) for jj in range(8)], 4,
                  tagreg="s65", mask="0xfffffff", hook=up)
        a("v_xor_b32 v250, s65, v65")
        for jj in range(1, 8): a(f"v_bitop3_b32 v250, v{65+4*jj}, s65, v250 bitop3:0xbe")
        a("v_cmp_ne_u32 vcc, 0, v250\ns_cmp_eq_u64 vcc, 0\ns_cselect_b32 s11, 1, 0\ns_cbranch_scc1 L_qloc")
        a(up)
        a("L_qloc:\ns_nop 1\nv_mov_b32 v13, s30\nv_mov_b32 v15, s30")
    else:
        if noq != 1: a("buffer_store_dwordx4 v[12:15], v6, s[56:59], s40 offen " + qfl.replace("+", " "))
        if qdelay: a(f"s_sleep {qdelay}")
        if WDW == 2: wdload()
        if noq:
            pass
        elif maskpoll:
            poll_rows("L_p0", [(f"buffer_load_dwordx4 v[{64+4*jj}:{67+4*jj}], v6, s[56:59], s{41+jj//4} offen offset:{1024*(jj%4)} {ql.replace('+', ' ')}", 65 + 4 * jj, 67 + 4 * jj) for jj in range(8)], 4)
        else:
            poll("L_p0", [f"buffer_load_dwordx4 v[{128+4*jj}:{131+4*jj}], v6, s[56:59], s{41+jj//4} offen offset:{1024*(jj%4)} sc1" for jj in range(8)],
                 [129 + 2 * i for i in range(16)])
    stamp(2)
    def sum8(base, stride):
        for o in (0, 2):
            for (x, y) in ((0, 1), (2, 3), (4, 5), (6, 7), (0, 2), (4, 6), (0, 4)):
                a(f"v_add_f32 v{base+x*stride+o}, v{base+x*stride+o}, v{base+y*stride+o}")
    sum8(64, 4)
    a(f"v_cvt_pk_bf16_f32 v64, v64, v66\nv_lshlrev_b32 v20, 2, v1\nds_write_b32 v20, v64 offset:{QL}")
    if NB2F:
        a(f"v_mov_b32 v20, 1\nds_write_b32 v8, v20 offset:{QF}")
        if WDW == 3: wdload()
        a.fence()
        a(f"L_fg:\nds_read_b128 v[20:23], v8 offset:{FG}\ns_waitcnt lgkmcnt(0)\nv_and_b32 v20, v20, v21\nv_and_b32 v22, v22, v23\nv_and_b32 v20, v20, v22\nv_readfirstlane_b32 s31, v20")
        a("s_cmp_eq_u32 s31, 1\ns_cbranch_scc1 L_fg_ok\ns_sleep 2\ns_branch L_fg\nL_fg_ok:")
    else:
        a("s_waitcnt lgkmcnt(0)\ns_barrier")
    def tag4(v):
        for i in range(4): a(f"v_bfi_b32 v{v+i}, s61, v13, v{v+i}")
    a("s_mov_b32 s61, 0xff")
    red4(0, RED_G, 20); red4(0, RED_U, 28); a("s_waitcnt lgkmcnt(0)")
    for d, t in ((16, 20), (18, 28)):
        a(f"v_add_f32 v{d}, v{t}, v{t+2}\nv_add_f32 v{d+1}, v{t+1}, v{t+3}\nv_add_f32 v{t+4}, v{t+4}, v{t+6}\nv_add_f32 v{t+5}, v{t+5}, v{t+7}")
        a(f"v_add_f32 v{d}, v{d}, v{t+4}\nv_add_f32 v{d+1}, v{d+1}, v{t+5}")
    tag4(16)
    a("s_lshl_b32 s43, s2, 10\ns_add_u32 s40, s43, %d\ns_mov_b32 s62, -1\ns_mov_b32 s63, 0xffffff" % H0GU)
    a("s_mov_b64 exec, s[62:63]")
    if LOC:
        a("s_cmp_eq_u32 s11, 1\ns_cbranch_scc1 L_gs_l\nbuffer_store_dwordx4 v[16:19], v6, s[56:59], s40 offen sc1\ns_branch L_gs_e\nL_gs_l:\nbuffer_store_dwordx4 v[16:19], v6, s[56:59], s40 offen\nL_gs_e:")
    else:
        a("buffer_store_dwordx4 v[16:19], v6, s[56:59], s40 offen " + gufl.replace("+", " "))
    a("s_mov_b64 exec, -1")
    def ffn():
        if WDW == 0: wdload()
        a("s_lshl_b32 s31, s28, 13\ns_add_u32 s18, s31, %d\ns_add_u32 s19, s18, 4096" % H0GU)
        a("s_mov_b64 exec, s[62:63]")
        pollc("L_pg", [f"buffer_load_dwordx4 v[{64+4*n}:{67+4*n}], v6, s[56:59], s{18+n//4} offen offset:{1024*(n%4)} {gul.replace('+', ' ')}" for n in range(8)],
              list(range(64, 96)), sleep=50)
        stamp(3)
        for o in range(4):
            for (x, y) in ((0, 1), (2, 3), (4, 5), (6, 7), (0, 2), (4, 6), (0, 4)):
                a(f"v_add_f32 v{64+4*x+o}, v{64+4*x+o}, v{64+4*y+o}")
        for v in (64, 65, 66, 67): rbf(v)
        a("s_mov_b32 s16, 0x3d372713\ns_mov_b32 s17, 0xc0135761")
        for g, u in ((64, 66), (65, 67)):
            a(f"v_mul_f32 v20, v{g}, v{g}\nv_fma_f32 v20, v20, s16, 1.0\nv_mul_f32 v20, v20, v{g}\nv_mul_f32 v20, s17, v20\nv_exp_f32 v20, v20\nv_add_f32 v20, 1.0, v20\nv_rcp_f32 v20, v20\nv_mul_f32 v{g}, v{g}, v20")
            rbf(g)
            a(f"v_mul_f32 v{g}, v{g}, v{u}")
        a(f"v_cvt_pk_bf16_f32 v20, v64, v64\nv_cvt_pk_bf16_f32 v21, v65, v65\nds_write_b64 v9, v[20:21] offset:{HL}")
        a(f"v_lshl_add_u32 v20, v2, 2, v7\nds_read_b32 v56, v20 offset:{HL}\nds_read_b32 v57, v20 offset:{HL+256}\ns_waitcnt lgkmcnt(0)")
        buildA(0, 56, 0)
        for i in range(28):
            if i < 27: buildA((i + 1) & 1, 56 + (i + 1) // 16, (i + 1) % 16)
            mfma(52, i & 1, 128 + 4 * i, i == 0)
        tag4(52)
        if FW == 2:
            a("v_lshlrev_b32 v39, 5, v3\nv_lshl_add_u32 v39, v2, 4, v39\ns_lshl_b32 s31, s2, 9\ns_add_u32 s42, s31, %d" % H2F)
            a("s_mov_b64 exec, s[78:79]\nbuffer_store_dwordx4 v[52:55], v39, s[56:59], s42 offen sc1 nt\ns_mov_b64 exec, -1")
    if not GF: ffn()
    def bump(r, first):
        if not GA: return f"s_add_u32 s{r}, s{r}, {GP}"
        return f"s_cmp_eq_u32 s{r}, {first}\ns_cselect_b32 s9, {GA}, {GP}\ns_add_u32 s{r}, s{r}, s9"
    sh = GP.bit_length() - 1
    assert GP == 1 << sh
    a("v_lshlrev_b32 v50, 7, v1")
    a(f"s_mov_b32 s44, {G0}\ns_mov_b32 s45, {G0+GG}\ns_mov_b32 s46, {G0+GR}\ns_mov_b32 s47, 0\ns_mov_b32 s51, 0\ns_mov_b32 s52, 0\ns_mov_b32 s53, 0\ns_mov_b32 s54, 0")
    if NREF == 64: a("s_xor_b32 s55, s28, s29\ns_and_b32 s55, s55, 3")
    if NREF == 32: a("s_xor_b32 s55, s28, s29\ns_and_b32 s55, s55, 7")
    if NREF == 16: a("s_lshr_b32 s55, s2, 4\ns_xor_b32 s55, s55, s2\ns_and_b32 s55, s55, 15")
    if NREF == 8: a("s_lshr_b32 s55, s2, 5\ns_mul_i32 s55, s55, 5\ns_xor_b32 s55, s55, s2\ns_and_b32 s55, s55, 31")
    rsh = {64: 2, 32: 3, 16: 4, 8: 5}[NREF]
    if NREF < 64: a(f"v_and_b32 v50, {NREF-1}, v1\nv_lshlrev_b32 v50, 7, v50")
    a(f"s_lshr_b32 s48, s2, {rsh}")
    a("s_lshl_b32 s48, s48, 7\ns_add_u32 s48, s48, %d\ns_mov_b32 s49, %d" % (PHI, PHI))
    a("s_mov_b32 s50, 0" if NREP == 1 else "s_lshr_b32 s50, s28, 2" if perm == 1 else "s_mov_b32 s50, s29")
    a("s_lshl_b32 s50, s50, 7\ns_add_u32 s50, s50, %d\ns_mov_b32 s60, %d" % (REF, REF))
    a("s_cmp_eq_u32 s2, 0\ns_cselect_b32 s45, s45, -1")
    a("s_mov_b32 s4, 0\ns_mov_b32 s5, 0\ns_mov_b32 s6, 0\ns_mov_b32 s7, 0\ns_mov_b32 s10, %d" % GF)
    if noex: a("s_mov_b32 s44, -1\ns_mov_b32 s45, -1\ns_mov_b32 s46, -1")
    a.fence()
    a("L_ctl:")
    a(f"ds_read_b128 v[20:23], v8 offset:{PH}\nds_read_b128 v[24:27], v8 offset:{PH+16}\ns_waitcnt lgkmcnt(0)")
    a("v_min_u32 v21, v21, v23\nv_min3_u32 v21, v21, v25, v27\nv_readfirstlane_b32 s31, v21")
    if GF: a(f"s_cmp_eq_u32 s10, -1\ns_cbranch_scc0 L_ctl_c")
    a(f"s_cmp_ge_u32 s31, {GEX}\ns_cbranch_scc1 L_ctl_end\nL_ctl_c:\ns_cmp_eq_u32 s31, s47\ns_cbranch_scc1 L_ctl_sleep\ns_mov_b32 s47, s31")
    a("v_sub_u32 v22, v22, v20\nv_sub_u32 v24, v24, v20\nv_sub_u32 v26, v26, v20\nv_add3_u32 v22, v22, v24, v26\nv_ashrrev_i32 v22, 2, v22\nv_add_u32 v12, v20, v22")
    if JD:
        a(f"v_readfirstlane_b32 s8, v12\ns_sub_u32 s9, s8, s5\ns_and_b32 s9, s9, s54\ns_mov_b32 s5, s4\ns_mov_b32 s4, s8")
        a(f"s_cmp_gt_i32 s9, {JD}\ns_cbranch_scc0 L_ctl_nj\ns_add_u32 s51, s51, s9\ns_add_u32 s6, s6, s9\ns_mov_b32 s5, s8\nL_ctl_nj:")
    a(f"s_cmp_lt_u32 s47, s44\ns_cbranch_scc1 L_ctl_g\ns_mov_b32 s6, 0\n{bump(44, G0)}\ns_cmp_lg_u32 s55, 0\ns_cbranch_scc1 L_ctl_g")
    a("s_mov_b64 exec, 1\nbuffer_store_dwordx2 v[12:13], v8, s[56:59], s48 offen " + exs.replace("+", " ") + "\ns_mov_b64 exec, -1\ns_add_u32 s48, s48, 8192")
    a("L_ctl_g:")
    a("s_cmp_lt_u32 s47, s45\ns_cbranch_scc1 L_ctl_rd")
    a("buffer_load_dwordx2 v[20:21], v50, s[56:59], s49 offen " + exl.replace("+", " ") + "\ns_waitcnt vmcnt(0)")
    a("v_cmp_ne_u32 vcc, s30, v21\ns_cmp_lg_u64 vcc, 0\ns_cbranch_scc1 L_ctl_rd")
    a("v_sub_u32 v20, v20, v12")
    if RB:
        a("v_mov_b32 v22, v20")
        wave_reduce(22, 21, "v_max_i32")
    wave_reduce(20, 21, "v_add_u32")
    a("v_ashrrev_i32 v20, 6, v20")
    if RB: a(f"s_cmp_gt_u32 s45, {G0 + GG + GA}\ns_cselect_b32 s9, {RD}, 0x100000\nv_sub_u32 v22, v22, v20\nv_subrev_u32 v22, s9, v22\nv_max_i32 v22, 0, v22\nv_ashrrev_i32 v22, {RB}, v22\nv_add_u32 v20, v20, v22")
    a("v_add_u32 v14, v12, v20")
    a(("s_mov_b64 exec, 0xff" if NREP == 8 else "s_mov_b64 exec, 1") + "\nbuffer_store_dwordx2 v[14:15], v50, s[56:59], s60 offen " + exs.replace("+", " ") + "\ns_mov_b64 exec, -1")
    a(f"{bump(45, G0 + GG)}\ns_add_u32 s49, s49, 8192\ns_add_u32 s60, s60, 1024")
    a.fence()
    a("L_ctl_rd:")
    a("s_cmp_lt_u32 s47, s46\ns_cbranch_scc1 L_ctl_up")
    if RP == 1:
        a("s_mov_b64 exec, 1\ns_cmp_eq_u32 s47, s46\ns_cbranch_scc1 L_ctl_r1\nbuffer_load_dwordx2 v[28:29], v8, s[56:59], s50 offen sc1\ns_branch L_ctl_r2")
        a("L_ctl_r1:\nbuffer_load_dwordx2 v[28:29], v8, s[56:59], s50 offen\nL_ctl_r2:")
        a("s_waitcnt vmcnt(0)\nv_readfirstlane_b32 s31, v29\nv_readfirstlane_b32 s64, v28\ns_mov_b64 exec, -1")
    elif RP == 2:
        a("s_cmp_eq_u32 s47, s46\ns_cbranch_scc1 L_ctl_r1")
        a("s_mov_b64 exec, 1\nbuffer_load_dwordx2 v[28:29], v8, s[56:59], s50 offen sc1\ns_waitcnt vmcnt(0)\nv_readfirstlane_b32 s65, v29\nv_readfirstlane_b32 s64, v28\ns_mov_b64 exec, -1\ns_nop 3\ns_branch L_ctl_r2")
        a("L_ctl_r1:\ns_load_dwordx2 s[64:65], s[26:27], s50\ns_waitcnt lgkmcnt(0)\nL_ctl_r2:\ns_mov_b32 s31, s65")
    else:
        a("s_mov_b64 exec, 1\nbuffer_load_dwordx2 v[28:29], v8, s[56:59], s50 offen " + exl.replace("+", " ") + "\ns_waitcnt vmcnt(0)\nv_readfirstlane_b32 s31, v29\nv_readfirstlane_b32 s64, v28\ns_mov_b64 exec, -1")
    a("s_cmp_lg_u32 s31, s30\ns_cbranch_scc1 L_ctl_up")
    if FB: a(f"s_andn2_b32 s9, {FB}, s54\ns_sub_u32 s64, s64, s9")
    a("s_add_u32 s64, s64, s6\ns_sub_u32 s52, s64, s51\ns_and_b32 s52, s52, s54")
    if MS: a("s_mov_b32 s9, s52\ns_min_i32 s52, s52, s7\ns_mov_b32 s7, s9")
    if MS == 2: a("s_cmp_lt_i32 s52, 40\ns_cselect_b32 s52, 0, s52")
    if not slope: a("s_mov_b32 s52, 0")
    a(f"s_mov_b32 s51, s64\ns_sub_u32 s53, s46, {GR + 1}\ns_mov_b32 s54, -1\n{bump(46, G0 + GR)}\ns_add_u32 s50, s50, 1024")
    a("L_ctl_up:")
    a(f"s_sub_u32 s31, s47, s53\ns_mul_i32 s31, s31, s52\ns_ashr_i32 s31, s31, {sh}\ns_add_u32 s31, s31, s51")
    a(f"v_mov_b32 v30, s31\nv_mov_b32 v31, s54\nds_write_b64 v8, v[30:31] offset:{RF}")
    if TL & 1:
        a("s_cmp_lt_u32 s47, s82\ns_cbranch_scc1 L_ctl_nt\ns_mov_b32 s82, -1\nv_lshlrev_b32 v20, 21, v1\ns_mov_b64 exec, 0xff\nglobal_load_dword v21, v20, s[72:73] nt\ns_mov_b64 exec, -1\ns_waitcnt vmcnt(0)\nL_ctl_nt:")
    if GF:
        a("s_cmp_lt_u32 s47, s10\ns_cbranch_scc1 L_ctl_sleep\ns_mov_b32 s10, -1")
        ffn()
        a.fence()
    a(f"L_ctl_sleep:\ns_sleep {CSL}\ns_branch L_ctl")
    a("L_ctl_end:")
    if PRIO: a(f"s_setprio {PRIO}")
    if TL & 2:
        a("s_mov_b64 exec, 1\nglobal_load_dword v64, v8, s[80:81] nt\nbuffer_load_dword v65, v8, s[68:71], 0 offen nt\ns_mov_b64 exec, -1")
    a(f"ds_read_b128 v[44:47], v8 offset:{MX}\ns_waitcnt lgkmcnt(0)\nv_max_f32 v20, v44, v45\nv_max3_f32 v16, v20, v46, v47\ns_mov_b32 s31, {LOG2E}")
    for w in range(4): a(f"v_sub_f32 v{44+w}, v{44+w}, v16\nv_mul_f32 v{44+w}, s31, v{44+w}\nv_exp_f32 v{44+w}, v{44+w}")
    a("s_add_u32 s40, s43, %d\ns_lshl_b32 s31, s2, 9\ns_add_u32 s41, s31, %d\ns_add_u32 s42, s31, %d" % (H1, H2A, H2F))
    a("v_lshlrev_b32 v39, 5, v3\nv_lshl_add_u32 v39, v2, 4, v39")
    a("v_cmp_eq_u32 vcc, 32, v1\nv_mov_b32 v20, 2048\nv_cndmask_b32 v48, v6, v20, vcc\nv_cndmask_b32 v49, 0, v16, vcc\nv_mov_b32 v20, 0xff\nv_cndmask_b32 v51, v20, -1, vcc")
    a("s_mov_b32 s63, 1")
    a("v_lshrrev_b32 v36, 3, v1\nv_lshlrev_b32 v36, 12, v36\nv_lshl_add_u32 v36, v37, 4, v36")
    a("s_lshl_b32 s31, s29, 9\ns_lshl_b32 s44, s28, 7\ns_add_u32 s44, s44, s31\ns_add_u32 s44, s44, %d" % H2A)
    for i in range(1, 8): a(f"s_add_u32 s{44+i}, s44, {32768*i}")
    assert H2F == H2A + 4 * 32768
    a("v_lshlrev_b32 v40, 16, v10\nv_and_b32 v41, 0xffff0000, v10\nv_lshlrev_b32 v42, 16, v11\nv_and_b32 v43, 0xffff0000, v11")
    if LOC and PD:
        a("s_cmp_lg_u32 s11, 1\ns_cbranch_scc1 L_npd\nv_not_b32 v60, v13\nv_not_b32 v61, v13\nv_not_b32 v62, v13\nv_not_b32 v63, v13")
        a("s_mov_b32 s64, -1\ns_mov_b32 s65, 0xff\ns_mov_b64 exec, s[64:65]\nbuffer_store_dwordx4 v[60:63], v6, s[56:59], s40 offen\ns_mov_b64 exec, -1\nL_npd:")
    if PT:
        pf = "sc1" if PT == 1 else ""
        a(f"s_mov_b64 exec, s[62:63]\nbuffer_load_dwordx4 v[64:67], v6, s[56:59], s40 offen {pf}\ns_mov_b64 exec, s[78:79]\nbuffer_load_dwordx4 v[68:71], v6, s[56:59], s41 offen {pf}")
        if FW != 2: a(f"buffer_load_dwordx4 v[72:75], v6, s[56:59], s42 offen {pf}")
        a("s_mov_b64 exec, -1")
    if warm:
        a("s_getpc_b64 s[64:65]\nL_pc:\ns_sub_u32 s64, s64, L_pc-L_tail0\ns_subb_u32 s65, s65, 0")
        for i in range(warm): a(f"global_load_dwordx4 v[64:67], v6, s[64:65]\ns_add_u32 s64, s64, 1024\ns_addc_u32 s65, s65, 0")
        a("s_waitcnt vmcnt(0)")
    def xred(b, skip=False):
        if not skip:
            for i in range(4): a(f"v_add_f32 v{b+i}, v{b+i}, v{b+4+i}\nv_add_f32 v{b+8+i}, v{b+8+i}, v{b+12+i}")
        for i in range(4): a(f"v_add_f32 v{b+i}, v{b+i}, v{b+8+i}")
        for i in range(4): a(f"v_add_f32_dpp v{b+i}, v{b+i}, v{b+i} row_ror:8 row_mask:0xf bank_mask:0xf")
        for op in ("v_permlane16_swap_b32", "v_permlane32_swap_b32"):
            for i in range(4): a(f"v_mov_b32 v{b+4+i}, v{b+i}")
            for i in range(4): a(f"{op} v{b+i}, v{b+4+i}")
            for i in range(4): a(f"v_add_f32 v{b+i}, v{b+i}, v{b+4+i}")
        for i in range(4): rbf(b + i)
    def ffn_gather():
        pollc("L_pf", [f"buffer_load_dwordx4 v[{144+4*i}:{147+4*i}], v36, s[56:59], s{48+i} offen sc1" for i in range(4)], list(range(144, 160)), sleep=sl2)
        xred(144)
    if FW == 2:
        a("s_cmp_ge_u32 s28, 4\ns_cbranch_scc1 L_nf")
        ffn_gather()
        a.fence()
        a("L_nf:")
    if LP:
        a(f"s_add_u32 s12, s41, {LOFF}\ns_add_u32 s13, s42, {LOFF}\nv_add_u32 v59, {LOFF}, v36")
        a("v_not_b32 v60, v13\nv_not_b32 v61, v13\nv_not_b32 v62, v13\nv_not_b32 v63, v13")
        a("s_mov_b64 exec, s[78:79]\nbuffer_store_dwordx4 v[52:55], v39, s[56:59], s13 offen\nbuffer_store_dwordx4 v[60:63], v6, s[56:59], s12 offen\ns_mov_b64 exec, -1")
        a("s_mov_b32 s14, 0")
        a("s_barrier")
        stamp(4)
        a("s_mov_b64 exec, s[62:63]")
        for w in range(4): a(f"ds_read_b128 v[{20+4*w}:{23+4*w}], v48 offset:{RED_O+512*w}")
        a("s_waitcnt lgkmcnt(0)")
        a("v_mul_f32 v16, v20, v44\nv_fma_f32 v17, v21, v44, v49\nv_mul_f32 v18, v22, v44\nv_mul_f32 v19, v23, v44")
        for w in range(1, 4):
            for i in range(4): a(f"v_fmac_f32 v{16+i}, v{20+4*w+i}, v{44+w}")
        a("v_bfi_b32 v16, s61, v13, v16\nv_bfi_b32 v17, s61, v13, v17\nv_bfi_b32 v18, v51, v13, v18\nv_bfi_b32 v19, v51, v13, v19")
        a("buffer_store_dwordx4 v[16:19], v6, s[56:59], s40 offen sc1")
        a("s_cmp_ge_u32 s28, 4\ns_cbranch_scc1 L_b5")
        a("s_mov_b64 exec, s[78:79]\nbuffer_store_dwordx4 v[52:55], v39, s[56:59], s42 offen sc1\ns_mov_b64 exec, -1")
        pollc("L_lf", [f"buffer_load_dwordx4 v[{144+4*i}:{147+4*i}], v59, s[56:59], s{48+i} offen sc1" for i in range(4)], list(range(144, 160)), sleep=0, tries=1, fail="L_b5")
        xred(144)
        a("s_mov_b32 s14, 1")
        a.fence()
        a("L_b5:\ns_mov_b64 exec, s[78:79]")
        a("s_barrier")
        stamp(5)
        for w in range(4): a(f"ds_read_b128 v[{20+4*w}:{23+4*w}], v6 offset:{RED_A+512*w}")
        a("s_waitcnt lgkmcnt(0)")
        for i in range(4): a(f"v_add_f32 v{20+i}, v{20+i}, v{24+i}\nv_add_f32 v{28+i}, v{28+i}, v{32+i}")
        for i in range(4): a(f"v_add_f32 v{60+i}, v{20+i}, v{28+i}")
        tag4(60)
        a("buffer_store_dwordx4 v[60:63], v6, s[56:59], s12 offen")
        a("s_cmp_lt_u32 s28, 4\ns_cbranch_scc1 L_cons")
        a("buffer_store_dwordx4 v[52:55], v39, s[56:59], s42 offen sc1")
        if diag: stamp(6); a("s_branch L_noep")
        else: a("s_branch L_noep" if spin else "s_endpgm")
        a("L_cons:\ns_mov_b64 exec, -1")
        a("s_cmp_eq_u32 s14, 0\ns_cbranch_scc1 L_fbf")
        pollc("L_la", [f"buffer_load_dwordx4 v[{128+4*i}:{131+4*i}], v59, s[56:59], s{44+i} offen sc1" for i in range(4)], list(range(128, 144)), sleep=lsl, tries=LN, fail="L_fba")
        a("s_branch L_fin")
        a("L_fbf:")
        ffn_gather()
        a.fence()
        a("L_fba:")
        pollc("L_p2", [f"buffer_load_dwordx4 v[{128+4*i}:{131+4*i}], v36, s[56:59], s{44+i} offen sc1" for i in range(4)], list(range(128, 144)), sleep=sl2)
        a("L_fin:")
    else:
        tf = tfl.replace("+", " ")
        a("s_barrier")
        stamp(4)
        a("s_mov_b64 exec, s[62:63]")
        for w in range(4): a(f"ds_read_b128 v[{20+4*w}:{23+4*w}], v48 offset:{RED_O+512*w}")
        a("s_waitcnt lgkmcnt(0)")
        a("v_mul_f32 v16, v20, v44\nv_fma_f32 v17, v21, v44, v49\nv_mul_f32 v18, v22, v44\nv_mul_f32 v19, v23, v44")
        for w in range(1, 4):
            for i in range(4): a(f"v_fmac_f32 v{16+i}, v{20+4*w+i}, v{44+w}")
        a("v_bfi_b32 v16, s61, v13, v16\nv_bfi_b32 v17, s61, v13, v17\nv_bfi_b32 v18, v51, v13, v18\nv_bfi_b32 v19, v51, v13, v19")
        if LOC:
            a("s_cmp_eq_u32 s11, 1\ns_cbranch_scc1 L_hs_l\nbuffer_store_dwordx4 v[16:19], v6, s[56:59], s40 offen sc1\ns_branch L_hs_e\nL_hs_l:\nbuffer_store_dwordx4 v[16:19], v6, s[56:59], s40 offen\nL_hs_e:")
        else:
            a("buffer_store_dwordx4 v[16:19], v6, s[56:59], s40 offen " + tf)
        a("s_mov_b64 exec, s[78:79]")
        if FW == 0: a(f"buffer_store_dwordx4 v[52:55], v39, s[56:59], s42 offen {tf}")
        a("s_barrier")
        stamp(5)
        for w in range(4): a(f"ds_read_b128 v[{20+4*w}:{23+4*w}], v6 offset:{RED_A+512*w}")
        if FW == 1: a(f"buffer_store_dwordx4 v[52:55], v39, s[56:59], s42 offen {tf}")
        a("s_waitcnt lgkmcnt(0)")
        for i in range(4): a(f"v_add_f32 v{20+i}, v{20+i}, v{24+i}\nv_add_f32 v{28+i}, v{28+i}, v{32+i}")
        for i in range(4): a(f"v_add_f32 v{60+i}, v{20+i}, v{28+i}")
        tag4(60)
        a(f"buffer_store_dwordx4 v[60:63], v6, s[56:59], s41 offen {tf}\ns_mov_b64 exec, -1")
        if diag:
            a("s_cmp_lt_u32 s28, 4\ns_cbranch_scc1 L_cons"); stamp(6); a("s_branch L_noep\nL_cons:")
        else:
            a("s_cmp_ge_u32 s28, 4\ns_cbranch_scc1 " + ("L_noep" if spin else "L_exit"))
        if not HP:
            if FW != 2: ffn_gather()
            pollc("L_p2", [f"buffer_load_dwordx4 v[{128+4*i}:{131+4*i}], v36, s[56:59], s{44+i} offen sc1" for i in range(4)], list(range(128, 144)), sleep=sl2)
    if HP:
        sets = [160, 176, 192][:HP]
        def ld(b):
            for i in range(4): a(f"buffer_load_dwordx4 v[{b+4*i}:{b+3+4*i}], v36, s[56:59], s{44+i} offen sc1")
        def chk(b):
            a(f"v_xor_b32 v250, s30, v{b}\nv_xor_b32 v251, s30, v{b+8}")
            for r in range(1, 8): a(f"v_bitop3_b32 v250, v{b+r}, s30, v250 bitop3:0xbe\nv_bitop3_b32 v251, v{b+8+r}, s30, v251 bitop3:0xbe")
            a("v_or_b32 v250, v250, v251\nv_and_b32 v250, 0xff, v250\nv_cmp_ne_u32 vcc, 0, v250\ns_cmp_eq_u64 vcc, 0")
        for i in range(4): a(f"buffer_load_dwordx4 v[{144+4*i}:{147+4*i}], v36, s[56:59], s{48+i} offen sc1")
        for b in sets[:-1]:
            ld(b); a(f"s_sleep {gap}")
        ld(sets[-1])
        a(f"s_waitcnt vmcnt({4*HP})")
        chk(144)
        a("s_cbranch_scc1 L_fok")
        pollc("L_pf", [f"buffer_load_dwordx4 v[{144+4*i}:{147+4*i}], v36, s[56:59], s{48+i} offen sc1" for i in range(4)], list(range(144, 160)), sleep=sl2)
        a("L_fok:")
        xred(144)
        a("s_mov_b32 s77, 0x100000")
        a.fence()
        a("L_hp:")
        for n, b in enumerate(sets):
            a(f"s_waitcnt vmcnt({4*(HP-1)})")
            chk(b)
            a(f"s_cbranch_scc1 L_hp_{n}")
            ld(b)
        a("s_sub_u32 s77, s77, 1\ns_cmp_lg_u32 s77, 0\ns_cbranch_scc1 L_hp")
        for n, b in enumerate(sets):
            a(f"L_hp_{n}:")
            for i in range(4): a(f"v_add_f32 v{128+i}, v{b+i}, v{b+4+i}\nv_add_f32 v{136+i}, v{b+8+i}, v{b+12+i}")
            if n < HP - 1: a("s_branch L_hp_e")
        a("L_hp_e:")
        stamp(6)
        xred(128, skip=True)
    else:
        stamp(6)
        xred(128)
    for i in range(4): a(f"v_add_f32 v{128+i}, v{128+i}, v{40+i}")
    for i in range(4): rbf(128 + i)
    for i in range(4): a(f"v_add_f32 v{128+i}, v{128+i}, v{144+i}")
    a("v_cvt_pk_bf16_f32 v20, v128, v129\nv_cvt_pk_bf16_f32 v21, v130, v131")
    a("s_mov_b64 exec, 0xff\nbuffer_store_dwordx2 v[20:21], v38, s[68:71], s75 offen\ns_mov_b64 exec, 1")
    a("s_cmp_lg_u32 s2, 0\ns_cbranch_scc1 L_noep\nbuffer_store_dword v13, v8, s[56:59], 0 offen" + ("" if epl else " sc1") + "\nL_noep:")
    if spin:
        if spinwg >= 0: a(f"s_cmp_lg_u32 s2, {spinwg}\ns_cbranch_scc1 L_exit")
        a(f"L_spin:\ns_memrealtime s[64:65]\ns_waitcnt lgkmcnt(0)\ns_sub_u32 s64, s64, s66\ns_cmp_lt_u32 s64, {spin}\ns_cbranch_scc1 L_spin")
    if diag:
        a("s_waitcnt vmcnt(0)")
        stamp(7)
        a("s_mov_b32 s31, 64")
        a("L_stamps:")
        a("s_waitcnt lgkmcnt(0)\ns_mov_b64 exec, 1")
        if dbgout:
            a("v_mov_b32 v8, 0\ns_cmp_lg_u32 s31, 0\ns_cbranch_scc1 L_dbgc")
            for n, k in enumerate((0, 2, 3, 4, 5)):
                a(f"v_mov_b32 v12, s{84+2*k}\nv_not_b32 v13, v12\nglobal_atomic_umax v8, v12, s[24:25] offset:{8*n}\nglobal_atomic_umax v8, v13, s[24:25] offset:{8*n+4}")
            a("s_endpgm\nL_dbgc:")
            for n, k in enumerate((2, 6, 7)):
                a(f"v_mov_b32 v12, s{84+2*k}\nv_not_b32 v13, v12\nglobal_atomic_umax v8, v12, s[24:25] offset:{40+8*n}\nglobal_atomic_umax v8, v13, s[24:25] offset:{44+8*n}")
        else:
            a("s_add_u32 s26, s26, 0x8000000\ns_addc_u32 s27, s27, 0\ns_lshl_b32 s74, s2, 7\ns_add_u32 s74, s74, s31\nv_mov_b32 v8, s74")
            for q in range(4):
                for e in range(4): a(f"v_mov_b32 v{12+e}, s{84+4*q+e}")
                a(f"global_store_dwordx4 v8, v[12:15], s[26:27] offset:{16*q}")
                a("s_nop 2")
    a("L_exit:\ns_endpgm")

    out = HDR
    out += "; Override launch geometry by editing the next line (default: block=256,\n"
    out += f"; @launch grid=(256,1,1) block=(320,1,1) lds={LDS_BYTES}\n"
    out += DOC
    out += f'.amdgcn_target "amdgcn-amd-amdhsa--gfx950"\n.text\n.globl {NAME}\n.p2align 8\n.type {NAME},@function\n{NAME}:\n'
    out += a.text()
    if E2: out += f"; unreachable filler (s_endpgm words): the L2 prefetch of the code at entry reads up to 41 KiB past the entry point\n.fill (41984 - (. - {NAME})) / 4, 4, 0xbf810000\n"
    out += f""".section .rodata,"a"
.p2align 6
.amdhsa_kernel {NAME}
  .amdhsa_next_free_vgpr 256
  .amdhsa_next_free_sgpr 102
  .amdhsa_accum_offset 256
  .amdhsa_group_segment_fixed_size 0
  .amdhsa_kernarg_size 96
  .amdhsa_user_sgpr_count 2
  .amdhsa_user_sgpr_kernarg_segment_ptr 1
  .amdhsa_system_sgpr_workgroup_id_x 1
  .amdhsa_float_denorm_mode_32 3
.end_amdhsa_kernel
"""
    return out, LDS_BYTES

if __name__ == "__main__":
    kw = {}
    for x in sys.argv[2:]:
        k, v = x.split("=")
        try: v = int(v)
        except ValueError: pass
        kw[k] = v
    s, lds = gen(**kw)
    open(sys.argv[1], "w").write(s)
    print("lds", lds)
```
